```python
import torch

def _softmax(x, axis=-1):
    return torch.softmax(x, dim=axis)
def _gelu(x):
    return torch.nn.functional.gelu(x, approximate="tanh")
def _silu(x):
    return torch.nn.functional.silu(x)
def _sigmoid(x):
    return torch.sigmoid(x)
def _layernorm(x, axis=-1, eps=1e-5):
    m = x.mean(dim=axis, keepdim=True)
    v = x.var(dim=axis, keepdim=True, unbiased=False)
    return (x - m) / torch.sqrt(v + eps)
def _scatter_add(tgt, idx, src, axis=0):
    return tgt.clone().index_add_(axis, idx, src)
def _segment_sum(src, seg, n):
    out = torch.zeros((n,) + src.shape[1:], dtype=src.dtype)
    return out.index_add_(0, seg, src)
def _pad(x, pw):
    flat = tuple(v for pair in reversed(pw) for v in pair)
    return torch.nn.functional.pad(x, flat)

kernel_name = 'concat_heads__ssm_conv_s4d__grouped_kv_mqa__prompt'

def setup_inputs():

    _w = (lambda a: (lambda t: t.to(torch.bfloat16) if t.is_floating_point() else t)(torch.as_tensor(a)))
    def _A_setup():
        Bsz, L, D, N = 1, 2048, 448, 256
        return {
            "u": _w((lambda *s: torch.randn(*s, dtype=torch.bfloat16) * 0.05)(Bsz, L, D)),
            "log_A_real": _w((lambda *s: torch.randn(*s, dtype=torch.bfloat16) * 6.4)(D, N) * 0.5),
            "A_imag": _w((lambda *s: torch.randn(*s, dtype=torch.bfloat16) * 0.05)(D, N) * 3.14),
            "C_real": _w((lambda *s: torch.randn(*s, dtype=torch.bfloat16) * 0.4)(D, N) / N ** 0.5),
            "C_imag": _w((lambda *s: torch.randn(*s, dtype=torch.bfloat16) * 0.4)(D, N) / N ** 0.5),
            "log_dt": _w((lambda *s: torch.randn(*s, dtype=torch.bfloat16) * 0.05)(D) * 0.5 - 4.0),
            "D_skip": _w((lambda *s: torch.randn(*s, dtype=torch.bfloat16) * 0.05)(D)),
        }
    _A_in = _A_setup()

    def _B_setup():
        B, S, D, H = 1, 2048, 448, 16
        Dh = D // H
        return {
            "x": _w((lambda *s: torch.randn(*s, dtype=torch.bfloat16) * 0.05)(B, S, D)),
            "wq": _w((lambda *s: torch.randn(*s, dtype=torch.bfloat16) * 1.6)(D, H * Dh)),
            "wk": _w((lambda *s: torch.randn(*s, dtype=torch.bfloat16) * 1.6)(D, Dh)),
            "wv": _w((lambda *s: torch.randn(*s, dtype=torch.bfloat16) * 0.05)(D, Dh)),
            "wo": _w((lambda *s: torch.randn(*s, dtype=torch.bfloat16) * 0.05)(H * Dh, D)),
        }
    _B_in = _B_setup()

    return {
        "A_u": _A_in["u"],
        "A_log_A_real": _A_in["log_A_real"],
        "A_A_imag": _A_in["A_imag"],
        "A_C_real": _A_in["C_real"],
        "A_C_imag": _A_in["C_imag"],
        "A_log_dt": _A_in["log_dt"],
        "A_D_skip": _A_in["D_skip"],
        "B_x": _B_in["x"],
        "B_wq": _B_in["wq"],
        "B_wk": _B_in["wk"],
        "B_wv": _B_in["wv"],
        "B_wo": _B_in["wo"],
    }

def reference(A_u, A_log_A_real, A_A_imag, A_C_real, A_C_imag, A_log_dt, A_D_skip, B_x, B_wq, B_wk, B_wv, B_wo):
    def _A_ref(u, log_A_real, A_imag, C_real, C_imag, log_dt, D_skip):
        L = u.shape[1]
        dt = torch.exp(log_dt)
        A = -torch.exp(log_A_real) + 1j * A_imag
        C = (C_real + 1j * C_imag) * dt[:, None]
        pos = (lambda x, dt: x.to(dt))(torch.arange(L), log_dt.dtype)
        P = torch.exp((A * dt[:, None])[:, :, None] * pos[None, None, :])
        K = 2.0 * torch.einsum("dn,dnl->dl", C, P).real
        L2 = 2 * L
        u_t = (lambda x, *d: x.permute(*d))(u, 0, 2, 1)
        Kf = (lambda x, *a, **k: torch.fft.rfft(x.float(), *a, **k))(K, L2)
        Uf = (lambda x, *a, **k: torch.fft.rfft(x.float(), *a, **k))(u_t, L2)
        y = (lambda x, *a, **k: torch.fft.irfft(x, *a, **k).to(torch.bfloat16))(Uf * Kf[None, :, :], L2)[:, :, :L]
        y = (lambda x, *d: x.permute(*d))(y, 0, 2, 1)
        return y + u * D_skip[None, None, :]

    def _B_ref(x, wq, wk, wv, wo):
        B, S, D = x.shape
        H = 16
        Dh = D // H
        q = (lambda x, *d: x.permute(*d))((x @ wq).reshape(B, S, H, Dh), 0, 2, 1, 3)
        k = x @ wk
        v = x @ wv
        scores = torch.einsum("bhqd,bkd->bhqk", q, k) * (Dh ** -0.5)
        p = _softmax(scores, axis=-1)
        o = torch.einsum("bhqk,bkd->bhqd", p, v)
        return (lambda x, *d: x.permute(*d))(o, 0, 2, 1, 3).reshape(B, S, H * Dh) @ wo

    a = _A_ref(A_u, A_log_A_real, A_A_imag, A_C_real, A_C_imag, A_log_dt, A_D_skip)
    b = _B_ref(B_x, B_wq, B_wk, B_wv, B_wo)
    return torch.concatenate([a, b], axis=-1)
```

```python
import re

TRANS = ('v_exp_', 'v_log_', 'v_rcp_', 'v_rsq_', 'v_sqrt_', 'v_sin_', 'v_cos_')

def regs_of(tok):
    tok = tok.strip()
    tok = re.sub(r'^(-|abs\(|\|)+', '', tok).rstrip(')|')
    m = re.fullmatch(r'([vs])\[(\d+):(\d+)\]', tok)
    if m:
        return {(m.group(1), i) for i in range(int(m.group(2)), int(m.group(3)) + 1)}
    m = re.fullmatch(r'([vs])(\d+)', tok)
    if m:
        return {(m.group(1), int(m.group(2)))}
    if tok == 'vcc': return {('s', 106), ('s', 107)}
    if tok == 'vcc_lo': return {('s', 106)}
    if tok == 'vcc_hi': return {('s', 107)}
    if tok == 'm0': return {('s', 124)}
    if tok == 'exec': return {('s', 126), ('s', 127)}
    if tok == 'exec_lo': return {('s', 126)}
    if tok == 'exec_hi': return {('s', 127)}
    return set()

class Ins:
    def __init__(self, text):
        self.text = text
        t = text.split(';')[0].strip()
        self.is_label = t.endswith(':')
        self.is_dir = t.startswith('.')
        self.mn = ''
        self.defs = set(); self.uses = set(); self.srcc = set(); self.srcab = set()
        self.ws = 1
        if self.is_label or self.is_dir or not t:
            self.ws = 0
            return
        parts = t.split(None, 1)
        mn = self.mn = parts[0]
        rest = parts[1] if len(parts) > 1 else ''
        ops = []
        depth = 0; cur = ''
        for ch in rest:
            if ch in '[(': depth += 1
            if ch in '])': depth -= 1
            if ch == ',' and depth == 0:
                ops.append(cur.strip()); cur = ''
            else:
                cur += ch
        if cur.strip(): ops.append(cur.strip())
        mods = ''
        if ops:
            last = ops[-1].split(None, 1)
            ops[-1] = last[0]
            mods = last[1] if len(last) > 1 else ''
        self.mods = mods
        self.ops = ops
        R = [regs_of(o) for o in ops]
        self.is_mfma = mn.startswith('v_mfma')
        self.is_valu = mn.startswith('v_') and not self.is_mfma
        self.is_trans = mn.startswith(TRANS)
        self.is_vmem = mn.startswith(('buffer_', 'global_'))
        self.is_ds = mn.startswith('ds_')
        self.is_salu = mn.startswith('s_')
        self.is_dpp = '_dpp' in mn
        self.is_perm = mn.startswith('v_permlane')
        self.is_rl = mn.startswith(('v_readlane', 'v_readfirstlane'))
        self.is_lds_dma = self.is_vmem and re.search(r'\blds\b', mods) is not None
        self.passes = 0
        if mn == 's_nop':
            self.ws = int(ops[0], 0) + 1
        if self.is_mfma:
            self.passes = 8 if '32x32x16' in mn else 4 if '16x16x32' in mn else None
            assert self.passes
            self.defs = R[0]; self.srcab = R[1] | R[2]; self.srcc = R[3]; self.uses = self.srcab | self.srcc
        elif self.is_valu:
            if self.is_perm:
                self.defs = R[0] | R[1]; self.uses = R[0] | R[1]
            elif mn.startswith(('v_add_co', 'v_sub_co', 'v_addc_co', 'v_subb_co')):
                self.defs = R[0] | R[1]; self.uses = set().union(*R[2:])
            else:
                self.defs = R[0]; self.uses = set().union(*R[1:]) if len(R) > 1 else set()
                if mn.startswith(('v_fmac', 'v_dot2c', 'v_writelane')) or self.is_dpp or 'sdwa' in mn:
                    self.uses |= R[0]
                if mn.startswith('v_cndmask') and len(ops) == 3:
                    self.uses |= regs_of('vcc')
        elif self.is_vmem:
            if 'store' in mn or ('atomic' in mn and 'sc0' not in mods) or self.is_lds_dma:
                self.uses = set().union(*R)
                if self.is_lds_dma: self.uses |= regs_of('m0')
            else:
                self.defs = R[0]; self.uses = set().union(*R[1:])
                if 'atomic' in mn or 'd16' in mn: self.uses |= R[0]
            self.store_data = set()
            if 'store' in mn and ('x4' in mn or 'x3' in mn):
                self.store_data = R[0] if mn.startswith('buffer_') else R[1]
        elif self.is_ds:
            if mn.startswith(('ds_write', 'ds_add', 'ds_max', 'ds_or')) and 'rtn' not in mn:
                self.uses = set().union(*R)
            else:
                self.defs = R[0]; self.uses = set().union(*R[1:]) if len(R) > 1 else set()
                if 'd16' in mn: self.uses |= R[0]
            if 'addtid' in mn: self.uses |= regs_of('m0')
        elif self.is_salu:
            if mn.startswith(('s_cmp', 's_bitcmp', 's_cbranch', 's_branch', 's_waitcnt', 's_barrier', 's_nop', 's_sleep', 's_setprio', 's_endpgm')):
                self.uses = set().union(*R) if R else set()
            else:
                self.defs = R[0] if R else set(); self.uses = set().union(*R[1:]) if len(R) > 1 else set()
                if 'saveexec' in mn: self.defs |= regs_of('exec')

def V(regs): return {r for r in regs if r[0] == 'v'}
def S(regs): return {r for r in regs if r[0] == 's'}

def required(p, c):
    need = 0
    if p.is_valu:
        vd = V(p.defs); sd = S(p.defs)
        if c.is_mfma and vd & c.uses: need = max(need, 2)
        if c.is_valu:
            if p.is_trans and not c.is_trans and vd & c.uses: need = max(need, 1)
            if (c.is_perm or c.is_dpp) and vd & c.uses: need = max(need, 2)
            if c.is_rl and vd & c.uses: need = max(need, 1)
            if sd & c.uses: need = max(need, 4 if (c.is_rl or c.mn.startswith('v_writelane')) else 2)
        if c.is_vmem and sd & c.uses: need = max(need, 5)
        if c.is_salu and sd & (c.uses | ({('s',106),('s',107)} if 'vcc' in c.mn else set())): need = max(need, 1)
        if p.is_trans and (c.is_vmem or c.is_ds) and vd & c.uses: need = max(need, 1)
    if p.is_mfma:
        big = 12 if p.passes == 8 else 8
        if c.is_mfma:
            if p.defs & c.srcab: need = max(need, big)
            if p.defs & c.srcc:
                if not (p.defs == c.srcc and p.passes == c.passes): need = max(need, big - 2)
            elif p.defs & c.defs: need = max(need, big - 2)
        elif c.is_valu or c.is_vmem or c.is_ds:
            if p.defs & (c.uses | c.defs): need = max(need, big)
        if c.is_valu and p.srcc & c.defs: need = max(need, 7 if p.passes == 8 else 3)
    if p.is_salu and ('s', 124) in p.defs:
        if c.is_lds_dma or 'addtid' in c.mn: need = max(need, 1)
    if p.is_vmem and getattr(p, 'store_data', None):
        if p.store_data & c.defs: need = max(need, 2 if c.is_valu else 1)
    return need

class Asm:
    def __init__(self):
        self.lines = []
    def __call__(self, text):
        for l in text.split('\n'):
            l = l.strip()
            if l: self.lines.append(l)
    def label(self, n): self.lines.append(n + ':')
    def finalize(self, verbose=False):
        ins = [Ins(l) for l in self.lines]
        out = []
        def deficit(prev, c):
            dist = 0; worst = 0; who = None
            for p in reversed(prev):
                if p.ws == 0: continue
                if dist >= 20: break
                n = required(p, c) - dist
                if n > worst: worst = n; who = p
                if p.mn in ('s_branch', 's_endpgm', 's_setpc_b64'): break
                dist += p.ws
            return worst, who
        nins = 0
        for c in ins:
            if c.ws:
                d, who = deficit(out, c)
                if d > 0:
                    if verbose: print(f'  [hazard] +{d} before "{c.text}" (after "{who.text}")')
                    while d > 0:
                        k = min(d, 16); out.append(Ins(f's_nop {k-1}')); d -= k; nins += 1
            out.append(c)
        labels = {i.text.split(';')[0].strip()[:-1]: k for k, i in enumerate(out) if i.is_label}
        for k, b in enumerate(out):
            if b.mn.startswith(('s_cbranch', 's_branch')):
                tgt = labels[b.ops[0]]
                prev = [x for x in out[max(0, k - 40):k]]
                prev.append(Ins('s_nop 0'))
                seq = []
                dist = 0
                for c in out[tgt:tgt + 40]:
                    if c.ws == 0: continue
                    d, who = deficit(prev + seq, c)
                    if d > 0 and who in prev:
                        raise SystemExit(f'branch-edge hazard: "{who.text}" -> [{b.text}] -> "{c.text}" short by {d}')
                    seq.append(c); dist += c.ws
                    if dist >= 20 or c.mn in ('s_branch', 's_endpgm'): break
        self.n_nops = nins
        return '\n'.join((i.text if (i.is_label or i.is_dir) else '  ' + i.text) for i in out) + '\n'
```

```python
import sys, struct, math
from asmdsl import Asm

NAME = 'concat_heads__ssm_conv_s4d__grouped_kv_mqa__prompt'
X_BYTES = 2048 * 896; WQ_BYTES = 448 * 896; WK_BYTES = 448 * 56; OUT_BYTES = 2048 * 1792
WS_E = 0; WS_FKV = 0x1000; WS_FU = 0x9000; WS_FY = 0xA000; WS_FO = 0xB000
WS_KV = 0x10000; WS_O = 0x100000; WS_UT = 0x300000; WS_YT = 0x500000; WS_ST = 0x700000; WS_BYTES = 0x800000
NREP = 32
def f32(x): return '0x%08x' % struct.unpack('<I', struct.pack('<f', x))[0]
LOG2E = math.log2(math.e)
CSCALE = LOG2E / math.sqrt(28.0)

sWAVE = 's3'; sXG = 's4'; sJ = 's5'
P_U, P_LAR, P_AIM, P_CRE, P_CIM, P_LDT, P_DSK, P_X = [16 + 2 * i for i in range(8)]
P_WQ, P_WK, P_WV, P_WO = 32, 34, 36, 38
P_OUT, P_DBG, P_WS = 40, 42, 44
sNONCE = 's46'
R_X = 48; R_W = 52; R_WS = 56; R_OUT = 60; R_B = 64
def srd(r): return f's[{r}:{r+3}]'
def sp(r): return f's[{r}:{r+1}]'
def vr(a, n): return f'v[{a}:{a+n-1}]' if n > 1 else f'v{a}'

class Gen:
    def __init__(self, mode, stamps=False):
        self.a = Asm(); self.mode = mode; self.stamps = stamps; self.uid = 0
    def L(self, base):
        self.uid += 1
        return f'L_{base}_{self.uid}'
    def mk_srd(self, r, p, nbytes):
        self.a(f's_mov_b32 s{r}, s{p}\ns_mov_b32 s{r+1}, s{p+1}\ns_mov_b32 s{r+2}, {hex(nbytes)}\ns_mov_b32 s{r+3}, 0x20000')
    def stamp(self, i):
        if self.stamps:
            self.a(f's_memrealtime s[{76+2*i}:{77+2*i}]')
    def stamp_flush(self, n):
        if not self.stamps: return
        a = self.a
        a('s_waitcnt lgkmcnt(0)')
        a(f's_lshl_b32 s6, s2, 2\ns_add_u32 s6, s6, {sWAVE}\ns_lshl_b32 s6, s6, 6\ns_add_u32 s6, s6, {WS_ST}')
        a('v_mov_b32 v1, s6')
        for i in range(n):
            a(f'v_mov_b32 v2, s{76+2*i}\nbuffer_store_dword v2, v1, {srd(R_WS)}, 0 offen offset:{4*i}')
        a('s_getreg_b32 s7, hwreg(HW_REG_XCC_ID)\nv_mov_b32 v2, s7')
        a(f'buffer_store_dword v2, v1, {srd(R_WS)}, 0 offen offset:60')

    def prologue(self, nwg):
        a = self.a
        self.stamp(0)
        a(f's_cmp_ge_u32 s2, {nwg}\ns_cbranch_scc1 {self.lend}')
        a('s_load_dwordx16 s[16:31], s[0:1], 0\ns_load_dwordx8 s[32:39], s[0:1], 64')
        a('s_load_dwordx4 s[40:43], s[0:1], 96\ns_load_dwordx2 s[44:45], s[0:1], 112')
        a('v_lshrrev_b32 v1, 6, v0\nv_and_b32 v0, 63, v0')
        a(f's_and_b32 {sXG}, s2, 7\ns_bfe_u32 {sJ}, s2, 0x50003')
        a(f'v_readfirstlane_b32 {sWAVE}, v1')

    def after_kernarg(self):
        a = self.a
        a('s_waitcnt lgkmcnt(0)')
        if self.mode == 'fused':
            a(f's_load_dword {sNONCE}, {sp(P_WS)}, {WS_E}')
        self.mk_srd(R_WS, P_WS, WS_BYTES)

    def row7_addr(self, v0, v1, tmp, rowstride):
        a = self.a
        for v, add in ((v0, 0), (v1, 64)):
            if add: a(f'v_add_u32 {tmp}, {add}, v0')
            else: a(f'v_mov_b32 {tmp}, v0')
            a(f'v_mul_u32_u24 {v}, 147, {tmp}\nv_lshrrev_b32 {v}, 10, {v}')
            a(f'v_mul_u32_u24 {v}, {rowstride - 112}, {v}')
            a(f'v_lshl_add_u32 {v}, {tmp}, 4, {v}')

    def a_qproj(self):
        a = self.a
        XB = 0; WB = 40960; QX = XB + 16384
        sQB = 's6'; sHP = 's7'
        a(f's_lshr_b32 s8, {sJ}, 3\ns_lshl_b32 {sQB}, {sXG}, 2\ns_add_u32 {sQB}, {sQB}, s8\ns_and_b32 {sHP}, {sJ}, 7')
        a(f's_lshl_b32 s8, {sWAVE}, 4\ns_lshl_b32 s9, {sQB}, 6\ns_add_u32 s9, s9, s8\ns_mul_i32 s9, s9, 896')
        a('v_lshrrev_b32 v2, 3, v0\nv_lshrrev_b32 v3, 4, v0\nv_and_b32 v4, 7, v0')
        a('v_xor_b32 v4, v4, v3\nv_mul_u32_u24 v2, 896, v2')
        a('v_lshl_add_u32 v5, v4, 4, v2\nv_add_u32 v5, s9, v5')
        a('v_xor_b32 v4, 4, v4\nv_lshl_add_u32 v6, v4, 4, v2\nv_add_u32 v6, s9, v6\nv_add_u32 v6, 7168, v6')
        self.row7_addr('v7', 'v8', 'v2', 896)
        a(f's_mul_i32 s9, s8, 896\ns_mul_i32 s10, {sHP}, 112\ns_add_u32 s9, s9, s10')
        a('v_add_u32 v7, s9, v7\nv_add_u32 v8, s9, v8')
        self.after_kernarg()
        self.mk_srd(R_X, P_X, X_BYTES); self.mk_srd(R_W, P_WQ, WQ_BYTES)
        a(f's_lshl_b32 s10, {sWAVE}, 11\ns_mul_i32 s11, {sWAVE}, 1792\ns_add_u32 s11, s11, {WB}')
        for kb in range(5):
            a(f's_mov_b32 s12, {kb*128}\ns_mov_b32 s13, {kb*64*896}')
            a(f's_add_u32 m0, s10, {XB + kb*8192}\nbuffer_load_dwordx4 v5, {srd(R_X)}, s12 offen lds')
            a(f's_add_u32 m0, s10, {XB + kb*8192 + 1024}\nbuffer_load_dwordx4 v6, {srd(R_X)}, s12 offen lds')
            a(f's_add_u32 m0, s11, {kb*7168}\nbuffer_load_dwordx4 v7, {srd(R_W)}, s13 offen lds')
            a(f's_add_u32 m0, s11, {kb*7168 + 1024}\nbuffer_load_dwordx4 v8, {srd(R_W)}, s13 offen lds')
        ST = 192
        for i, kb in enumerate((5, 6)):
            a(f's_mov_b32 s12, {kb*128}\ns_mov_b32 s13, {kb*64*896}')
            a(f'buffer_load_dwordx4 {vr(ST+16*i,4)}, v5, {srd(R_X)}, s12 offen')
            a(f'buffer_load_dwordx4 {vr(ST+16*i+4,4)}, v6, {srd(R_X)}, s12 offen')
            a(f'buffer_load_dwordx4 {vr(ST+16*i+8,4)}, v7, {srd(R_W)}, s13 offen')
            a(f'buffer_load_dwordx4 {vr(ST+16*i+12,4)}, v8, {srd(R_W)}, s13 offen')
        self.mk_srd(R_B, P_WO, WQ_BYTES); self.mk_srd(R_OUT, P_OUT, OUT_BYTES)
        T = 0
        if self.mode == 'fused':
            a('v_lshlrev_b32 v2, 17, v0')
            a(f'buffer_load_dword v224, v2, {srd(R_WS)}, 0 offen')
            a(f'buffer_load_dword v225, v2, {srd(R_OUT)}, 0 offen')
            a(f'buffer_load_dword v226, v2, {srd(R_B)}, 0 offen')
            T = 3
        a(f's_and_b32 s8, {sWAVE}, 1\ns_lshl_b32 s8, s8, 5')
        a('v_and_b32 v2, 31, v0\nv_add_u32 v2, s8, v2\nv_bfe_u32 v3, v2, 1, 3\nv_lshrrev_b32 v4, 5, v0\nv_xor_b32 v3, v3, v4\nv_lshlrev_b32 v2, 7, v2')
        for ks in range(4):
            a(f'v_xor_b32 v9, {2*ks}, v3\nv_lshl_add_u32 v{10+ks}, v9, 4, v2')
        a('v_bfe_u32 v2, v0, 2, 2\nv_lshl_add_u32 v2, v4, 3, v2\nv_mul_u32_u24 v2, 112, v2')
        a('v_bfe_u32 v3, v0, 4, 1\nv_lshl_add_u32 v2, v3, 5, v2\nv_and_b32 v3, 3, v0\nv_lshl_add_u32 v2, v3, 3, v2')
        a(f's_lshr_b32 s8, {sWAVE}, 1\ns_mul_i32 s8, s8, 56\ns_add_u32 s8, s8, {WB}\nv_add_u32 v14, s8, v2')
        a('v_lshlrev_b32 v15, 4, v0\nv_add_u32 v9, s10, v15\nv_add_u32 v1, s11, v15')
        SETS = (112, 144)
        ACC = 48
        def reads(kb, s):
            reg = kb if kb < 5 else kb - 5
            for ks in range(4):
                a(f'ds_read_b128 {vr(SETS[s]+4*ks,4)}, v{10+ks} offset:{XB + reg*8192}')
                for t in range(2):
                    a(f'ds_read_b64_tr_b16 {vr(SETS[s]+16+4*ks+2*t,2)}, v14 offset:{reg*7168 + (16*ks+4*t)*112}')
        def mm(s, first=False):
            for ks in range(4):
                c = '0' if (first and ks == 0) else vr(ACC, 16)
                a(f'v_mfma_f32_32x32x16_bf16 {vr(ACC,16)}, {vr(SETS[s]+16+4*ks,4)}, {vr(SETS[s]+4*ks,4)}, {c}')
        for kb in range(5):
            a(f's_waitcnt vmcnt({24 - 4*kb + T})\ns_barrier')
            if kb == 0: self.stamp(1)
            reads(kb, kb & 1)
            if kb:
                a('s_waitcnt lgkmcnt(12)'); mm((kb - 1) & 1, first=(kb == 1))
        a(f's_waitcnt vmcnt({T})')
        for i in range(2):
            a(f'ds_write_b128 v9, {vr(ST+16*i,4)} offset:{XB + i*8192}')
            a(f'ds_write_b128 v9, {vr(ST+16*i+4,4)} offset:{XB + i*8192 + 1024}')
            a(f'ds_write_b128 v1, {vr(ST+16*i+8,4)} offset:{i*7168}')
        a('s_mov_b32 exec_hi, 0xffff')
        for i in range(2):
            a(f'ds_write_b128 v1, {vr(ST+16*i+12,4)} offset:{i*7168 + 1024}')
        a('s_mov_b32 exec_hi, -1')
        a('s_waitcnt lgkmcnt(0)\ns_barrier')
        reads(5, 1); mm(0); reads(6, 0)
        a('s_waitcnt lgkmcnt(12)'); mm(1)
        a('s_waitcnt lgkmcnt(0)'); mm(0)
        a(f's_lshl_b32 s8, {sWAVE}, 11\ns_add_u32 s8, s8, {QX}\nv_add_u32 v2, s8, v15\ns_mov_b32 s12, {f32(CSCALE)}')
        for js in range(4):
            a(f's_add_u32 s8, {sWAVE}, {1+js}\ns_and_b32 s8, s8, 3\ns_lshl_b32 s9, s8, 11\ns_add_u32 s9, s9, {QX}\nv_add_u32 v{10+js}, s9, v15')
            if js < 3:
                a(f's_mul_i32 s9, s8, 12288\nv_add_u32 v{3+js}, s9, v15')
        for r in range(16): a(f'v_mul_f32 v{ACC+r}, s12, v{ACC+r}')
        for r in range(8): a(f'v_cvt_pk_bf16_f32 v{64+r}, v{ACC+2*r}, v{ACC+2*r+1}')
        a('s_mov_b32 exec_lo, 0\nv_mov_b32 v70, 0\nv_mov_b32 v71, 0\ns_mov_b32 exec_lo, -1')
        a('ds_write_b128 v2, v[64:67]\nds_write_b128 v2, v[68:71] offset:1024')
        a('s_waitcnt lgkmcnt(0)\ns_barrier')
        for js in range(4):
            a(f'ds_read_b128 {vr(16+8*js,4)}, v{10+js}\nds_read_b128 {vr(20+8*js,4)}, v{10+js} offset:1024')
        self.stamp(2)

    def a_attn(self):
        a = self.a
        Q = 16; O = 48; KV = 112; SS = (144, 160); PP = (176, 184)
        K = lambda buf, f: vr(KV + 16*buf + 4*f, 4)
        Vv = lambda buf, f: vr(KV + 16*buf + 8 + 4*f, 4)
        sT = 's14'; sB = 's15'; sOFF = 's68'; sOFV = 's69'; sCNT = 's70'
        a(f's_lshl_b32 {sB}, {sWAVE}, 16\ns_add_u32 {sB}, {sB}, {WS_KV}\ns_and_b32 {sT}, {sJ}, 15\ns_lshl_b32 {sT}, {sT}, 12')
        for r in range(64): a(f'v_mov_b32 v{O+r}, 0')
        for r in range(8): a(f'v_mov_b32 v{PP[1]+r}, 0\nv_mov_b32 v{KV+24+r}, 0')
        if self.mode == 'fused': self.wait_kv()
        self.stamp(3)
        def nxt():
            return f's_add_u32 {sT}, {sT}, 4096\ns_and_b32 {sT}, {sT}, 0xffff\ns_add_u32 {sOFF}, {sB}, {sT}'
        def ldK(buf, off): return [f'buffer_load_dwordx4 {K(buf,f)}, v15, {srd(R_WS)}, {off} offen offset:{1024*f} sc1' for f in range(2)]
        def ldV(buf, off): return [f'buffer_load_dwordx4 {Vv(buf,f)}, v15, {srd(R_WS)}, {off} offen offset:{2048+1024*f} sc1' for f in range(2)]
        a(f's_add_u32 {sOFF}, {sB}, {sT}')
        for x in ldK(0, sOFF) + ldV(0, sOFF): a(x)
        a(nxt())
        for x in ldK(1, sOFF): a(x)
        def mA(u, buf, f):
            s = SS[u & 1]; c = '0' if f == 0 else vr(s, 16)
            return f'v_mfma_f32_32x32x16_bf16 {vr(s,16)}, {K(buf,f)}, {vr(Q + 8*(u&3) + 4*f, 4)}, {c}'
        def mC(u, buf, f):
            o = vr(O + 16*(u & 3), 16)
            return f'v_mfma_f32_32x32x16_bf16 {o}, {Vv(buf,f)}, {vr(PP[u&1] + 4*f, 4)}, {o}'
        a('s_waitcnt vmcnt(4) lgkmcnt(0)')
        a(mA(0, 0, 0)); a(mA(0, 0, 1))
        a(f's_mov_b32 {sCNT}, 7')
        def unit(u, mf, extra):
            s = SS[u & 1]; p = PP[u & 1]
            e = lambda i: f'v_exp_f32 v{s+i}, v{s+i}'
            c = lambda i: f'v_cvt_pk_bf16_f32 v{p+i}, v{s+2*i}, v{s+2*i+1}'
            seq = [[e(0), e(1), e(2), e(3), c(0), e(4)], [e(5), c(1), e(6), e(7), c(2), e(8)],
                   [e(9), c(3), e(10), e(11), c(4), e(12)], [e(13), c(5), e(14), e(15), c(6), c(7)]]
            for i in range(4):
                for x in extra.get(('pre', i), []): a(x)
                if mf[i]: a(mf[i])
                for x in extra.get(i, []): a(x)
                for x in seq[i]: a(x)
        lloop = self.L('attn')
        def body(tail):
            for u in range(8):
                t = u >> 2; b = u & 3
                nu = u + 1; nbuf = (nu >> 2) & 1
                pu = u - 1; pbuf = ((pu >> 2) & 1)
                mf = [mA(nu, nbuf, 0), mA(nu, nbuf, 1), mC(pu, pbuf, 0), mC(pu, pbuf, 1)]
                ex = {}
                if tail and u == 7: mf = [mC(pu, pbuf, 0), mC(pu, pbuf, 1), None, None]
                if b == 3:
                    if not tail:
                        ex[('pre', 0)] = ['s_waitcnt vmcnt(2)']
                        ex[0] = nxt().split('\n')[:1]; ex[1] = nxt().split('\n')[1:]
                        ex[2] = [ldK(t, sOFF)[0]]; ex[3] = [ldK(t, sOFF)[1]]
                    elif u == 3:
                        ex[('pre', 0)] = ['s_waitcnt vmcnt(2)']
                if b == 1:
                    if not tail:
                        ex[('pre', 2)] = ['s_waitcnt vmcnt(2)']
                        ex[2] = [ldV(t ^ 1, sOFF)[0]]; ex[3] = [ldV(t ^ 1, sOFF)[1]]
                    elif u == 1:
                        ex[('pre', 2)] = ['s_waitcnt vmcnt(2)']
                        ex[2] = [ldV(t ^ 1, sOFF)[0]]; ex[3] = [ldV(t ^ 1, sOFF)[1]]
                    else:
                        ex[('pre', 2)] = ['s_waitcnt vmcnt(0)']
                if tail and u == 6:
                    for g in range(4): ex.setdefault((1,2,2,3)[g], []).append(f'ds_write_b128 v3, {vr(O+4*g,4)} offset:{g*1024}')
                if tail and u == 7:
                    for g in range(4): ex.setdefault((1,2,2,3)[g], []).append(f'ds_write_b128 v4, {vr(O+16+4*g,4)} offset:{4096+g*1024}')
                if not tail and u == 7:
                    ex.setdefault(0, []).append(f's_sub_u32 {sCNT}, {sCNT}, 1')
                unit(u, mf, ex)
        a('s_nop 10\n.p2align 4')
        a.label(lloop)
        body(False)
        a(f's_cmp_lg_u32 {sCNT}, 0\ns_cbranch_scc1 {lloop}')
        body(True)
        a(mC(7, 1, 0)); a(mC(7, 1, 1))
        for g in range(4): a(f'ds_write_b128 v5, {vr(O+32+4*g,4)} offset:{8192+g*1024}')
        a(f's_mul_i32 s8, {sWAVE}, 12288\nv_add_u32 v2, s8, v15')
        a('s_waitcnt lgkmcnt(0)\ns_barrier')
        self.stamp(4)
        RD = 112
        for i in range(12): a(f'ds_read_b128 {vr(RD+4*i,4)}, v2 offset:{i*1024}')
        F = O + 48
        for s in range(3):
            a(f's_waitcnt lgkmcnt({8-4*s})')
            for r in range(0, 16, 2): a(f'v_pk_add_f32 {vr(F+r,2)}, {vr(F+r,2)}, {vr(RD+16*s+r,2)}')
        a(f'v_mov_b32 v10, v{F+12}\nv_mov_b32 v11, v{F+12}\nv_permlane32_swap_b32 v10, v11\nv_rcp_f32 v10, v11')
        a(f's_lshl_b32 s8, s6, 1\ns_and_b32 s9, {sWAVE}, 1\ns_add_u32 s8, s8, s9\ns_lshl_b32 s8, s8, 15')
        a(f's_lshl_b32 s9, s7, 1\ns_lshr_b32 s10, {sWAVE}, 1\ns_add_u32 s9, s9, s10\ns_lshl_b32 s9, s9, 11')
        a(f's_add_u32 s8, s8, s9\ns_add_u32 s8, s8, {WS_O}')
        for r in range(0, 16, 2): a(f'v_pk_mul_f32 {vr(F+r,2)}, {vr(F+r,2)}, v[10:11] op_sel_hi:[1,0]')
        for r in range(8): a(f'v_cvt_pk_bf16_f32 v{160+r}, v{F+2*r}, v{F+2*r+1}')
        a('s_mov_b32 exec_lo, 0\nv_mov_b32 v166, 0\nv_mov_b32 v167, 0\ns_mov_b32 exec_lo, -1')
        a(f'buffer_store_dwordx4 v[160:163], v15, {srd(R_WS)}, s8 offen sc1')
        a(f'buffer_store_dwordx4 v[164:167], v15, {srd(R_WS)}, s8 offen offset:1024 sc1')

    def a_outproj_pro(self):
        a = self.a
        a(f's_lshr_b32 s8, {sJ}, 3\ns_lshl_b32 s6, {sXG}, 2\ns_add_u32 s6, s6, s8\ns_and_b32 s7, {sJ}, 7')
        self.row7_addr('v7', 'v8', 'v2', 896)
        a(f's_lshl_b32 s8, {sWAVE}, 4\ns_mul_i32 s9, s8, 896\ns_mul_i32 s10, s7, 112\ns_add_u32 s9, s9, s10')
        a('v_add_u32 v7, s9, v7\nv_add_u32 v8, s9, v8\nv_lshlrev_b32 v15, 4, v0')
        self.after_kernarg()
        self.mk_srd(R_B, P_WO, WQ_BYTES); self.mk_srd(R_OUT, P_OUT, OUT_BYTES)

    def a_outproj(self):
        a = self.a
        a(f's_mul_i32 s11, {sWAVE}, 1792')
        for kb in range(7):
            a(f's_mov_b32 s13, {kb*64*896}')
            a(f's_add_u32 m0, s11, {kb*7168}\nbuffer_load_dwordx4 v7, {srd(R_B)}, s13 offen lds')
            a(f's_add_u32 m0, s11, {kb*7168 + 1024}\nbuffer_load_dwordx4 v8, {srd(R_B)}, s13 offen lds')
        a(f's_mov_b32 s13, {7*64*896}\ns_add_u32 m0, s11, {7*7168}\nbuffer_load_dwordx4 v7, {srd(R_B)}, s13 offen lds')
        a('v_lshrrev_b32 v4, 5, v0\nv_bfe_u32 v2, v0, 2, 2\nv_lshl_add_u32 v2, v4, 2, v2\nv_mul_u32_u24 v2, 112, v2')
        a('v_bfe_u32 v3, v0, 4, 1\nv_lshl_add_u32 v2, v3, 5, v2\nv_and_b32 v3, 3, v0\nv_lshl_add_u32 v2, v3, 3, v2')
        a(f's_lshr_b32 s12, {sWAVE}, 1\ns_mul_i32 s8, s12, {224*112 + 64}\nv_add_u32 v14, s8, v2\ns_mul_i32 s8, s12, {224*112 - 64}\ns_add_u32 s8, s8, 64\nv_add_u32 v13, s8, v2')
        a(f's_lshl_b32 s8, s6, 1\ns_and_b32 s9, {sWAVE}, 1\ns_add_u32 s8, s8, s9\ns_lshl_b32 s10, s8, 15\ns_lshl_b32 s9, s12, 14')
        a(f's_add_u32 s10, s10, s9\ns_add_u32 s10, s10, {WS_O}')
        XCH = 57344
        a(f's_xor_b32 s9, {sWAVE}, 2\ns_lshl_b32 s9, s9, 12\ns_add_u32 s9, s9, {XCH}\nv_add_u32 v5, s9, v15')
        a(f's_lshl_b32 s9, {sWAVE}, 12\ns_add_u32 s9, s9, {XCH}\nv_add_u32 v6, s9, v15')
        a(f's_mul_i32 s8, s8, {32*1792}\ns_mul_i32 s9, s7, 112\ns_add_u32 s8, s8, s9\ns_lshl_b32 s9, s12, 6\ns_add_u32 s8, s8, s9\ns_add_u32 s8, s8, 896')
        a('v_and_b32 v9, 31, v0\nv_mul_u32_u24 v9, 1792, v9\nv_lshl_add_u32 v9, v4, 4, v9\nv_add_u32 v9, s8, v9')
        if self.mode == 'fused': self.wait_o()
        else: a('s_waitcnt vmcnt(0)\ns_barrier')
        self.stamp(6)
        OF = 16
        for i in range(16):
            if i % 4 == 0 and i: a('s_add_u32 s10, s10, 4096')
            a(f'buffer_load_dwordx4 {vr(OF+4*i,4)}, v15, {srd(R_WS)}, s10 offen offset:{(i%4)*1024} sc1')
        WF = 112
        ACC = (80, 96)
        def rd(i):
            hd, f = i >> 1, i & 1
            b = WF + 8 * (i & 3)
            for ct in range(2):
                for t in range(2):
                    a(f'ds_read_b64_tr_b16 {vr(b+4*ct+2*t,2)}, v{14-ct} offset:{(28*hd+16*f+8*t)*112}')
        rd(0); rd(1); rd(2)
        for i in range(16):
            if i + 3 < 16: rd(i + 3)
            left = min(3, 15 - i)
            a(f's_waitcnt vmcnt({15-i}) lgkmcnt({4*left})')
            b = WF + 8 * (i & 3)
            for ct in range(2):
                c = '0' if i == 0 else vr(ACC[ct], 16)
                a(f'v_mfma_f32_32x32x16_bf16 {vr(ACC[ct],16)}, {vr(b+4*ct,4)}, {vr(OF+4*i,4)}, {c}')
        for g in range(4): a(f'ds_write_b128 v5, {vr(ACC[1]+4*g,4)} offset:{g*1024}')
        a('s_waitcnt lgkmcnt(0)\ns_barrier')
        for g in range(4): a(f'ds_read_b128 {vr(16+4*g,4)}, v6 offset:{g*1024}')
        a('s_waitcnt lgkmcnt(0)')
        for r in range(0, 16, 2): a(f'v_pk_add_f32 {vr(ACC[0]+r,2)}, {vr(ACC[0]+r,2)}, {vr(16+r,2)}')
        for r in range(8): a(f'v_cvt_pk_bf16_f32 v{32+r}, v{ACC[0]+2*r}, v{ACC[0]+2*r+1}')
        a('v_permlane32_swap_b32 v32, v34\nv_permlane32_swap_b32 v33, v35\nv_permlane32_swap_b32 v36, v38\nv_permlane32_swap_b32 v37, v39')
        a(f'buffer_store_dwordx4 v[32:35], v9, {srd(R_OUT)}, 0 offen')
        a('s_cmp_eq_u32 s12, 0\ns_cselect_b32 exec_hi, -1, 0')
        a(f'buffer_store_dwordx4 v[36:39], v9, {srd(R_OUT)}, 0 offen offset:32')
        a('s_mov_b32 exec_hi, -1')
        self.stamp(7)

    UTILE = 58368; UB = 58368; KB = 67584; SCR = 14592
    def s_start(self, kv=True):
        a = self.a
        self.row7_addr('v7', 'v8', 'v2', 896)
        a(f's_lshl_b32 s8, {sJ}, 6\ns_lshl_b32 s9, {sWAVE}, 4\ns_add_u32 s8, s8, s9\ns_mul_i32 s8, s8, 896\ns_mul_i32 s9, {sXG}, 112\ns_add_u32 s8, s8, s9')
        a('v_add_u32 v7, s8, v7\nv_add_u32 v8, s8, v8')
        a(f's_lshl_b32 s6, {sJ}, 2\ns_add_u32 s6, s6, {sXG}\ns_lshr_b32 s7, s6, 1')
        a(f's_lshl_b32 s9, s7, 5\ns_lshl_b32 s10, {sWAVE}, 3\ns_add_u32 s9, s9, s10\ns_mul_i32 s9, s9, 896')
        a(f'v_lshrrev_b32 v2, 3, v0\nv_lshrrev_b32 v3, 4, v0\ns_and_b32 s10, {sWAVE}, 1\ns_lshl_b32 s10, s10, 2\nv_add_u32 v3, s10, v3')
        a('v_and_b32 v4, 7, v0\nv_xor_b32 v4, v4, v3\nv_mul_u32_u24 v2, 896, v2\nv_lshl_add_u32 v5, v4, 4, v2\nv_add_u32 v5, s9, v5')
        a(f'v_lshlrev_b32 v15, 4, v0\ns_lshl_b32 s11, {sWAVE}, 10\nv_add_u32 v6, s11, v15')
        self.after_kernarg()
        self.mk_srd(R_X, P_X, X_BYTES); self.mk_srd(R_B, P_U, X_BYTES)
        a(f's_bitcmp1_b32 s6, 0\ns_cselect_b32 s{R_W}, s{P_WV}, s{P_WK}\ns_cselect_b32 s{R_W+1}, s{P_WV+1}, s{P_WK+1}')
        a(f's_mov_b32 s{R_W+2}, {WK_BYTES}\ns_mov_b32 s{R_W+3}, 0x20000')
        self.mk_srd(R_OUT, P_OUT, OUT_BYTES)
        lnp = self.L('noprod')
        a(f's_cmp_ge_u32 {sXG}, 4\ns_cbranch_scc1 {lnp}')
        for kb in range(7):
            a(f's_mov_b32 s12, {kb*128}\ns_mov_b32 s13, {kb*4096}')
            a(f's_add_u32 m0, s11, {kb*4096}\nbuffer_load_dwordx4 v5, {srd(R_X)}, s12 offen lds')
            a(f's_add_u32 m0, s11, {28672 + kb*4096}\nbuffer_load_dwordx4 v6, {srd(R_W)}, s13 offen lds')
        a.label(lnp)
        a(f's_mul_i32 s12, {sWAVE}, 1792')
        a(f's_add_u32 m0, s12, {self.UTILE}\nbuffer_load_dwordx4 v7, {srd(R_B)}, 0 offen lds')
        a(f's_add_u32 m0, s12, {self.UTILE + 1024}\nbuffer_load_dwordx4 v8, {srd(R_B)}, 0 offen lds')

    def s_params(self):
        a = self.a
        a(f's_min_u32 s8, {sJ}, 27\ns_lshl_b32 s8, s8, 1\ns_mul_i32 s9, {sXG}, 56\ns_add_u32 s73, s8, s9')
        a(f's_lshl_b32 s8, s73, 1\ns_load_dword s71, {sp(P_LDT)}, s8\ns_load_dword s72, {sp(P_DSK)}, s8')
        a(f's_lshr_b32 s8, {sWAVE}, 1\ns_add_u32 s74, s73, s8')
        a(f's_lshl_b32 s8, s74, 9\ns_and_b32 s9, {sWAVE}, 1\ns_lshl_b32 s10, s9, 8\ns_add_u32 s8, s8, s10')
        a('v_lshl_add_u32 v2, v0, 2, s8')
        for i, p in enumerate((P_LAR, P_AIM, P_CRE, P_CIM)):
            a(f'global_load_dword v{16+i}, v2, {sp(p)}')
        lp = self.L('pc')
        a(f's_getpc_b64 s[12:13]')
        a.label(lp)
        a(f's_add_u32 s12, s12, L_table-{lp}\ns_addc_u32 s13, s13, 0')
        a('s_lshl_b32 s9, s9, 12\nv_lshl_add_u32 v3, v0, 6, s9')
        for i in range(4):
            a(f'global_load_dwordx4 {vr(20+4*i,4)}, v3, s[12:13] offset:{16*i}')
        return 8

    def s_kv(self, newer):
        a = self.a
        lskip = self.L('kvskip'); lv = self.L('kvV'); lst = self.L('kvst')
        a(f's_cmp_ge_u32 {sXG}, 4\ns_cbranch_scc1 {lskip}')
        a(f's_and_b32 s8, {sWAVE}, 1\ns_lshl_b32 s9, s8, 4\ns_lshr_b32 s10, {sWAVE}, 1')
        a('v_and_b32 v2, 15, v0\nv_add_u32 v3, s9, v2\nv_bfe_u32 v4, v3, 1, 3\nv_lshrrev_b32 v9, 4, v0\nv_xor_b32 v4, v4, v9\nv_lshlrev_b32 v3, 7, v3')
        a('v_lshl_add_u32 v10, v4, 4, v3\nv_xor_b32 v4, 4, v4\nv_lshl_add_u32 v11, v4, 4, v3')
        a('v_bfe_u32 v3, v0, 2, 2\nv_lshl_add_u32 v3, v9, 3, v3\nv_mul_u32_u24 v3, 56, v3\nv_and_b32 v4, 3, v0\nv_lshl_add_u32 v3, v4, 3, v3')
        a('s_lshl_b32 s9, s10, 5\ns_add_u32 s9, s9, 28672\nv_add_u32 v12, s9, v3')
        a('v_lshlrev_b32 v13, 4, v2\nv_bfe_u32 v3, v0, 4, 1\nv_lshl_add_u32 v13, v3, 9, v13\nv_lshrrev_b32 v3, 5, v0\nv_lshl_add_u32 v13, v3, 3, v13')
        a('s_bitcmp1_b32 s6, 0\ns_cselect_b32 s12, s8, s10\ns_cselect_b32 s13, s10, s8\ns_cselect_b32 s14, 2048, 0')
        a(f's_lshl_b32 s12, s12, 10\ns_lshl_b32 s13, s13, 8\ns_add_u32 s12, s12, s13\ns_add_u32 s12, s12, s14\ns_lshl_b32 s13, s7, 12\ns_add_u32 s12, s12, s13\ns_add_u32 s12, s12, {WS_KV}')
        a(f's_waitcnt vmcnt({newer})\ns_barrier')
        self.stamp(1)
        XF = 40; WF = 96; ACC = 36
        def rdk(ks):
            a(f'ds_read_b128 {vr(XF+4*ks,4)}, v{10+(ks&1)} offset:{(ks>>1)*4096}')
            for t in range(2):
                a(f'ds_read_b64_tr_b16 {vr(WF+4*ks+2*t,2)}, v12 offset:{(32*ks+4*t)*56}')
        for ks in range(4): rdk(ks)
        a('s_bitcmp1_b32 s6, 0')
        def chain(swap):
            for ks in range(14):
                if ks + 4 < 14: rdk(ks + 4)
                a(f's_waitcnt lgkmcnt({3*min(4, 13-ks)})')
                A, B = (vr(XF+4*ks,4), vr(WF+4*ks,4)) if swap else (vr(WF+4*ks,4), vr(XF+4*ks,4))
                c = '0' if ks == 0 else vr(ACC, 4)
                a(f'v_mfma_f32_16x16x32_bf16 {vr(ACC,4)}, {A}, {B}, {c}')
        a(f's_cbranch_scc1 {lv}')
        chain(False)
        a(f's_cmp_eq_u32 s10, 1\ns_cselect_b32 s14, 0xffff0000, 0\ns_mov_b32 s15, 0')
        a(f'v_cvt_pk_bf16_f32 v2, v{ACC}, v{ACC+1}\nv_cvt_pk_bf16_f32 v3, v{ACC+2}, v{ACC+3}')
        a('s_mov_b32 exec_lo, s15\ns_mov_b32 exec_hi, s14\nv_mov_b32 v2, 0x3f803f80\nv_mov_b32 v3, 0x00003f80\ns_mov_b64 exec, -1')
        a(f's_branch {lst}')
        a.label(lv)
        chain(True)
        a(f's_cmp_eq_u32 s10, 1\ns_cselect_b32 s14, 0xe000e000, 0\ns_cselect_b32 s15, 0x10001000, 0')
        a(f'v_cvt_pk_bf16_f32 v2, v{ACC}, v{ACC+1}\nv_cvt_pk_bf16_f32 v3, v{ACC+2}, v{ACC+3}')
        a('s_mov_b32 exec_lo, s14\ns_mov_b32 exec_hi, s14\nv_mov_b32 v2, 0\nv_mov_b32 v3, 0')
        a('s_mov_b32 exec_lo, s15\ns_mov_b32 exec_hi, s15\nv_mov_b32 v2, 0x3f803f80\nv_mov_b32 v3, 0x3f803f80\ns_mov_b64 exec, -1')
        a.label(lst)
        a(f'buffer_store_dwordx2 v[2:3], v13, {srd(R_WS)}, s12 offen sc1')
        if self.mode == 'fused': self.publish_kv()
        a.label(lskip)
        self.stamp(2)

    def s_ut(self):
        a = self.a
        a('s_waitcnt vmcnt(0)\ns_barrier')
        a(f'v_bfe_u32 v2, v0, 2, 2\nv_lshlrev_b32 v2, 2, v2\nv_add_u32 v2, {sWAVE}, v2\nv_mul_u32_u24 v2, 112, v2')
        a(f'v_lshrrev_b32 v3, 4, v0\nv_lshl_add_u32 v2, v3, 5, v2\nv_and_b32 v3, 3, v0\nv_lshl_add_u32 v2, v3, 3, v2')
        for half in range(2):
            for t in range(2):
                a(f'ds_read_b64_tr_b16 {vr(36+4*half+2*t,2)}, v2 offset:{self.UTILE + (32*half+16*t)*112}')
        a(f's_mul_i32 s8, {sXG}, {56*4096}\ns_lshl_b32 s9, {sJ}, 7\ns_add_u32 s8, s8, s9\ns_lshl_b32 s9, {sWAVE}, 5\ns_add_u32 s8, s8, s9\ns_add_u32 s8, s8, {WS_UT}')
        a('v_lshlrev_b32 v3, 12, v0\ns_mov_b32 exec_hi, 0x00ffffff\ns_waitcnt lgkmcnt(0)')
        a(f'buffer_store_dwordx4 v[36:39], v3, {srd(R_WS)}, s8 offen sc1')
        a(f'buffer_store_dwordx4 v[40:43], v3, {srd(R_WS)}, s8 offen offset:16 sc1')
        a('s_mov_b32 exec_hi, -1')
        if self.mode == 'fused': self.publish_grp(WS_FU)
        self.stamp(3)

    def s_kgen(self):
        a = self.a
        RS = 272
        a(f's_waitcnt lgkmcnt(0)\ns_bitcmp1_b32 {sWAVE}, 1\ns_cselect_b32 s8, 0, 16')
        a('s_lshl_b32 s9, s71, s8\ns_and_b32 s9, s9, 0xffff0000\ns_lshl_b32 s10, s72, s8\ns_and_b32 s72, s10, 0xffff0000')
        a(f'v_mov_b32 v2, s9\nv_mul_f32 v2, {f32(LOG2E)}, v2\nv_exp_f32 v2, v2\nv_cvt_pk_bf16_f32 v2, v2, v2\nv_and_b32 v2, 0xffff0000, v2')
        a(f'v_mul_f32 v3, {f32(-LOG2E)}, v2\nv_mul_f32 v4, 0.15915494309189532, v2\nv_add_f32 v5, v2, v2')
        a(f's_mul_i32 s11, {sWAVE}, {self.SCR}\ns_mov_b32 m0, s11')
        a(f'v_and_b32 v6, 31, v0\nv_mul_u32_u24 v9, {RS}, v6\nv_lshrrev_b32 v10, 5, v0\nv_lshl_add_u32 v9, v10, 4, v9\nv_add_u32 v9, s11, v9')
        a(f'v_mul_u32_u24 v11, 144, v6\nv_lshl_add_u32 v11, v10, 4, v11\nv_add_u32 v11, s11, v11')
        a('v_mov_b32 v12, 0x00003f80')
        ACC = 48; FR = 64
        W1, W8, W256 = 40, 42, 44
        def cmul(z, x, y, conj, t):
            a(f'v_pk_mul_f32 {vr(t,2)}, {vr(x,2)}, {vr(y,2)} op_sel_hi:[1,0]')
            a(f'v_pk_fma_f32 {vr(z,2)}, {vr(x,2)}, {vr(y,2)}, {vr(t,2)} op_sel:[1,1,0] op_sel_hi:[0,1,1] {"neg_hi" if conj else "neg_lo"}:[1,0,0]')
        cnt = [0]
        def put(z, row):
            t = 128 + (cnt[0] & 3); cnt[0] += 1
            a(f'v_cvt_pk_bf16_f32 v{t}, v{z}, v{z+1}\nds_write_addtid_b32 v{t} offset:{row*RS}')
        a('s_waitcnt vmcnt(0)')
        for rnd in range(2):
            ex = (lambda d, s: f'v_lshlrev_b32 v{d}, 16, v{s}') if rnd == 0 else (lambda d, s: f'v_and_b32 v{d}, 0xffff0000, v{s}')
            a(ex(36, 16)); a(ex(37, 17)); a(ex(132, 18)); a(ex(133, 19))
            a(f'v_mul_f32 v36, {f32(LOG2E)}, v36\nv_exp_f32 v36, v36\nv_mul_f32 v37, v37, v4\nv_cvt_pk_bf16_f32 v36, v36, v36\nv_and_b32 v36, 0xffff0000, v36\nv_mul_f32 v36, v36, v3')
            a('v_mul_f32 v132, v132, v5\nv_mul_f32 v133, -v133, v5')
            for W, m in ((W1, 1.0), (W8, 8.0), (W256, 256.0)):
                if m == 1.0: a('v_exp_f32 v38, v36\nv_fract_f32 v39, v37')
                else: a(f'v_mul_f32 v38, {f32(m)}, v36\nv_mul_f32 v39, {f32(m)}, v37\nv_exp_f32 v38, v38\nv_fract_f32 v39, v39')
                a(f'v_cos_f32 v{W}, v39\nv_sin_f32 v{W+1}, v39\nv_mul_f32 v{W}, v{W}, v38\nv_mul_f32 v{W+1}, v{W+1}, v38')
            if rnd == 1:
                a('s_waitcnt lgkmcnt(0)')
            a('ds_write_addtid_b32 v12 offset:0')
            put(W8, 1); put(132, 32)
            jobsL = []; cur = W8
            for b in range(2, 32):
                z = 134 + 2 * (b & 1); jobsL.append((z, cur, W8, False, 146, b)); cur = z
            H = {0: 132, 1: 138, 2: 140, 3: 138, 4: 142, 5: 138, 6: 144, 7: 138}
            jobsH = [(H[k], H[k-1], W1, True, 148, 32 + k) for k in range(1, 8)]
            jobsH += [(132, 132, W256, True, 148, 40), (140, 140, W256, True, 148, 41), (142, 142, W256, True, 148, 42), (144, 144, W256, True, 148, 43),
                      (132, 132, W256, True, 148, 44), (142, 142, W256, True, 148, 45), (132, 132, W256, True, 148, 46), (142, 142, W256, True, 148, 47)]
            jobsH += [(132, 132, W256, True, 148, 48 + k) for k in range(5)]
            il = []; n = len(jobsL)
            hi = 0
            for i, jl in enumerate(jobsL):
                il.append(jl)
                while hi < (i + 1) * len(jobsH) // n: il.append(jobsH[hi]); hi += 1
            mf = []
            if rnd == 1:
                mf = [f'v_mfma_f32_32x32x16_bf16 {vr(ACC,16)}, {vr(FR+8*q,4)}, {vr(FR+8*q+4,4)}, {"0" if q == 0 else vr(ACC,16)}' for q in range(8)]
                for x in mf: a(x)
            for (z, x, y, cj, t, row) in il:
                cmul(z, x, y, cj, t); put(z, row)
            a('s_waitcnt lgkmcnt(0)')
            for q in range(8):
                a(f'ds_read_b128 {vr(FR+8*q,4)}, v9 offset:{32*q}\nds_read_b128 {vr(FR+8*q+4,4)}, v9 offset:{32*RS + 32*q}')
        for q in range(8):
            a(f's_waitcnt lgkmcnt({14-2*q})')
            a(f'v_mfma_f32_32x32x16_bf16 {vr(ACC,16)}, {vr(FR+8*q,4)}, {vr(FR+8*q+4,4)}, {vr(ACC,16)}')
        a(f's_and_b32 s8, {sWAVE}, 2\ns_mul_i32 s8, s8, {self.SCR}')
        for k in range(16): a(f'v_add_u32 v{20+k}, s8, v{20+k}')
        for g in range(4): a(f'ds_write_b128 v11, {vr(ACC+4*g,4)} offset:{32*g}')
        a(f's_lshr_b32 s8, {sWAVE}, 1\ns_mul_i32 s8, s8, 4160\ns_add_u32 s75, s8, {self.KB}\ns_and_b32 s9, {sWAVE}, 1\ns_lshl_b32 s10, s9, 11\ns_add_u32 s10, s10, s75')
        a('v_lshl_add_u32 v13, v0, 5, s10\nv_mov_b32 v14, 0')
        a('s_cmp_eq_u32 s9, 0\ns_cselect_b32 exec_lo, 1, 0\ns_mov_b32 exec_hi, 0\nv_mov_b32 v14, s72\ns_mov_b64 exec, -1')
        a('s_waitcnt lgkmcnt(0)\ns_barrier')
        G = 64
        for k in range(16): a(f'ds_read2st64_b32 {vr(G+2*k,2)}, v{20+k} offset1:57')
        a('v_lshl_add_u32 v2, v0, 2, s75\nv_mov_b32 v3, 0\ns_mov_b64 exec, 0xffff\nds_write_b32 v2, v3\ns_mov_b64 exec, -1')
        for k in range(16):
            if k % 4 == 0: a(f's_waitcnt lgkmcnt({13-k})')
            a(f'v_add_f32 v{G+2*k}, v{G+2*k}, v{G+2*k+1}')
            if k == 0: a(f'v_add_f32 v{G}, v{G}, v14')
        for k in range(8): a(f'v_cvt_pk_bf16_f32 v{100+k}, v{G+4*k}, v{G+4*k+2}')
        a('ds_write_b128 v13, v[100:103] offset:64\nds_write_b128 v13, v[104:107] offset:80')
        self.stamp(4)

    def s_conv(self):
        a = self.a
        a(f's_lshl_b32 s8, s74, 12\ns_and_b32 s9, {sWAVE}, 1\ns_lshl_b32 s10, s9, 11\ns_add_u32 s8, s8, s10\ns_add_u32 s8, s8, {WS_UT}')
        for i in range(2): a(f'buffer_load_dwordx4 {vr(16+4*i,4)}, v15, {srd(R_WS)}, s8 offen offset:{1024*i} sc1')
        a(f's_lshr_b32 s10, {sWAVE}, 1\ns_mul_i32 s11, s10, 4608\ns_add_u32 s11, s11, {self.UB}')
        a('v_bfe_u32 v2, v0, 1, 2\nv_mul_u32_u24 v2, 1152, v2\nv_lshrrev_b32 v3, 3, v0\nv_lshl_add_u32 v2, v3, 5, v2\nv_and_b32 v3, 1, v0\nv_lshl_add_u32 v2, v3, 4, v2')
        a('s_lshl_b32 s12, s9, 9\ns_add_u32 s12, s12, s11\nv_add_u32 v2, s12, v2')
        a('v_lshrrev_b32 v3, 3, v0\nv_mul_u32_u24 v3, 1152, v3\nv_and_b32 v4, 7, v0\nv_lshl_add_u32 v3, v4, 4, v3\nv_add_u32 v3, s11, v3')
        a('v_mov_b32 v24, 0\nv_mov_b32 v25, 0\nv_mov_b32 v26, 0\nv_mov_b32 v27, 0')
        a('s_mov_b32 exec_hi, 0\nds_write_b128 v3, v[24:27]\ns_mov_b32 exec_hi, -1')
        a('v_and_b32 v4, 1, v0\nv_lshlrev_b32 v4, 4, v4\nv_bfe_u32 v5, v0, 1, 1\nv_lshl_add_u32 v4, v5, 2, v4\nv_bfe_u32 v5, v0, 4, 1\nv_lshl_add_u32 v4, v5, 3, v4')
        a('v_lshrrev_b32 v6, 5, v0\nv_lshlrev_b32 v5, 5, v6\nv_sub_u32 v4, v4, v5\nv_bfe_u32 v5, v0, 2, 2\nv_lshlrev_b32 v5, 2, v5\nv_sub_u32 v4, v4, v5')
        a('s_add_u32 s12, s75, 96\nv_lshl_add_u32 v9, v4, 1, s12')
        a('v_bfe_u32 v4, v0, 3, 2\nv_mul_u32_u24 v5, 1152, v4\nv_and_b32 v7, 7, v0\nv_add_u32 v8, v7, v6\nv_lshl_add_u32 v5, v8, 4, v5\ns_add_u32 s12, s11, 16\nv_add_u32 v10, s12, v5')
        a('v_lshrrev_b32 v8, 1, v7\nv_and_b32 v5, 1, v7\nv_lshl_or_b32 v8, v5, 2, v8\nv_lshlrev_b32 v5, 2, v6\nv_xor_b32 v8, v8, v5')
        a('v_lshlrev_b32 v4, 13, v4\nv_lshl_add_u32 v4, v7, 7, v4\ns_lshl_b32 s12, s10, 15\nv_add_u32 v4, s12, v4')
        for g in range(4): a(f'v_xor_b32 v5, {g}, v8\nv_lshl_add_u32 v{11+g}, v5, 4, v4')
        a('s_waitcnt vmcnt(0)')
        a('ds_write_b128 v2, v[16:19] offset:128\nds_write_b128 v2, v[20:23] offset:384')
        a('s_waitcnt lgkmcnt(0)\ns_barrier')
        self.stamp(5)
        D = 16; BF = (80, 112); TF = (144, 176)
        l1 = self.L('cv1'); lj = self.L('cvj')
        a(f's_cmp_eq_u32 s9, 0\ns_cbranch_scc0 {l1}')
        def variant(tset):
            mmax = max(tset)
            ops = []
            mf = []
            reads = []
            seen = set(); started = set()
            for r in range(4):
                pb = r & 1
                for jj in range(mmax + 1):
                    for ti, t in enumerate(tset):
                        if t < jj: continue
                        m = t - jj
                        nb = ('B', r, m); nt = ('T', r, jj)
                        for k in (nt, nb):
                            if k not in seen:
                                seen.add(k)
                                if k[0] == 'B':
                                    reads.append((k, [f'ds_read_b128 {vr(BF[pb]+4*m,4)}, v10 offset:{32*(4*m - r + 3)}']))
                                else:
                                    mu = 4*jj + r
                                    reads.append((k, [f'ds_read_b64_tr_b16 {vr(TF[pb]+4*jj+2*tt,2)}, v9 offset:{128*mu + 32*(1-tt)}' for tt in range(2)]))
                        c = vr(D+16*ti, 16) if t in started else '0'
                        started.add(t)
                        mf.append((f'v_mfma_f32_32x32x16_bf16 {vr(D+16*ti,16)}, {vr(TF[pb]+4*jj,4)}, {vr(BF[pb]+4*m,4)}, {c}', (nb, nt), r))
            flat = []; endpos = {}
            for k, xs in reads:
                for x in xs: flat.append((x, k))
                endpos[k] = len(flat)
            issued = 0; done = 0
            lastuse = {}
            for i, (_, needs, r) in enumerate(mf):
                lastuse[r] = i
            for i, (txt, needs, r) in enumerate(mf):
                need = max(endpos[k] for k in needs)
                tgt = min(len(flat), need + 12)
                while issued < tgt:
                    kk = flat[issued][1]
                    if kk[1] >= r + 2: break
                    a(flat[issued][0]); issued += 1
                if need > done:
                    n = issued - need
                    assert n <= 15
                    a(f's_waitcnt lgkmcnt({n})'); done = need
                a(txt)
            a('s_barrier')
            for ti, t in enumerate(tset):
                for g in range(4): a(f'ds_write_b128 v{11+g}, {vr(D+16*ti+4*g,4)} offset:{t*1024}')
        variant([7, 4, 3, 0]); a(f's_branch {lj}')
        a.label(l1); variant([6, 5, 2, 1])
        a.label(lj)
        a('s_lshl_b32 s12, s9, 6\nv_add_u32 v2, s12, v0\nv_lshrrev_b32 v3, 1, v2\nv_and_b32 v4, 1, v2')
        def fa(dst, av): a(f'v_bfe_u32 {dst}, {av}, 1, 2\nv_and_b32 v8, 1, {av}\nv_lshl_or_b32 {dst}, v8, 2, {dst}')
        fa('v5', 'v3')
        a('v_lshlrev_b32 v6, 2, v4\nv_xor_b32 v5, v5, v6\ns_lshl_b32 s12, s10, 15\nv_lshlrev_b32 v6, 7, v3\nv_add_u32 v6, s12, v6')
        for k in range(4): a(f'v_xor_b32 v7, {k}, v5\nv_lshl_add_u32 v{10+k}, v7, 4, v6')
        a('v_xor_b32 v7, 1, v4\nv_sub_u32 v3, v3, v7\nv_max_i32 v3, 0, v3')
        fa('v5', 'v3')
        a('v_lshlrev_b32 v7, 2, v7\nv_add_u32 v7, 3, v7\nv_xor_b32 v5, v5, v7\nv_lshlrev_b32 v6, 7, v3\nv_add_u32 v6, s12, v6\nv_lshl_add_u32 v14, v5, 4, v6')
        a(f's_lshl_b32 s8, s74, 12\ns_add_u32 s8, s8, {WS_YT}\nv_lshlrev_b32 v9, 5, v2')
        a('s_waitcnt lgkmcnt(0)\ns_barrier')
        Y = [16, 36, 56, 76]
        for ph in range(4):
            if ph: a(f'ds_read_b128 {vr(Y[ph],4)}, v14 offset:{ph*8192}')
            for k in range(4): a(f'ds_read_b128 {vr(Y[ph]+4+4*k,4)}, v{10+k} offset:{ph*8192}')
            if ph == 1: a('s_cmp_eq_u32 s9, 0\ns_cselect_b32 s13, 1, 0')
        for ph in range(1, 4):
            a(f's_waitcnt lgkmcnt({5*(3-ph)})')
            a('s_mov_b32 exec_lo, s13\ns_mov_b32 exec_hi, 0')
            for k in range(4 - ph, 4): a(f'v_mov_b32 v{Y[ph]+k}, 0')
            a('s_mov_b64 exec, -1')
            for k in range(16): a(f'v_add_f32 v{20+k}, v{20+k}, v{Y[ph]+4+k-ph}')
        for k in range(8): a(f'v_cvt_pk_bf16_f32 v{96+k}, v{20+2*k}, v{21+2*k}')
        a(f'buffer_store_dwordx4 v[96:99], v9, {srd(R_WS)}, s8 offen sc1')
        a(f'buffer_store_dwordx4 v[100:103], v9, {srd(R_WS)}, s8 offen offset:16 sc1')
        self.stamp(6)

    def s_assemble(self):
        a = self.a
        a(f'v_lshrrev_b32 v2, 3, v0\nv_and_b32 v3, 7, v0\nv_lshlrev_b32 v3, 4, v3\nv_lshl_add_u32 v4, v2, 12, v3')
        a(f's_mul_i32 s8, {sXG}, 56\ns_lshl_b32 s9, {sWAVE}, 3\ns_add_u32 s8, s8, s9\ns_lshl_b32 s8, s8, 12\ns_lshl_b32 s10, {sJ}, 7\ns_add_u32 s8, s8, s10\ns_add_u32 s8, s8, {WS_YT}')
        a(f's_add_u32 s11, s8, {32*4096}\ns_cmp_eq_u32 {sWAVE}, 3\ns_cselect_b32 s11, s8, s11')
        a(f'buffer_load_dwordx4 v[16:19], v4, {srd(R_WS)}, s8 offen sc1')
        a(f'buffer_load_dwordx4 v[20:23], v4, {srd(R_WS)}, s11 offen sc1')
        a('v_add_u32 v2, s9, v2\nv_mul_u32_u24 v2, 160, v2\nv_add_u32 v2, v2, v3')
        a('v_bfe_u32 v5, v0, 2, 2\nv_add_u32 v5, s9, v5\nv_mul_u32_u24 v5, 160, v5\nv_lshrrev_b32 v6, 4, v0\nv_lshl_add_u32 v5, v6, 5, v5\nv_and_b32 v6, 3, v0\nv_lshl_add_u32 v5, v6, 3, v5')
        a(f's_mul_i32 s8, {sJ}, {64*1792}\ns_mul_i32 s10, {sXG}, 112\ns_add_u32 s8, s8, s10\ns_lshl_b32 s10, {sWAVE}, 4\ns_add_u32 s8, s8, s10')
        a('v_mul_u32_u24 v6, 1792, v0')
        a('s_waitcnt vmcnt(0)')
        a(f'ds_write_b128 v2, v[16:19]\nds_write_b128 v2, v[20:23] offset:{32*160}')
        a('s_waitcnt lgkmcnt(0)\ns_barrier')
        for o in range(2):
            for t in range(2): a(f'ds_read_b64_tr_b16 {vr(24+4*o+2*t,2)}, v5 offset:{(32*o+4*t)*160}')
        a('s_waitcnt lgkmcnt(0)')
        a(f'buffer_store_dwordx4 v[24:27], v6, {srd(R_OUT)}, s8 offen')
        lsk = self.L('as3')
        a(f's_cmp_eq_u32 {sWAVE}, 3\ns_cbranch_scc1 {lsk}')
        a(f'buffer_store_dwordx4 v[28:31], v6, {srd(R_OUT)}, s8 offen offset:64')
        a.label(lsk)
        self.stamp(7)

    def kernel_head(self, name):
        self.lend = f'L_end_{name}'
        self.a(f'.globl {name}\n.p2align 8\n.type {name},@function')
        self.a.label(name)
    def kernel_tail(self):
        self.a.label(self.lend)
        self.a('s_endpgm')

    def build_multi(self):
        a = self.a
        self.kernel_head('k1_kernel'); self.prologue(256)
        self.s_start(); self.s_kv(2); self.s_ut(); self.stamp_flush(8); self.kernel_tail()
        self.kernel_head('k2_kernel'); self.prologue(512)
        la = self.L('roleA')
        a(f's_cmp_ge_u32 s2, 256\ns_cbranch_scc1 {la}')
        a(f's_cmp_ge_u32 {sJ}, 28\ns_cbranch_scc1 {self.lend}')
        a('v_lshlrev_b32 v15, 4, v0')
        self.after_kernarg(); self.s_params(); self.s_kgen(); self.s_conv(); self.stamp_flush(8)
        a('s_endpgm')
        a.label(la)
        self.a_qproj(); self.a_attn(); self.stamp_flush(8); self.kernel_tail()
        self.kernel_head('k3_kernel'); self.prologue(512)
        la = self.L('roleA')
        a(f's_cmp_ge_u32 s2, 256\ns_cbranch_scc1 {la}')
        self.after_kernarg(); self.mk_srd(R_OUT, P_OUT, OUT_BYTES); self.s_assemble(); a('s_endpgm')
        a.label(la)
        self.a_outproj_pro(); self.a_outproj(); self.kernel_tail()
        return ['k1_kernel', 'k2_kernel', 'k3_kernel'], [256, 512, 512]

def table():
    import numpy as np
    def rne_bf16(j):
        u = struct.unpack('<I', struct.pack('<f', float(j)))[0]
        u = (u + 0x7fff + ((u >> 16) & 1)) & 0xffff0000
        return int(struct.unpack('<f', struct.pack('<I', u))[0])
    hi = [0,1,2,3,4,5,6,7, 256,258,260,262, 512,516,768,772, 1024,1280,1536,1792, 2048]
    out = []
    for j in range(2048):
        p = rne_bf16(j)
        b = (p >> 3) & 31
        out.append(hi.index(p - 8 * b) * 144 + 4 * b)
    return out

def main():
    mode = sys.argv[1]; outp = sys.argv[2]; stamps = len(sys.argv) > 3 and sys.argv[3] == 'stamps'
    g = Gen(mode, stamps)
    names, grids = g.build_multi() if mode == 'multi' else g.build_fused()
    body = g.a.finalize(verbose='-v' in sys.argv)
    head = open('cdna_kernels/' + NAME + '.s.ref').read().split('; Override launch geometry')[0]
    txt = head
    if mode == 'multi':
        for n, gr in zip(names, grids): txt += f'; @launch kernel={n} grid=({gr},1,1) block=(256,1,1) lds=81920\n'
    else:
        txt += f'; @launch grid=({grids[0]},1,1) block=(256,1,1) lds=81920\n'
    txt += '.amdgcn_target "amdgcn-amd-amdhsa--gfx950"\n.text\n' + body
    txt += '.p2align 6\n.type L_table,@object\nL_table:\n'
    t = table()
    for i in range(0, 2048, 16): txt += '.long ' + ','.join(str(x) for x in t[i:i+16]) + '\n'
    txt += '.section .rodata,"a"\n'
    for n in names:
        txt += f'''.p2align 6
.amdhsa_kernel {n}
  .amdhsa_next_free_vgpr 256
  .amdhsa_next_free_sgpr 96
  .amdhsa_accum_offset 256
  .amdhsa_group_segment_fixed_size 0
  .amdhsa_kernarg_size 120
  .amdhsa_user_sgpr_count 2
  .amdhsa_user_sgpr_kernarg_segment_ptr 1
  .amdhsa_system_sgpr_workgroup_id_x 1
.end_amdhsa_kernel
'''
    open(outp, 'w').write(txt)
    print('written', outp, 'nops inserted', g.a.n_nops, 'lines', len(g.a.lines))

if __name__ == '__main__':
    main()
```

```python
import sys, struct, math
from asmdsl import Asm

NAME = 'concat_heads__ssm_conv_s4d__grouped_kv_mqa__prompt'
X_BYTES = 2048 * 896; WQ_BYTES = 448 * 896; WK_BYTES = 448 * 56; OUT_BYTES = 2048 * 1792
WS_E = 0; WS_FKV = 0x1000; WS_FU = 0x9000; WS_FY = 0xA000; WS_FO = 0xB000
WS_KV = 0x10000; WS_O = 0x100000; WS_UT = 0x300000; WS_YT = 0x500000; WS_ST = 0x700000; WS_BYTES = 0x800000
NREP = 32
def f32(x): return '0x%08x' % struct.unpack('<I', struct.pack('<f', x))[0]
LOG2E = math.log2(math.e)
CSCALE = LOG2E / math.sqrt(28.0)

sWAVE = 's3'; sXG = 's4'; sJ = 's5'
P_U, P_LAR, P_AIM, P_CRE, P_CIM, P_LDT, P_DSK, P_X = [16 + 2 * i for i in range(8)]
P_WQ, P_WK, P_WV, P_WO = 32, 34, 36, 38
P_OUT, P_DBG, P_WS = 40, 42, 44
sNONCE = 's46'
R_X = 48; R_W = 52; R_WS = 56; R_OUT = 60; R_B = 64
def srd(r): return f's[{r}:{r+3}]'
def sp(r): return f's[{r}:{r+1}]'
def vr(a, n): return f'v[{a}:{a+n-1}]' if n > 1 else f'v{a}'

def OPT(x): return x in sys.argv
class Gen:
    def __init__(self, mode, stamps=False):
        self.a = Asm(); self.mode = mode; self.stamps = stamps; self.uid = 0
    def L(self, base):
        self.uid += 1
        return f'L_{base}_{self.uid}'
    def mk_srd(self, r, p, nbytes):
        self.a(f's_mov_b32 s{r}, s{p}\ns_mov_b32 s{r+1}, s{p+1}\ns_mov_b32 s{r+2}, {hex(nbytes)}\ns_mov_b32 s{r+3}, 0x20000')
    def stamp(self, i):
        if self.stamps and not (OPT('early') and i > 0):
            self.a(f's_memrealtime s[{76+2*i}:{77+2*i}]')
    def estamp(self, i):
        if self.stamps and OPT('early'):
            self.a(f's_memrealtime s[{76+2*i}:{77+2*i}]')
    def cstamp(self, i):
        if self.stamps:
            self.a(f's_memtime s[{76+2*i}:{77+2*i}]')
    def stamp_flush(self, n):
        if not self.stamps: return
        a = self.a
        a('s_waitcnt lgkmcnt(0)')
        a(f's_lshl_b32 s6, s2, 2\ns_add_u32 s6, s6, {sWAVE}\ns_lshl_b32 s6, s6, 6\ns_add_u32 s6, s6, {WS_ST}')
        a('v_mov_b32 v1, s6')
        for i in range(n):
            a(f'v_mov_b32 v2, s{76+2*i}\nbuffer_store_dword v2, v1, {srd(R_WS)}, 0 offen offset:{4*i}')
        a('s_getreg_b32 s7, hwreg(HW_REG_XCC_ID)\nv_mov_b32 v2, s7')
        a(f'buffer_store_dword v2, v1, {srd(R_WS)}, 0 offen offset:60')

    def prologue(self, nwg):
        a = self.a
        self.stamp(0)
        a(f's_cmp_ge_u32 s2, {nwg}\ns_cbranch_scc1 {self.lend}')
        a('s_load_dwordx16 s[16:31], s[0:1], 0\ns_load_dwordx8 s[32:39], s[0:1], 64')
        a('s_load_dwordx4 s[40:43], s[0:1], 96\ns_load_dwordx2 s[44:45], s[0:1], 112')
        a('v_lshrrev_b32 v1, 6, v0\nv_and_b32 v0, 63, v0')
        a(f's_and_b32 {sXG}, s2, 7\ns_bfe_u32 {sJ}, s2, 0x50003')
        a(f'v_readfirstlane_b32 {sWAVE}, v1')

    def after_kernarg(self):
        a = self.a
        self.estamp(1)
        a('s_waitcnt lgkmcnt(0)')
        self.estamp(2)
        if self.mode == 'fused':
            a(f's_load_dword {sNONCE}, {sp(P_WS)}, {WS_E}')
        self.mk_srd(R_WS, P_WS, WS_BYTES)

    def row7_addr(self, v0, v1, tmp, rowstride):
        a = self.a
        for v, add in ((v0, 0), (v1, 64)):
            if add: a(f'v_add_u32 {tmp}, {add}, v0')
            else: a(f'v_mov_b32 {tmp}, v0')
            a(f'v_mul_u32_u24 {v}, 147, {tmp}\nv_lshrrev_b32 {v}, 10, {v}')
            a(f'v_mul_u32_u24 {v}, {rowstride - 112}, {v}')
            a(f'v_lshl_add_u32 {v}, {tmp}, 4, {v}')

    def a_qproj(self):
        a = self.a
        XB = 0; WB = 40960; QX = XB + 16384
        sQB = 's6'; sHP = 's7'
        a(f's_lshr_b32 s8, {sJ}, 3\ns_lshl_b32 {sQB}, {sXG}, 2\ns_add_u32 {sQB}, {sQB}, s8\ns_and_b32 {sHP}, {sJ}, 7')
        a(f's_lshl_b32 s8, {sWAVE}, 4\ns_lshl_b32 s9, {sQB}, 6\ns_add_u32 s9, s9, s8\ns_mul_i32 s9, s9, 896')
        a('v_lshrrev_b32 v2, 3, v0\nv_lshrrev_b32 v3, 4, v0\nv_and_b32 v4, 7, v0')
        a('v_xor_b32 v4, v4, v3\nv_mul_u32_u24 v2, 896, v2')
        a('v_lshl_add_u32 v5, v4, 4, v2\nv_add_u32 v5, s9, v5')
        a('v_xor_b32 v4, 4, v4\nv_lshl_add_u32 v6, v4, 4, v2\nv_add_u32 v6, s9, v6\nv_add_u32 v6, 7168, v6')
        self.row7_addr('v7', 'v8', 'v2', 896)
        a(f's_mul_i32 s9, s8, 896\ns_mul_i32 s10, {sHP}, 112\ns_add_u32 s9, s9, s10')
        a('v_add_u32 v7, s9, v7\nv_add_u32 v8, s9, v8')
        self.after_kernarg()
        self.mk_srd(R_X, P_X, X_BYTES); self.mk_srd(R_W, P_WQ, WQ_BYTES)
        a(f's_lshl_b32 s10, {sWAVE}, 11\ns_mul_i32 s11, {sWAVE}, 1792\ns_add_u32 s11, s11, {WB}')
        for kb in range(5):
            a(f's_mov_b32 s12, {kb*128}\ns_mov_b32 s13, {kb*64*896}')
            a(f's_add_u32 m0, s10, {XB + kb*8192}\nbuffer_load_dwordx4 v5, {srd(R_X)}, s12 offen lds')
            a(f's_add_u32 m0, s10, {XB + kb*8192 + 1024}\nbuffer_load_dwordx4 v6, {srd(R_X)}, s12 offen lds')
            a(f's_add_u32 m0, s11, {kb*7168}\nbuffer_load_dwordx4 v7, {srd(R_W)}, s13 offen lds')
            a(f's_add_u32 m0, s11, {kb*7168 + 1024}\nbuffer_load_dwordx4 v8, {srd(R_W)}, s13 offen lds')
        ST = 192
        for i, kb in enumerate((5, 6)):
            a(f's_mov_b32 s12, {kb*128}\ns_mov_b32 s13, {kb*64*896}')
            a(f'buffer_load_dwordx4 {vr(ST+16*i,4)}, v5, {srd(R_X)}, s12 offen')
            a(f'buffer_load_dwordx4 {vr(ST+16*i+4,4)}, v6, {srd(R_X)}, s12 offen')
            a(f'buffer_load_dwordx4 {vr(ST+16*i+8,4)}, v7, {srd(R_W)}, s13 offen')
            a(f'buffer_load_dwordx4 {vr(ST+16*i+12,4)}, v8, {srd(R_W)}, s13 offen')
        self.mk_srd(R_B, P_WO, WQ_BYTES); self.mk_srd(R_OUT, P_OUT, OUT_BYTES)
        T = 0
        self.estamp(3)
        if self.mode == 'fused' and not OPT('notlb'):
            a('v_lshlrev_b32 v2, 17, v0')
            a(f'buffer_load_dword v224, v2, {srd(R_WS)}, 0 offen')
            a(f'buffer_load_dword v225, v2, {srd(R_OUT)}, 0 offen')
            a(f'buffer_load_dword v226, v2, {srd(R_B)}, 0 offen')
            T = 3
        a(f's_and_b32 s8, {sWAVE}, 1\ns_lshl_b32 s8, s8, 5')
        a('v_and_b32 v2, 31, v0\nv_add_u32 v2, s8, v2\nv_bfe_u32 v3, v2, 1, 3\nv_lshrrev_b32 v4, 5, v0\nv_xor_b32 v3, v3, v4\nv_lshlrev_b32 v2, 7, v2')
        for ks in range(4):
            a(f'v_xor_b32 v9, {2*ks}, v3\nv_lshl_add_u32 v{10+ks}, v9, 4, v2')
        a('v_bfe_u32 v2, v0, 2, 2\nv_lshl_add_u32 v2, v4, 3, v2\nv_mul_u32_u24 v2, 112, v2')
        a('v_bfe_u32 v3, v0, 4, 1\nv_lshl_add_u32 v2, v3, 5, v2\nv_and_b32 v3, 3, v0\nv_lshl_add_u32 v2, v3, 3, v2')
        a(f's_lshr_b32 s8, {sWAVE}, 1\ns_mul_i32 s8, s8, 56\ns_add_u32 s8, s8, {WB}\nv_add_u32 v14, s8, v2')
        a('v_lshlrev_b32 v15, 4, v0\nv_add_u32 v9, s10, v15\nv_add_u32 v1, s11, v15')
        SETS = (112, 144)
        ACC = 48
        def reads(kb, s):
            reg = kb if kb < 5 else kb - 5
            for ks in range(4):
                a(f'ds_read_b128 {vr(SETS[s]+4*ks,4)}, v{10+ks} offset:{XB + reg*8192}')
                for t in range(2):
                    a(f'ds_read_b64_tr_b16 {vr(SETS[s]+16+4*ks+2*t,2)}, v14 offset:{reg*7168 + (16*ks+4*t)*112}')
        def mm(s, first=False):
            for ks in range(4):
                c = '0' if (first and ks == 0) else vr(ACC, 16)
                a(f'v_mfma_f32_32x32x16_bf16 {vr(ACC,16)}, {vr(SETS[s]+16+4*ks,4)}, {vr(SETS[s]+4*ks,4)}, {c}')
        for kb in range(5):
            a(f's_waitcnt vmcnt({24 - 4*kb + T})\ns_barrier')
            if kb == 0: self.stamp(1); self.estamp(4)
            if kb == 2: self.estamp(5)
            if kb == 4: self.estamp(6)
            reads(kb, kb & 1)
            if kb:
                a('s_waitcnt lgkmcnt(12)'); mm((kb - 1) & 1, first=(kb == 1))
        a(f's_waitcnt vmcnt({T})')
        for i in range(2):
            a(f'ds_write_b128 v9, {vr(ST+16*i,4)} offset:{XB + i*8192}')
            a(f'ds_write_b128 v9, {vr(ST+16*i+4,4)} offset:{XB + i*8192 + 1024}')
            a(f'ds_write_b128 v1, {vr(ST+16*i+8,4)} offset:{i*7168}')
        a('s_mov_b32 exec_hi, 0xffff')
        for i in range(2):
            a(f'ds_write_b128 v1, {vr(ST+16*i+12,4)} offset:{i*7168 + 1024}')
        a('s_mov_b32 exec_hi, -1')
        a('s_waitcnt lgkmcnt(0)\ns_barrier')
        reads(5, 1); mm(0); reads(6, 0)
        a('s_waitcnt lgkmcnt(12)'); mm(1)
        a('s_waitcnt lgkmcnt(0)'); mm(0)
        a(f's_lshl_b32 s8, {sWAVE}, 11\ns_add_u32 s8, s8, {QX}\nv_add_u32 v2, s8, v15\ns_mov_b32 s12, {f32(CSCALE)}')
        for js in range(4):
            a(f's_add_u32 s8, {sWAVE}, {1+js}\ns_and_b32 s8, s8, 3\ns_lshl_b32 s9, s8, 11\ns_add_u32 s9, s9, {QX}\nv_add_u32 v{10+js}, s9, v15')
            if js < 3:
                a(f's_mul_i32 s9, s8, 12288\nv_add_u32 v{3+js}, s9, v15')
        for r in range(16): a(f'v_mul_f32 v{ACC+r}, s12, v{ACC+r}')
        for r in range(8): a(f'v_cvt_pk_bf16_f32 v{64+r}, v{ACC+2*r}, v{ACC+2*r+1}')
        a('s_mov_b32 exec_lo, 0\nv_mov_b32 v70, 0\nv_mov_b32 v71, 0\ns_mov_b32 exec_lo, -1')
        a('ds_write_b128 v2, v[64:67]\nds_write_b128 v2, v[68:71] offset:1024')
        a('s_waitcnt lgkmcnt(0)\ns_barrier')
        for js in range(4):
            a(f'ds_read_b128 {vr(16+8*js,4)}, v{10+js}\nds_read_b128 {vr(20+8*js,4)}, v{10+js} offset:1024')
        self.stamp(2); self.estamp(7)

    def a_attn(self):
        a = self.a
        Q = 16; O = 48; KV = 112; SS = (144, 160); PP = (176, 184)
        K = lambda buf, f: vr(KV + 16*buf + 4*f, 4)
        Vv = lambda buf, f: vr(KV + 16*buf + 8 + 4*f, 4)
        sT = 's14'; sB = 's15'; sOFF = 's68'; sOFV = 's69'; sCNT = 's70'
        a(f's_lshl_b32 {sB}, {sWAVE}, 16\ns_add_u32 {sB}, {sB}, {WS_KV}\ns_and_b32 {sT}, {sJ}, 15\ns_lshl_b32 {sT}, {sT}, 12')
        for r in range(64): a(f'v_mov_b32 v{O+r}, 0')
        for r in range(8): a(f'v_mov_b32 v{PP[1]+r}, 0\nv_mov_b32 v{KV+24+r}, 0')
        if self.mode == 'fused': self.wait_kv()
        self.stamp(3); self.cstamp(8)
        def nxt():
            return f's_add_u32 {sT}, {sT}, 4096\ns_and_b32 {sT}, {sT}, 0xffff\ns_add_u32 {sOFF}, {sB}, {sT}'
        NOLD = 'nold' in sys.argv
        def ldK(buf, off): return ['s_nop 0','s_nop 0'] if NOLD and self.inloop else [f'buffer_load_dwordx4 {K(buf,f)}, v15, {srd(R_WS)}, {off} offen offset:{1024*f} sc1' for f in range(2)]
        def ldV(buf, off): return ['s_nop 0','s_nop 0'] if NOLD and self.inloop else [f'buffer_load_dwordx4 {Vv(buf,f)}, v15, {srd(R_WS)}, {off} offen offset:{2048+1024*f} sc1' for f in range(2)]
        self.inloop = False
        a(f's_add_u32 {sOFF}, {sB}, {sT}')
        for x in ldK(0, sOFF) + ldV(0, sOFF): a(x)
        a(nxt())
        for x in ldK(1, sOFF): a(x)
        def mA(u, buf, f):
            s = SS[u & 1]; c = '0' if f == 0 else vr(s, 16)
            return f'v_mfma_f32_32x32x16_bf16 {vr(s,16)}, {K(buf,f)}, {vr(Q + 8*(u&3) + 4*f, 4)}, {c}'
        def mC(u, buf, f):
            o = vr(O + 16*(u & 3), 16)
            return f'v_mfma_f32_32x32x16_bf16 {o}, {Vv(buf,f)}, {vr(PP[u&1] + 4*f, 4)}, {o}'
        a('s_waitcnt vmcnt(4) lgkmcnt(0)')
        a(mA(0, 0, 0)); a(mA(0, 0, 1))
        a(f's_mov_b32 {sCNT}, 7')
        def unit(u, mf, extra):
            s = SS[u & 1]; p = PP[u & 1]
            e = lambda i: f'v_exp_f32 v{s+i}, v{s+i}'
            c = lambda i: f'v_cvt_pk_bf16_f32 v{p+i}, v{s+2*i}, v{s+2*i+1}'
            seq = [[e(0), e(1), e(2), e(3), c(0), e(4)], [e(5), c(1), e(6), e(7), c(2), e(8)],
                   [e(9), c(3), e(10), e(11), c(4), e(12)], [e(13), c(5), e(14), e(15), c(6), c(7)]]
            for i in range(4):
                for x in extra.get(('pre', i), []): a(x)
                if mf[i]: a(mf[i])
                for x in extra.get(i, []): a(x)
                for x in seq[i]: a(x)
        lloop = self.L('attn'); self.inloop = True
        def body(tail):
            for u in range(8):
                t = u >> 2; b = u & 3
                nu = u + 1; nbuf = (nu >> 2) & 1
                pu = u - 1; pbuf = ((pu >> 2) & 1)
                mf = [mA(nu, nbuf, 0), mA(nu, nbuf, 1), mC(pu, pbuf, 0), mC(pu, pbuf, 1)]
                ex = {}
                if tail and u == 7: mf = [mC(pu, pbuf, 0), mC(pu, pbuf, 1), None, None]
                if b == 3:
                    if not tail:
                        ex[('pre', 0)] = ['s_waitcnt vmcnt(2)']
                        ex[0] = nxt().split('\n')[:1]; ex[1] = nxt().split('\n')[1:]
                        ex[2] = [ldK(t, sOFF)[0]]; ex[3] = [ldK(t, sOFF)[1]]
                    elif u == 3:
                        ex[('pre', 0)] = ['s_waitcnt vmcnt(2)']
                if b == 1:
                    if not tail:
                        ex[('pre', 2)] = ['s_waitcnt vmcnt(2)']
                        ex[2] = [ldV(t ^ 1, sOFF)[0]]; ex[3] = [ldV(t ^ 1, sOFF)[1]]
                    elif u == 1:
                        ex[('pre', 2)] = ['s_waitcnt vmcnt(2)']
                        ex[2] = [ldV(t ^ 1, sOFF)[0]]; ex[3] = [ldV(t ^ 1, sOFF)[1]]
                    else:
                        ex[('pre', 2)] = ['s_waitcnt vmcnt(0)']
                if tail and u == 6:
                    for g in range(4): ex.setdefault((1,2,2,3)[g], []).append(f'ds_write_b128 v3, {vr(O+4*g,4)} offset:{g*1024}')
                if tail and u == 7:
                    for g in range(4): ex.setdefault((1,2,2,3)[g], []).append(f'ds_write_b128 v4, {vr(O+16+4*g,4)} offset:{4096+g*1024}')
                if not tail and u == 7:
                    ex.setdefault(0, []).append(f's_sub_u32 {sCNT}, {sCNT}, 1')
                unit(u, mf, ex)
        a('s_nop 10\n.p2align 4')
        a.label(lloop)
        body(False)
        a(f's_cmp_lg_u32 {sCNT}, 0\ns_cbranch_scc1 {lloop}')
        body(True)
        a(mC(7, 1, 0)); a(mC(7, 1, 1))
        for g in range(4): a(f'ds_write_b128 v5, {vr(O+32+4*g,4)} offset:{8192+g*1024}')
        a(f's_mul_i32 s8, {sWAVE}, 12288\nv_add_u32 v2, s8, v15')
        a('s_waitcnt lgkmcnt(0)\ns_barrier')
        self.stamp(4); self.cstamp(9)
        RD = 112
        for i in range(12): a(f'ds_read_b128 {vr(RD+4*i,4)}, v2 offset:{i*1024}')
        F = O + 48
        for s in range(3):
            a(f's_waitcnt lgkmcnt({8-4*s})')
            for r in range(0, 16, 2): a(f'v_pk_add_f32 {vr(F+r,2)}, {vr(F+r,2)}, {vr(RD+16*s+r,2)}')
        a(f'v_mov_b32 v10, v{F+12}\nv_mov_b32 v11, v{F+12}\nv_permlane32_swap_b32 v10, v11\nv_rcp_f32 v10, v11')
        a(f's_lshl_b32 s8, s6, 1\ns_and_b32 s9, {sWAVE}, 1\ns_add_u32 s8, s8, s9\ns_lshl_b32 s8, s8, 15')
        a(f's_lshl_b32 s9, s7, 1\ns_lshr_b32 s10, {sWAVE}, 1\ns_add_u32 s9, s9, s10\ns_lshl_b32 s9, s9, 11')
        a(f's_add_u32 s8, s8, s9\ns_add_u32 s8, s8, {WS_O}')
        for r in range(0, 16, 2): a(f'v_pk_mul_f32 {vr(F+r,2)}, {vr(F+r,2)}, v[10:11] op_sel_hi:[1,0]')
        for r in range(8): a(f'v_cvt_pk_bf16_f32 v{160+r}, v{F+2*r}, v{F+2*r+1}')
        a('s_mov_b32 exec_lo, 0\nv_mov_b32 v166, 0\nv_mov_b32 v167, 0\ns_mov_b32 exec_lo, -1')
        a(f'buffer_store_dwordx4 v[160:163], v15, {srd(R_WS)}, s8 offen sc1')
        a(f'buffer_store_dwordx4 v[164:167], v15, {srd(R_WS)}, s8 offen offset:1024 sc1')

    def a_outproj_pro(self):
        a = self.a
        a(f's_lshr_b32 s8, {sJ}, 3\ns_lshl_b32 s6, {sXG}, 2\ns_add_u32 s6, s6, s8\ns_and_b32 s7, {sJ}, 7')
        self.row7_addr('v7', 'v8', 'v2', 896)
        a(f's_lshl_b32 s8, {sWAVE}, 4\ns_mul_i32 s9, s8, 896\ns_mul_i32 s10, s7, 112\ns_add_u32 s9, s9, s10')
        a('v_add_u32 v7, s9, v7\nv_add_u32 v8, s9, v8\nv_lshlrev_b32 v15, 4, v0')
        self.after_kernarg()
        self.mk_srd(R_B, P_WO, WQ_BYTES); self.mk_srd(R_OUT, P_OUT, OUT_BYTES)

    def a_outproj(self):
        a = self.a
        a(f's_mul_i32 s11, {sWAVE}, 1792')
        for kb in range(7):
            a(f's_mov_b32 s13, {kb*64*896}')
            a(f's_add_u32 m0, s11, {kb*7168}\nbuffer_load_dwordx4 v7, {srd(R_B)}, s13 offen lds')
            a(f's_add_u32 m0, s11, {kb*7168 + 1024}\nbuffer_load_dwordx4 v8, {srd(R_B)}, s13 offen lds')
        a(f's_mov_b32 s13, {7*64*896}\ns_add_u32 m0, s11, {7*7168}\nbuffer_load_dwordx4 v7, {srd(R_B)}, s13 offen lds')
        a('v_lshrrev_b32 v4, 5, v0\nv_bfe_u32 v2, v0, 2, 2\nv_lshl_add_u32 v2, v4, 2, v2\nv_mul_u32_u24 v2, 112, v2')
        a('v_bfe_u32 v3, v0, 4, 1\nv_lshl_add_u32 v2, v3, 5, v2\nv_and_b32 v3, 3, v0\nv_lshl_add_u32 v2, v3, 3, v2')
        a(f's_lshr_b32 s12, {sWAVE}, 1\ns_mul_i32 s8, s12, {224*112 + 64}\nv_add_u32 v14, s8, v2\ns_mul_i32 s8, s12, {224*112 - 64}\ns_add_u32 s8, s8, 64\nv_add_u32 v13, s8, v2')
        a(f's_lshl_b32 s8, s6, 1\ns_and_b32 s9, {sWAVE}, 1\ns_add_u32 s8, s8, s9\ns_lshl_b32 s10, s8, 15\ns_lshl_b32 s9, s12, 14')
        a(f's_add_u32 s10, s10, s9\ns_add_u32 s10, s10, {WS_O}')
        XCH = 57344
        a(f's_xor_b32 s9, {sWAVE}, 2\ns_lshl_b32 s9, s9, 12\ns_add_u32 s9, s9, {XCH}\nv_add_u32 v5, s9, v15')
        a(f's_lshl_b32 s9, {sWAVE}, 12\ns_add_u32 s9, s9, {XCH}\nv_add_u32 v6, s9, v15')
        a(f's_mul_i32 s8, s8, {32*1792}\ns_mul_i32 s9, s7, 112\ns_add_u32 s8, s8, s9\ns_lshl_b32 s9, s12, 6\ns_add_u32 s8, s8, s9\ns_add_u32 s8, s8, 896')
        a('v_and_b32 v9, 31, v0\nv_mul_u32_u24 v9, 1792, v9\nv_lshl_add_u32 v9, v4, 4, v9\nv_add_u32 v9, s8, v9')
        if self.mode == 'fused': self.wait_o()
        else: a('s_waitcnt vmcnt(0)\ns_barrier')
        self.stamp(6)
        OF = 16
        for i in range(16):
            if i % 4 == 0 and i: a('s_add_u32 s10, s10, 4096')
            a(f'buffer_load_dwordx4 {vr(OF+4*i,4)}, v15, {srd(R_WS)}, s10 offen offset:{(i%4)*1024} sc1')
        WF = 112
        ACC = (80, 96)
        def rd(i):
            hd, f = i >> 1, i & 1
            b = WF + 8 * (i & 3)
            for ct in range(2):
                for t in range(2):
                    a(f'ds_read_b64_tr_b16 {vr(b+4*ct+2*t,2)}, v{14-ct} offset:{(28*hd+16*f+8*t)*112}')
        rd(0); rd(1); rd(2)
        for i in range(16):
            if i + 3 < 16: rd(i + 3)
            left = min(3, 15 - i)
            a(f's_waitcnt vmcnt({15-i}) lgkmcnt({4*left})')
            b = WF + 8 * (i & 3)
            for ct in range(2):
                c = '0' if i == 0 else vr(ACC[ct], 16)
                a(f'v_mfma_f32_32x32x16_bf16 {vr(ACC[ct],16)}, {vr(b+4*ct,4)}, {vr(OF+4*i,4)}, {c}')
        for g in range(4): a(f'ds_write_b128 v5, {vr(ACC[1]+4*g,4)} offset:{g*1024}')
        a('s_waitcnt lgkmcnt(0)\ns_barrier')
        for g in range(4): a(f'ds_read_b128 {vr(16+4*g,4)}, v6 offset:{g*1024}')
        a('s_waitcnt lgkmcnt(0)')
        for r in range(0, 16, 2): a(f'v_pk_add_f32 {vr(ACC[0]+r,2)}, {vr(ACC[0]+r,2)}, {vr(16+r,2)}')
        for r in range(8): a(f'v_cvt_pk_bf16_f32 v{32+r}, v{ACC[0]+2*r}, v{ACC[0]+2*r+1}')
        a('v_permlane32_swap_b32 v32, v34\nv_permlane32_swap_b32 v33, v35\nv_permlane32_swap_b32 v36, v38\nv_permlane32_swap_b32 v37, v39')
        a(f'buffer_store_dwordx4 v[32:35], v9, {srd(R_OUT)}, 0 offen')
        a('s_cmp_eq_u32 s12, 0\ns_cselect_b32 exec_hi, -1, 0')
        a(f'buffer_store_dwordx4 v[36:39], v9, {srd(R_OUT)}, 0 offen offset:32')
        a('s_mov_b32 exec_hi, -1')
        self.stamp(7)

    UTILE = 58368; UB = 58368; KB = 67584; SCR = 14592
    def s_start(self, kv=True):
        a = self.a
        self.row7_addr('v7', 'v8', 'v2', 896)
        a(f's_lshl_b32 s8, {sJ}, 6\ns_lshl_b32 s9, {sWAVE}, 4\ns_add_u32 s8, s8, s9\ns_mul_i32 s8, s8, 896\ns_mul_i32 s9, {sXG}, 112\ns_add_u32 s8, s8, s9')
        a('v_add_u32 v7, s8, v7\nv_add_u32 v8, s8, v8')
        a(f's_lshl_b32 s6, {sJ}, 2\ns_add_u32 s6, s6, {sXG}\ns_lshr_b32 s7, s6, 1')
        a(f's_lshl_b32 s9, s7, 5\ns_lshl_b32 s10, {sWAVE}, 3\ns_add_u32 s9, s9, s10\ns_mul_i32 s9, s9, 896')
        a(f'v_lshrrev_b32 v2, 3, v0\nv_lshrrev_b32 v3, 4, v0\ns_and_b32 s10, {sWAVE}, 1\ns_lshl_b32 s10, s10, 2\nv_add_u32 v3, s10, v3')
        a('v_and_b32 v4, 7, v0\nv_xor_b32 v4, v4, v3\nv_mul_u32_u24 v2, 896, v2\nv_lshl_add_u32 v5, v4, 4, v2\nv_add_u32 v5, s9, v5')
        a(f'v_lshlrev_b32 v15, 4, v0\ns_lshl_b32 s11, {sWAVE}, 10\nv_add_u32 v6, s11, v15')
        self.after_kernarg()
        self.mk_srd(R_X, P_X, X_BYTES); self.mk_srd(R_B, P_U, X_BYTES)
        a(f's_bitcmp1_b32 s6, 0\ns_cselect_b32 s{R_W}, s{P_WV}, s{P_WK}\ns_cselect_b32 s{R_W+1}, s{P_WV+1}, s{P_WK+1}')
        a(f's_mov_b32 s{R_W+2}, {WK_BYTES}\ns_mov_b32 s{R_W+3}, 0x20000')
        self.mk_srd(R_OUT, P_OUT, OUT_BYTES)
        lnp = self.L('noprod')
        a(f's_cmp_ge_u32 {sXG}, 4\ns_cbranch_scc1 {lnp}')
        for kb in range(7):
            a(f's_mov_b32 s12, {kb*128}\ns_mov_b32 s13, {kb*4096}')
            a(f's_add_u32 m0, s11, {kb*4096}\nbuffer_load_dwordx4 v5, {srd(R_X)}, s12 offen lds')
            a(f's_add_u32 m0, s11, {28672 + kb*4096}\nbuffer_load_dwordx4 v6, {srd(R_W)}, s13 offen lds')
        a.label(lnp)
        a(f's_mul_i32 s12, {sWAVE}, 1792')
        a(f's_add_u32 m0, s12, {self.UTILE}\nbuffer_load_dwordx4 v7, {srd(R_B)}, 0 offen lds')
        a(f's_add_u32 m0, s12, {self.UTILE + 1024}\nbuffer_load_dwordx4 v8, {srd(R_B)}, 0 offen lds')

    def s_params(self):
        a = self.a
        a(f's_min_u32 s8, {sJ}, 27\ns_lshl_b32 s8, s8, 1\ns_mul_i32 s9, {sXG}, 56\ns_add_u32 s73, s8, s9')
        a(f's_lshl_b32 s8, s73, 1\ns_load_dword s71, {sp(P_LDT)}, s8\ns_load_dword s72, {sp(P_DSK)}, s8')
        a(f's_lshr_b32 s8, {sWAVE}, 1\ns_add_u32 s74, s73, s8')
        a(f's_lshl_b32 s8, s74, 9\ns_and_b32 s9, {sWAVE}, 1\ns_lshl_b32 s10, s9, 8\ns_add_u32 s8, s8, s10')
        a('v_lshl_add_u32 v2, v0, 2, s8')
        for i, p in enumerate((P_LAR, P_AIM, P_CRE, P_CIM)):
            a(f'global_load_dword v{16+i}, v2, {sp(p)}')
        lp = self.L('pc')
        a(f's_getpc_b64 s[12:13]')
        a.label(lp)
        a(f's_add_u32 s12, s12, L_table-{lp}\ns_addc_u32 s13, s13, 0')
        a('s_lshl_b32 s9, s9, 12\nv_lshl_add_u32 v3, v0, 4, s9')
        for i in range(4):
            a(f'global_load_dwordx4 {vr(20+4*i,4)}, v3, s[12:13] offset:{1024*i}')
        return 8

    def s_kv(self, newer):
        a = self.a
        lskip = self.L('kvskip'); lv = self.L('kvV'); lst = self.L('kvst')
        a(f's_cmp_ge_u32 {sXG}, 4\ns_cbranch_scc1 {lskip}')
        a(f's_and_b32 s8, {sWAVE}, 1\ns_lshl_b32 s9, s8, 4\ns_lshr_b32 s10, {sWAVE}, 1')
        a('v_and_b32 v2, 15, v0\nv_add_u32 v3, s9, v2\nv_bfe_u32 v4, v3, 1, 3\nv_lshrrev_b32 v9, 4, v0\nv_xor_b32 v4, v4, v9\nv_lshlrev_b32 v3, 7, v3')
        a('v_lshl_add_u32 v10, v4, 4, v3\nv_xor_b32 v4, 4, v4\nv_lshl_add_u32 v11, v4, 4, v3')
        a('v_bfe_u32 v3, v0, 2, 2\nv_lshl_add_u32 v3, v9, 3, v3\nv_mul_u32_u24 v3, 56, v3\nv_and_b32 v4, 3, v0\nv_lshl_add_u32 v3, v4, 3, v3')
        a('s_lshl_b32 s9, s10, 5\ns_add_u32 s9, s9, 28672\nv_add_u32 v12, s9, v3')
        a('v_lshlrev_b32 v13, 4, v2\nv_bfe_u32 v3, v0, 4, 1\nv_lshl_add_u32 v13, v3, 9, v13\nv_lshrrev_b32 v3, 5, v0\nv_lshl_add_u32 v13, v3, 3, v13')
        a('s_bitcmp1_b32 s6, 0\ns_cselect_b32 s12, s8, s10\ns_cselect_b32 s13, s10, s8\ns_cselect_b32 s14, 2048, 0')
        a(f's_lshl_b32 s12, s12, 10\ns_lshl_b32 s13, s13, 8\ns_add_u32 s12, s12, s13\ns_add_u32 s12, s12, s14\ns_lshl_b32 s13, s7, 12\ns_add_u32 s12, s12, s13\ns_add_u32 s12, s12, {WS_KV}')
        a(f's_waitcnt vmcnt({newer})\ns_barrier')
        self.stamp(1)
        XF = 40; WF = 96; ACC = 36
        def rdk(ks):
            a(f'ds_read_b128 {vr(XF+4*ks,4)}, v{10+(ks&1)} offset:{(ks>>1)*4096}')
            for t in range(2):
                a(f'ds_read_b64_tr_b16 {vr(WF+4*ks+2*t,2)}, v12 offset:{(32*ks+4*t)*56}')
        for ks in range(4): rdk(ks)
        a('s_bitcmp1_b32 s6, 0')
        def chain(swap):
            for ks in range(14):
                if ks + 4 < 14: rdk(ks + 4)
                a(f's_waitcnt lgkmcnt({3*min(4, 13-ks)})')
                A, B = (vr(XF+4*ks,4), vr(WF+4*ks,4)) if swap else (vr(WF+4*ks,4), vr(XF+4*ks,4))
                c = '0' if ks == 0 else vr(ACC, 4)
                a(f'v_mfma_f32_16x16x32_bf16 {vr(ACC,4)}, {A}, {B}, {c}')
        a(f's_cbranch_scc1 {lv}')
        chain(False)
        a(f's_cmp_eq_u32 s10, 1\ns_cselect_b32 s14, 0xffff0000, 0\ns_mov_b32 s15, 0')
        a(f'v_cvt_pk_bf16_f32 v2, v{ACC}, v{ACC+1}\nv_cvt_pk_bf16_f32 v3, v{ACC+2}, v{ACC+3}')
        a('s_mov_b32 exec_lo, s15\ns_mov_b32 exec_hi, s14\nv_mov_b32 v2, 0x3f803f80\nv_mov_b32 v3, 0x00003f80\ns_mov_b64 exec, -1')
        a(f's_branch {lst}')
        a.label(lv)
        chain(True)
        a(f's_cmp_eq_u32 s10, 1\ns_cselect_b32 s14, 0xe000e000, 0\ns_cselect_b32 s15, 0x10001000, 0')
        a(f'v_cvt_pk_bf16_f32 v2, v{ACC}, v{ACC+1}\nv_cvt_pk_bf16_f32 v3, v{ACC+2}, v{ACC+3}')
        a('s_mov_b32 exec_lo, s14\ns_mov_b32 exec_hi, s14\nv_mov_b32 v2, 0\nv_mov_b32 v3, 0')
        a('s_mov_b32 exec_lo, s15\ns_mov_b32 exec_hi, s15\nv_mov_b32 v2, 0x3f803f80\nv_mov_b32 v3, 0x3f803f80\ns_mov_b64 exec, -1')
        a.label(lst)
        a(f'buffer_store_dwordx2 v[2:3], v13, {srd(R_WS)}, s12 offen sc1')
        if self.mode == 'fused': self.publish_kv()
        a.label(lskip)
        self.stamp(2)

    def s_ut(self):
        a = self.a
        a('s_waitcnt vmcnt(0)\ns_barrier')
        self.estamp(6)
        a(f'v_bfe_u32 v2, v0, 2, 2\nv_lshlrev_b32 v2, 2, v2\nv_add_u32 v2, {sWAVE}, v2\nv_mul_u32_u24 v2, 112, v2')
        a(f'v_lshrrev_b32 v3, 4, v0\nv_lshl_add_u32 v2, v3, 5, v2\nv_and_b32 v3, 3, v0\nv_lshl_add_u32 v2, v3, 3, v2')
        for half in range(2):
            for t in range(2):
                a(f'ds_read_b64_tr_b16 {vr(36+4*half+2*t,2)}, v2 offset:{self.UTILE + (32*half+16*t)*112}')
        a(f's_mul_i32 s8, {sXG}, {56*4096}\ns_lshl_b32 s9, {sJ}, 7\ns_add_u32 s8, s8, s9\ns_lshl_b32 s9, {sWAVE}, 5\ns_add_u32 s8, s8, s9\ns_add_u32 s8, s8, {WS_UT}')
        a('v_lshlrev_b32 v3, 12, v0\ns_mov_b32 exec_hi, 0x00ffffff\ns_waitcnt lgkmcnt(0)')
        a(f'buffer_store_dwordx4 v[36:39], v3, {srd(R_WS)}, s8 offen sc1')
        a(f'buffer_store_dwordx4 v[40:43], v3, {srd(R_WS)}, s8 offen offset:16 sc1')
        a('s_mov_b32 exec_hi, -1')
        if self.mode == 'fused': self.publish_grp(WS_FU)
        self.stamp(3)

    def s_kgen(self):
        a = self.a
        RS = 272
        a(f's_waitcnt lgkmcnt(0)\ns_bitcmp1_b32 {sWAVE}, 1\ns_cselect_b32 s8, 0, 16')
        a('s_lshl_b32 s9, s71, s8\ns_and_b32 s9, s9, 0xffff0000\ns_lshl_b32 s10, s72, s8\ns_and_b32 s72, s10, 0xffff0000')
        a(f'v_mov_b32 v2, s9\nv_mul_f32 v2, {f32(LOG2E)}, v2\nv_exp_f32 v2, v2\nv_cvt_pk_bf16_f32 v2, v2, v2\nv_and_b32 v2, 0xffff0000, v2')
        a(f'v_mul_f32 v3, {f32(-LOG2E)}, v2\nv_mul_f32 v4, 0.15915494309189532, v2\nv_add_f32 v5, v2, v2')
        a(f's_mul_i32 s11, {sWAVE}, {self.SCR}\ns_mov_b32 m0, s11')
        a(f'v_and_b32 v6, 31, v0\nv_mul_u32_u24 v9, {RS}, v6\nv_lshrrev_b32 v10, 5, v0\nv_lshl_add_u32 v9, v10, 4, v9\nv_add_u32 v9, s11, v9')
        a(f'v_mul_u32_u24 v11, 144, v6\nv_lshl_add_u32 v11, v10, 4, v11\nv_add_u32 v11, s11, v11')
        a('v_mov_b32 v12, 0x00003f80')
        ACC = 48; FR = 64
        W1, W8, W256 = 40, 42, 44
        def cmul(z, x, y, conj, t):
            a(f'v_pk_mul_f32 {vr(t,2)}, {vr(x,2)}, {vr(y,2)} op_sel_hi:[1,0]')
            a(f'v_pk_fma_f32 {vr(z,2)}, {vr(x,2)}, {vr(y,2)}, {vr(t,2)} op_sel:[1,1,0] op_sel_hi:[0,1,1] {"neg_hi" if conj else "neg_lo"}:[1,0,0]')
        cnt = [0]
        def put(z, row):
            t = 128 + (cnt[0] & 3); cnt[0] += 1
            a(f'v_cvt_pk_bf16_f32 v{t}, v{z}, v{z+1}\nds_write_addtid_b32 v{t} offset:{row*RS}')
        a('s_waitcnt vmcnt(0)')
        for rnd in range(2):
            ex = (lambda d, s: f'v_lshlrev_b32 v{d}, 16, v{s}') if rnd == 0 else (lambda d, s: f'v_and_b32 v{d}, 0xffff0000, v{s}')
            a(ex(36, 16)); a(ex(37, 17)); a(ex(132, 18)); a(ex(133, 19))
            a(f'v_mul_f32 v36, {f32(LOG2E)}, v36\nv_exp_f32 v36, v36\nv_mul_f32 v37, v37, v4\nv_cvt_pk_bf16_f32 v36, v36, v36\nv_and_b32 v36, 0xffff0000, v36\nv_mul_f32 v36, v36, v3')
            a('v_mul_f32 v132, v132, v5\nv_mul_f32 v133, -v133, v5')
            for W, m in ((W1, 1.0), (W8, 8.0), (W256, 256.0)):
                if m == 1.0: a('v_exp_f32 v38, v36\nv_fract_f32 v39, v37')
                else: a(f'v_mul_f32 v38, {f32(m)}, v36\nv_mul_f32 v39, {f32(m)}, v37\nv_exp_f32 v38, v38\nv_fract_f32 v39, v39')
                a(f'v_cos_f32 v{W}, v39\nv_sin_f32 v{W+1}, v39\nv_mul_f32 v{W}, v{W}, v38\nv_mul_f32 v{W+1}, v{W+1}, v38')
            if rnd == 1:
                a('s_waitcnt lgkmcnt(0)')
            a('ds_write_addtid_b32 v12 offset:0')
            put(W8, 1); put(132, 32)
            jobsL = []; cur = W8
            for b in range(2, 32):
                z = 134 + 2 * (b & 1); jobsL.append((z, cur, W8, False, 146, b)); cur = z
            H = {0: 132, 1: 138, 2: 140, 3: 138, 4: 142, 5: 138, 6: 144, 7: 138}
            jobsH = [(H[k], H[k-1], W1, True, 148, 32 + k) for k in range(1, 8)]
            jobsH += [(132, 132, W256, True, 148, 40), (140, 140, W256, True, 148, 41), (142, 142, W256, True, 148, 42), (144, 144, W256, True, 148, 43),
                      (132, 132, W256, True, 148, 44), (142, 142, W256, True, 148, 45), (132, 132, W256, True, 148, 46), (142, 142, W256, True, 148, 47)]
            jobsH += [(132, 132, W256, True, 148, 48 + k) for k in range(5)]
            il = []; n = len(jobsL)
            hi = 0
            for i, jl in enumerate(jobsL):
                il.append(jl)
                while hi < (i + 1) * len(jobsH) // n: il.append(jobsH[hi]); hi += 1
            mf = []
            if rnd == 1:
                mf = [f'v_mfma_f32_32x32x16_bf16 {vr(ACC,16)}, {vr(FR+8*q,4)}, {vr(FR+8*q+4,4)}, {"0" if q == 0 else vr(ACC,16)}' for q in range(8)]
                for x in mf: a(x)
            for (z, x, y, cj, t, row) in il:
                cmul(z, x, y, cj, t); put(z, row)
            a('s_waitcnt lgkmcnt(0)')
            for q in range(8):
                a(f'ds_read_b128 {vr(FR+8*q,4)}, v9 offset:{32*q}\nds_read_b128 {vr(FR+8*q+4,4)}, v9 offset:{32*RS + 32*q}')
        for q in range(8):
            a(f's_waitcnt lgkmcnt({14-2*q})')
            a(f'v_mfma_f32_32x32x16_bf16 {vr(ACC,16)}, {vr(FR+8*q,4)}, {vr(FR+8*q+4,4)}, {vr(ACC,16)}')
        a(f's_and_b32 s8, {sWAVE}, 2\ns_mul_i32 s8, s8, {self.SCR}')
        for k in range(16): a(f'v_add_u32 v{20+k}, s8, v{20+k}')
        for g in range(4): a(f'ds_write_b128 v11, {vr(ACC+4*g,4)} offset:{32*g}')
        a(f's_lshr_b32 s8, {sWAVE}, 1\ns_mul_i32 s8, s8, 4160\ns_add_u32 s75, s8, {self.KB}\ns_and_b32 s9, {sWAVE}, 1\ns_lshl_b32 s10, s9, 11\ns_add_u32 s10, s10, s75')
        a('v_lshl_add_u32 v13, v0, 5, s10\nv_mov_b32 v14, 0')
        a('s_cmp_eq_u32 s9, 0\ns_cselect_b32 exec_lo, 1, 0\ns_mov_b32 exec_hi, 0\nv_mov_b32 v14, s72\ns_mov_b64 exec, -1')
        a('s_waitcnt lgkmcnt(0)\ns_barrier')
        G = 64
        for k in range(16): a(f'ds_read2st64_b32 {vr(G+2*k,2)}, v{20+k} offset1:57')
        a('v_lshl_add_u32 v2, v0, 2, s75\nv_mov_b32 v3, 0\ns_mov_b64 exec, 0xffff\nds_write_b32 v2, v3\ns_mov_b64 exec, -1')
        for k in range(16):
            if k % 4 == 0: a(f's_waitcnt lgkmcnt({13-k})')
            a(f'v_add_f32 v{G+2*k}, v{G+2*k}, v{G+2*k+1}')
            if k == 0: a(f'v_add_f32 v{G}, v{G}, v14')
        for k in range(8): a(f'v_cvt_pk_bf16_f32 v{100+k}, v{G+4*k}, v{G+4*k+2}')
        a('ds_write_b128 v13, v[100:103] offset:64\nds_write_b128 v13, v[104:107] offset:80')
        self.stamp(4)

    def s_conv(self):
        a = self.a
        a(f's_lshl_b32 s8, s74, 12\ns_and_b32 s9, {sWAVE}, 1\ns_lshl_b32 s10, s9, 11\ns_add_u32 s8, s8, s10\ns_add_u32 s8, s8, {WS_UT}')
        for i in range(2): a(f'buffer_load_dwordx4 {vr(16+4*i,4)}, v15, {srd(R_WS)}, s8 offen offset:{1024*i} sc1')
        a(f's_lshr_b32 s10, {sWAVE}, 1\ns_mul_i32 s11, s10, 4608\ns_add_u32 s11, s11, {self.UB}')
        a('v_bfe_u32 v2, v0, 1, 2\nv_mul_u32_u24 v2, 1152, v2\nv_lshrrev_b32 v3, 3, v0\nv_lshl_add_u32 v2, v3, 5, v2\nv_and_b32 v3, 1, v0\nv_lshl_add_u32 v2, v3, 4, v2')
        a('s_lshl_b32 s12, s9, 9\ns_add_u32 s12, s12, s11\nv_add_u32 v2, s12, v2')
        a('v_lshrrev_b32 v3, 3, v0\nv_mul_u32_u24 v3, 1152, v3\nv_and_b32 v4, 7, v0\nv_lshl_add_u32 v3, v4, 4, v3\nv_add_u32 v3, s11, v3')
        a('v_mov_b32 v24, 0\nv_mov_b32 v25, 0\nv_mov_b32 v26, 0\nv_mov_b32 v27, 0')
        a('s_mov_b32 exec_hi, 0\nds_write_b128 v3, v[24:27]\ns_mov_b32 exec_hi, -1')
        a('v_and_b32 v4, 1, v0\nv_lshlrev_b32 v4, 4, v4\nv_bfe_u32 v5, v0, 1, 1\nv_lshl_add_u32 v4, v5, 2, v4\nv_bfe_u32 v5, v0, 4, 1\nv_lshl_add_u32 v4, v5, 3, v4')
        a('v_lshrrev_b32 v6, 5, v0\nv_lshlrev_b32 v5, 5, v6\nv_sub_u32 v4, v4, v5\nv_bfe_u32 v5, v0, 2, 2\nv_lshlrev_b32 v5, 2, v5\nv_sub_u32 v4, v4, v5')
        a('s_add_u32 s12, s75, 96\nv_lshl_add_u32 v9, v4, 1, s12')
        a('v_bfe_u32 v4, v0, 3, 2\nv_mul_u32_u24 v5, 1152, v4\nv_and_b32 v7, 7, v0\nv_add_u32 v8, v7, v6\nv_lshl_add_u32 v5, v8, 4, v5\ns_add_u32 s12, s11, 16\nv_add_u32 v10, s12, v5')
        a('v_lshrrev_b32 v8, 1, v7\nv_and_b32 v5, 1, v7\nv_lshl_or_b32 v8, v5, 2, v8\nv_lshlrev_b32 v5, 2, v6\nv_xor_b32 v8, v8, v5')
        a('v_lshlrev_b32 v4, 13, v4\nv_lshl_add_u32 v4, v7, 7, v4\ns_lshl_b32 s12, s10, 15\nv_add_u32 v4, s12, v4')
        for g in range(4): a(f'v_xor_b32 v5, {g}, v8\nv_lshl_add_u32 v{11+g}, v5, 4, v4')
        a('s_waitcnt vmcnt(0)')
        a('ds_write_b128 v2, v[16:19] offset:128\nds_write_b128 v2, v[20:23] offset:384')
        a('s_waitcnt lgkmcnt(0)\ns_barrier')
        self.stamp(5)
        D = 16; BF = (80, 112); TF = (144, 176)
        l1 = self.L('cv1'); lj = self.L('cvj')
        a(f's_cmp_eq_u32 s9, 0\ns_cbranch_scc0 {l1}')
        def variant(tset):
            mmax = max(tset)
            ops = []
            mf = []
            reads = []
            seen = set(); started = set()
            for r in range(4):
                pb = r & 1
                for jj in range(mmax + 1):
                    for ti, t in enumerate(tset):
                        if t < jj: continue
                        m = t - jj
                        nb = ('B', r, m); nt = ('T', r, jj)
                        for k in (nt, nb):
                            if k not in seen:
                                seen.add(k)
                                if k[0] == 'B':
                                    reads.append((k, [f'ds_read_b128 {vr(BF[pb]+4*m,4)}, v10 offset:{32*(4*m - r + 3)}']))
                                else:
                                    mu = 4*jj + r
                                    reads.append((k, [f'ds_read_b64_tr_b16 {vr(TF[pb]+4*jj+2*tt,2)}, v9 offset:{128*mu + 32*(1-tt)}' for tt in range(2)]))
                        c = vr(D+16*ti, 16) if t in started else '0'
                        started.add(t)
                        mf.append((f'v_mfma_f32_32x32x16_bf16 {vr(D+16*ti,16)}, {vr(TF[pb]+4*jj,4)}, {vr(BF[pb]+4*m,4)}, {c}', (nb, nt), r))
            flat = []; endpos = {}
            for k, xs in reads:
                for x in xs: flat.append((x, k))
                endpos[k] = len(flat)
            issued = 0; done = 0
            lastuse = {}
            for i, (_, needs, r) in enumerate(mf):
                lastuse[r] = i
            for i, (txt, needs, r) in enumerate(mf):
                need = max(endpos[k] for k in needs)
                tgt = min(len(flat), need + 12)
                while issued < tgt:
                    kk = flat[issued][1]
                    if kk[1] >= r + 2: break
                    a(flat[issued][0]); issued += 1
                if need > done:
                    n = issued - need
                    assert n <= 15
                    a(f's_waitcnt lgkmcnt({n})'); done = need
                a(txt)
            a('s_barrier')
            for ti, t in enumerate(tset):
                for g in range(4): a(f'ds_write_b128 v{11+g}, {vr(D+16*ti+4*g,4)} offset:{t*1024}')
        variant([7, 4, 3, 0]); a(f's_branch {lj}')
        a.label(l1); variant([6, 5, 2, 1])
        a.label(lj)
        a('s_lshl_b32 s12, s9, 6\nv_add_u32 v2, s12, v0\nv_lshrrev_b32 v3, 1, v2\nv_and_b32 v4, 1, v2')
        def fa(dst, av): a(f'v_bfe_u32 {dst}, {av}, 1, 2\nv_and_b32 v8, 1, {av}\nv_lshl_or_b32 {dst}, v8, 2, {dst}')
        fa('v5', 'v3')
        a('v_lshlrev_b32 v6, 2, v4\nv_xor_b32 v5, v5, v6\ns_lshl_b32 s12, s10, 15\nv_lshlrev_b32 v6, 7, v3\nv_add_u32 v6, s12, v6')
        for k in range(4): a(f'v_xor_b32 v7, {k}, v5\nv_lshl_add_u32 v{10+k}, v7, 4, v6')
        a('v_xor_b32 v7, 1, v4\nv_sub_u32 v3, v3, v7\nv_max_i32 v3, 0, v3')
        fa('v5', 'v3')
        a('v_lshlrev_b32 v7, 2, v7\nv_add_u32 v7, 3, v7\nv_xor_b32 v5, v5, v7\nv_lshlrev_b32 v6, 7, v3\nv_add_u32 v6, s12, v6\nv_lshl_add_u32 v14, v5, 4, v6')
        a(f's_lshl_b32 s8, s74, 12\ns_add_u32 s8, s8, {WS_YT}\nv_lshlrev_b32 v9, 5, v2')
        a('s_waitcnt lgkmcnt(0)\ns_barrier')
        Y = [16, 36, 56, 76]
        for ph in range(4):
            if ph: a(f'ds_read_b128 {vr(Y[ph],4)}, v14 offset:{ph*8192}')
            for k in range(4): a(f'ds_read_b128 {vr(Y[ph]+4+4*k,4)}, v{10+k} offset:{ph*8192}')
            if ph == 1: a('s_cmp_eq_u32 s9, 0\ns_cselect_b32 s13, 1, 0')
        for ph in range(1, 4):
            a(f's_waitcnt lgkmcnt({5*(3-ph)})')
            a('s_mov_b32 exec_lo, s13\ns_mov_b32 exec_hi, 0')
            for k in range(4 - ph, 4): a(f'v_mov_b32 v{Y[ph]+k}, 0')
            a('s_mov_b64 exec, -1')
            for k in range(16): a(f'v_add_f32 v{20+k}, v{20+k}, v{Y[ph]+4+k-ph}')
        for k in range(8): a(f'v_cvt_pk_bf16_f32 v{96+k}, v{20+2*k}, v{21+2*k}')
        a(f'buffer_store_dwordx4 v[96:99], v9, {srd(R_WS)}, s8 offen sc1')
        a(f'buffer_store_dwordx4 v[100:103], v9, {srd(R_WS)}, s8 offen offset:16 sc1')
        self.stamp(6)

    def s_assemble(self):
        a = self.a
        a(f'v_lshrrev_b32 v2, 3, v0\nv_and_b32 v3, 7, v0\nv_lshlrev_b32 v3, 4, v3\nv_lshl_add_u32 v4, v2, 12, v3')
        a(f's_mul_i32 s8, {sXG}, 56\ns_lshl_b32 s9, {sWAVE}, 3\ns_add_u32 s8, s8, s9\ns_lshl_b32 s8, s8, 12\ns_lshl_b32 s10, {sJ}, 7\ns_add_u32 s8, s8, s10\ns_add_u32 s8, s8, {WS_YT}')
        a(f's_add_u32 s11, s8, {32*4096}\ns_cmp_eq_u32 {sWAVE}, 3\ns_cselect_b32 s11, s8, s11')
        a(f'buffer_load_dwordx4 v[16:19], v4, {srd(R_WS)}, s8 offen sc1')
        a(f'buffer_load_dwordx4 v[20:23], v4, {srd(R_WS)}, s11 offen sc1')
        a('v_add_u32 v2, s9, v2\nv_mul_u32_u24 v2, 160, v2\nv_add_u32 v2, v2, v3')
        a('v_bfe_u32 v5, v0, 2, 2\nv_add_u32 v5, s9, v5\nv_mul_u32_u24 v5, 160, v5\nv_lshrrev_b32 v6, 4, v0\nv_lshl_add_u32 v5, v6, 5, v5\nv_and_b32 v6, 3, v0\nv_lshl_add_u32 v5, v6, 3, v5')
        a(f's_mul_i32 s8, {sJ}, {64*1792}\ns_mul_i32 s10, {sXG}, 112\ns_add_u32 s8, s8, s10\ns_lshl_b32 s10, {sWAVE}, 4\ns_add_u32 s8, s8, s10')
        a('v_mul_u32_u24 v6, 1792, v0')
        a('s_waitcnt vmcnt(0)')
        a(f'ds_write_b128 v2, v[16:19]\nds_write_b128 v2, v[20:23] offset:{32*160}')
        a('s_waitcnt lgkmcnt(0)\ns_barrier')
        for o in range(2):
            for t in range(2): a(f'ds_read_b64_tr_b16 {vr(24+4*o+2*t,2)}, v5 offset:{(32*o+4*t)*160}')
        a('s_waitcnt lgkmcnt(0)')
        a(f'buffer_store_dwordx4 v[24:27], v6, {srd(R_OUT)}, s8 offen')
        lsk = self.L('as3')
        a(f's_cmp_eq_u32 {sWAVE}, 3\ns_cbranch_scc1 {lsk}')
        a(f'buffer_store_dwordx4 v[28:31], v6, {srd(R_OUT)}, s8 offen offset:64')
        a.label(lsk)
        self.stamp(7)

    def kernel_head(self, name):
        self.lend = f'L_end_{name}'
        self.a(f'.globl {name}\n.p2align 8\n.type {name},@function')
        self.a.label(name)
    def kernel_tail(self):
        self.a.label(self.lend)
        self.a('s_endpgm')

    def build_multi(self):
        a = self.a
        self.kernel_head('k1_kernel'); self.prologue(256)
        self.s_start(); self.s_kv(2); self.s_ut(); self.kernel_tail()
        self.kernel_head('k2_kernel'); self.prologue(512)
        la = self.L('roleA')
        a(f's_cmp_ge_u32 s2, 256\ns_cbranch_scc1 {la}')
        a(f's_cmp_ge_u32 {sJ}, 28\ns_cbranch_scc1 {self.lend}')
        a('v_lshlrev_b32 v15, 4, v0')
        self.after_kernarg(); self.s_params(); self.s_kgen(); self.s_conv(); self.stamp_flush(8)
        a('s_endpgm')
        a.label(la)
        self.a_qproj(); self.a_attn(); self.stamp_flush(10); self.kernel_tail()
        self.kernel_head('k3_kernel'); self.prologue(512)
        la = self.L('roleA')
        a(f's_cmp_ge_u32 s2, 256\ns_cbranch_scc1 {la}')
        self.after_kernarg(); self.mk_srd(R_OUT, P_OUT, OUT_BYTES); self.s_assemble(); a('s_endpgm')
        a.label(la)
        self.a_outproj_pro(); self.a_outproj(); self.kernel_tail()
        return ['k1_kernel', 'k2_kernel', 'k3_kernel'], [256, 512, 512]

    SPIN = 1 << 20
    def nonce(self):
        self.a(f's_waitcnt lgkmcnt(0)\ns_add_u32 {sNONCE}, {sNONCE}, 0x9e3779b9')
    def publish_kv(self):
        a = self.a; l = self.L('pkv')
        a(f's_lshl_b32 s8, s6, 2\ns_add_u32 s8, s8, {WS_FKV}\nv_lshlrev_b32 v2, 10, v0\nv_mov_b32 v3, {sNONCE}')
        a(f's_waitcnt vmcnt(0)\ns_barrier\ns_cmp_lg_u32 {sWAVE}, 0\ns_cbranch_scc1 {l}')
        a(f's_mov_b32 exec_hi, 0\nbuffer_store_dword v3, v2, {srd(R_WS)}, s8 offen sc1\ns_mov_b32 exec_hi, -1')
        a.label(l)
    def publish_grp(self, base):
        a = self.a; l = self.L('pg')
        a(f's_lshl_b32 s8, {sXG}, 8\ns_lshl_b32 s9, {sJ}, 2\ns_add_u32 s8, s8, s9\ns_add_u32 s8, s8, {base}\nv_mov_b32 v2, 0\nv_mov_b32 v3, {sNONCE}')
        a(f's_waitcnt vmcnt(0)\ns_barrier\ns_cmp_lg_u32 {sWAVE}, 0\ns_cbranch_scc1 {l}')
        a(f's_mov_b64 exec, 1\nbuffer_store_dword v3, v2, {srd(R_WS)}, s8 offen sc1\ns_mov_b64 exec, -1')
        a.label(l)
    def poll(self, vaddr, soff, width, mask_lo, mask_hi, sleep, vt=250):
        a = self.a; lp = self.L('poll'); ld = self.L('polled')
        ld_ = {1: 'dword', 2: 'dwordx2', 4: 'dwordx4'}[width]
        a(f's_mov_b32 exec_lo, {hex(mask_lo)}\ns_mov_b32 exec_hi, {hex(mask_hi)}\ns_mov_b32 s47, {self.SPIN}')
        a.label(lp)
        a(f'buffer_load_{ld_} {vr(vt,width)}, {vaddr}, {srd(R_WS)}, {soff} offen sc1\ns_waitcnt vmcnt(0)')
        a(f'v_xor_b32 v{vt}, {sNONCE}, v{vt}')
        for i in range(1, width): a(f'v_xor_b32 v{vt+i}, {sNONCE}, v{vt+i}\nv_or_b32 v{vt}, v{vt}, v{vt+i}')
        a(f'v_cmp_ne_u32 vcc, 0, v{vt}\ns_cbranch_vccz {ld}')
        if sleep: a(f's_sleep {sleep}')
        a(f's_sub_u32 s47, s47, 1\ns_cmp_lg_u32 s47, 0\ns_cbranch_scc1 {lp}')
        a.label(ld)
        a('s_mov_b64 exec, -1')
    def wait_kv(self):
        a = self.a; l = self.L('wkv')
        a(f's_cmp_lg_u32 {sWAVE}, 0\ns_cbranch_scc1 {l}')
        a(f's_and_b32 s8, s2, {NREP-1}\ns_lshl_b32 s8, s8, 10\ns_add_u32 s8, s8, {WS_FKV}\nv_lshlrev_b32 v2, 3, v0')
        self.poll('v2', 's8', 2, 0xffffffff, 0xffffffff, 1)
        a.label(l)
        a('s_barrier')
    def wait_grp(self, base, n, sleep):
        a = self.a; l = self.L('wg')
        a(f's_cmp_lg_u32 {sWAVE}, 0\ns_cbranch_scc1 {l}')
        a(f's_lshl_b32 s8, {sXG}, 8\ns_add_u32 s8, s8, {base}\nv_lshlrev_b32 v2, 2, v0')
        self.poll('v2', 's8', 1, (1 << n) - 1, 0, sleep)
        a.label(l)
        a('s_barrier')
    def publish_o(self):
        a = self.a
        a(f's_lshl_b32 s8, s6, 8\ns_lshl_b32 s9, s7, 4\ns_add_u32 s8, s8, s9\ns_lshl_b32 s9, {sWAVE}, 2\ns_add_u32 s8, s8, s9\ns_add_u32 s8, s8, {WS_FO}')
        a(f'v_mov_b32 v2, 0\nv_mov_b32 v3, {sNONCE}\ns_waitcnt vmcnt(0)')
        a(f's_mov_b64 exec, 1\nbuffer_store_dword v3, v2, {srd(R_WS)}, s8 offen sc1\ns_mov_b64 exec, -1')
        self.stamp(5)
        a('s_barrier')
    def wait_o(self):
        a = self.a; l = self.L('wo')
        a(f's_cmp_lg_u32 {sWAVE}, 0\ns_cbranch_scc1 {l}')
        a(f's_lshl_b32 s9, s6, 8\ns_add_u32 s9, s9, {WS_FO}\nv_lshlrev_b32 v2, 2, v0')
        self.poll('v2', 's9', 1, 0xffffffff, 0, 0)
        a.label(l)
        a('s_waitcnt vmcnt(0)\ns_barrier')
    def e_update(self):
        a = self.a; l = self.L('eu')
        a(f's_cmp_lg_u32 s2, 255\ns_cbranch_scc1 {l}')
        a('v_lshrrev_b32 v2, 3, v0\nv_lshlrev_b32 v2, 8, v2\nv_and_b32 v3, 7, v0\nv_lshl_add_u32 v2, v3, 4, v2')
        a(f's_mov_b32 s8, {WS_FU}')
        self.poll('v2', 's8', 4, 0xffffffff, 0xffffffff, 8)
        a(f's_lshl_b32 s8, {sWAVE}, 11\ns_add_u32 s8, s8, {WS_FO}')
        self.poll('v2', 's8', 4, 0xffffffff, 0xffffffff, 8)
        a(f's_barrier\ns_cmp_lg_u32 {sWAVE}, 0\ns_cbranch_scc1 {l}')
        a(f'v_mov_b32 v2, {WS_E}\nv_mov_b32 v3, {sNONCE}\ns_mov_b64 exec, 1\nbuffer_store_dword v3, v2, {srd(R_WS)}, 0 offen sc1')
        a.label(l)

    def build_fused(self):
        a = self.a
        kn = NAME + '_kernel'
        self.kernel_head(kn); self.prologue(512)
        la = self.L('roleA'); lidle = self.L('idle'); lnopf = self.L('nopf')
        a(f's_cmp_ge_u32 s2, 256\ns_cbranch_scc1 {la}')
        a('s_setprio 3')
        lp = self.L('pc')
        a(f's_cmp_lt_u32 {sJ}, 28\ns_cbranch_scc1 {lnopf}')
        a('s_getpc_b64 s[12:13]'); a.label(lp)
        a(f's_add_u32 s12, s12, {kn}-{lp}\ns_addc_u32 s13, s13, -1')
        a(f's_and_b32 s8, {sJ}, 3\ns_lshl_b32 s8, s8, 2\ns_add_u32 s8, s8, {sWAVE}\ns_lshl_b32 s8, s8, 11\nv_lshl_add_u32 v2, v0, 4, s8\nv_min_u32 v2, L_table+8192-1040-{kn}, v2')
        a('global_load_dwordx4 v[240:243], v2, s[12:13]\nglobal_load_dwordx4 v[244:247], v2, s[12:13] offset:1024')
        a.label(lnopf)
        self.s_start()
        n = self.s_params()
        self.estamp(3)
        self.nonce()
        self.estamp(4)
        self.s_kv(2 + n); self.estamp(5); self.s_ut(); self.estamp(7)
        a('s_setprio 0')
        self.mk_srd(R_X, P_WO, WQ_BYTES)
        a(f's_mul_i32 s8, {sJ}, 12544\ns_lshl_b32 s9, {sWAVE}, 10\ns_add_u32 s8, s8, s9')
        for i in range(4):
            a(f'buffer_load_dwordx4 v[240:243], v15, {srd(R_X)}, s8 offen')
            if i < 3: a('s_add_u32 s8, s8, 4096')
        a(f's_cmp_ge_u32 {sJ}, 28\ns_cbranch_scc1 {lidle}')
        self.s_kgen()
        self.wait_grp(WS_FU, 32, 1)
        self.s_conv()
        self.publish_grp(WS_FY)
        a.label(lidle)
        self.wait_grp(WS_FY, 28, 4)
        self.s_assemble()
        self.stamp_flush(8)
        self.e_update()
        a('s_endpgm')
        a.label(la)
        a('s_setprio 2')
        self.a_qproj(); self.nonce_a(); self.a_attn(); self.publish_o(); self.a_outproj(); self.stamp_flush(10)
        self.kernel_tail()
        return [kn], [512]
    def nonce_a(self):
        self.a(f's_add_u32 {sNONCE}, {sNONCE}, 0x9e3779b9')

def table():
    import numpy as np
    def rne_bf16(j):
        u = struct.unpack('<I', struct.pack('<f', float(j)))[0]
        u = (u + 0x7fff + ((u >> 16) & 1)) & 0xffff0000
        return int(struct.unpack('<f', struct.pack('<I', u))[0])
    hi = [0,1,2,3,4,5,6,7, 256,258,260,262, 512,516,768,772, 1024,1280,1536,1792, 2048]
    out = []
    for j in range(2048):
        p = rne_bf16(j)
        b = (p >> 3) & 31
        out.append(hi.index(p - 8 * b) * 144 + 4 * b)
    lin = []
    for mh in range(2):
        for i in range(4):
            for lane in range(64):
                lin += out[16*(64*mh+lane)+4*i:16*(64*mh+lane)+4*i+4]
    return lin

def main():
    mode = sys.argv[1]; outp = sys.argv[2]; stamps = len(sys.argv) > 3 and sys.argv[3] == 'stamps'
    g = Gen(mode, stamps)
    names, grids = g.build_multi() if mode == 'multi' else g.build_fused()
    body = g.a.finalize(verbose='-v' in sys.argv)
    head = open('cdna_kernels/' + NAME + '.s.ref').read().split('; Override launch geometry')[0]
    txt = head
    if mode == 'multi':
        for n, gr in zip(names, grids): txt += f'; @launch kernel={n} grid=({gr},1,1) block=(256,1,1) lds=81920\n'
    else:
        txt += f'; @launch grid=({grids[0]},1,1) block=(256,1,1) lds=81920\n'
    txt += '.amdgcn_target "amdgcn-amd-amdhsa--gfx950"\n.text\n' + body
    txt += '.p2align 6\n.type L_table,@object\nL_table:\n'
    t = table()
    for i in range(0, 2048, 16): txt += '.long ' + ','.join(str(x) for x in t[i:i+16]) + '\n'
    txt += '.section .rodata,"a"\n'
    for n in names:
        txt += f'''.p2align 6
.amdhsa_kernel {n}
  .amdhsa_next_free_vgpr 256
  .amdhsa_next_free_sgpr 100
  .amdhsa_accum_offset 256
  .amdhsa_group_segment_fixed_size 0
  .amdhsa_kernarg_size 120
  .amdhsa_user_sgpr_count 2
  .amdhsa_user_sgpr_kernarg_segment_ptr 1
  .amdhsa_system_sgpr_workgroup_id_x 1
.end_amdhsa_kernel
'''
    open(outp, 'w').write(txt)
    print('written', outp, 'nops inserted', g.a.n_nops, 'lines', len(g.a.lines))

if __name__ == '__main__':
    main()
```

```python
import sys, struct, math
from asmdsl import Asm

NAME = 'concat_heads__ssm_conv_s4d__grouped_kv_mqa__prompt'
X_BYTES = 2048 * 896; WQ_BYTES = 448 * 896; WK_BYTES = 448 * 56; OUT_BYTES = 2048 * 1792
WS_E = 0; WS_FKV = 0x1000; WS_FU = 0x9000; WS_FY = 0xA000; WS_FO = 0xB000
WS_KV = 0x10000; WS_O = 0x100000; WS_UT = 0x300000; WS_YT = 0x500000; WS_ST = 0x700000; WS_BYTES = 0x800000
NREP = 32
def f32(x): return '0x%08x' % struct.unpack('<I', struct.pack('<f', x))[0]
LOG2E = math.log2(math.e)
CSCALE = LOG2E / math.sqrt(28.0)

sWAVE = 's3'; sXG = 's4'; sJ = 's5'
P_U, P_LAR, P_AIM, P_CRE, P_CIM, P_LDT, P_DSK, P_X = [16 + 2 * i for i in range(8)]
P_WQ, P_WK, P_WV, P_WO = 32, 34, 36, 38
P_OUT, P_DBG, P_WS = 40, 42, 44
sNONCE = 's46'
R_X = 48; R_W = 52; R_WS = 56; R_OUT = 60; R_B = 64
def srd(r): return f's[{r}:{r+3}]'
def sp(r): return f's[{r}:{r+1}]'
def vr(a, n): return f'v[{a}:{a+n-1}]' if n > 1 else f'v{a}'

def OPT(x): return x in sys.argv
class Gen:
    def __init__(self, mode, stamps=False):
        self.a = Asm(); self.mode = mode; self.stamps = stamps; self.uid = 0
    def L(self, base):
        self.uid += 1
        return f'L_{base}_{self.uid}'
    def mk_srd(self, r, p, nbytes):
        self.a(f's_mov_b32 s{r}, s{p}\ns_mov_b32 s{r+1}, s{p+1}\ns_mov_b32 s{r+2}, {hex(nbytes)}\ns_mov_b32 s{r+3}, 0x20000')
    def stamp(self, i):
        if self.stamps and not (OPT('early') and i > 0):
            self.a(f's_memrealtime s[{76+2*i}:{77+2*i}]')
    def estamp(self, i):
        if self.stamps and OPT('early'):
            self.a(f's_memrealtime s[{76+2*i}:{77+2*i}]')
    def cstamp(self, i):
        if self.stamps:
            self.a(f's_memtime s[{76+2*i}:{77+2*i}]')
    def stamp_flush(self, n):
        if not self.stamps: return
        a = self.a
        a('s_waitcnt lgkmcnt(0)')
        if OPT('dbgst'):
            l = self.L('dbg')
            a(f's_cmp_lg_u32 {sWAVE}, 0\ns_cbranch_scc1 {l}')
            self.mk_srd(R_X, P_DBG, 256)
            a('v_mov_b32 v2, 0')
            isA = n == 10
            for i in range(8):
                if i == 0 and isA: a('s_not_b32 s6, s76\nv_writelane_b32 v2, s6, 0')
                else: a(f'v_writelane_b32 v2, s{76+2*i}, {i}')
            a(f'v_lshlrev_b32 v1, 2, v0\nv_add_u32 v1, {0 if isA else 32}, v1\ns_mov_b64 exec, 0xff')
            a(f'buffer_atomic_umax v2, v1, {srd(R_X)}, 0 offen\ns_mov_b64 exec, -1')
            a.label(l)
            return
        a(f's_lshl_b32 s6, s2, 2\ns_add_u32 s6, s6, {sWAVE}\ns_lshl_b32 s6, s6, 6\ns_add_u32 s6, s6, {WS_ST}')
        a('v_mov_b32 v1, s6')
        for i in range(n):
            a(f'v_mov_b32 v2, s{76+2*i}\nbuffer_store_dword v2, v1, {srd(R_WS)}, 0 offen offset:{4*i}')
        a('s_getreg_b32 s7, hwreg(HW_REG_XCC_ID)\nv_mov_b32 v2, s7')
        a(f'buffer_store_dword v2, v1, {srd(R_WS)}, 0 offen offset:60')

    def prologue(self, nwg):
        a = self.a
        if self.stamps:
            for i in range(1, 10): a(f's_mov_b64 s[{76+2*i}:{77+2*i}], 0')
        self.stamp(0)
        a(f's_cmp_ge_u32 s2, {nwg}\ns_cbranch_scc1 {self.lend}')
        a('s_load_dwordx16 s[16:31], s[0:1], 0\ns_load_dwordx8 s[32:39], s[0:1], 64')
        a('s_load_dwordx4 s[40:43], s[0:1], 96\ns_load_dwordx2 s[44:45], s[0:1], 112')
        a('v_lshrrev_b32 v1, 6, v0\nv_and_b32 v0, 63, v0')
        a(f's_and_b32 {sXG}, s2, 7\ns_bfe_u32 {sJ}, s2, 0x50003')
        a(f'v_readfirstlane_b32 {sWAVE}, v1')

    def after_kernarg(self):
        a = self.a
        self.estamp(1)
        a('s_waitcnt lgkmcnt(0)')
        self.estamp(2)
        if self.mode == 'fused':
            a(f's_load_dword {sNONCE}, {sp(P_WS)}, {WS_E}')
        self.mk_srd(R_WS, P_WS, WS_BYTES)

    def row7_addr(self, v0, v1, tmp, rowstride):
        a = self.a
        for v, add in ((v0, 0), (v1, 64)):
            if add: a(f'v_add_u32 {tmp}, {add}, v0')
            else: a(f'v_mov_b32 {tmp}, v0')
            a(f'v_mul_u32_u24 {v}, 147, {tmp}\nv_lshrrev_b32 {v}, 10, {v}')
            a(f'v_mul_u32_u24 {v}, {rowstride - 112}, {v}')
            a(f'v_lshl_add_u32 {v}, {tmp}, 4, {v}')

    def a_qproj(self):
        a = self.a
        XB = 0; WB = 40960; QX = XB + 16384
        sQB = 's6'; sHP = 's7'
        a(f's_lshr_b32 s8, {sJ}, 3\ns_lshl_b32 {sQB}, {sXG}, 2\ns_add_u32 {sQB}, {sQB}, s8\ns_and_b32 {sHP}, {sJ}, 7')
        a(f's_lshl_b32 s8, {sWAVE}, 4\ns_lshl_b32 s9, {sQB}, 6\ns_add_u32 s9, s9, s8\ns_mul_i32 s9, s9, 896')
        a('v_lshrrev_b32 v2, 3, v0\nv_lshrrev_b32 v3, 4, v0\nv_and_b32 v4, 7, v0')
        a('v_xor_b32 v4, v4, v3\nv_mul_u32_u24 v2, 896, v2')
        a('v_lshl_add_u32 v5, v4, 4, v2\nv_add_u32 v5, s9, v5')
        a('v_xor_b32 v4, 4, v4\nv_lshl_add_u32 v6, v4, 4, v2\nv_add_u32 v6, s9, v6\nv_add_u32 v6, 7168, v6')
        self.row7_addr('v7', 'v8', 'v2', 896)
        a(f's_mul_i32 s9, s8, 896\ns_mul_i32 s10, {sHP}, 112\ns_add_u32 s9, s9, s10')
        a('v_add_u32 v7, s9, v7\nv_add_u32 v8, s9, v8')
        self.after_kernarg()
        self.mk_srd(R_X, P_X, X_BYTES); self.mk_srd(R_W, P_WQ, WQ_BYTES)
        a(f's_lshl_b32 s10, {sWAVE}, 11\ns_mul_i32 s11, {sWAVE}, 1792\ns_add_u32 s11, s11, {WB}')
        for kb in range(5):
            a(f's_mov_b32 s12, {kb*128}\ns_mov_b32 s13, {kb*64*896}')
            a(f's_add_u32 m0, s10, {XB + kb*8192}\nbuffer_load_dwordx4 v5, {srd(R_X)}, s12 offen lds')
            a(f's_add_u32 m0, s10, {XB + kb*8192 + 1024}\nbuffer_load_dwordx4 v6, {srd(R_X)}, s12 offen lds')
            a(f's_add_u32 m0, s11, {kb*7168}\nbuffer_load_dwordx4 v7, {srd(R_W)}, s13 offen lds')
            a(f's_add_u32 m0, s11, {kb*7168 + 1024}\nbuffer_load_dwordx4 v8, {srd(R_W)}, s13 offen lds')
        ST = 192
        for i, kb in enumerate((5, 6)):
            a(f's_mov_b32 s12, {kb*128}\ns_mov_b32 s13, {kb*64*896}')
            a(f'buffer_load_dwordx4 {vr(ST+16*i,4)}, v5, {srd(R_X)}, s12 offen')
            a(f'buffer_load_dwordx4 {vr(ST+16*i+4,4)}, v6, {srd(R_X)}, s12 offen')
            a(f'buffer_load_dwordx4 {vr(ST+16*i+8,4)}, v7, {srd(R_W)}, s13 offen')
            a(f'buffer_load_dwordx4 {vr(ST+16*i+12,4)}, v8, {srd(R_W)}, s13 offen')
        self.mk_srd(R_B, P_WO, WQ_BYTES); self.mk_srd(R_OUT, P_OUT, OUT_BYTES)
        T = 0
        self.estamp(3)
        if self.mode == 'fused' and not OPT('notlb'):
            a('v_lshlrev_b32 v2, 17, v0')
            a(f'buffer_load_dword v224, v2, {srd(R_WS)}, 0 offen')
            a(f'buffer_load_dword v225, v2, {srd(R_OUT)}, 0 offen')
            a(f'buffer_load_dword v226, v2, {srd(R_B)}, 0 offen')
            T = 3
        a(f's_and_b32 s8, {sWAVE}, 1\ns_lshl_b32 s8, s8, 5')
        a('v_and_b32 v2, 31, v0\nv_add_u32 v2, s8, v2\nv_bfe_u32 v3, v2, 1, 3\nv_lshrrev_b32 v4, 5, v0\nv_xor_b32 v3, v3, v4\nv_lshlrev_b32 v2, 7, v2')
        for ks in range(4):
            a(f'v_xor_b32 v9, {2*ks}, v3\nv_lshl_add_u32 v{10+ks}, v9, 4, v2')
        a('v_bfe_u32 v2, v0, 2, 2\nv_lshl_add_u32 v2, v4, 3, v2\nv_mul_u32_u24 v2, 112, v2')
        a('v_bfe_u32 v3, v0, 4, 1\nv_lshl_add_u32 v2, v3, 5, v2\nv_and_b32 v3, 3, v0\nv_lshl_add_u32 v2, v3, 3, v2')
        a(f's_lshr_b32 s8, {sWAVE}, 1\ns_mul_i32 s8, s8, 56\ns_add_u32 s8, s8, {WB}\nv_add_u32 v14, s8, v2')
        a('v_lshlrev_b32 v15, 4, v0\nv_add_u32 v9, s10, v15\nv_add_u32 v1, s11, v15')
        SETS = (112, 144)
        ACC = 48
        def reads(kb, s):
            reg = kb if kb < 5 else kb - 5
            for ks in range(4):
                a(f'ds_read_b128 {vr(SETS[s]+4*ks,4)}, v{10+ks} offset:{XB + reg*8192}')
                for t in range(2):
                    a(f'ds_read_b64_tr_b16 {vr(SETS[s]+16+4*ks+2*t,2)}, v14 offset:{reg*7168 + (16*ks+4*t)*112}')
        def mm(s, first=False):
            for ks in range(4):
                c = '0' if (first and ks == 0) else vr(ACC, 16)
                a(f'v_mfma_f32_32x32x16_bf16 {vr(ACC,16)}, {vr(SETS[s]+16+4*ks,4)}, {vr(SETS[s]+4*ks,4)}, {c}')
        for kb in range(5):
            a(f's_waitcnt vmcnt({24 - 4*kb + T})\ns_barrier')
            if kb == 0: self.stamp(1); self.estamp(4)
            if kb == 2: self.estamp(5)
            if kb == 4: self.estamp(6)
            reads(kb, kb & 1)
            if kb:
                a('s_waitcnt lgkmcnt(12)'); mm((kb - 1) & 1, first=(kb == 1))
        a(f's_waitcnt vmcnt({T})')
        for i in range(2):
            a(f'ds_write_b128 v9, {vr(ST+16*i,4)} offset:{XB + i*8192}')
            a(f'ds_write_b128 v9, {vr(ST+16*i+4,4)} offset:{XB + i*8192 + 1024}')
            a(f'ds_write_b128 v1, {vr(ST+16*i+8,4)} offset:{i*7168}')
        a('s_mov_b32 exec_hi, 0xffff')
        for i in range(2):
            a(f'ds_write_b128 v1, {vr(ST+16*i+12,4)} offset:{i*7168 + 1024}')
        a('s_mov_b32 exec_hi, -1')
        a('s_waitcnt lgkmcnt(0)\ns_barrier')
        reads(5, 1); mm(0); reads(6, 0)
        a('s_waitcnt lgkmcnt(12)'); mm(1)
        a('s_waitcnt lgkmcnt(0)'); mm(0)
        a(f's_lshl_b32 s8, {sWAVE}, 11\ns_add_u32 s8, s8, {QX}\nv_add_u32 v2, s8, v15\ns_mov_b32 s12, {f32(CSCALE)}')
        for js in range(4):
            a(f's_add_u32 s8, {sWAVE}, {1+js}\ns_and_b32 s8, s8, 3\ns_lshl_b32 s9, s8, 11\ns_add_u32 s9, s9, {QX}\nv_add_u32 v{10+js}, s9, v15')
            if js < 3:
                a(f's_mul_i32 s9, s8, 12288\nv_add_u32 v{3+js}, s9, v15')
        for r in range(16): a(f'v_mul_f32 v{ACC+r}, s12, v{ACC+r}')
        for r in range(8): a(f'v_cvt_pk_bf16_f32 v{64+r}, v{ACC+2*r}, v{ACC+2*r+1}')
        a('s_mov_b32 exec_lo, 0\nv_mov_b32 v70, 0\nv_mov_b32 v71, 0\ns_mov_b32 exec_lo, -1')
        a('ds_write_b128 v2, v[64:67]\nds_write_b128 v2, v[68:71] offset:1024')
        a('s_waitcnt lgkmcnt(0)\ns_barrier')
        for js in range(4):
            a(f'ds_read_b128 {vr(16+8*js,4)}, v{10+js}\nds_read_b128 {vr(20+8*js,4)}, v{10+js} offset:1024')
        self.stamp(2); self.estamp(7)

    def a_attn(self):
        a = self.a
        Q = 16; O = 48; KV = 112; SS = (144, 160); PP = (176, 184)
        K = lambda buf, f: vr(KV + 16*buf + 4*f, 4)
        Vv = lambda buf, f: vr(KV + 16*buf + 8 + 4*f, 4)
        sT = 's14'; sB = 's15'; sOFF = 's68'; sOFV = 's69'; sCNT = 's70'
        a(f's_lshl_b32 {sB}, {sWAVE}, 16\ns_add_u32 {sB}, {sB}, {WS_KV}\ns_and_b32 {sT}, {sJ}, 15\ns_lshl_b32 {sT}, {sT}, 12')
        for r in range(64): a(f'v_mov_b32 v{O+r}, 0')
        for r in range(8): a(f'v_mov_b32 v{PP[1]+r}, 0\nv_mov_b32 v{KV+24+r}, 0')
        if self.mode == 'fused': self.wait_kv()
        self.stamp(3); self.cstamp(8)
        def nxt():
            return f's_add_u32 {sT}, {sT}, 4096\ns_and_b32 {sT}, {sT}, 0xffff\ns_add_u32 {sOFF}, {sB}, {sT}'
        NOLD = 'nold' in sys.argv
        def ldK(buf, off): return ['s_nop 0','s_nop 0'] if NOLD and self.inloop else [f'buffer_load_dwordx4 {K(buf,f)}, v15, {srd(R_WS)}, {off} offen offset:{1024*f} sc1' for f in range(2)]
        def ldV(buf, off): return ['s_nop 0','s_nop 0'] if NOLD and self.inloop else [f'buffer_load_dwordx4 {Vv(buf,f)}, v15, {srd(R_WS)}, {off} offen offset:{2048+1024*f} sc1' for f in range(2)]
        self.inloop = False
        a(f's_add_u32 {sOFF}, {sB}, {sT}')
        for x in ldK(0, sOFF) + ldV(0, sOFF): a(x)
        a(nxt())
        for x in ldK(1, sOFF): a(x)
        def mA(u, buf, f):
            s = SS[u & 1]; c = '0' if f == 0 else vr(s, 16)
            return f'v_mfma_f32_32x32x16_bf16 {vr(s,16)}, {K(buf,f)}, {vr(Q + 8*(u&3) + 4*f, 4)}, {c}'
        def mC(u, buf, f):
            o = vr(O + 16*(u & 3), 16)
            return f'v_mfma_f32_32x32x16_bf16 {o}, {Vv(buf,f)}, {vr(PP[u&1] + 4*f, 4)}, {o}'
        a('s_waitcnt vmcnt(4) lgkmcnt(0)')
        a(mA(0, 0, 0)); a(mA(0, 0, 1))
        a(f's_mov_b32 {sCNT}, 7')
        def unit(u, mf, extra):
            s = SS[u & 1]; p = PP[u & 1]
            e = lambda i: f'v_exp_f32 v{s+i}, v{s+i}'
            c = lambda i: f'v_cvt_pk_bf16_f32 v{p+i}, v{s+2*i}, v{s+2*i+1}'
            seq = [[e(0), e(1), e(2), e(3), c(0), e(4)], [e(5), c(1), e(6), e(7), c(2), e(8)],
                   [e(9), c(3), e(10), e(11), c(4), e(12)], [e(13), c(5), e(14), e(15), c(6), c(7)]]
            for i in range(4):
                for x in extra.get(('pre', i), []): a(x)
                if mf[i]: a(mf[i])
                for x in extra.get(i, []): a(x)
                for x in seq[i]: a(x)
        lloop = self.L('attn'); self.inloop = True
        def body(tail):
            for u in range(8):
                t = u >> 2; b = u & 3
                nu = u + 1; nbuf = (nu >> 2) & 1
                pu = u - 1; pbuf = ((pu >> 2) & 1)
                mf = [mA(nu, nbuf, 0), mA(nu, nbuf, 1), mC(pu, pbuf, 0), mC(pu, pbuf, 1)]
                ex = {}
                if tail and u == 7: mf = [mC(pu, pbuf, 0), mC(pu, pbuf, 1), None, None]
                if b == 3:
                    if not tail:
                        ex[('pre', 0)] = ['s_waitcnt vmcnt(2)']
                        ex[0] = nxt().split('\n')[:1]; ex[1] = nxt().split('\n')[1:]
                        ex[2] = [ldK(t, sOFF)[0]]; ex[3] = [ldK(t, sOFF)[1]]
                    elif u == 3:
                        ex[('pre', 0)] = ['s_waitcnt vmcnt(2)']
                if b == 1:
                    if not tail:
                        ex[('pre', 2)] = ['s_waitcnt vmcnt(2)']
                        ex[2] = [ldV(t ^ 1, sOFF)[0]]; ex[3] = [ldV(t ^ 1, sOFF)[1]]
                    elif u == 1:
                        ex[('pre', 2)] = ['s_waitcnt vmcnt(2)']
                        ex[2] = [ldV(t ^ 1, sOFF)[0]]; ex[3] = [ldV(t ^ 1, sOFF)[1]]
                    else:
                        ex[('pre', 2)] = ['s_waitcnt vmcnt(0)']
                if tail and u == 6:
                    for g in range(4): ex.setdefault((1,2,2,3)[g], []).append(f'ds_write_b128 v3, {vr(O+4*g,4)} offset:{g*1024}')
                if tail and u == 7:
                    for g in range(4): ex.setdefault((1,2,2,3)[g], []).append(f'ds_write_b128 v4, {vr(O+16+4*g,4)} offset:{4096+g*1024}')
                if not tail and u == 7:
                    ex.setdefault(0, []).append(f's_sub_u32 {sCNT}, {sCNT}, 1')
                unit(u, mf, ex)
        a('s_nop 10\n.p2align 4')
        a.label(lloop)
        body(False)
        a(f's_cmp_lg_u32 {sCNT}, 0\ns_cbranch_scc1 {lloop}')
        body(True)
        a(mC(7, 1, 0)); a(mC(7, 1, 1))
        for g in range(4): a(f'ds_write_b128 v5, {vr(O+32+4*g,4)} offset:{8192+g*1024}')
        a(f's_mul_i32 s8, {sWAVE}, 12288\nv_add_u32 v2, s8, v15')
        a('s_waitcnt lgkmcnt(0)\ns_barrier')
        self.stamp(4); self.cstamp(9)
        RD = 112
        for i in range(12): a(f'ds_read_b128 {vr(RD+4*i,4)}, v2 offset:{i*1024}')
        F = O + 48
        for s in range(3):
            a(f's_waitcnt lgkmcnt({8-4*s})')
            for r in range(0, 16, 2): a(f'v_pk_add_f32 {vr(F+r,2)}, {vr(F+r,2)}, {vr(RD+16*s+r,2)}')
        a(f'v_mov_b32 v10, v{F+12}\nv_mov_b32 v11, v{F+12}\nv_permlane32_swap_b32 v10, v11\nv_rcp_f32 v10, v11')
        a(f's_lshl_b32 s8, s6, 1\ns_and_b32 s9, {sWAVE}, 1\ns_add_u32 s8, s8, s9\ns_lshl_b32 s8, s8, 15')
        a(f's_lshl_b32 s9, s7, 1\ns_lshr_b32 s10, {sWAVE}, 1\ns_add_u32 s9, s9, s10\ns_lshl_b32 s9, s9, 11')
        a(f's_add_u32 s8, s8, s9\ns_add_u32 s8, s8, {WS_O}')
        for r in range(0, 16, 2): a(f'v_pk_mul_f32 {vr(F+r,2)}, {vr(F+r,2)}, v[10:11] op_sel_hi:[1,0]')
        for r in range(8): a(f'v_cvt_pk_bf16_f32 v{160+r}, v{F+2*r}, v{F+2*r+1}')
        a('s_mov_b32 exec_lo, 0\nv_mov_b32 v166, 0\nv_mov_b32 v167, 0\ns_mov_b32 exec_lo, -1')
        a(f'buffer_store_dwordx4 v[160:163], v15, {srd(R_WS)}, s8 offen sc1')
        a(f'buffer_store_dwordx4 v[164:167], v15, {srd(R_WS)}, s8 offen offset:1024 sc1')

    def a_outproj_pro(self):
        a = self.a
        a(f's_lshr_b32 s8, {sJ}, 3\ns_lshl_b32 s6, {sXG}, 2\ns_add_u32 s6, s6, s8\ns_and_b32 s7, {sJ}, 7')
        self.row7_addr('v7', 'v8', 'v2', 896)
        a(f's_lshl_b32 s8, {sWAVE}, 4\ns_mul_i32 s9, s8, 896\ns_mul_i32 s10, s7, 112\ns_add_u32 s9, s9, s10')
        a('v_add_u32 v7, s9, v7\nv_add_u32 v8, s9, v8\nv_lshlrev_b32 v15, 4, v0')
        self.after_kernarg()
        self.mk_srd(R_B, P_WO, WQ_BYTES); self.mk_srd(R_OUT, P_OUT, OUT_BYTES)

    def a_outproj(self):
        a = self.a
        a(f's_mul_i32 s11, {sWAVE}, 1792')
        for kb in range(7):
            a(f's_mov_b32 s13, {kb*64*896}')
            a(f's_add_u32 m0, s11, {kb*7168}\nbuffer_load_dwordx4 v7, {srd(R_B)}, s13 offen lds')
            a(f's_add_u32 m0, s11, {kb*7168 + 1024}\nbuffer_load_dwordx4 v8, {srd(R_B)}, s13 offen lds')
        a(f's_mov_b32 s13, {7*64*896}\ns_add_u32 m0, s11, {7*7168}\nbuffer_load_dwordx4 v7, {srd(R_B)}, s13 offen lds')
        a('v_lshrrev_b32 v4, 5, v0\nv_bfe_u32 v2, v0, 2, 2\nv_lshl_add_u32 v2, v4, 2, v2\nv_mul_u32_u24 v2, 112, v2')
        a('v_bfe_u32 v3, v0, 4, 1\nv_lshl_add_u32 v2, v3, 5, v2\nv_and_b32 v3, 3, v0\nv_lshl_add_u32 v2, v3, 3, v2')
        a(f's_lshr_b32 s12, {sWAVE}, 1\ns_mul_i32 s8, s12, {224*112 + 64}\nv_add_u32 v14, s8, v2\ns_mul_i32 s8, s12, {224*112 - 64}\ns_add_u32 s8, s8, 64\nv_add_u32 v13, s8, v2')
        a(f's_lshl_b32 s8, s6, 1\ns_and_b32 s9, {sWAVE}, 1\ns_add_u32 s8, s8, s9\ns_lshl_b32 s10, s8, 15\ns_lshl_b32 s9, s12, 14')
        a(f's_add_u32 s10, s10, s9\ns_add_u32 s10, s10, {WS_O}')
        XCH = 57344
        a(f's_xor_b32 s9, {sWAVE}, 2\ns_lshl_b32 s9, s9, 12\ns_add_u32 s9, s9, {XCH}\nv_add_u32 v5, s9, v15')
        a(f's_lshl_b32 s9, {sWAVE}, 12\ns_add_u32 s9, s9, {XCH}\nv_add_u32 v6, s9, v15')
        a(f's_mul_i32 s8, s8, {32*1792}\ns_mul_i32 s9, s7, 112\ns_add_u32 s8, s8, s9\ns_lshl_b32 s9, s12, 6\ns_add_u32 s8, s8, s9\ns_add_u32 s8, s8, 896')
        a('v_and_b32 v9, 31, v0\nv_mul_u32_u24 v9, 1792, v9\nv_lshl_add_u32 v9, v4, 4, v9\nv_add_u32 v9, s8, v9')
        if self.mode == 'fused': self.wait_o()
        else: a('s_waitcnt vmcnt(0)\ns_barrier')
        self.stamp(6)
        OF = 16
        for i in range(16):
            if i % 4 == 0 and i: a('s_add_u32 s10, s10, 4096')
            a(f'buffer_load_dwordx4 {vr(OF+4*i,4)}, v15, {srd(R_WS)}, s10 offen offset:{(i%4)*1024} sc1')
        WF = 112
        ACC = (80, 96)
        def rd(i):
            hd, f = i >> 1, i & 1
            b = WF + 8 * (i & 3)
            for ct in range(2):
                for t in range(2):
                    a(f'ds_read_b64_tr_b16 {vr(b+4*ct+2*t,2)}, v{14-ct} offset:{(28*hd+16*f+8*t)*112}')
        rd(0); rd(1); rd(2)
        for i in range(16):
            if i + 3 < 16: rd(i + 3)
            left = min(3, 15 - i)
            a(f's_waitcnt vmcnt({15-i}) lgkmcnt({4*left})')
            b = WF + 8 * (i & 3)
            for ct in range(2):
                c = '0' if i == 0 else vr(ACC[ct], 16)
                a(f'v_mfma_f32_32x32x16_bf16 {vr(ACC[ct],16)}, {vr(b+4*ct,4)}, {vr(OF+4*i,4)}, {c}')
        for g in range(4): a(f'ds_write_b128 v5, {vr(ACC[1]+4*g,4)} offset:{g*1024}')
        a('s_waitcnt lgkmcnt(0)\ns_barrier')
        for g in range(4): a(f'ds_read_b128 {vr(16+4*g,4)}, v6 offset:{g*1024}')
        a('s_waitcnt lgkmcnt(0)')
        for r in range(0, 16, 2): a(f'v_pk_add_f32 {vr(ACC[0]+r,2)}, {vr(ACC[0]+r,2)}, {vr(16+r,2)}')
        for r in range(8): a(f'v_cvt_pk_bf16_f32 v{32+r}, v{ACC[0]+2*r}, v{ACC[0]+2*r+1}')
        a('v_permlane32_swap_b32 v32, v34\nv_permlane32_swap_b32 v33, v35\nv_permlane32_swap_b32 v36, v38\nv_permlane32_swap_b32 v37, v39')
        a(f'buffer_store_dwordx4 v[32:35], v9, {srd(R_OUT)}, 0 offen')
        a('s_cmp_eq_u32 s12, 0\ns_cselect_b32 exec_hi, -1, 0')
        a(f'buffer_store_dwordx4 v[36:39], v9, {srd(R_OUT)}, 0 offen offset:32')
        a('s_mov_b32 exec_hi, -1')
        self.stamp(7)

    UTILE = 58368; UB = 58368; KB = 67584; SCR = 14592
    def s_start(self, kv=True):
        a = self.a
        self.row7_addr('v7', 'v8', 'v2', 896)
        a(f's_lshl_b32 s8, {sJ}, 6\ns_lshl_b32 s9, {sWAVE}, 4\ns_add_u32 s8, s8, s9\ns_mul_i32 s8, s8, 896\ns_mul_i32 s9, {sXG}, 112\ns_add_u32 s8, s8, s9')
        a('v_add_u32 v7, s8, v7\nv_add_u32 v8, s8, v8')
        a(f's_lshl_b32 s6, {sJ}, 2\ns_add_u32 s6, s6, {sXG}\ns_lshr_b32 s7, s6, 1')
        a(f's_lshl_b32 s9, s7, 5\ns_lshl_b32 s10, {sWAVE}, 3\ns_add_u32 s9, s9, s10\ns_mul_i32 s9, s9, 896')
        a(f'v_lshrrev_b32 v2, 3, v0\nv_lshrrev_b32 v3, 4, v0\ns_and_b32 s10, {sWAVE}, 1\ns_lshl_b32 s10, s10, 2\nv_add_u32 v3, s10, v3')
        a('v_and_b32 v4, 7, v0\nv_xor_b32 v4, v4, v3\nv_mul_u32_u24 v2, 896, v2\nv_lshl_add_u32 v5, v4, 4, v2\nv_add_u32 v5, s9, v5')
        a(f'v_lshlrev_b32 v15, 4, v0\ns_lshl_b32 s11, {sWAVE}, 10\nv_add_u32 v6, s11, v15')
        self.after_kernarg()
        self.mk_srd(R_X, P_X, X_BYTES); self.mk_srd(R_B, P_U, X_BYTES)
        a(f's_bitcmp1_b32 s6, 0\ns_cselect_b32 s{R_W}, s{P_WV}, s{P_WK}\ns_cselect_b32 s{R_W+1}, s{P_WV+1}, s{P_WK+1}')
        a(f's_mov_b32 s{R_W+2}, {WK_BYTES}\ns_mov_b32 s{R_W+3}, 0x20000')
        self.mk_srd(R_OUT, P_OUT, OUT_BYTES)
        lnp = self.L('noprod')
        a(f's_cmp_ge_u32 {sXG}, 4\ns_cbranch_scc1 {lnp}')
        for kb in range(7):
            a(f's_mov_b32 s12, {kb*128}\ns_mov_b32 s13, {kb*4096}')
            a(f's_add_u32 m0, s11, {kb*4096}\nbuffer_load_dwordx4 v5, {srd(R_X)}, s12 offen lds')
            a(f's_add_u32 m0, s11, {28672 + kb*4096}\nbuffer_load_dwordx4 v6, {srd(R_W)}, s13 offen lds')
        a.label(lnp)
        a(f's_mul_i32 s12, {sWAVE}, 1792')
        a(f's_add_u32 m0, s12, {self.UTILE}\nbuffer_load_dwordx4 v7, {srd(R_B)}, 0 offen lds')
        a(f's_add_u32 m0, s12, {self.UTILE + 1024}\nbuffer_load_dwordx4 v8, {srd(R_B)}, 0 offen lds')

    def s_params(self):
        a = self.a
        a(f's_min_u32 s8, {sJ}, 27\ns_lshl_b32 s8, s8, 1\ns_mul_i32 s9, {sXG}, 56\ns_add_u32 s73, s8, s9')
        a(f's_lshl_b32 s8, s73, 1\ns_load_dword s71, {sp(P_LDT)}, s8\ns_load_dword s72, {sp(P_DSK)}, s8')
        a(f's_lshr_b32 s8, {sWAVE}, 1\ns_add_u32 s74, s73, s8')
        a(f's_lshl_b32 s8, s74, 9\ns_and_b32 s9, {sWAVE}, 1\ns_lshl_b32 s10, s9, 8\ns_add_u32 s8, s8, s10')
        a('v_lshl_add_u32 v2, v0, 2, s8')
        for i, p in enumerate((P_LAR, P_AIM, P_CRE, P_CIM)):
            a(f'global_load_dword v{16+i}, v2, {sp(p)}')
        lp = self.L('pc')
        a(f's_getpc_b64 s[12:13]')
        a.label(lp)
        a(f's_add_u32 s12, s12, L_table-{lp}\ns_addc_u32 s13, s13, 0')
        a('s_lshl_b32 s9, s9, 12\nv_lshl_add_u32 v3, v0, 4, s9')
        for i in range(4):
            a(f'global_load_dwordx4 {vr(20+4*i,4)}, v3, s[12:13] offset:{1024*i}')
        return 8

    def s_kv(self, newer):
        a = self.a
        lskip = self.L('kvskip'); lv = self.L('kvV'); lst = self.L('kvst')
        a(f's_cmp_ge_u32 {sXG}, 4\ns_cbranch_scc1 {lskip}')
        a(f's_and_b32 s8, {sWAVE}, 1\ns_lshl_b32 s9, s8, 4\ns_lshr_b32 s10, {sWAVE}, 1')
        a('v_and_b32 v2, 15, v0\nv_add_u32 v3, s9, v2\nv_bfe_u32 v4, v3, 1, 3\nv_lshrrev_b32 v9, 4, v0\nv_xor_b32 v4, v4, v9\nv_lshlrev_b32 v3, 7, v3')
        a('v_lshl_add_u32 v10, v4, 4, v3\nv_xor_b32 v4, 4, v4\nv_lshl_add_u32 v11, v4, 4, v3')
        a('v_bfe_u32 v3, v0, 2, 2\nv_lshl_add_u32 v3, v9, 3, v3\nv_mul_u32_u24 v3, 56, v3\nv_and_b32 v4, 3, v0\nv_lshl_add_u32 v3, v4, 3, v3')
        a('s_lshl_b32 s9, s10, 5\ns_add_u32 s9, s9, 28672\nv_add_u32 v12, s9, v3')
        a('v_lshlrev_b32 v13, 4, v2\nv_bfe_u32 v3, v0, 4, 1\nv_lshl_add_u32 v13, v3, 9, v13\nv_lshrrev_b32 v3, 5, v0\nv_lshl_add_u32 v13, v3, 3, v13')
        a('s_bitcmp1_b32 s6, 0\ns_cselect_b32 s12, s8, s10\ns_cselect_b32 s13, s10, s8\ns_cselect_b32 s14, 2048, 0')
        a(f's_lshl_b32 s12, s12, 10\ns_lshl_b32 s13, s13, 8\ns_add_u32 s12, s12, s13\ns_add_u32 s12, s12, s14\ns_lshl_b32 s13, s7, 12\ns_add_u32 s12, s12, s13\ns_add_u32 s12, s12, {WS_KV}')
        a(f's_waitcnt vmcnt({newer})\ns_barrier')
        self.stamp(1)
        XF = 40; WF = 96; ACC = 36
        def rdk(ks):
            a(f'ds_read_b128 {vr(XF+4*ks,4)}, v{10+(ks&1)} offset:{(ks>>1)*4096}')
            for t in range(2):
                a(f'ds_read_b64_tr_b16 {vr(WF+4*ks+2*t,2)}, v12 offset:{(32*ks+4*t)*56}')
        for ks in range(4): rdk(ks)
        a('s_bitcmp1_b32 s6, 0')
        def chain(swap):
            for ks in range(14):
                if ks + 4 < 14: rdk(ks + 4)
                a(f's_waitcnt lgkmcnt({3*min(4, 13-ks)})')
                A, B = (vr(XF+4*ks,4), vr(WF+4*ks,4)) if swap else (vr(WF+4*ks,4), vr(XF+4*ks,4))
                c = '0' if ks == 0 else vr(ACC, 4)
                a(f'v_mfma_f32_16x16x32_bf16 {vr(ACC,4)}, {A}, {B}, {c}')
        a(f's_cbranch_scc1 {lv}')
        chain(False)
        a(f's_cmp_eq_u32 s10, 1\ns_cselect_b32 s14, 0xffff0000, 0\ns_mov_b32 s15, 0')
        a(f'v_cvt_pk_bf16_f32 v2, v{ACC}, v{ACC+1}\nv_cvt_pk_bf16_f32 v3, v{ACC+2}, v{ACC+3}')
        a('s_mov_b32 exec_lo, s15\ns_mov_b32 exec_hi, s14\nv_mov_b32 v2, 0x3f803f80\nv_mov_b32 v3, 0x00003f80\ns_mov_b64 exec, -1')
        a(f's_branch {lst}')
        a.label(lv)
        chain(True)
        a(f's_cmp_eq_u32 s10, 1\ns_cselect_b32 s14, 0xe000e000, 0\ns_cselect_b32 s15, 0x10001000, 0')
        a(f'v_cvt_pk_bf16_f32 v2, v{ACC}, v{ACC+1}\nv_cvt_pk_bf16_f32 v3, v{ACC+2}, v{ACC+3}')
        a('s_mov_b32 exec_lo, s14\ns_mov_b32 exec_hi, s14\nv_mov_b32 v2, 0\nv_mov_b32 v3, 0')
        a('s_mov_b32 exec_lo, s15\ns_mov_b32 exec_hi, s15\nv_mov_b32 v2, 0x3f803f80\nv_mov_b32 v3, 0x3f803f80\ns_mov_b64 exec, -1')
        a.label(lst)
        a(f'buffer_store_dwordx2 v[2:3], v13, {srd(R_WS)}, s12 offen sc1')
        if self.mode == 'fused': self.publish_kv()
        a.label(lskip)
        self.stamp(2)

    def s_ut(self):
        a = self.a
        a('s_waitcnt vmcnt(0)\ns_barrier')
        self.estamp(6)
        a(f'v_bfe_u32 v2, v0, 2, 2\nv_lshlrev_b32 v2, 2, v2\nv_add_u32 v2, {sWAVE}, v2\nv_mul_u32_u24 v2, 112, v2')
        a(f'v_lshrrev_b32 v3, 4, v0\nv_lshl_add_u32 v2, v3, 5, v2\nv_and_b32 v3, 3, v0\nv_lshl_add_u32 v2, v3, 3, v2')
        for half in range(2):
            for t in range(2):
                a(f'ds_read_b64_tr_b16 {vr(36+4*half+2*t,2)}, v2 offset:{self.UTILE + (32*half+16*t)*112}')
        a(f's_mul_i32 s8, {sXG}, {56*4096}\ns_lshl_b32 s9, {sJ}, 7\ns_add_u32 s8, s8, s9\ns_lshl_b32 s9, {sWAVE}, 5\ns_add_u32 s8, s8, s9\ns_add_u32 s8, s8, {WS_UT}')
        a('v_lshlrev_b32 v3, 12, v0\ns_mov_b32 exec_hi, 0x00ffffff\ns_waitcnt lgkmcnt(0)')
        a(f'buffer_store_dwordx4 v[36:39], v3, {srd(R_WS)}, s8 offen sc1')
        a(f'buffer_store_dwordx4 v[40:43], v3, {srd(R_WS)}, s8 offen offset:16 sc1')
        a('s_mov_b32 exec_hi, -1')
        if self.mode == 'fused': self.publish_grp(WS_FU)
        self.stamp(3)

    def s_kgen(self):
        a = self.a
        RS = 272
        a(f's_waitcnt lgkmcnt(0)\ns_bitcmp1_b32 {sWAVE}, 1\ns_cselect_b32 s8, 0, 16')
        a('s_lshl_b32 s9, s71, s8\ns_and_b32 s9, s9, 0xffff0000\ns_lshl_b32 s10, s72, s8\ns_and_b32 s72, s10, 0xffff0000')
        a(f'v_mov_b32 v2, s9\nv_mul_f32 v2, {f32(LOG2E)}, v2\nv_exp_f32 v2, v2\nv_cvt_pk_bf16_f32 v2, v2, v2\nv_and_b32 v2, 0xffff0000, v2')
        a(f'v_mul_f32 v3, {f32(-LOG2E)}, v2\nv_mul_f32 v4, 0.15915494309189532, v2\nv_add_f32 v5, v2, v2')
        a(f's_mul_i32 s11, {sWAVE}, {self.SCR}\ns_mov_b32 m0, s11')
        a(f'v_and_b32 v6, 31, v0\nv_mul_u32_u24 v9, {RS}, v6\nv_lshrrev_b32 v10, 5, v0\nv_lshl_add_u32 v9, v10, 4, v9\nv_add_u32 v9, s11, v9')
        a(f'v_mul_u32_u24 v11, 144, v6\nv_lshl_add_u32 v11, v10, 4, v11\nv_add_u32 v11, s11, v11')
        a('v_mov_b32 v12, 0x00003f80')
        ACC = 48; FR = 64
        W1, W8, W256 = 40, 42, 44
        def cmul(z, x, y, conj, t):
            a(f'v_pk_mul_f32 {vr(t,2)}, {vr(x,2)}, {vr(y,2)} op_sel_hi:[1,0]')
            a(f'v_pk_fma_f32 {vr(z,2)}, {vr(x,2)}, {vr(y,2)}, {vr(t,2)} op_sel:[1,1,0] op_sel_hi:[0,1,1] {"neg_hi" if conj else "neg_lo"}:[1,0,0]')
        cnt = [0]
        def put(z, row):
            t = 128 + (cnt[0] & 3); cnt[0] += 1
            a(f'v_cvt_pk_bf16_f32 v{t}, v{z}, v{z+1}\nds_write_addtid_b32 v{t} offset:{row*RS}')
        a('s_waitcnt vmcnt(0)')
        for rnd in range(2):
            ex = (lambda d, s: f'v_lshlrev_b32 v{d}, 16, v{s}') if rnd == 0 else (lambda d, s: f'v_and_b32 v{d}, 0xffff0000, v{s}')
            a(ex(36, 16)); a(ex(37, 17)); a(ex(132, 18)); a(ex(133, 19))
            a(f'v_mul_f32 v36, {f32(LOG2E)}, v36\nv_exp_f32 v36, v36\nv_mul_f32 v37, v37, v4\nv_cvt_pk_bf16_f32 v36, v36, v36\nv_and_b32 v36, 0xffff0000, v36\nv_mul_f32 v36, v36, v3')
            a('v_mul_f32 v132, v132, v5\nv_mul_f32 v133, -v133, v5')
            for W, m in ((W1, 1.0), (W8, 8.0), (W256, 256.0)):
                if m == 1.0: a('v_exp_f32 v38, v36\nv_fract_f32 v39, v37')
                else: a(f'v_mul_f32 v38, {f32(m)}, v36\nv_mul_f32 v39, {f32(m)}, v37\nv_exp_f32 v38, v38\nv_fract_f32 v39, v39')
                a(f'v_cos_f32 v{W}, v39\nv_sin_f32 v{W+1}, v39\nv_mul_f32 v{W}, v{W}, v38\nv_mul_f32 v{W+1}, v{W+1}, v38')
            if rnd == 1:
                a('s_waitcnt lgkmcnt(0)')
            a('ds_write_addtid_b32 v12 offset:0')
            put(W8, 1); put(132, 32)
            jobsL = []; cur = W8
            for b in range(2, 32):
                z = 134 + 2 * (b & 1); jobsL.append((z, cur, W8, False, 146, b)); cur = z
            H = {0: 132, 1: 138, 2: 140, 3: 138, 4: 142, 5: 138, 6: 144, 7: 138}
            jobsH = [(H[k], H[k-1], W1, True, 148, 32 + k) for k in range(1, 8)]
            jobsH += [(132, 132, W256, True, 148, 40), (140, 140, W256, True, 148, 41), (142, 142, W256, True, 148, 42), (144, 144, W256, True, 148, 43),
                      (132, 132, W256, True, 148, 44), (142, 142, W256, True, 148, 45), (132, 132, W256, True, 148, 46), (142, 142, W256, True, 148, 47)]
            jobsH += [(132, 132, W256, True, 148, 48 + k) for k in range(5)]
            il = []; n = len(jobsL)
            hi = 0
            for i, jl in enumerate(jobsL):
                il.append(jl)
                while hi < (i + 1) * len(jobsH) // n: il.append(jobsH[hi]); hi += 1
            mf = []
            if rnd == 1:
                mf = [f'v_mfma_f32_32x32x16_bf16 {vr(ACC,16)}, {vr(FR+8*q,4)}, {vr(FR+8*q+4,4)}, {"0" if q == 0 else vr(ACC,16)}' for q in range(8)]
                for x in mf: a(x)
            for (z, x, y, cj, t, row) in il:
                cmul(z, x, y, cj, t); put(z, row)
            a('s_waitcnt lgkmcnt(0)')
            for q in range(8):
                a(f'ds_read_b128 {vr(FR+8*q,4)}, v9 offset:{32*q}\nds_read_b128 {vr(FR+8*q+4,4)}, v9 offset:{32*RS + 32*q}')
        for q in range(8):
            a(f's_waitcnt lgkmcnt({14-2*q})')
            a(f'v_mfma_f32_32x32x16_bf16 {vr(ACC,16)}, {vr(FR+8*q,4)}, {vr(FR+8*q+4,4)}, {vr(ACC,16)}')
        a(f's_and_b32 s8, {sWAVE}, 2\ns_mul_i32 s8, s8, {self.SCR}')
        for k in range(16): a(f'v_add_u32 v{20+k}, s8, v{20+k}')
        for g in range(4): a(f'ds_write_b128 v11, {vr(ACC+4*g,4)} offset:{32*g}')
        a(f's_lshr_b32 s8, {sWAVE}, 1\ns_mul_i32 s8, s8, 4160\ns_add_u32 s75, s8, {self.KB}\ns_and_b32 s9, {sWAVE}, 1\ns_lshl_b32 s10, s9, 11\ns_add_u32 s10, s10, s75')
        a('v_lshl_add_u32 v13, v0, 5, s10\nv_mov_b32 v14, 0')
        a('s_cmp_eq_u32 s9, 0\ns_cselect_b32 exec_lo, 1, 0\ns_mov_b32 exec_hi, 0\nv_mov_b32 v14, s72\ns_mov_b64 exec, -1')
        a('s_waitcnt lgkmcnt(0)\ns_barrier')
        G = 64
        for k in range(16): a(f'ds_read2st64_b32 {vr(G+2*k,2)}, v{20+k} offset1:57')
        a('v_lshl_add_u32 v2, v0, 2, s75\nv_mov_b32 v3, 0\ns_mov_b64 exec, 0xffff\nds_write_b32 v2, v3\ns_mov_b64 exec, -1')
        for k in range(16):
            if k % 4 == 0: a(f's_waitcnt lgkmcnt({13-k})')
            a(f'v_add_f32 v{G+2*k}, v{G+2*k}, v{G+2*k+1}')
            if k == 0: a(f'v_add_f32 v{G}, v{G}, v14')
        for k in range(8): a(f'v_cvt_pk_bf16_f32 v{100+k}, v{G+4*k}, v{G+4*k+2}')
        a('ds_write_b128 v13, v[100:103] offset:64\nds_write_b128 v13, v[104:107] offset:80')
        self.stamp(4)

    def s_conv(self):
        a = self.a
        a(f's_lshl_b32 s8, s74, 12\ns_and_b32 s9, {sWAVE}, 1\ns_lshl_b32 s10, s9, 11\ns_add_u32 s8, s8, s10\ns_add_u32 s8, s8, {WS_UT}')
        for i in range(2): a(f'buffer_load_dwordx4 {vr(16+4*i,4)}, v15, {srd(R_WS)}, s8 offen offset:{1024*i} sc1')
        a(f's_lshr_b32 s10, {sWAVE}, 1\ns_mul_i32 s11, s10, 4608\ns_add_u32 s11, s11, {self.UB}')
        a('v_bfe_u32 v2, v0, 1, 2\nv_mul_u32_u24 v2, 1152, v2\nv_lshrrev_b32 v3, 3, v0\nv_lshl_add_u32 v2, v3, 5, v2\nv_and_b32 v3, 1, v0\nv_lshl_add_u32 v2, v3, 4, v2')
        a('s_lshl_b32 s12, s9, 9\ns_add_u32 s12, s12, s11\nv_add_u32 v2, s12, v2')
        a('v_lshrrev_b32 v3, 3, v0\nv_mul_u32_u24 v3, 1152, v3\nv_and_b32 v4, 7, v0\nv_lshl_add_u32 v3, v4, 4, v3\nv_add_u32 v3, s11, v3')
        a('v_mov_b32 v24, 0\nv_mov_b32 v25, 0\nv_mov_b32 v26, 0\nv_mov_b32 v27, 0')
        a('s_mov_b32 exec_hi, 0\nds_write_b128 v3, v[24:27]\ns_mov_b32 exec_hi, -1')
        a('v_and_b32 v4, 1, v0\nv_lshlrev_b32 v4, 4, v4\nv_bfe_u32 v5, v0, 1, 1\nv_lshl_add_u32 v4, v5, 2, v4\nv_bfe_u32 v5, v0, 4, 1\nv_lshl_add_u32 v4, v5, 3, v4')
        a('v_lshrrev_b32 v6, 5, v0\nv_lshlrev_b32 v5, 5, v6\nv_sub_u32 v4, v4, v5\nv_bfe_u32 v5, v0, 2, 2\nv_lshlrev_b32 v5, 2, v5\nv_sub_u32 v4, v4, v5')
        a('s_add_u32 s12, s75, 96\nv_lshl_add_u32 v9, v4, 1, s12')
        a('v_bfe_u32 v4, v0, 3, 2\nv_mul_u32_u24 v5, 1152, v4\nv_and_b32 v7, 7, v0\nv_add_u32 v8, v7, v6\nv_lshl_add_u32 v5, v8, 4, v5\ns_add_u32 s12, s11, 16\nv_add_u32 v10, s12, v5')
        a('v_lshrrev_b32 v8, 1, v7\nv_and_b32 v5, 1, v7\nv_lshl_or_b32 v8, v5, 2, v8\nv_lshlrev_b32 v5, 2, v6\nv_xor_b32 v8, v8, v5')
        a('v_lshlrev_b32 v4, 13, v4\nv_lshl_add_u32 v4, v7, 7, v4\ns_lshl_b32 s12, s10, 15\nv_add_u32 v4, s12, v4')
        for g in range(4): a(f'v_xor_b32 v5, {g}, v8\nv_lshl_add_u32 v{11+g}, v5, 4, v4')
        a('s_waitcnt vmcnt(0)')
        a('ds_write_b128 v2, v[16:19] offset:128\nds_write_b128 v2, v[20:23] offset:384')
        a('s_waitcnt lgkmcnt(0)\ns_barrier')
        self.stamp(5)
        D = 16; BF = (80, 112); TF = (144, 176)
        l1 = self.L('cv1'); lj = self.L('cvj')
        a(f's_cmp_eq_u32 s9, 0\ns_cbranch_scc0 {l1}')
        def variant(tset):
            mmax = max(tset)
            ops = []
            mf = []
            reads = []
            seen = set(); started = set()
            for r in range(4):
                pb = r & 1
                for jj in range(mmax + 1):
                    for ti, t in enumerate(tset):
                        if t < jj: continue
                        m = t - jj
                        nb = ('B', r, m); nt = ('T', r, jj)
                        for k in (nt, nb):
                            if k not in seen:
                                seen.add(k)
                                if k[0] == 'B':
                                    reads.append((k, [f'ds_read_b128 {vr(BF[pb]+4*m,4)}, v10 offset:{32*(4*m - r + 3)}']))
                                else:
                                    mu = 4*jj + r
                                    reads.append((k, [f'ds_read_b64_tr_b16 {vr(TF[pb]+4*jj+2*tt,2)}, v9 offset:{128*mu + 32*(1-tt)}' for tt in range(2)]))
                        c = vr(D+16*ti, 16) if t in started else '0'
                        started.add(t)
                        mf.append((f'v_mfma_f32_32x32x16_bf16 {vr(D+16*ti,16)}, {vr(TF[pb]+4*jj,4)}, {vr(BF[pb]+4*m,4)}, {c}', (nb, nt), r))
            flat = []; endpos = {}
            for k, xs in reads:
                for x in xs: flat.append((x, k))
                endpos[k] = len(flat)
            issued = 0; done = 0
            lastuse = {}
            for i, (_, needs, r) in enumerate(mf):
                lastuse[r] = i
            for i, (txt, needs, r) in enumerate(mf):
                need = max(endpos[k] for k in needs)
                tgt = min(len(flat), need + 12)
                while issued < tgt:
                    kk = flat[issued][1]
                    if kk[1] >= r + 2: break
                    a(flat[issued][0]); issued += 1
                if need > done:
                    n = issued - need
                    assert n <= 15
                    a(f's_waitcnt lgkmcnt({n})'); done = need
                a(txt)
            a('s_barrier')
            for ti, t in enumerate(tset):
                for g in range(4): a(f'ds_write_b128 v{11+g}, {vr(D+16*ti+4*g,4)} offset:{t*1024}')
        variant([7, 4, 3, 0]); a(f's_branch {lj}')
        a.label(l1); variant([6, 5, 2, 1])
        a.label(lj)
        a('s_lshl_b32 s12, s9, 6\nv_add_u32 v2, s12, v0\nv_lshrrev_b32 v3, 1, v2\nv_and_b32 v4, 1, v2')
        def fa(dst, av): a(f'v_bfe_u32 {dst}, {av}, 1, 2\nv_and_b32 v8, 1, {av}\nv_lshl_or_b32 {dst}, v8, 2, {dst}')
        fa('v5', 'v3')
        a('v_lshlrev_b32 v6, 2, v4\nv_xor_b32 v5, v5, v6\ns_lshl_b32 s12, s10, 15\nv_lshlrev_b32 v6, 7, v3\nv_add_u32 v6, s12, v6')
        for k in range(4): a(f'v_xor_b32 v7, {k}, v5\nv_lshl_add_u32 v{10+k}, v7, 4, v6')
        a('v_xor_b32 v7, 1, v4\nv_sub_u32 v3, v3, v7\nv_max_i32 v3, 0, v3')
        fa('v5', 'v3')
        a('v_lshlrev_b32 v7, 2, v7\nv_add_u32 v7, 3, v7\nv_xor_b32 v5, v5, v7\nv_lshlrev_b32 v6, 7, v3\nv_add_u32 v6, s12, v6\nv_lshl_add_u32 v14, v5, 4, v6')
        a(f's_lshl_b32 s8, s74, 12\ns_add_u32 s8, s8, {WS_YT}\nv_lshlrev_b32 v9, 5, v2')
        a('s_waitcnt lgkmcnt(0)\ns_barrier')
        Y = [16, 36, 56, 76]
        for ph in range(4):
            if ph: a(f'ds_read_b128 {vr(Y[ph],4)}, v14 offset:{ph*8192}')
            for k in range(4): a(f'ds_read_b128 {vr(Y[ph]+4+4*k,4)}, v{10+k} offset:{ph*8192}')
            if ph == 1: a('s_cmp_eq_u32 s9, 0\ns_cselect_b32 s13, 1, 0')
        for ph in range(1, 4):
            a(f's_waitcnt lgkmcnt({5*(3-ph)})')
            a('s_mov_b32 exec_lo, s13\ns_mov_b32 exec_hi, 0')
            for k in range(4 - ph, 4): a(f'v_mov_b32 v{Y[ph]+k}, 0')
            a('s_mov_b64 exec, -1')
            for k in range(16): a(f'v_add_f32 v{20+k}, v{20+k}, v{Y[ph]+4+k-ph}')
        for k in range(8): a(f'v_cvt_pk_bf16_f32 v{96+k}, v{20+2*k}, v{21+2*k}')
        a(f'buffer_store_dwordx4 v[96:99], v9, {srd(R_WS)}, s8 offen sc1')
        a(f'buffer_store_dwordx4 v[100:103], v9, {srd(R_WS)}, s8 offen offset:16 sc1')
        self.stamp(6)

    def s_assemble(self):
        a = self.a
        a(f'v_lshrrev_b32 v2, 3, v0\nv_and_b32 v3, 7, v0\nv_lshlrev_b32 v3, 4, v3\nv_lshl_add_u32 v4, v2, 12, v3')
        a(f's_mul_i32 s8, {sXG}, 56\ns_lshl_b32 s9, {sWAVE}, 3\ns_add_u32 s8, s8, s9\ns_lshl_b32 s8, s8, 12\ns_lshl_b32 s10, {sJ}, 7\ns_add_u32 s8, s8, s10\ns_add_u32 s8, s8, {WS_YT}')
        a(f's_add_u32 s11, s8, {32*4096}\ns_cmp_eq_u32 {sWAVE}, 3\ns_cselect_b32 s11, s8, s11')
        a(f'buffer_load_dwordx4 v[16:19], v4, {srd(R_WS)}, s8 offen sc1')
        a(f'buffer_load_dwordx4 v[20:23], v4, {srd(R_WS)}, s11 offen sc1')
        a('v_add_u32 v2, s9, v2\nv_mul_u32_u24 v2, 160, v2\nv_add_u32 v2, v2, v3')
        a('v_bfe_u32 v5, v0, 2, 2\nv_add_u32 v5, s9, v5\nv_mul_u32_u24 v5, 160, v5\nv_lshrrev_b32 v6, 4, v0\nv_lshl_add_u32 v5, v6, 5, v5\nv_and_b32 v6, 3, v0\nv_lshl_add_u32 v5, v6, 3, v5')
        a(f's_mul_i32 s8, {sJ}, {64*1792}\ns_mul_i32 s10, {sXG}, 112\ns_add_u32 s8, s8, s10\ns_lshl_b32 s10, {sWAVE}, 4\ns_add_u32 s8, s8, s10')
        a('v_mul_u32_u24 v6, 1792, v0')
        a('s_waitcnt vmcnt(0)')
        a(f'ds_write_b128 v2, v[16:19]\nds_write_b128 v2, v[20:23] offset:{32*160}')
        a('s_waitcnt lgkmcnt(0)\ns_barrier')
        for o in range(2):
            for t in range(2): a(f'ds_read_b64_tr_b16 {vr(24+4*o+2*t,2)}, v5 offset:{(32*o+4*t)*160}')
        a('s_waitcnt lgkmcnt(0)')
        a(f'buffer_store_dwordx4 v[24:27], v6, {srd(R_OUT)}, s8 offen')
        lsk = self.L('as3')
        a(f's_cmp_eq_u32 {sWAVE}, 3\ns_cbranch_scc1 {lsk}')
        a(f'buffer_store_dwordx4 v[28:31], v6, {srd(R_OUT)}, s8 offen offset:64')
        a.label(lsk)
        self.stamp(7)

    def kernel_head(self, name):
        self.lend = f'L_end_{name}'
        self.a(f'.globl {name}\n.p2align 8\n.type {name},@function')
        self.a.label(name)
    def kernel_tail(self):
        self.a.label(self.lend)
        self.a('s_endpgm')

    def build_multi(self):
        a = self.a
        self.kernel_head('k1_kernel'); self.prologue(256)
        self.s_start(); self.s_kv(2); self.s_ut(); self.kernel_tail()
        self.kernel_head('k2_kernel'); self.prologue(512)
        la = self.L('roleA')
        a(f's_cmp_ge_u32 s2, 256\ns_cbranch_scc1 {la}')
        a(f's_cmp_ge_u32 {sJ}, 28\ns_cbranch_scc1 {self.lend}')
        a('v_lshlrev_b32 v15, 4, v0')
        self.after_kernarg(); self.s_params(); self.s_kgen(); self.s_conv(); self.stamp_flush(8)
        a('s_endpgm')
        a.label(la)
        self.a_qproj(); self.a_attn(); self.stamp_flush(10); self.kernel_tail()
        self.kernel_head('k3_kernel'); self.prologue(512)
        la = self.L('roleA')
        a(f's_cmp_ge_u32 s2, 256\ns_cbranch_scc1 {la}')
        self.after_kernarg(); self.mk_srd(R_OUT, P_OUT, OUT_BYTES); self.s_assemble(); a('s_endpgm')
        a.label(la)
        self.a_outproj_pro(); self.a_outproj(); self.kernel_tail()
        return ['k1_kernel', 'k2_kernel', 'k3_kernel'], [256, 512, 512]

    SPIN = 1 << 20
    def nonce(self):
        self.a(f's_waitcnt lgkmcnt(0)\ns_add_u32 {sNONCE}, {sNONCE}, 0x9e3779b9')
    def publish_kv(self):
        a = self.a; l = self.L('pkv')
        a(f's_lshl_b32 s8, s6, 2\ns_add_u32 s8, s8, {WS_FKV}\nv_lshlrev_b32 v2, 10, v0\nv_mov_b32 v3, {sNONCE}')
        a(f's_waitcnt vmcnt(0)\ns_barrier\ns_cmp_lg_u32 {sWAVE}, 0\ns_cbranch_scc1 {l}')
        a(f's_mov_b32 exec_hi, 0\nbuffer_store_dword v3, v2, {srd(R_WS)}, s8 offen sc1\ns_mov_b32 exec_hi, -1')
        a.label(l)
    def publish_grp(self, base):
        a = self.a; l = self.L('pg')
        a(f's_lshl_b32 s8, {sXG}, 8\ns_lshl_b32 s9, {sJ}, 2\ns_add_u32 s8, s8, s9\ns_add_u32 s8, s8, {base}\nv_mov_b32 v2, 0\nv_mov_b32 v3, {sNONCE}')
        a(f's_waitcnt vmcnt(0)\ns_barrier\ns_cmp_lg_u32 {sWAVE}, 0\ns_cbranch_scc1 {l}')
        a(f's_mov_b64 exec, 1\nbuffer_store_dword v3, v2, {srd(R_WS)}, s8 offen sc1\ns_mov_b64 exec, -1')
        a.label(l)
    def poll(self, vaddr, soff, width, mask_lo, mask_hi, sleep, vt=250):
        a = self.a; lp = self.L('poll'); ld = self.L('polled')
        ld_ = {1: 'dword', 2: 'dwordx2', 4: 'dwordx4'}[width]
        a(f's_mov_b32 exec_lo, {hex(mask_lo)}\ns_mov_b32 exec_hi, {hex(mask_hi)}\ns_mov_b32 s47, {self.SPIN}')
        a.label(lp)
        a(f'buffer_load_{ld_} {vr(vt,width)}, {vaddr}, {srd(R_WS)}, {soff} offen sc1\ns_waitcnt vmcnt(0)')
        a(f'v_xor_b32 v{vt}, {sNONCE}, v{vt}')
        for i in range(1, width): a(f'v_xor_b32 v{vt+i}, {sNONCE}, v{vt+i}\nv_or_b32 v{vt}, v{vt}, v{vt+i}')
        a(f'v_cmp_ne_u32 vcc, 0, v{vt}\ns_cbranch_vccz {ld}')
        if sleep: a(f's_sleep {sleep}')
        a(f's_sub_u32 s47, s47, 1\ns_cmp_lg_u32 s47, 0\ns_cbranch_scc1 {lp}')
        a.label(ld)
        a('s_mov_b64 exec, -1')
    def wait_kv(self):
        a = self.a; l = self.L('wkv')
        a(f's_cmp_lg_u32 {sWAVE}, 0\ns_cbranch_scc1 {l}')
        a(f's_and_b32 s8, s2, {NREP-1}\ns_lshl_b32 s8, s8, 10\ns_add_u32 s8, s8, {WS_FKV}\nv_lshlrev_b32 v2, 3, v0')
        self.poll('v2', 's8', 2, 0xffffffff, 0xffffffff, 1)
        a.label(l)
        a('s_barrier')
    def wait_grp(self, base, n, sleep):
        a = self.a; l = self.L('wg')
        a(f's_cmp_lg_u32 {sWAVE}, 0\ns_cbranch_scc1 {l}')
        a(f's_lshl_b32 s8, {sXG}, 8\ns_add_u32 s8, s8, {base}\nv_lshlrev_b32 v2, 2, v0')
        self.poll('v2', 's8', 1, (1 << n) - 1, 0, sleep)
        a.label(l)
        a('s_barrier')
    def publish_o(self):
        a = self.a
        a(f's_lshl_b32 s8, s6, 8\ns_lshl_b32 s9, s7, 4\ns_add_u32 s8, s8, s9\ns_lshl_b32 s9, {sWAVE}, 2\ns_add_u32 s8, s8, s9\ns_add_u32 s8, s8, {WS_FO}')
        a(f'v_mov_b32 v2, 0\nv_mov_b32 v3, {sNONCE}\ns_waitcnt vmcnt(0)')
        a(f's_mov_b64 exec, 1\nbuffer_store_dword v3, v2, {srd(R_WS)}, s8 offen sc1\ns_mov_b64 exec, -1')
        self.stamp(5)
        a('s_barrier')
    def wait_o(self):
        a = self.a; l = self.L('wo')
        a(f's_cmp_lg_u32 {sWAVE}, 0\ns_cbranch_scc1 {l}')
        a(f's_lshl_b32 s9, s6, 8\ns_add_u32 s9, s9, {WS_FO}\nv_lshlrev_b32 v2, 2, v0')
        self.poll('v2', 's9', 1, 0xffffffff, 0, 0)
        a.label(l)
        a('s_waitcnt vmcnt(0)\ns_barrier')
    def e_update(self):
        a = self.a; l = self.L('eu')
        a(f's_cmp_lg_u32 s2, 255\ns_cbranch_scc1 {l}')
        a('v_lshrrev_b32 v2, 3, v0\nv_lshlrev_b32 v2, 8, v2\nv_and_b32 v3, 7, v0\nv_lshl_add_u32 v2, v3, 4, v2')
        a(f's_mov_b32 s8, {WS_FU}')
        self.poll('v2', 's8', 4, 0xffffffff, 0xffffffff, 8)
        a(f's_lshl_b32 s8, {sWAVE}, 11\ns_add_u32 s8, s8, {WS_FO}')
        self.poll('v2', 's8', 4, 0xffffffff, 0xffffffff, 8)
        a(f's_barrier\ns_cmp_lg_u32 {sWAVE}, 0\ns_cbranch_scc1 {l}')
        a(f'v_mov_b32 v2, {WS_E}\nv_mov_b32 v3, {sNONCE}\ns_mov_b64 exec, 1\nbuffer_store_dword v3, v2, {srd(R_WS)}, 0 offen sc1')
        a.label(l)

    def build_fused(self):
        a = self.a
        kn = NAME + '_kernel'
        self.kernel_head(kn); self.prologue(512)
        la = self.L('roleA'); lidle = self.L('idle'); lnopf = self.L('nopf')
        a(f's_cmp_ge_u32 s2, 256\ns_cbranch_scc1 {la}')
        a('s_setprio 3')
        lp = self.L('pc')
        a(f's_cmp_lt_u32 {sJ}, 28\ns_cbranch_scc1 {lnopf}')
        a('s_getpc_b64 s[12:13]'); a.label(lp)
        a(f's_add_u32 s12, s12, {kn}-{lp}\ns_addc_u32 s13, s13, -1')
        a(f's_and_b32 s8, {sJ}, 3\ns_lshl_b32 s8, s8, 2\ns_add_u32 s8, s8, {sWAVE}\ns_lshl_b32 s8, s8, 11\nv_lshl_add_u32 v2, v0, 4, s8\nv_min_u32 v2, L_table+8192-1040-{kn}, v2')
        a('global_load_dwordx4 v[240:243], v2, s[12:13]\nglobal_load_dwordx4 v[244:247], v2, s[12:13] offset:1024')
        a.label(lnopf)
        self.s_start()
        n = self.s_params()
        self.estamp(3)
        self.nonce()
        self.estamp(4)
        self.s_kv(2 + n); self.estamp(5); self.s_ut(); self.estamp(7)
        a('s_setprio 0')
        self.mk_srd(R_X, P_WO, WQ_BYTES)
        a(f's_mul_i32 s8, {sJ}, 12544\ns_lshl_b32 s9, {sWAVE}, 10\ns_add_u32 s8, s8, s9')
        for i in range(4):
            a(f'buffer_load_dwordx4 v[240:243], v15, {srd(R_X)}, s8 offen')
            if i < 3: a('s_add_u32 s8, s8, 4096')
        a(f's_cmp_ge_u32 {sJ}, 28\ns_cbranch_scc1 {lidle}')
        self.s_kgen()
        self.wait_grp(WS_FU, 32, 1)
        self.s_conv()
        self.publish_grp(WS_FY)
        a.label(lidle)
        self.wait_grp(WS_FY, 28, 4)
        self.s_assemble()
        self.stamp_flush(8)
        self.e_update()
        a('s_endpgm')
        a.label(la)
        a('s_setprio 2')
        self.a_qproj(); self.nonce_a(); self.a_attn(); self.publish_o(); self.a_outproj(); self.stamp_flush(10)
        self.kernel_tail()
        return [kn], [512]
    def nonce_a(self):
        self.a(f's_add_u32 {sNONCE}, {sNONCE}, 0x9e3779b9')

def table():
    import numpy as np
    def rne_bf16(j):
        u = struct.unpack('<I', struct.pack('<f', float(j)))[0]
        u = (u + 0x7fff + ((u >> 16) & 1)) & 0xffff0000
        return int(struct.unpack('<f', struct.pack('<I', u))[0])
    hi = [0,1,2,3,4,5,6,7, 256,258,260,262, 512,516,768,772, 1024,1280,1536,1792, 2048]
    out = []
    for j in range(2048):
        p = rne_bf16(j)
        b = (p >> 3) & 31
        out.append(hi.index(p - 8 * b) * 144 + 4 * b)
    lin = []
    for mh in range(2):
        for i in range(4):
            for lane in range(64):
                lin += out[16*(64*mh+lane)+4*i:16*(64*mh+lane)+4*i+4]
    return lin

def main():
    mode = sys.argv[1]; outp = sys.argv[2]; stamps = len(sys.argv) > 3 and sys.argv[3] == 'stamps'
    g = Gen(mode, stamps)
    names, grids = g.build_multi() if mode == 'multi' else g.build_fused()
    body = g.a.finalize(verbose='-v' in sys.argv)
    head = open('cdna_kernels/' + NAME + '.s.ref').read().split('; Override launch geometry')[0]
    txt = head
    if mode == 'multi':
        for n, gr in zip(names, grids): txt += f'; @launch kernel={n} grid=({gr},1,1) block=(256,1,1) lds=81920\n'
    else:
        txt += f'; @launch grid=({grids[0]},1,1) block=(256,1,1) lds=81920\n'
    txt += '.amdgcn_target "amdgcn-amd-amdhsa--gfx950"\n.text\n' + body
    txt += '.p2align 6\n.type L_table,@object\nL_table:\n'
    t = table()
    for i in range(0, 2048, 16): txt += '.long ' + ','.join(str(x) for x in t[i:i+16]) + '\n'
    txt += '.section .rodata,"a"\n'
    for n in names:
        txt += f'''.p2align 6
.amdhsa_kernel {n}
  .amdhsa_next_free_vgpr 256
  .amdhsa_next_free_sgpr 100
  .amdhsa_accum_offset 256
  .amdhsa_group_segment_fixed_size 0
  .amdhsa_kernarg_size 120
  .amdhsa_user_sgpr_count 2
  .amdhsa_user_sgpr_kernarg_segment_ptr 1
  .amdhsa_system_sgpr_workgroup_id_x 1
.end_amdhsa_kernel
'''
    open(outp, 'w').write(txt)
    print('written', outp, 'nops inserted', g.a.n_nops, 'lines', len(g.a.lines))

if __name__ == '__main__':
    main()
```

```python
import sys, struct, math
from asmdsl import Asm

NAME = 'concat_heads__ssm_conv_s4d__grouped_kv_mqa__prompt'
X_BYTES = 2048 * 896; WQ_BYTES = 448 * 896; WK_BYTES = 448 * 56; OUT_BYTES = 2048 * 1792
WS_E = 0; WS_FKV = 0x1000; WS_FU = 0x9000; WS_FY = 0xA000; WS_FO = 0xB000
WS_FA = 0x50000; WS_PO = 0x60000; WS_PY = 0x70000; WS_KV = 0x10000; WS_O = 0x100000; WS_UT = 0x300000; WS_YT = 0x500000; WS_ST = 0x700000; WS_BYTES = 0x800000
NREP = 32
def f32(x): return '0x%08x' % struct.unpack('<I', struct.pack('<f', x))[0]
LOG2E = math.log2(math.e)
CSCALE = LOG2E / math.sqrt(28.0)

sWAVE = 's3'; sXG = 's4'; sJ = 's5'
P_U, P_LAR, P_AIM, P_CRE, P_CIM, P_LDT, P_DSK, P_X = [16 + 2 * i for i in range(8)]
P_WQ, P_WK, P_WV, P_WO = 32, 34, 36, 38
P_OUT, P_DBG, P_WS = 40, 42, 44
sNONCE = 's46'
R_X = 48; R_W = 52; R_WS = 56; R_OUT = 60; R_B = 64
def srd(r): return f's[{r}:{r+3}]'
def sp(r): return f's[{r}:{r+1}]'
def vr(a, n): return f'v[{a}:{a+n-1}]' if n > 1 else f'v{a}'

def OPT(x): return x in sys.argv
class Gen:
    def __init__(self, mode, stamps=False):
        self.a = Asm(); self.mode = mode; self.stamps = stamps; self.uid = 0
    def L(self, base):
        self.uid += 1
        return f'L_{base}_{self.uid}'
    def mk_srd(self, r, p, nbytes):
        self.a(f's_mov_b32 s{r}, s{p}\ns_mov_b32 s{r+1}, s{p+1}\ns_mov_b32 s{r+2}, {hex(nbytes)}\ns_mov_b32 s{r+3}, 0x20000')
    def stamp(self, i):
        if self.stamps and not ((OPT('early') or OPT('sfine') or OPT('tail')) and i > 0):
            self.a(f's_memrealtime s[{76+2*i}:{77+2*i}]')
    def fstamp(self, i):
        if self.stamps and OPT('sfine'):
            self.a(f's_memrealtime s[{76+2*i}:{77+2*i}]')
    def tstamp(self, i):
        if self.stamps and OPT('tail'):
            self.a(f's_memrealtime s[{76+2*i}:{77+2*i}]')
    def estamp(self, i):
        if self.stamps and OPT('early'):
            self.a(f's_memrealtime s[{76+2*i}:{77+2*i}]')
    def cstamp(self, i):
        if self.stamps:
            self.a(f's_memtime s[{76+2*i}:{77+2*i}]')
    def stamp_flush(self, n):
        if not self.stamps: return
        a = self.a
        a('s_waitcnt lgkmcnt(0)')
        if OPT('dbgst'):
            l = self.L('dbg')
            a(f's_cmp_lg_u32 {sWAVE}, 0\ns_cbranch_scc1 {l}')
            self.mk_srd(R_X, P_DBG, 256)
            a('v_mov_b32 v2, 0')
            isA = n == 10
            for i in range(8):
                if i == 0 and isA: a('s_not_b32 s6, s76\nv_writelane_b32 v2, s6, 0')
                else: a(f'v_writelane_b32 v2, s{76+2*i}, {i}')
            a(f'v_lshlrev_b32 v1, 2, v0\nv_add_u32 v1, {0 if isA else 32}, v1\ns_mov_b64 exec, 0xff')
            a(f'buffer_atomic_umax v2, v1, {srd(R_X)}, 0 offen\ns_mov_b64 exec, -1')
            a.label(l)
            return
        a(f's_lshl_b32 s6, s2, 2\ns_add_u32 s6, s6, {sWAVE}\ns_lshl_b32 s6, s6, 6\ns_add_u32 s6, s6, {WS_ST}')
        a('v_mov_b32 v1, s6')
        for i in range(n):
            a(f'v_mov_b32 v2, s{76+2*i}\nbuffer_store_dword v2, v1, {srd(R_WS)}, 0 offen offset:{4*i}')
        a('s_getreg_b32 s7, hwreg(HW_REG_XCC_ID)\nv_mov_b32 v2, s7')
        a(f'buffer_store_dword v2, v1, {srd(R_WS)}, 0 offen offset:60')

    def prologue(self, nwg):
        a = self.a
        if self.stamps:
            for i in range(1, 10): a(f's_mov_b64 s[{76+2*i}:{77+2*i}], 0')
        self.stamp(0)
        a(f's_cmp_ge_u32 s2, {nwg}\ns_cbranch_scc1 {self.lend}')
        a('s_load_dwordx16 s[16:31], s[0:1], 0\ns_load_dwordx8 s[32:39], s[0:1], 64')
        a('s_load_dwordx4 s[40:43], s[0:1], 96\ns_load_dwordx2 s[44:45], s[0:1], 112')
        a('v_lshrrev_b32 v1, 6, v0\nv_and_b32 v0, 63, v0')
        a(f's_and_b32 {sXG}, s2, 7\ns_bfe_u32 {sJ}, s2, 0x50003')
        a(f'v_readfirstlane_b32 {sWAVE}, v1')

    def after_kernarg(self):
        a = self.a
        self.estamp(1)
        a('s_waitcnt lgkmcnt(0)')
        self.estamp(2)
        if self.mode == 'fused':
            a(f's_load_dword {sNONCE}, {sp(P_WS)}, {WS_E}')
        self.mk_srd(R_WS, P_WS, WS_BYTES)

    def row7_addr(self, v0, v1, tmp, rowstride):
        a = self.a
        for v, add in ((v0, 0), (v1, 64)):
            if add: a(f'v_add_u32 {tmp}, {add}, v0')
            else: a(f'v_mov_b32 {tmp}, v0')
            a(f'v_mul_u32_u24 {v}, 147, {tmp}\nv_lshrrev_b32 {v}, 10, {v}')
            a(f'v_mul_u32_u24 {v}, {rowstride - 112}, {v}')
            a(f'v_lshl_add_u32 {v}, {tmp}, 4, {v}')

    def w128_src(self):
        a = self.a
        a(f's_lshl_b32 s8, {sWAVE}, 4\ns_mul_i32 s9, s8, 896\ns_mul_i32 s11, s7, 112\ns_add_u32 s9, s9, s11')
        a('v_lshrrev_b32 v2, 3, v0\nv_mul_u32_u24 v2, 896, v2\nv_bfe_u32 v3, v0, 4, 1\nv_lshlrev_b32 v3, 2, v3\nv_and_b32 v4, 7, v0\nv_xor_b32 v3, v3, v4')
        a('v_lshl_add_u32 v7, v3, 4, v2\nv_add_u32 v7, s9, v7\nv_add_u32 v8, 7168, v7')
    def w128_frag(self, dst, rowmul_h, sbyte):
        a = self.a
        a(f'v_bfe_u32 v2, v0, 4, 1\nv_lshlrev_b32 v2, 5, v2\nv_and_b32 v3, 3, v0\nv_lshl_add_u32 v2, v3, 3, v2\nv_add_u32 v2, {sbyte}, v2')
        a(f'v_bfe_u32 v3, v0, 3, 1\nv_lshlrev_b32 v3, 6, v3\nv_xor_b32 v2, v2, v3')
        a(f'v_lshrrev_b32 v3, 5, v0\nv_mul_u32_u24 v3, {rowmul_h}, v3\nv_bfe_u32 v4, v0, 2, 2\nv_add_u32 v3, v3, v4\nv_lshl_add_u32 {dst}, v3, 7, v2')
    def a_qproj(self):
        a = self.a
        QX = 32768
        REG = [0, 16384, 32768, 49152, 65536, 0, 16384]
        sQB = 's6'; sHP = 's7'
        a(f's_lshr_b32 s8, {sJ}, 3\ns_lshl_b32 {sQB}, {sXG}, 2\ns_add_u32 {sQB}, {sQB}, s8\ns_and_b32 {sHP}, {sJ}, 7')
        a(f's_lshl_b32 s8, {sWAVE}, 4\ns_lshl_b32 s9, {sQB}, 6\ns_add_u32 s9, s9, s8\ns_mul_i32 s9, s9, 896')
        a('v_lshrrev_b32 v2, 3, v0\nv_lshrrev_b32 v3, 4, v0\nv_and_b32 v4, 7, v0')
        a('v_xor_b32 v4, v4, v3\nv_mul_u32_u24 v2, 896, v2')
        a('v_lshl_add_u32 v5, v4, 4, v2\nv_add_u32 v5, s9, v5')
        a('v_xor_b32 v4, 4, v4\nv_lshl_add_u32 v6, v4, 4, v2\nv_add_u32 v6, s9, v6\nv_add_u32 v6, 7168, v6')
        a(f's_lshl_b32 s10, {sWAVE}, 11')
        self.w128_src()
        a(f's_lshr_b32 s8, {sJ}, 3\ns_lshl_b32 s8, s8, 1\ns_add_u32 s8, s8, {sHP}\ns_cmp_ge_u32 s8, 7\ns_cselect_b32 s9, 7, 0\ns_sub_u32 s8, s8, s9')
        a('s_cmp_ge_u32 s8, 7\ns_cselect_b32 s9, 7, 0\ns_sub_u32 s8, s8, s9')
        a('s_lshl_b32 s14, s8, 7\ns_mul_i32 s15, s8, 57344')
        self.after_kernarg()
        self.mk_srd(R_X, P_X, X_BYTES); self.mk_srd(R_W, P_WQ, WQ_BYTES)
        def load(i):
            a(f's_add_u32 m0, s10, {REG[i]}\ns_nop 0\nbuffer_load_dwordx4 v5, {srd(R_X)}, s14 offen lds')
            a(f's_add_u32 m0, s10, {REG[i] + 8192}\ns_nop 0\nbuffer_load_dwordx4 v7, {srd(R_W)}, s15 offen lds')
            a(f's_add_u32 m0, s10, {REG[i] + 1024}\ns_nop 0\nbuffer_load_dwordx4 v6, {srd(R_X)}, s14 offen lds')
            a(f's_add_u32 m0, s10, {REG[i] + 8192 + 1024}\ns_add_u32 s14, s14, 128\nbuffer_load_dwordx4 v8, {srd(R_W)}, s15 offen lds')
            if i < 6: a('s_cmp_eq_u32 s14, 896\ns_cselect_b32 s14, 0, s14\ns_mul_i32 s15, s14, 448')
        NF = 2 if OPT('q2') else 4 if OPT('q4') else 3
        for i in range(NF): load(i)
        self.estamp(3)
        self.mk_srd(R_B, P_WO, WQ_BYTES); self.mk_srd(R_OUT, P_OUT, OUT_BYTES)
        a(f's_and_b32 s8, {sWAVE}, 1\ns_lshl_b32 s8, s8, 5')
        a('v_and_b32 v2, 31, v0\nv_add_u32 v2, s8, v2\nv_bfe_u32 v3, v2, 1, 3\nv_lshrrev_b32 v4, 5, v0\nv_xor_b32 v3, v3, v4\nv_lshlrev_b32 v2, 7, v2')
        for ks in range(4):
            a(f'v_xor_b32 v9, {2*ks}, v3\nv_lshl_add_u32 v{10+ks}, v9, 4, v2\nv_add_u32 v{20+ks}, 0x10000, v{10+ks}')
        a(f's_lshr_b32 s8, {sWAVE}, 1\ns_mul_i32 s8, s8, 56')
        self.w128_frag('v14', 8, 's8')
        a('v_add_u32 v24, 0x10000, v14\nv_lshlrev_b32 v15, 4, v0')
        a(f's_lshl_b32 s8, {sWAVE}, 11\ns_add_u32 s8, s8, {QX}\nv_add_u32 v2, s8, v15')
        for js in range(4):
            a(f's_add_u32 s8, {sWAVE}, {1+js}\ns_and_b32 s8, s8, 3\ns_lshl_b32 s9, s8, 11\ns_add_u32 s9, s9, {QX}\nv_add_u32 v{192+js}, s9, v15')
            if js < 3:
                a(f's_mul_i32 s9, s8, 12288\nv_add_u32 v{196+js}, s9, v15')
        for r in range(64, 112): a(f'v_mov_b32 v{r}, 0')
        XF = 112; WF = 128; ACC = 48
        for i in range(7):
            a(f's_waitcnt vmcnt({4*min(NF-1, 6-i)})\ns_barrier')
            if i == 0: self.stamp(1); self.estamp(4)
            if i == 3: self.estamp(5)
            if i == 6: self.estamp(6)
            hi = REG[i] >= 65536
            off = REG[i] - (65536 if hi else 0)
            for ks in range(4):
                a(f'ds_read_b128 {vr(XF+4*ks,4)}, v{(20 if hi else 10)+ks} offset:{off}')
                for t in range(2):
                    a(f'ds_read_b64_tr_b16 {vr(WF+4*ks+2*t,2)}, v{24 if hi else 14} offset:{off + 8192 + (16*ks+4*t)*128}')
            if i + NF < 7: load(i + NF)
            for ks in range(4):
                c = '0' if (i == 0 and ks == 0) else vr(ACC, 16)
                a(f's_waitcnt lgkmcnt({9-3*ks})')
                a(f'v_mfma_f32_32x32x16_bf16 {vr(ACC,16)}, {vr(WF+4*ks,4)}, {vr(XF+4*ks,4)}, {c}')
        for r in range(8): a(f'v_mov_b32 v{184+r}, 0')
        for r in range(8): a(f'v_cvt_pk_bf16_f32 v{224+r}, v{ACC+2*r}, v{ACC+2*r+1}')
        a('s_mov_b32 exec_lo, 0\nv_mov_b32 v230, 0\nv_mov_b32 v231, 0\ns_mov_b32 exec_lo, -1')
        a('ds_write_b128 v2, v[224:227]\nds_write_b128 v2, v[228:231] offset:1024')
        for r in range(48, 64): a(f'v_mov_b32 v{r}, 0')
        a('s_waitcnt lgkmcnt(0)\ns_barrier')
        for js in range(4):
            a(f'ds_read_b128 {vr(16+8*js,4)}, v{192+js}\nds_read_b128 {vr(20+8*js,4)}, v{192+js} offset:1024')
        self.stamp(2); self.estamp(7)

    def a_attn(self):
        a = self.a
        Q = 16; O = 48; SS = (144, 160); PP = (176, 184)
        KB_ = (112, 128, 200, 216)
        K = lambda buf, f: vr(KB_[buf] + 4*f, 4)
        Vv = lambda buf, f: vr(KB_[buf] + 8 + 4*f, 4)
        sT = 's14'; sB = 's15'; sOFF = 's68'; sCNT = 's70'
        a(f's_lshl_b32 {sB}, {sWAVE}, 16\ns_add_u32 {sB}, {sB}, {WS_KV}\ns_and_b32 {sT}, {sJ}, 15\ns_lshl_b32 {sT}, {sT}, 12')
        for r in range(8): a(f'v_mov_b32 v{KB_[3]+8+r}, 0')
        a(f's_and_b32 s69, s2, 255\ns_lshl_b32 s69, s69, 8\ns_add_u32 s69, s69, {WS_FA}\nv_mov_b32 v199, {sNONCE}\nv_mov_b32 v232, 0')
        self.wait_kv()
        self.stamp(3); self.cstamp(8)
        def nxt():
            return f's_add_u32 {sT}, {sT}, 4096\ns_and_b32 {sT}, {sT}, 0xffff\ns_add_u32 {sOFF}, {sB}, {sT}'
        def ldK(buf): return [f'buffer_load_dwordx4 {K(buf,f)}, v15, {srd(R_WS)}, {sOFF} offen offset:{1024*f} sc1' for f in range(2)]
        def ldV(buf): return [f'buffer_load_dwordx4 {Vv(buf,f)}, v15, {srd(R_WS)}, {sOFF} offen offset:{2048+1024*f} sc1' for f in range(2)]
        a(f's_add_u32 {sOFF}, {sB}, {sT}')
        for b in range(4):
            if b: a(nxt())
            for x in ldK(b) + (ldV(b) if b < 3 else []): a(x)
        def mA(u, buf, f):
            s = SS[u & 1]; c = '0' if f == 0 else vr(s, 16)
            return f'v_mfma_f32_32x32x16_bf16 {vr(s,16)}, {K(buf,f)}, {vr(Q + 8*(u&3) + 4*f, 4)}, {c}'
        def mC(u, buf, f):
            o = vr(O + 16*(u & 3), 16)
            return f'v_mfma_f32_32x32x16_bf16 {o}, {Vv(buf,f)}, {vr(PP[u&1] + 4*f, 4)}, {o}'
        a('s_waitcnt vmcnt(12) lgkmcnt(0)')
        a(mA(0, 0, 0)); a(mA(0, 0, 1))
        a(f's_mov_b32 {sCNT}, 3')
        def unit(u, mf, extra):
            s = SS[u & 1]; p = PP[u & 1]
            e = lambda i: f'v_exp_f32 v{s+i}, v{s+i}'
            c = lambda i: f'v_cvt_pk_bf16_f32 v{p+i}, v{s+2*i}, v{s+2*i+1}'
            seq = [[e(0), e(1), e(2), e(3), c(0), e(4)], [e(5), c(1), e(6), e(7), c(2), e(8)],
                   [e(9), c(3), e(10), e(11), c(4), e(12)], [e(13), c(5), e(14), e(15), c(6), c(7)]]
            for i in range(4):
                for x in extra.get(('pre', i), []): a(x)
                if mf[i]: a(mf[i])
                for x in extra.get(i, []): a(x)
                for x in seq[i]: a(x)
        lloop = self.L('attn')
        TRIG = [int(x[4:]) for x in sys.argv if x.startswith('trig') and x[4:].isdigit()]
        TRIG = TRIG[0] if TRIG else 4
        W = lambda n, u, slot: n + (1 if (u, slot) > (TRIG, 0) else 0)
        def body(tail):
            for u in range(16):
                t = u >> 2; b = u & 3
                nu = u + 1; nbuf = (nu >> 2) & 3
                pu = u - 1; pbuf = ((pu >> 2) & 3)
                mf = [mA(nu, nbuf, 0), mA(nu, nbuf, 1), mC(pu, pbuf, 0), mC(pu, pbuf, 1)]
                ex = {}
                if tail and u == 15: mf = [mC(pu, pbuf, 0), mC(pu, pbuf, 1), None, None]
                if b == 3:
                    if not tail:
                        ex[('pre', 0)] = ['s_waitcnt vmcnt(10)']
                        ex[0] = nxt().split('\n')[:1]; ex[1] = nxt().split('\n')[1:]
                        ex[2] = [ldK(t)[0]]; ex[3] = [ldK(t)[1]]
                    elif t < 3:
                        ex[('pre', 0)] = [f's_waitcnt vmcnt({W(10 - 4*t, u, 0)})']
                if b == 1:
                    if not tail or t == 0:
                        assert TRIG >= 2
                        ex[('pre', 2)] = ['s_waitcnt vmcnt(10)']
                        ex[2] = [ldV((t - 1) & 3)[0]]; ex[3] = [ldV((t - 1) & 3)[1]]
                    else:
                        ex[('pre', 2)] = [f's_waitcnt vmcnt({W(12 - 4*t, u, 2)})']
                if tail and u == TRIG:
                    ex.setdefault(0, []).append(f'buffer_store_dword v199, v232, {srd(R_WS)}, s69 offen sc1')
                if tail and u == 14:
                    for g in range(4): ex.setdefault((1,2,2,3)[g], []).append(f'ds_write_b128 v196, {vr(O+4*g,4)} offset:{g*1024}')
                if tail and u == 15:
                    for g in range(4): ex.setdefault((1,2,2,3)[g], []).append(f'ds_write_b128 v197, {vr(O+16+4*g,4)} offset:{4096+g*1024}')
                if not tail and u == 14:
                    ex.setdefault(0, []).append(f's_sub_u32 {sCNT}, {sCNT}, 1')
                unit(u, mf, ex)
        a('s_nop 10\n.p2align 4')
        a.label(lloop)
        body(False)
        a(f's_cmp_lg_u32 {sCNT}, 0\ns_cbranch_scc1 {lloop}')
        body(True)
        a('s_setprio 3')
        a(mC(15, 3, 0)); a(mC(15, 3, 1))
        for g in range(4): a(f'ds_write_b128 v198, {vr(O+32+4*g,4)} offset:{8192+g*1024}')
        a(f's_mul_i32 s8, {sWAVE}, 12288\nv_add_u32 v2, s8, v15')
        a('s_waitcnt lgkmcnt(0)\ns_barrier')
        self.stamp(4); self.cstamp(9); self.tstamp(1)
        RD = 112
        for i in range(12): a(f'ds_read_b128 {vr(RD+4*i,4)}, v2 offset:{i*1024}')
        F = O + 48
        for s in range(3):
            a(f's_waitcnt lgkmcnt({8-4*s})')
            for r in range(16): a(f'v_add_f32 v{F+r}, v{F+r}, v{RD+16*s+r}')
        a(f'v_mov_b32 v10, v{F+12}\nv_mov_b32 v11, v{F+12}\nv_permlane32_swap_b32 v10, v11\nv_rcp_f32 v10, v11')
        a(f's_lshl_b32 s8, s6, 1\ns_and_b32 s9, {sWAVE}, 1\ns_add_u32 s8, s8, s9\ns_lshl_b32 s8, s8, 15')
        a(f's_lshl_b32 s9, s7, 1\ns_lshr_b32 s10, {sWAVE}, 1\ns_add_u32 s9, s9, s10\ns_lshl_b32 s9, s9, 11')
        a(f's_add_u32 s8, s8, s9\ns_add_u32 s8, s8, {WS_O}')
        for r in range(16): a(f'v_mul_f32 v{F+r}, v{F+r}, v10')
        for r in range(8): a(f'v_cvt_pk_bf16_f32 v{160+r}, v{F+2*r}, v{F+2*r+1}')
        a('s_mov_b32 exec_lo, 0\nv_mov_b32 v166, 0\nv_mov_b32 v167, 0\ns_mov_b32 exec_lo, -1')
        a(f'buffer_store_dwordx4 v[160:163], v15, {srd(R_WS)}, s8 offen sc1')
        a(f'buffer_store_dwordx4 v[164:167], v15, {srd(R_WS)}, s8 offen offset:1024 sc1')

    def a_outproj(self):
        a = self.a
        a(f's_lshl_b32 s11, {sWAVE}, 11\ns_and_b32 s8, s6, 3\ns_mul_i32 s8, s8, 7\ns_add_u32 s8, s8, 2\ns_lshr_b32 s8, s8, 2\ns_lshl_b32 s12, s8, 13')
        for kb in range(7):
            a(f's_add_u32 m0, s11, s12\ns_mul_i32 s13, s12, 7\nbuffer_load_dwordx4 v7, {srd(R_B)}, s13 offen lds')
            a(f's_add_u32 m0, m0, 1024\ns_add_u32 s12, s12, 8192\nbuffer_load_dwordx4 v8, {srd(R_B)}, s13 offen lds')
            if kb < 6: a('s_cmp_eq_u32 s12, 57344\ns_cselect_b32 s12, 0, s12')
        a(f's_mov_b32 m0, {7*8192}\ns_mov_b32 s13, {WQ_BYTES}\nbuffer_load_dwordx4 v7, {srd(R_B)}, s13 offen lds')
        a(f's_lshr_b32 s12, {sWAVE}, 1\ns_lshl_b32 s8, s12, 6')
        self.w128_frag('v14', 4, 's8')
        a(f's_and_b32 s9, s7, 1\ns_lshl_b32 s13, s12, 1\ns_add_u32 s14, s13, s9\ns_xor_b32 s15, s14, 1\ns_mul_i32 s8, s14, {112*128}\ns_mul_i32 s9, s15, {112*128}')
        a('v_add_u32 v12, s9, v14\nv_add_u32 v14, s8, v14\nv_xor_b32 v13, 64, v14\nv_xor_b32 v11, 64, v12')
        a(f's_lshl_b32 s8, s6, 1\ns_and_b32 s9, {sWAVE}, 1\ns_add_u32 s8, s8, s9\ns_lshl_b32 s10, s8, 15\ns_add_u32 s10, s10, {WS_O}')
        a('s_lshl_b32 s15, s15, 13\ns_lshl_b32 s14, s14, 13\ns_add_u32 s15, s15, s10\ns_add_u32 s10, s10, s14')
        XCH = 59392
        a(f's_xor_b32 s9, {sWAVE}, 2\ns_lshl_b32 s9, s9, 12\ns_add_u32 s9, s9, {XCH}\nv_add_u32 v5, s9, v15')
        a(f's_lshl_b32 s9, {sWAVE}, 12\ns_add_u32 s9, s9, {XCH}\nv_add_u32 v6, s9, v15')
        a(f's_mul_i32 s8, s8, {32*1792}\ns_mul_i32 s9, s7, 112\ns_add_u32 s8, s8, s9\ns_lshl_b32 s9, s12, 6\ns_add_u32 s8, s8, s9\ns_add_u32 s8, s8, 896')
        a('v_lshrrev_b32 v4, 5, v0\nv_and_b32 v9, 31, v0\nv_mul_u32_u24 v9, 1792, v9\nv_lshl_add_u32 v9, v4, 4, v9\nv_add_u32 v9, s8, v9')
        self.tstamp(4)
        self.wait_o()
        self.stamp(6); self.tstamp(5)
        OF = 16
        for i in range(16):
            if i == 4: a('s_add_u32 s10, s10, 4096')
            if i == 12: a('s_add_u32 s15, s15, 4096')
            a(f'buffer_load_dwordx4 {vr(OF+4*i,4)}, v15, {srd(R_WS)}, {"s10" if i < 8 else "s15"} offen offset:{(i%4)*1024} sc1')
        WF = 112
        ACC = (80, 96)
        def rd(i):
            hd, f = (i >> 1) & 3, i & 1
            b = WF + 8 * (i & 3)
            for ct in range(2):
                for t in range(2):
                    a(f'ds_read_b64_tr_b16 {vr(b+4*ct+2*t,2)}, v{(14 if i < 8 else 12)-ct} offset:{(28*hd+16*f+8*t)*128}')
        rd(0); rd(1); rd(2)
        for i in range(16):
            if i + 3 < 16: rd(i + 3)
            left = min(3, 15 - i)
            a(f's_waitcnt vmcnt({15-i}) lgkmcnt({4*left})')
            b = WF + 8 * (i & 3)
            for ct in (1, 0):
                c = '0' if i == 0 else vr(ACC[ct], 16)
                a(f'v_mfma_f32_32x32x16_bf16 {vr(ACC[ct],16)}, {vr(b+4*ct,4)}, {vr(OF+4*i,4)}, {c}')
        self.tstamp(6)
        for g in range(4): a(f'ds_write_b128 v5, {vr(ACC[1]+4*g,4)} offset:{g*1024}')
        a('s_waitcnt lgkmcnt(0)\ns_barrier')
        for g in range(4): a(f'ds_read_b128 {vr(16+4*g,4)}, v6 offset:{g*1024}')
        a('s_waitcnt lgkmcnt(0)')
        for r in range(16): a(f'v_add_f32 v{ACC[0]+r}, v{ACC[0]+r}, v{16+r}')
        for r in range(8): a(f'v_cvt_pk_bf16_f32 v{32+r}, v{ACC[0]+2*r}, v{ACC[0]+2*r+1}')
        a('v_permlane32_swap_b32 v32, v34\nv_permlane32_swap_b32 v33, v35\nv_permlane32_swap_b32 v36, v38\nv_permlane32_swap_b32 v37, v39')
        a(f'buffer_store_dwordx4 v[32:35], v9, {srd(R_OUT)}, 0 offen')
        a('s_cmp_eq_u32 s12, 0\ns_cselect_b32 exec_hi, -1, 0')
        a(f'buffer_store_dwordx4 v[36:39], v9, {srd(R_OUT)}, 0 offen offset:32')
        a('s_mov_b32 exec_hi, -1')
        self.stamp(7); self.tstamp(7)

    UTILE = 61440; TSCR = 69632; UB = 61440; KB = 70656; SCR = 15360
    def s_ids(self):
        a = self.a
        a(f's_cmp_gt_u32 {sXG}, 5\ns_cselect_b32 s8, 1, 0\ns_sub_u32 s73, {sXG}, s8')
        a(f's_lshl_b32 s8, s73, 6\ns_lshl_b32 s9, {sJ}, 1\ns_add_u32 s74, s8, s9')
        a('v_lshlrev_b32 v15, 4, v0')
    def s_params_addr(self):
        a = self.a
        a(f's_lshl_b32 s14, s74, 1\ns_lshr_b32 s8, {sWAVE}, 1\ns_add_u32 s74, s74, s8')
        a(f's_lshl_b32 s8, s74, 9\ns_and_b32 s9, {sWAVE}, 1\ns_lshl_b32 s10, s9, 8\ns_add_u32 s8, s8, s10')
        a('v_lshl_add_u32 v2, v0, 2, s8\ns_lshl_b32 s9, s9, 12\nv_add_u32 v1, s9, v15')
    def s_params_load(self):
        a = self.a
        for i, p in enumerate((P_LAR, P_AIM, P_CRE, P_CIM)):
            a(f'global_load_dword v{16+i}, v2, {sp(p)}')
        a(f's_load_dword s71, {sp(P_LDT)}, s14\ns_load_dword s72, {sp(P_DSK)}, s14')
    def s_table_load(self):
        a = self.a
        lp = self.L('pc')
        a('s_getpc_b64 s[12:13]')
        a.label(lp)
        a(f's_add_u32 s12, s12, L_table-{lp}\ns_addc_u32 s13, s13, 0')
        for i in range(4):
            a(f'global_load_dwordx4 {vr(20+4*i,4)}, v1, s[12:13] offset:{1024*i}')
    def s_kv_addr(self):
        a = self.a
        a(f's_bfe_u32 s7, {sJ}, 0x30001\ns_lshl_b32 s8, {sXG}, 3\ns_add_u32 s7, s7, s8\ns_lshr_b32 s8, {sJ}, 4\ns_lshl_b32 s8, s8, 5\ns_add_u32 s7, s7, s8')
        a(f's_and_b32 s8, {sJ}, 1\ns_lshl_b32 s6, s7, 1\ns_add_u32 s6, s6, s8')
        a(f's_lshl_b32 s9, s7, 5\ns_lshl_b32 s10, {sWAVE}, 3\ns_add_u32 s9, s9, s10\ns_mul_i32 s9, s9, 896')
        a(f'v_lshrrev_b32 v7, 3, v0\nv_lshrrev_b32 v8, 4, v0\ns_and_b32 s10, {sWAVE}, 1\ns_lshl_b32 s10, s10, 2\nv_add_u32 v8, s10, v8')
        a('v_and_b32 v4, 7, v0\nv_xor_b32 v8, v4, v8\nv_mul_u32_u24 v7, 896, v7\nv_lshl_add_u32 v5, v8, 4, v7\nv_add_u32 v5, s9, v5')
        a(f's_lshl_b32 s11, {sWAVE}, 10\nv_add_u32 v6, s11, v15\ns_add_u32 s15, s11, 28672')
        a(f's_lshl_b32 s8, {sJ}, 6\ns_lshl_b32 s9, {sWAVE}, 4\ns_add_u32 s8, s8, s9\ns_mul_i32 s8, s8, 896\ns_lshl_b32 s9, s73, 7\ns_add_u32 s8, s8, s9')
        a('v_lshl_add_u32 v7, v4, 4, v7\nv_add_u32 v7, s8, v7')
    def s_kv_load(self):
        a = self.a
        self.mk_srd(R_X, P_X, X_BYTES)
        a(f's_bitcmp1_b32 s6, 0\ns_cselect_b32 s{R_W}, s{P_WV}, s{P_WK}\ns_cselect_b32 s{R_W+1}, s{P_WV+1}, s{P_WK+1}')
        a(f's_mov_b32 s{R_W+2}, {WK_BYTES}\ns_mov_b32 s{R_W+3}, 0x20000')
        lnp = self.L('noprod')
        a(f's_cmp_ge_u32 {sXG}, 4\ns_cbranch_scc1 {lnp}')
        a(f's_and_b32 s8, s6, 1\ns_lshl_b32 s12, s8, 14\ns_cmp_ge_u32 {sJ}, 28\ns_cselect_b32 s9, 28, 0\ns_sub_u32 s13, {sJ}, s9\ns_lshr_b32 s13, s13, 2\ns_lshl_b32 s13, s13, 12')
        for i in range(7):
            a(f's_add_u32 m0, s11, s12\ns_lshr_b32 s8, s12, 5\nbuffer_load_dwordx4 v5, {srd(R_X)}, s8 offen lds')
            a(f's_add_u32 m0, s15, s13\ns_add_u32 s12, s12, 4096\nbuffer_load_dwordx4 v6, {srd(R_W)}, s13 offen lds')
            if i < 6: a('s_cmp_eq_u32 s12, 28672\ns_cselect_b32 s12, 0, s12\ns_add_u32 s13, s13, 4096\ns_cmp_eq_u32 s13, 28672\ns_cselect_b32 s13, 0, s13')
        a.label(lnp)
    def s_u_load(self):
        a = self.a
        self.mk_srd(R_B, P_U, X_BYTES if not OPT('nou') else 16)
        a(f's_lshl_b32 s12, {sWAVE}, 11')
        a(f's_add_u32 m0, s12, {self.UTILE}\ns_mov_b32 s13, {8*896}\nbuffer_load_dwordx4 v7, {srd(R_B)}, 0 offen lds')
        a(f's_add_u32 m0, s12, {self.UTILE + 1024}\ns_nop 0\nbuffer_load_dwordx4 v7, {srd(R_B)}, s13 offen lds')

    def s_kv(self, newer):
        a = self.a
        lskip = self.L('kvskip'); lv = self.L('kvV'); lst = self.L('kvst')
        a(f's_cmp_ge_u32 {sXG}, 4\ns_cbranch_scc1 {lskip}')
        a(f's_and_b32 s8, {sWAVE}, 1\ns_lshl_b32 s9, s8, 4\ns_lshr_b32 s10, {sWAVE}, 1')
        a('v_and_b32 v2, 15, v0\nv_add_u32 v3, s9, v2\nv_bfe_u32 v4, v3, 1, 3\nv_lshrrev_b32 v9, 4, v0\nv_xor_b32 v4, v4, v9\nv_lshlrev_b32 v3, 7, v3')
        a('v_lshl_add_u32 v10, v4, 4, v3\nv_xor_b32 v4, 4, v4\nv_lshl_add_u32 v11, v4, 4, v3')
        a('v_bfe_u32 v3, v0, 2, 2\nv_lshl_add_u32 v3, v9, 3, v3\nv_mul_u32_u24 v3, 56, v3\nv_and_b32 v4, 3, v0\nv_lshl_add_u32 v3, v4, 3, v3')
        a('s_lshl_b32 s9, s10, 5\ns_add_u32 s9, s9, 28672\nv_add_u32 v12, s9, v3')
        a('v_lshlrev_b32 v13, 4, v2\nv_bfe_u32 v3, v0, 4, 1\nv_lshl_add_u32 v13, v3, 9, v13')
        a('s_bitcmp1_b32 s6, 0\ns_cselect_b32 s12, s8, s10\ns_cselect_b32 s13, s10, s8\ns_cselect_b32 s14, 2048, 0')
        a(f's_lshl_b32 s12, s12, 10\ns_lshl_b32 s13, s13, 8\ns_add_u32 s12, s12, s13\ns_add_u32 s12, s12, s14\ns_lshl_b32 s13, s7, 12\ns_add_u32 s12, s12, s13\ns_add_u32 s12, s12, {WS_KV}')
        a(f's_waitcnt vmcnt({newer})\ns_barrier')
        self.stamp(1)
        ACC = 128
        XF = lambda ks: vr(64 + 8*(ks % 5), 4); WF = lambda ks, t=None: vr(68 + 8*(ks % 5), 4) if t is None else vr(68 + 8*(ks % 5) + 2*t, 2)
        def rdk(ks):
            a(f'ds_read_b128 {XF(ks)}, v{10+(ks&1)} offset:{(ks>>1)*4096}')
            for t in range(2):
                a(f'ds_read_b64_tr_b16 {WF(ks,t)}, v12 offset:{(32*ks+4*t)*56}')
        for ks in range(4): rdk(ks)
        a('s_bitcmp1_b32 s6, 0')
        def chain(swap):
            for ks in range(14):
                if ks + 4 < 14: rdk(ks + 4)
                a(f's_waitcnt lgkmcnt({3*min(4, 13-ks)})')
                A, B = (XF(ks), WF(ks)) if swap else (WF(ks), XF(ks))
                c = '0' if ks == 0 else vr(ACC, 4)
                a(f'v_mfma_f32_16x16x32_bf16 {vr(ACC,4)}, {A}, {B}, {c}')
        a(f's_cbranch_scc1 {lv}')
        chain(False)
        a(f's_cmp_eq_u32 s10, 1\ns_cselect_b32 s14, 0xffff0000, 0\ns_mov_b32 s15, 0')
        for r in range(4): a(f'v_mul_f32 v{ACC+r}, {f32(CSCALE)}, v{ACC+r}')
        a(f'v_cvt_pk_bf16_f32 v104, v{ACC}, v{ACC+1}\nv_cvt_pk_bf16_f32 v105, v{ACC+2}, v{ACC+3}')
        a('s_mov_b32 exec_lo, s15\ns_mov_b32 exec_hi, s14\nv_mov_b32 v104, 0x3f803f80\nv_mov_b32 v105, 0x00003f80\ns_mov_b64 exec, -1')
        a(f's_branch {lst}')
        a.label(lv)
        chain(True)
        a(f's_cmp_eq_u32 s10, 1\ns_cselect_b32 s14, 0xe000e000, 0\ns_cselect_b32 s15, 0x10001000, 0')
        a(f'v_cvt_pk_bf16_f32 v104, v{ACC}, v{ACC+1}\nv_cvt_pk_bf16_f32 v105, v{ACC+2}, v{ACC+3}')
        a('s_mov_b32 exec_lo, s14\ns_mov_b32 exec_hi, s14\nv_mov_b32 v104, 0\nv_mov_b32 v105, 0')
        a('s_mov_b32 exec_lo, s15\ns_mov_b32 exec_hi, s15\nv_mov_b32 v104, 0x3f803f80\nv_mov_b32 v105, 0x3f803f80\ns_mov_b64 exec, -1')
        a.label(lst)
        a('s_nop 1\nv_permlane32_swap_b32 v104, v106\nv_permlane32_swap_b32 v105, v107\ns_mov_b32 exec_hi, 0')
        a(f'buffer_store_dwordx4 v[104:107], v13, {srd(R_WS)}, s12 offen sc1\ns_mov_b32 exec_hi, -1')
        a.label(lskip)
        self.stamp(2)

    def s_ut(self):
        a = self.a
        a(f'v_bfe_u32 v2, v0, 2, 2\nv_lshrrev_b32 v3, 4, v0\nv_lshl_add_u32 v2, v2, 2, v3\nv_lshlrev_b32 v2, 7, v2\nv_and_b32 v4, 3, v0\nv_lshl_add_u32 v2, v4, 3, v2')
        a(f's_lshl_b32 s8, {sWAVE}, 5\ns_add_u32 s8, s8, {self.UTILE}\nv_add_u32 v2, s8, v2')
        a(f's_mul_i32 s9, {sWAVE}, 2304\ns_add_u32 s9, s9, {self.TSCR}')
        a('v_and_b32 v4, 15, v0\nv_mul_u32_u24 v4, 144, v4\nv_lshl_add_u32 v4, v3, 5, v4\nv_add_u32 v4, s9, v4')
        a('v_lshrrev_b32 v5, 3, v0\nv_and_b32 v6, 7, v0\nv_lshlrev_b32 v6, 4, v6\nv_mul_u32_u24 v3, 144, v5\nv_add3_u32 v3, v3, v6, s9')
        a('v_lshl_add_u32 v5, v5, 12, v6')
        a(f's_lshl_b32 s8, s73, 2\ns_add_u32 s8, s8, {sWAVE}\ns_lshl_b32 s8, s8, 16\ns_lshl_b32 s9, {sJ}, 7\ns_add_u32 s8, s8, s9\ns_add_u32 s8, s8, {WS_UT}\ns_add_u32 s9, s8, {8*4096}')
        a('s_waitcnt vmcnt(1)\ns_barrier')
        for half in range(2):
            for t in range(2):
                a(f'ds_read_b64_tr_b16 {vr(112+4*half+2*t,2)}, v2 offset:{(32*half+16*t)*128}')
        a('s_waitcnt lgkmcnt(2)\nds_write_b128 v4, v[112:115]\ns_waitcnt lgkmcnt(1)\nds_write_b128 v4, v[116:119] offset:16\ns_waitcnt lgkmcnt(0)')
        a(f'ds_read_b128 v[112:115], v3\nds_read_b128 v[116:119], v3 offset:{8*144}')
        a(f's_waitcnt lgkmcnt(1)\nbuffer_store_dwordx4 v[112:115], v5, {srd(R_WS)}, s8 offen sc1')
        a(f's_waitcnt lgkmcnt(0)\nbuffer_store_dwordx4 v[116:119], v5, {srd(R_WS)}, s9 offen sc1')
        self.stamp(3)

    def s_kgen(self, before_r0, mid_r0, after_r0, mid_r1, wait_params):
        a = self.a
        RS = 240
        DT1, DT2, DT3, AW, AR, AP = 'v4', 'v5', 'v6', 'v46', 'v47', 'v14'
        a(f's_waitcnt lgkmcnt(0)\ns_add_u32 {sNONCE}, {sNONCE}, 0x9e3779b9\ns_bitcmp1_b32 {sWAVE}, 1\ns_cselect_b32 s8, 0, 16')
        a('s_lshl_b32 s9, s71, s8\ns_and_b32 s9, s9, 0xffff0000\ns_lshl_b32 s10, s72, s8\ns_and_b32 s72, s10, 0xffff0000')
        a(f'v_mov_b32 v130, s9\nv_mul_f32 v130, {f32(LOG2E)}, v130\nv_exp_f32 v130, v130\ns_mul_i32 s11, {sWAVE}, {self.SCR}\nv_cvt_pk_bf16_f32 v130, v130, v130\nv_and_b32 v130, 0xffff0000, v130')
        a(f'v_mul_f32 v131, {f32(-LOG2E)}, v130\nv_mul_f32 v129, 0.15915494309189532, v130\nv_add_f32 v130, v130, v130')
        a('v_mov_b32 v60, v129\nv_mov_b32 v61, v130\nv_mov_b32 v62, v131')
        a(f'v_mul_u32_u24 {AW}, {RS}, v0\nv_add_u32 {AW}, s11, {AW}')
        a(f'v_bfe_u32 {AR}, v0, 2, 2\nv_lshrrev_b32 v129, 5, v0\nv_lshlrev_b32 {AR}, 1, {AR}\nv_add_u32 {AR}, {AR}, v129\nv_mul_u32_u24 {AR}, {2*RS}, {AR}')
        a(f'v_bfe_u32 v130, v0, 4, 1\nv_lshl_add_u32 {AR}, v130, 5, {AR}\nv_and_b32 v130, 3, v0\nv_lshl_add_u32 {AR}, v130, 3, {AR}\nv_add_u32 {AR}, s11, {AR}')
        a(f'v_and_b32 {AP}, 31, v0\nv_mul_u32_u24 {AP}, 144, {AP}\nv_lshl_add_u32 {AP}, v129, 4, {AP}\nv_add_u32 {AP}, s11, {AP}')
        ACC = 48; FR = 64
        W1, W8, W256 = 40, 42, 44
        RR = (144, 200)
        def cmul(z, x, y, conj, t):
            return [f'v_pk_mul_f32 {vr(t,2)}, {vr(x,2)}, {vr(y,2)} op_sel_hi:[1,0]',
                    f'v_pk_fma_f32 {vr(z,2)}, {vr(x,2)}, {vr(y,2)}, {vr(t,2)} op_sel:[1,1,0] op_sel_hi:[0,1,1] {"neg_hi" if conj else "neg_lo"}:[1,0,0]']
        def pack(buf, i, x, y): return [f'v_cvt_pk_bf16_f32 v{buf+i}, v{x}, v{y}', f'v_cvt_pk_bf16_f32 v{buf+4+i}, v{x+1}, v{y+1}']
        def flush(rnd):
            out = []
            for g in range(4): out += [f'ds_write_b128 {AW}, {vr(RR[rnd]+8*g,4)} offset:{16*g}', f'ds_write_b128 {AW}, {vr(RR[rnd]+8*g+4,4)} offset:{64+16*g}']
            for g in range(3): out += [f'ds_write_b128 {AW}, {vr(RR[rnd]+32+8*g,4)} offset:{128+16*g}', f'ds_write_b128 {AW}, {vr(RR[rnd]+32+8*g+4,4)} offset:{176+16*g}']
            return out
        def reads(q):
            qq, part = q >> 1, q & 1
            for t in range(2): a(f'ds_read_b64_tr_b16 {vr(FR+8*q+2*t,2)}, {AR} offset:{(16*qq+t)*RS + 64*part}')
            for t in range(2): a(f'ds_read_b64_tr_b16 {vr(FR+8*q+4+2*t,2)}, {AR} offset:{(16*qq+t)*RS + 128 + 48*part}')
        before_r0()
        a(f's_waitcnt vmcnt({wait_params})')
        self.fstamp(1)
        mfma = lambda q, first: f'v_mfma_f32_32x32x16_bf16 {vr(ACC,16)}, {vr(FR+8*q,4)}, {vr(FR+8*q+4,4)}, {"0" if first else vr(ACC,16)}'
        H0, H2, H4, H6, HT, HU, LA, LB, TL, TG = 132, 140, 142, 56, 138, 58, 134, 136, 52, 54
        for rnd in range(2):
            ex = (lambda d, s: f'v_lshlrev_b32 v{d}, 16, v{s}') if rnd == 0 else (lambda d, s: f'v_and_b32 v{d}, 0xffff0000, v{s}')
            setup = [ex(36, 16), ex(37, 17), ex(132, 18), ex(133, 19),
                     f'v_mul_f32 v36, {f32(LOG2E)}, v36', 'v_exp_f32 v36, v36', 'v_mul_f32 v37, v37, v60', 'v_cvt_pk_bf16_f32 v36, v36, v36', 'v_and_b32 v36, 0xffff0000, v36', 'v_mul_f32 v36, v36, v62',
                     'v_mul_f32 v132, v132, v61', 'v_mul_f32 v133, -v133, v61']
            for W, m in ((W1, 1.0), (W256, 256.0), (W8, 8.0)):
                if m == 1.0: setup += ['v_exp_f32 v38, v36', 'v_fract_f32 v39, v37']
                else: setup += [f'v_mul_f32 v38, {f32(m)}, v36', f'v_mul_f32 v39, {f32(m)}, v37', 'v_exp_f32 v38, v38', 'v_fract_f32 v39, v39']
                setup += [f'v_cos_f32 v{W}, v39', f'v_sin_f32 v{W+1}, v39', f'v_mul_f32 v{W}, v{W}, v38', f'v_mul_f32 v{W+1}, v{W+1}, v38']
            for x in setup: a(x)
            PL = [RR[rnd] + 8*g for g in range(4)]; PG = [RR[rnd] + 32 + 8*g for g in range(3)]
            jl = [f'v_cvt_pk_bf16_f32 v{PL[0]}, 1.0, v{W8}', f'v_cvt_pk_bf16_f32 v{PL[0]+4}, 0, v{W8+1}']
            cur = W8
            for b in range(2, 32, 2):
                jl += cmul(LA, cur, W8, False, TL) + cmul(LB, LA, W8, False, TL) + pack(PL[b >> 3], (b & 7) >> 1, LA, LB); cur = LB
            jg = cmul(HT, H0, W1, True, TG) + pack(PG[0], 0, H0, HT)
            jg += cmul(H2, HT, W1, True, TG) + cmul(HT, H2, W1, True, TG) + pack(PG[0], 1, H2, HT)
            jg += cmul(H4, HT, W1, True, TG) + cmul(HT, H4, W1, True, TG) + pack(PG[0], 2, H4, HT)
            jg += cmul(H6, HT, W1, True, TG) + cmul(HT, H6, W1, True, TG) + pack(PG[0], 3, H6, HT)
            jg += cmul(H0, H0, W256, True, TG) + cmul(H2, H2, W256, True, TG) + pack(PG[1], 0, H0, H2)
            jg += cmul(H4, H4, W256, True, TG) + cmul(H6, H6, W256, True, TG) + pack(PG[1], 1, H4, H6)
            jg += cmul(H0, H0, W256, True, TG) + cmul(H4, H4, W256, True, TG) + pack(PG[1], 2, H0, H4)
            jg += cmul(H0, H0, W256, True, TG) + cmul(H4, H4, W256, True, TG) + pack(PG[1], 3, H0, H4)
            jg += cmul(HT, H0, W256, True, TG) + cmul(HU, HT, W256, True, TG) + pack(PG[2], 0, HT, HU)
            jg += cmul(HT, HU, W256, True, TG) + cmul(HU, HT, W256, True, TG) + pack(PG[2], 1, HT, HU)
            jg += cmul(HT, HU, W256, True, TG) + pack(PG[2], 2, HT, HT) + [f'v_mov_b32 v{PG[2]+3}, 0', f'v_mov_b32 v{PG[2]+7}, 0']
            for x in jg: a(x)
            (mid_r0, mid_r1)[rnd]()
            for x in jl: a(x)
            self.fstamp(2 + rnd)
            if rnd == 0: after_r0()
        for x in flush(0): a(x)
        a('s_waitcnt lgkmcnt(0)')
        for q in range(8): reads(q)
        a('s_waitcnt lgkmcnt(0)')
        self.s_table_load()
        fl = flush(1)
        for q in range(8):
            a(mfma(q, q == 0))
            for x in fl[2*q:2*q+2]: a(x)
        a('s_waitcnt lgkmcnt(0)')
        self.estamp(7)
        for q in range(8):
            reads(q)
            if q >= 3:
                a('s_waitcnt lgkmcnt(12)'); a(mfma(q - 3, False))
        for q in range(5, 8):
            a(f's_waitcnt lgkmcnt({4*(7-q)})'); a(mfma(q, False))
        self.s_conv_addr()
        a(f's_and_b32 s8, {sWAVE}, 2\ns_mul_i32 s8, s8, {self.SCR}\ns_waitcnt vmcnt(0)')
        for k in range(16): a(f'v_add_u32 v{20+k}, s8, v{20+k}')
        for g in range(4): a(f'ds_write_b128 {AP}, {vr(ACC+4*g,4)} offset:{32*g}')
        a('s_lshl_b32 s12, s9, 11\ns_add_u32 s12, s12, s75\nv_lshl_add_u32 v45, v0, 5, s12\nv_mov_b32 v44, 0')
        a('s_cmp_eq_u32 s9, 0\ns_cselect_b32 exec_lo, 1, 0\ns_mov_b32 exec_hi, 0\nv_mov_b32 v44, s72\ns_mov_b64 exec, -1')
        a('v_lshl_add_u32 v42, v0, 2, s75')
        lw = self.L('wu')
        a(f's_cmp_lg_u32 {sWAVE}, 0\ns_cbranch_scc1 {lw}\ns_lshl_b32 s8, s73, 9\ns_add_u32 s8, s8, {WS_FU}\nv_lshlrev_b32 v43, 3, v0')
        self.poll('v43', 's8', 2, 0xffffffff, 0xffffffff, 2)
        a.label(lw)
        a('s_waitcnt lgkmcnt(0)\ns_barrier')
        self.fstamp(4)
        for i in range(2): a(f'buffer_load_dwordx4 {vr(112+4*i,4)}, v15, {srd(R_WS)}, s14 offen offset:{1024*i} sc1')
        G = 64
        for k in range(16): a(f'ds_read2st64_b32 {vr(G+2*k,2)}, v{20+k} offset1:{self.SCR//256}')
        a('s_mov_b64 exec, 0xffff\nds_write_b32 v42, v120\ns_mov_b32 exec_lo, -1\nds_write_b128 v3, v[120:123]\ns_mov_b64 exec, -1')
        for k in range(16):
            if k % 4 == 0: a(f's_waitcnt lgkmcnt({14-k})')
            a(f'v_add_f32 v{G+2*k}, v{G+2*k}, v{G+2*k+1}')
            if k == 0: a(f'v_add_f32 v{G}, v{G}, v44')
        for k in range(8): a(f'v_cvt_pk_bf16_f32 v{100+k}, v{G+4*k}, v{G+4*k+2}')
        a('ds_write_b128 v45, v[100:103] offset:64\nds_write_b128 v45, v[104:107] offset:80')
        self.stamp(4)
        a('s_waitcnt vmcnt(1)\nds_write_b128 v2, v[112:115] offset:128\ns_waitcnt vmcnt(0)\nds_write_b128 v2, v[116:119] offset:384')
        a('s_waitcnt lgkmcnt(0)\ns_barrier')

    def s_conv_addr(self):
        a = self.a
        a(f's_lshl_b32 s8, s74, 12\ns_and_b32 s9, {sWAVE}, 1\ns_lshl_b32 s10, s9, 11\ns_add_u32 s8, s8, s10\ns_add_u32 s14, s8, {WS_UT}')
        a(f's_lshr_b32 s10, {sWAVE}, 1\ns_mul_i32 s11, s10, 4608\ns_add_u32 s11, s11, {self.UB}\ns_mul_i32 s8, s10, 4160\ns_add_u32 s75, s8, {self.KB}')
        a('v_bfe_u32 v2, v0, 1, 2\nv_mul_u32_u24 v2, 1152, v2\nv_lshrrev_b32 v3, 3, v0\nv_lshl_add_u32 v2, v3, 5, v2\nv_and_b32 v4, 1, v0\nv_lshl_add_u32 v2, v4, 4, v2')
        a('s_lshl_b32 s12, s9, 9\ns_add_u32 s12, s12, s11\nv_add_u32 v2, s12, v2')
        a('v_mul_u32_u24 v3, 1152, v3\nv_and_b32 v7, 7, v0\nv_lshl_add_u32 v3, v7, 4, v3\nv_add_u32 v3, s11, v3')
        a('v_mov_b32 v120, 0\nv_mov_b32 v121, 0\nv_mov_b32 v122, 0\nv_mov_b32 v123, 0')
        a('v_lshlrev_b32 v4, 4, v4\nv_bfe_u32 v5, v0, 1, 1\nv_lshl_add_u32 v4, v5, 2, v4\nv_bfe_u32 v5, v0, 4, 1\nv_lshl_add_u32 v4, v5, 3, v4')
        a('v_lshrrev_b32 v6, 5, v0\nv_lshlrev_b32 v5, 5, v6\nv_sub_u32 v4, v4, v5\nv_bfe_u32 v5, v0, 2, 2\nv_lshlrev_b32 v5, 2, v5\nv_sub_u32 v4, v4, v5')
        a('s_add_u32 s12, s75, 96\nv_lshl_add_u32 v9, v4, 1, s12')
        a('v_bfe_u32 v4, v0, 3, 2\nv_mul_u32_u24 v5, 1152, v4\nv_add_u32 v8, v7, v6\nv_lshl_add_u32 v5, v8, 4, v5\ns_add_u32 s12, s11, 16\nv_add_u32 v10, s12, v5')
        a('v_lshrrev_b32 v8, 1, v7\nv_and_b32 v5, 1, v7\nv_lshl_or_b32 v8, v5, 2, v8\nv_lshlrev_b32 v5, 2, v6\nv_xor_b32 v8, v8, v5')
        a('v_lshlrev_b32 v4, 13, v4\nv_lshl_add_u32 v4, v7, 7, v4\ns_lshl_b32 s12, s10, 15\nv_add_u32 v4, s12, v4')
        for g in range(4): a(f'v_xor_b32 v5, {g}, v8\nv_lshl_add_u32 v{208+g}, v5, 4, v4')
    def s_conv(self):
        a = self.a
        self.stamp(5); self.fstamp(5); self.tstamp(1)
        D = 16; BF = (80, 112); TF = (144, 176)
        l1 = self.L('cv1'); lj = self.L('cvj')
        a(f's_cmp_eq_u32 s9, 0\ns_cbranch_scc0 {l1}')
        def variant(tset):
            mmax = max(tset)
            ops = []
            mf = []
            reads = []
            seen = set(); started = set()
            for r in range(4):
                pb = r & 1
                for jj in range(mmax + 1):
                    for ti, t in enumerate(tset):
                        if t < jj: continue
                        m = t - jj
                        nb = ('B', r, m); nt = ('T', r, jj)
                        for k in (nt, nb):
                            if k not in seen:
                                seen.add(k)
                                if k[0] == 'B':
                                    reads.append((k, [f'ds_read_b128 {vr(BF[pb]+4*m,4)}, v10 offset:{32*(4*m - r + 3)}']))
                                else:
                                    mu = 4*jj + r
                                    reads.append((k, [f'ds_read_b64_tr_b16 {vr(TF[pb]+4*jj+2*tt,2)}, v9 offset:{128*mu + 32*(1-tt)}' for tt in range(2)]))
                        c = vr(D+16*ti, 16) if t in started else '0'
                        started.add(t)
                        mf.append((f'v_mfma_f32_32x32x16_bf16 {vr(D+16*ti,16)}, {vr(TF[pb]+4*jj,4)}, {vr(BF[pb]+4*m,4)}, {c}', (nb, nt), r))
            flat = []; endpos = {}
            for k, xs in reads:
                for x in xs: flat.append((x, k))
                endpos[k] = len(flat)
            issued = 0; done = 0
            lastmf = {}
            for i, (txt, needs, r) in enumerate(mf): lastmf[txt.split(',')[0]] = i
            pend = []; released = False
            for i, (txt, needs, r) in enumerate(mf):
                need = max(endpos[k] for k in needs)
                tgt = min(len(flat), need + (12 if r < 2 else 24))
                step = 0
                while issued < tgt and (issued < need + 12 or step < 2):
                    kk = flat[issued][1]
                    if kk[1] >= r + 2: break
                    a(flat[issued][0]); issued += 1; step += 1
                if issued == len(flat) and not released and r == 3:
                    a('s_waitcnt lgkmcnt(0)\ns_barrier'); done = issued; released = True
                    self.fstamp(6)
                if need > done:
                    n = min(14, issued - need)
                    a(f's_waitcnt lgkmcnt({n})'); done = issued - n
                a(txt)
                if released and pend and pend[0][0] <= i:
                    a(pend.pop(0)[1])
                for ti, t in enumerate(tset):
                    if lastmf[f'v_mfma_f32_32x32x16_bf16 {vr(D+16*ti,16)}'] == i:
                        pend += [(i + 5, f'ds_write_b128 v{208+g}, {vr(D+16*ti+4*g,4)} offset:{t*1024}') for g in range(4)]
            assert released
            for _, x in pend: a(x)
        variant([7, 4, 3, 0]); a(f's_branch {lj}')
        a.label(l1); variant([6, 5, 2, 1])
        a.label(lj)
        a('s_lshl_b32 s12, s9, 7\nv_add_u32 v2, s12, v0\nv_lshrrev_b32 v3, 2, v2\nv_and_b32 v4, 3, v2\nv_lshlrev_b32 v4, 1, v4')
        def fa(dst, av): a(f'v_bfe_u32 {dst}, {av}, 1, 2\nv_and_b32 v8, 1, {av}\nv_lshl_or_b32 {dst}, v8, 2, {dst}')
        fa('v5', 'v3')
        a('v_xor_b32 v5, v5, v4\ns_lshl_b32 s12, s10, 15\nv_lshlrev_b32 v6, 7, v3\nv_add_u32 v6, s12, v6')
        a('v_lshl_add_u32 v10, v5, 4, v6\nv_xor_b32 v5, 1, v5\nv_lshl_add_u32 v11, v5, 4, v6')
        a('v_lshl_add_u32 v7, v3, 3, v4\nv_add_u32 v7, -1, v7\nv_ashrrev_i32 v3, 3, v7\nv_and_b32 v7, 7, v7')
        fa('v5', 'v3')
        a('v_xor_b32 v5, v5, v7\nv_lshlrev_b32 v6, 7, v3\nv_add_u32 v6, s12, v6\nv_lshl_add_u32 v12, v5, 4, v6\nv_add_u32 v12, 8192, v12')
        a(f's_lshl_b32 s8, s74, 12\ns_lshl_b32 s12, s9, 11\ns_add_u32 s8, s8, s12\ns_add_u32 s8, s8, {WS_YT}')
        a('s_cmp_eq_u32 s9, 0\ns_cselect_b32 s13, 1, 0')
        a('s_waitcnt lgkmcnt(0)\ns_barrier')
        self.tstamp(2)
        for i in range(2):
            Y = [16 + 44*i, 24 + 44*i, 36 + 44*i, 48 + 44*i]
            for ph in range(4):
                o = 4 if ph else 0
                if ph: a(f'ds_read_b128 {vr(Y[ph],4)}, v12 offset:{(ph-1)*8192 + i*2048}')
                a(f'ds_read_b128 {vr(Y[ph]+o,4)}, v10 offset:{ph*8192 + i*2048}\nds_read_b128 {vr(Y[ph]+o+4,4)}, v11 offset:{ph*8192 + i*2048}')
            if i == 0: continue
        for i in range(2):
            Y = [16 + 44*i, 24 + 44*i, 36 + 44*i, 48 + 44*i]
            for ph in range(1, 4):
                a(f's_waitcnt lgkmcnt({min(14, 11*(1-i) + 3*(3-ph))})')
                if i == 0:
                    a('s_mov_b32 exec_lo, s13\ns_mov_b32 exec_hi, 0')
                    for k in range(4 - ph, 4): a(f'v_mov_b32 v{Y[ph]+k}, 0')
                    a('s_mov_b64 exec, -1')
                for k in range(8): a(f'v_add_f32 v{Y[0]+k}, v{Y[0]+k}, v{Y[ph]+4+k-ph}')
            for k in range(4): a(f'v_cvt_pk_bf16_f32 v{104+4*i+k}, v{Y[0]+2*k}, v{Y[0]+2*k+1}')
            a(f'buffer_store_dwordx4 {vr(104+4*i,4)}, v15, {srd(R_WS)}, s8 offen offset:{1024*i} sc1')
        self.stamp(6); self.fstamp(7); self.tstamp(3)

    def s_assemble(self):
        a = self.a
        a(f'v_lshrrev_b32 v2, 3, v0\nv_and_b32 v3, 7, v0\nv_lshlrev_b32 v3, 4, v3\nv_lshl_add_u32 v4, v2, 12, v3')
        a(f's_lshl_b32 s8, s73, 6\ns_lshl_b32 s9, {sWAVE}, 3\ns_add_u32 s8, s8, s9\ns_lshl_b32 s8, s8, 12\ns_lshl_b32 s10, {sJ}, 7\ns_add_u32 s14, s8, s10\ns_add_u32 s14, s14, {WS_YT}')
        a(f's_add_u32 s11, s14, {32*4096}')
        a('v_add_u32 v2, s9, v2\nv_mul_u32_u24 v7, 160, v2\nv_add_u32 v7, v7, v3')
        a('v_bfe_u32 v5, v0, 2, 2\nv_add_u32 v5, s9, v5\nv_mul_u32_u24 v5, 160, v5\nv_lshrrev_b32 v6, 4, v0\nv_lshl_add_u32 v5, v6, 5, v5\nv_and_b32 v6, 3, v0\nv_lshl_add_u32 v5, v6, 3, v5')
        a(f's_mul_i32 s15, {sJ}, {64*1792}\ns_lshl_b32 s10, s73, 7\ns_add_u32 s15, s15, s10\ns_lshl_b32 s10, {sWAVE}, 4\ns_add_u32 s15, s15, s10')
        a('v_mul_u32_u24 v6, 1792, v0')
        self.mk_srd(R_OUT, P_OUT, OUT_BYTES)
        self.wait_y()
        self.tstamp(5)
        a(f'buffer_load_dwordx4 v[16:19], v4, {srd(R_WS)}, s14 offen sc1')
        a(f'buffer_load_dwordx4 v[20:23], v4, {srd(R_WS)}, s11 offen sc1')
        a(f's_waitcnt vmcnt(1)\nds_write_b128 v7, v[16:19]\ns_waitcnt vmcnt(0)\nds_write_b128 v7, v[20:23] offset:{32*160}')
        a('s_waitcnt lgkmcnt(0)\ns_barrier')
        self.tstamp(6)
        for o in range(2):
            for t in range(2): a(f'ds_read_b64_tr_b16 {vr(24+4*o+2*t,2)}, v5 offset:{(32*o+4*t)*160}')
        a(f's_waitcnt lgkmcnt(2)\nbuffer_store_dwordx4 v[24:27], v6, {srd(R_OUT)}, s15 offen')
        a(f's_waitcnt lgkmcnt(0)\nbuffer_store_dwordx4 v[28:31], v6, {srd(R_OUT)}, s15 offen offset:64')
        self.stamp(7); self.tstamp(7)

    def kernel_head(self, name):
        self.lend = f'L_end_{name}'
        self.a(f'.globl {name}\n.p2align 8\n.type {name},@function')
        self.a.label(name)
    def kernel_tail(self):
        self.a.label(self.lend)
        self.a('s_endpgm')

    SPIN = 1 << 20
    def nonce(self):
        self.a(f's_waitcnt lgkmcnt(0)\ns_add_u32 {sNONCE}, {sNONCE}, 0x9e3779b9')
    def publish_kv(self):
        a = self.a; l = self.L('pkv')
        a(f's_cmp_ge_u32 {sXG}, 4\ns_cbranch_scc1 {l}')
        a(f's_lshl_b32 s8, s6, 2\ns_add_u32 s8, s8, {WS_FKV}\nv_lshlrev_b32 v2, 10, v0\nv_mov_b32 v3, {sNONCE}')
        a(f's_waitcnt vmcnt(0)\ns_barrier\ns_cmp_lg_u32 {sWAVE}, 0\ns_cbranch_scc1 {l}')
        a(f's_mov_b32 exec_hi, 0\nbuffer_store_dword v3, v2, {srd(R_WS)}, s8 offen sc1\ns_mov_b32 exec_hi, -1')
        a.label(l)
    def publish_y(self):
        a = self.a; l = self.L('pg')
        a(f's_lshl_b32 s8, s73, 12\ns_add_u32 s8, s8, {WS_PY}\nv_lshl_add_u32 v2, v0, 7, s8\ns_lshl_b32 s8, s73, 8\ns_add_u32 s8, s8, {WS_FY}\nv_writelane_b32 v2, s8, 32')
        a(f's_lshl_b32 s9, {sJ}, 2\nv_mov_b32 v3, {sNONCE}')
        a('s_waitcnt vmcnt(0)\ns_barrier')
        self.tstamp(4)
        a(f's_cmp_lg_u32 {sWAVE}, 0\ns_cbranch_scc1 {l}')
        a(f's_mov_b32 exec_hi, 1\nbuffer_store_dword v3, v2, {srd(R_WS)}, s9 offen sc1\ns_mov_b64 exec, -1')
        a.label(l)
    def poll(self, vaddr, soff, width, mask_lo, mask_hi, sleep, vt=250):
        a = self.a; lp = self.L('poll'); ld = self.L('polled')
        ld_ = {1: 'dword', 2: 'dwordx2', 4: 'dwordx4'}[width]
        a(f's_mov_b32 exec_lo, {hex(mask_lo)}\ns_mov_b32 exec_hi, {hex(mask_hi)}\ns_mov_b32 s47, {self.SPIN}')
        a.label(lp)
        a(f'buffer_load_{ld_} {vr(vt,width)}, {vaddr}, {srd(R_WS)}, {soff} offen sc1\ns_waitcnt vmcnt(0)')
        a(f'v_xor_b32 v{vt}, {sNONCE}, v{vt}')
        for i in range(1, width): a(f'v_xor_b32 v{vt+i}, {sNONCE}, v{vt+i}\nv_or_b32 v{vt}, v{vt}, v{vt+i}')
        a(f'v_cmp_ne_u32 vcc, 0, v{vt}\ns_cbranch_vccz {ld}')
        if sleep: a(f's_sleep {sleep}')
        a(f's_sub_u32 s47, s47, 1\ns_cmp_lg_u32 s47, 0\ns_cbranch_scc1 {lp}')
        a.label(ld)
        a('s_mov_b64 exec, -1')
    def wait_kv(self, sleep=1):
        a = self.a; l = self.L('wkv')
        a(f's_cmp_lg_u32 {sWAVE}, 0\ns_cbranch_scc1 {l}')
        a(f's_and_b32 s8, s2, {NREP-1}\ns_lshl_b32 s8, s8, 10\ns_add_u32 s8, s8, {WS_FKV}\nv_lshlrev_b32 v2, 3, v0')
        self.poll('v2', 's8', 2, 0xffffffff, 0xffffffff, sleep)
        a.label(l)
        a('s_barrier')
    def wait_y(self):
        a = self.a; l = self.L('wg')
        a(f's_cmp_lg_u32 {sWAVE}, 0\ns_cbranch_scc1 {l}')
        a(f's_lshl_b32 s8, s73, 5\ns_add_u32 s8, s8, {sJ}\ns_lshl_b32 s8, s8, 7\ns_add_u32 s8, s8, {WS_PY}\nv_lshlrev_b32 v2, 2, v0')
        self.poll('v2', 's8', 1, 0xffffffff, 0, 1)
        a.label(l)
        a('s_barrier')
    def publish_o(self):
        a = self.a
        a(f's_lshl_b32 s8, s6, 10\ns_add_u32 s8, s8, {WS_PO}\nv_lshl_add_u32 v2, v0, 7, s8\ns_lshl_b32 s8, s6, 8\ns_add_u32 s8, s8, {WS_FO}\nv_writelane_b32 v2, s8, 8')
        a(f's_lshl_b32 s9, s7, 4\ns_lshl_b32 s8, {sWAVE}, 2\ns_add_u32 s9, s9, s8')
        self.tstamp(2)
        a(f'v_mov_b32 v3, {sNONCE}\ns_waitcnt vmcnt(0)')
        self.tstamp(3)
        a(f's_mov_b64 exec, 0x1ff\nbuffer_store_dword v3, v2, {srd(R_WS)}, s9 offen sc1\ns_mov_b64 exec, -1')
        self.stamp(5)
        a('s_barrier')
    def wait_o(self):
        a = self.a; l = self.L('wo')
        a(f's_cmp_lg_u32 {sWAVE}, 0\ns_cbranch_scc1 {l}')
        a(f's_lshl_b32 s9, s6, 3\ns_add_u32 s9, s9, s7\ns_lshl_b32 s9, s9, 7\ns_add_u32 s9, s9, {WS_PO}\nv_lshlrev_b32 v2, 2, v0')
        self.poll('v2', 's9', 1, 0xffffffff, 0, 0)
        a.label(l)
        a('s_waitcnt vmcnt(0)\ns_barrier')
    def e_update(self):
        a = self.a; l = self.L('eu')
        a(f's_cmp_lg_u32 s2, 253\ns_cbranch_scc1 {l}')
        a('v_lshrrev_b32 v2, 3, v0\nv_lshlrev_b32 v2, 8, v2\nv_and_b32 v3, 7, v0\nv_lshl_add_u32 v2, v3, 4, v2')
        a(f's_mov_b32 s8, {WS_FY}')
        self.poll('v2', 's8', 4, 0xffffffff, 0x00ffffff, 32)
        a(f's_lshl_b32 s8, {sWAVE}, 11\ns_add_u32 s8, s8, {WS_FO}')
        self.poll('v2', 's8', 4, 0xffffffff, 0xffffffff, 16)
        a(f's_barrier\ns_cmp_lg_u32 {sWAVE}, 0\ns_cbranch_scc1 {l}')
        a(f'v_mov_b32 v2, {WS_E}\nv_mov_b32 v3, {sNONCE}\ns_mov_b64 exec, 1\nbuffer_store_dword v3, v2, {srd(R_WS)}, 0 offen sc1')
        a.label(l)

    def wo_prefetch(self):
        a = self.a
        self.mk_srd(R_X, P_WO, WQ_BYTES)
        a(f's_mul_i32 s8, {sJ}, 12544\ns_lshl_b32 s9, {sWAVE}, 10\ns_add_u32 s8, s8, s9')
        for i in range(4):
            a(f'buffer_load_dwordx4 v[240:243], v15, {srd(R_X)}, s8 offen')
            if i < 3: a('s_add_u32 s8, s8, 4096')
    def build_fused(self):
        a = self.a
        kn = NAME + '_kernel'
        self.kernel_head(kn); self.prologue(512)
        la = self.L('roleA'); lidle = self.L('idle'); lnopf = self.L('nopf'); lnz = self.L('nonce')
        a(f's_cmp_ge_u32 s2, 256\ns_cbranch_scc1 {la}')
        if OPT('qonly'): a('s_endpgm')
        a('s_setprio 3')
        self.s_ids(); self.s_params_addr(); self.s_kv_addr()
        self.after_kernarg()
        a(f's_cmp_eq_u32 {sXG}, 5\ns_cbranch_scc1 {lidle}')
        self.s_params_load()
        self.s_kv_load()
        self.s_u_load()
        self.code_prefetch(kn)
        self.estamp(3)
        def before_r0():
            self.s_kv(3); self.estamp(4)
        def mid_r0():
            self.publish_kv(); self.estamp(5)
            a('s_setprio 2')
        def after_r0():
            self.s_ut()
        def mid_r1():
            a(f's_lshl_b32 s12, s73, 9\ns_lshl_b32 s9, {sJ}, 4\ns_add_u32 s12, s12, s9\ns_lshl_b32 s9, {sWAVE}, 2\ns_add_u32 s12, s12, s9\ns_add_u32 s12, s12, {WS_FU}\ns_waitcnt vmcnt(0)')
            a(f'v_mov_b32 v2, 0\nv_mov_b32 v3, {sNONCE}\ns_mov_b64 exec, 1\nbuffer_store_dword v3, v2, {srd(R_WS)}, s12 offen sc1\ns_mov_b64 exec, -1')
            self.estamp(6)
        self.s_kgen(before_r0, mid_r0, after_r0, mid_r1, 3)
        if not OPT('notrig') and not OPT('noA'):
            lt = self.L('trig')
            a(f's_setprio 0\ns_cmp_lg_u32 {sWAVE}, 0\ns_cbranch_scc1 {lt}\ns_lshl_b32 s8, s2, 8\ns_add_u32 s8, s8, {WS_FA}\nv_mov_b32 v43, 0')
            self.poll('v43', 's8', 1, 1, 0, 8)
            a.label(lt)
            a('s_barrier')
            if OPT('convhi'): a('s_setprio 2')
        self.s_conv()
        self.publish_y()
        self.s_assemble()
        self.stamp_flush(8)
        a('s_endpgm')
        a.label(lidle)
        self.code_prefetch(kn)
        self.wo_prefetch()
        self.nonce()
        if not OPT('noA'):
            self.e_update()
        else:
            a(f'v_mov_b32 v2, {WS_E}\nv_mov_b32 v3, {sNONCE}\ns_cmp_lg_u32 s2, 253\ns_cbranch_scc1 {self.lend}\n' + 's_sleep 127\n' * 6 + f'buffer_store_dword v3, v2, {srd(R_WS)}, 0 offen sc1')
        a('s_endpgm')
        a.label(la)
        if OPT('noA'): a('s_endpgm')
        a('s_setprio 3')
        self.a_qproj()
        if OPT('qonly'):
            self.stamp_flush(10); a('s_endpgm')
        a('s_setprio 1' if not OPT('ahigh') else 's_setprio 3')
        self.nonce_a(); self.a_attn(); self.publish_o(); self.a_outproj(); self.stamp_flush(10)
        self.kernel_tail()
        return [kn], [512]
    def code_prefetch(self, kn):
        a = self.a
        lp = self.L('pc')
        a('s_getpc_b64 s[12:13]'); a.label(lp)
        a(f's_add_u32 s12, s12, {kn}-{lp}\ns_addc_u32 s13, s13, -1')
        a(f's_lshl_b32 s8, {sJ}, 10\ns_lshl_b32 s9, {sWAVE}, 8\ns_add_u32 s8, s8, s9\nv_lshl_add_u32 v9, v0, 2, s8\nv_min_u32 v9, L_table-4-{kn}, v9')
        a('global_load_dword v63, v9, s[12:13]' if not OPT('nocpf') else f'global_load_dword v63, v15, {sp(P_LAR)}')
    def nonce_a(self):
        self.a(f's_add_u32 {sNONCE}, {sNONCE}, 0x9e3779b9')

def table():
    import numpy as np
    def rne_bf16(j):
        u = struct.unpack('<I', struct.pack('<f', float(j)))[0]
        u = (u + 0x7fff + ((u >> 16) & 1)) & 0xffff0000
        return int(struct.unpack('<f', struct.pack('<I', u))[0])
    hi = [0,1,2,3,4,5,6,7, 256,258,260,262, 512,516,768,772, 1024,1280,1536,1792, 2048]
    out = []
    for j in range(2048):
        p = rne_bf16(j)
        b = (p >> 3) & 31
        out.append(hi.index(p - 8 * b) * 144 + 4 * b)
    lin = []
    for mh in range(2):
        for i in range(4):
            for lane in range(64):
                lin += out[16*(64*mh+lane)+4*i:16*(64*mh+lane)+4*i+4]
    return lin

def main():
    mode = sys.argv[1]; outp = sys.argv[2]; stamps = len(sys.argv) > 3 and sys.argv[3] == 'stamps'
    g = Gen(mode, stamps)
    names, grids = g.build_multi() if mode == 'multi' else g.build_fused()
    body = g.a.finalize(verbose='-v' in sys.argv)
    head = open('cdna_kernels/' + NAME + '.s.ref').read().split('; Override launch geometry')[0]
    txt = head
    if mode == 'multi':
        for n, gr in zip(names, grids): txt += f'; @launch kernel={n} grid=({gr},1,1) block=(256,1,1) lds=81920\n'
    else:
        txt += f'; @launch grid=({grids[0]},1,1) block=(256,1,1) lds=81920\n'
    txt += '.amdgcn_target "amdgcn-amd-amdhsa--gfx950"\n.text\n' + body
    txt += '.p2align 6\n.type L_table,@object\nL_table:\n'
    t = table()
    for i in range(0, 2048, 16): txt += '.long ' + ','.join(str(x) for x in t[i:i+16]) + '\n'
    txt += '.section .rodata,"a"\n'
    for n in names:
        txt += f'''.p2align 6
.amdhsa_kernel {n}
  .amdhsa_next_free_vgpr 256
  .amdhsa_next_free_sgpr 100
  .amdhsa_accum_offset 256
  .amdhsa_group_segment_fixed_size 0
  .amdhsa_kernarg_size 120
  .amdhsa_user_sgpr_count 2
  .amdhsa_user_sgpr_kernarg_segment_ptr 1
  .amdhsa_system_sgpr_workgroup_id_x 1
.end_amdhsa_kernel
'''
    open(outp, 'w').write(txt)
    print('written', outp, 'nops inserted', g.a.n_nops, 'lines', len(g.a.lines))

if __name__ == '__main__':
    main()
```

```python
import sys, struct, math
from asmdsl import Asm

NAME = 'concat_heads__ssm_conv_s4d__grouped_kv_mqa__prompt'
X_BYTES = 2048 * 896; WQ_BYTES = 448 * 896; WK_BYTES = 448 * 56; OUT_BYTES = 2048 * 1792
WS_E = 0; WS_FKV = 0x1000; WS_FU = 0x9000; WS_FY = 0xA000; WS_FO = 0xB000
WS_FA = 0x50000; WS_PO = 0x60000; WS_PY = 0x70000; WS_KV = 0x10000; WS_O = 0x100000; WS_UT = 0x300000; WS_YT = 0x500000; WS_ST = 0x700000; WS_BYTES = 0x800000
NREP = 32
def f32(x): return '0x%08x' % struct.unpack('<I', struct.pack('<f', x))[0]
LOG2E = math.log2(math.e)
CSCALE = LOG2E / math.sqrt(28.0)

sWAVE = 's3'; sXG = 's4'; sJ = 's5'
P_U, P_LAR, P_AIM, P_CRE, P_CIM, P_LDT, P_DSK, P_X = [16 + 2 * i for i in range(8)]
P_WQ, P_WK, P_WV, P_WO = 32, 34, 36, 38
P_OUT, P_DBG, P_WS = 40, 42, 44
sNONCE = 's46'
R_X = 48; R_W = 52; R_WS = 56; R_OUT = 60; R_B = 64
def srd(r): return f's[{r}:{r+3}]'
def sp(r): return f's[{r}:{r+1}]'
def vr(a, n): return f'v[{a}:{a+n-1}]' if n > 1 else f'v{a}'

def OPT(x): return x in sys.argv
OSP = ' nt' if OPT('ont') else ' sc1' if OPT('osc1') else ' sc0 sc1' if OPT('osc01') else ''
class Gen:
    def __init__(self, mode, stamps=False):
        self.a = Asm(); self.mode = mode; self.stamps = stamps; self.uid = 0
    def L(self, base):
        self.uid += 1
        return f'L_{base}_{self.uid}'
    def mk_srd(self, r, p, nbytes):
        if r == R_OUT and OPT('nostore'): nbytes = 16
        if r == R_WS and OPT('wsbig'): nbytes = 0x10000000
        self.a(f's_mov_b32 s{r}, s{p}\ns_mov_b32 s{r+1}, s{p+1}\ns_mov_b32 s{r+2}, {hex(nbytes)}\ns_mov_b32 s{r+3}, 0x20000')
    def stamp(self, i):
        if self.stamps and not ((OPT('early') or OPT('sfine') or OPT('tail')) and i > 0):
            self.a(f's_memrealtime s[{76+2*i}:{77+2*i}]')
    def fstamp(self, i):
        if self.stamps and OPT('sfine'):
            self.a(f's_memrealtime s[{76+2*i}:{77+2*i}]')
    def tstamp(self, i):
        if self.stamps and OPT('tail'):
            self.a(f's_memrealtime s[{76+2*i}:{77+2*i}]')
    def estamp(self, i):
        if self.stamps and OPT('early'):
            self.a(f's_memrealtime s[{76+2*i}:{77+2*i}]')
    def cstamp(self, i):
        if self.stamps:
            self.a(f's_memtime s[{76+2*i}:{77+2*i}]')
    def stamp_flush(self, n):
        if not self.stamps: return
        a = self.a
        a('s_waitcnt lgkmcnt(0)')
        if OPT('dbgst'):
            l = self.L('dbg')
            a(f's_cmp_lg_u32 {sWAVE}, 0\ns_cbranch_scc1 {l}')
            self.mk_srd(R_X, P_DBG, 256)
            a('v_mov_b32 v2, 0')
            isA = n == 10
            for i in range(8):
                if i == 0 and isA: a('s_not_b32 s6, s76\nv_writelane_b32 v2, s6, 0')
                else: a(f'v_writelane_b32 v2, s{76+2*i}, {i}')
            a(f'v_lshlrev_b32 v1, 2, v0\nv_add_u32 v1, {0 if isA else 32}, v1\ns_mov_b64 exec, 0xff')
            a(f'buffer_atomic_umax v2, v1, {srd(R_X)}, 0 offen\ns_mov_b64 exec, -1')
            a.label(l)
            return
        a(f's_lshl_b32 s6, s2, 2\ns_add_u32 s6, s6, {sWAVE}\ns_lshl_b32 s6, s6, 6\ns_add_u32 s6, s6, {WS_ST}')
        a('v_mov_b32 v1, s6')
        for i in range(n):
            a(f'v_mov_b32 v2, s{76+2*i}\nbuffer_store_dword v2, v1, {srd(R_WS)}, 0 offen offset:{4*i}')
        a('s_getreg_b32 s7, hwreg(HW_REG_XCC_ID)\nv_mov_b32 v2, s7')
        a(f'buffer_store_dword v2, v1, {srd(R_WS)}, 0 offen offset:60')

    def prologue(self, nwg):
        a = self.a
        if self.stamps:
            for i in range(1, 10): a(f's_mov_b64 s[{76+2*i}:{77+2*i}], 0')
        self.stamp(0)
        a(f's_cmp_ge_u32 s2, {nwg}\ns_cbranch_scc1 {self.lend}')
        a('s_load_dwordx16 s[16:31], s[0:1], 0\ns_load_dwordx8 s[32:39], s[0:1], 64')
        a('s_load_dwordx4 s[40:43], s[0:1], 96\ns_load_dwordx2 s[44:45], s[0:1], 112')
        a('v_lshrrev_b32 v1, 6, v0\nv_and_b32 v0, 63, v0')
        a(f's_and_b32 {sXG}, s2, 7\ns_bfe_u32 {sJ}, s2, 0x50003')
        a(f'v_readfirstlane_b32 {sWAVE}, v1')

    def after_kernarg(self):
        a = self.a
        self.estamp(1)
        a('s_waitcnt lgkmcnt(0)')
        self.estamp(2)
        if self.mode == 'fused':
            a(f's_load_dword {sNONCE}, {sp(P_WS)}, {WS_E}')
        self.mk_srd(R_WS, P_WS, WS_BYTES)

    def row7_addr(self, v0, v1, tmp, rowstride):
        a = self.a
        for v, add in ((v0, 0), (v1, 64)):
            if add: a(f'v_add_u32 {tmp}, {add}, v0')
            else: a(f'v_mov_b32 {tmp}, v0')
            a(f'v_mul_u32_u24 {v}, 147, {tmp}\nv_lshrrev_b32 {v}, 10, {v}')
            a(f'v_mul_u32_u24 {v}, {rowstride - 112}, {v}')
            a(f'v_lshl_add_u32 {v}, {tmp}, 4, {v}')

    def w128_src(self):
        a = self.a
        a(f's_lshl_b32 s8, {sWAVE}, 4\ns_mul_i32 s9, s8, 896\ns_mul_i32 s11, s7, 112\ns_add_u32 s9, s9, s11')
        a('v_lshrrev_b32 v2, 3, v0\nv_mul_u32_u24 v2, 896, v2\nv_bfe_u32 v3, v0, 4, 1\nv_lshlrev_b32 v3, 2, v3\nv_and_b32 v4, 7, v0\nv_xor_b32 v3, v3, v4')
        a('v_lshl_add_u32 v7, v3, 4, v2\nv_add_u32 v7, s9, v7\nv_add_u32 v8, 7168, v7')
    def w128_frag(self, dst, rowmul_h, sbyte):
        a = self.a
        a(f'v_bfe_u32 v2, v0, 4, 1\nv_lshlrev_b32 v2, 5, v2\nv_and_b32 v3, 3, v0\nv_lshl_add_u32 v2, v3, 3, v2\nv_add_u32 v2, {sbyte}, v2')
        a(f'v_bfe_u32 v3, v0, 3, 1\nv_lshlrev_b32 v3, 6, v3\nv_xor_b32 v2, v2, v3')
        a(f'v_lshrrev_b32 v3, 5, v0\nv_mul_u32_u24 v3, {rowmul_h}, v3\nv_bfe_u32 v4, v0, 2, 2\nv_add_u32 v3, v3, v4\nv_lshl_add_u32 {dst}, v3, 7, v2')
    def a_qproj_addr(self):
        a = self.a
        QX = 32768
        self.mk_srd(R_B, P_WO, WQ_BYTES); self.mk_srd(R_OUT, P_OUT, OUT_BYTES)
        a(f's_and_b32 s8, {sWAVE}, 1\ns_lshl_b32 s8, s8, 5')
        a('v_and_b32 v2, 31, v0\nv_add_u32 v2, s8, v2\nv_bfe_u32 v3, v2, 1, 3\nv_lshrrev_b32 v4, 5, v0\nv_xor_b32 v3, v3, v4\nv_lshlrev_b32 v2, 7, v2')
        for ks in range(4):
            a(f'v_xor_b32 v9, {2*ks}, v3\nv_lshl_add_u32 v{10+ks}, v9, 4, v2\nv_add_u32 v{20+ks}, 0x10000, v{10+ks}')
        a(f's_lshr_b32 s8, {sWAVE}, 1\ns_mul_i32 s8, s8, 56')
        self.w128_frag('v14', 8, 's8')
        a('v_add_u32 v24, 0x10000, v14\nv_lshlrev_b32 v15, 4, v0')
        a(f's_lshl_b32 s8, {sWAVE}, 11\ns_add_u32 s8, s8, {QX}\nv_add_u32 v2, s8, v15')
        for js in range(4):
            a(f's_add_u32 s8, {sWAVE}, {1+js}\ns_and_b32 s8, s8, 3\ns_lshl_b32 s9, s8, 11\ns_add_u32 s9, s9, {QX}\nv_add_u32 v{192+js}, s9, v15')
            if js < 3:
                a(f's_mul_i32 s9, s8, 12288\nv_add_u32 v{196+js}, s9, v15')
        for r in range(64, 112): a(f'v_mov_b32 v{r}, 0')
    def a_qproj(self):
        a = self.a
        QX = 32768
        REG = [0, 16384, 32768, 49152, 65536, 0, 16384]
        sQB = 's6'; sHP = 's7'
        a(f's_lshr_b32 s8, {sJ}, 3\ns_lshl_b32 {sQB}, {sXG}, 2\ns_add_u32 {sQB}, {sQB}, s8\ns_and_b32 {sHP}, {sJ}, 7')
        a(f's_lshl_b32 s8, {sWAVE}, 4\ns_lshl_b32 s9, {sQB}, 6\ns_add_u32 s9, s9, s8\ns_mul_i32 s9, s9, 896')
        a('v_lshrrev_b32 v2, 3, v0\nv_lshrrev_b32 v3, 4, v0\nv_and_b32 v4, 7, v0')
        a('v_xor_b32 v4, v4, v3\nv_mul_u32_u24 v2, 896, v2')
        a('v_lshl_add_u32 v5, v4, 4, v2\nv_add_u32 v5, s9, v5')
        a('v_xor_b32 v4, 4, v4\nv_lshl_add_u32 v6, v4, 4, v2\nv_add_u32 v6, s9, v6\nv_add_u32 v6, 7168, v6')
        a(f's_lshl_b32 s10, {sWAVE}, 11')
        self.w128_src()
        a(f's_lshr_b32 s8, {sJ}, 3\ns_lshl_b32 s8, s8, 1\ns_add_u32 s8, s8, {sHP}\ns_cmp_ge_u32 s8, 7\ns_cselect_b32 s9, 7, 0\ns_sub_u32 s8, s8, s9')
        a('s_cmp_ge_u32 s8, 7\ns_cselect_b32 s9, 7, 0\ns_sub_u32 s8, s8, s9')
        a('s_lshl_b32 s14, s8, 7\ns_mul_i32 s15, s8, 57344')
        self.after_kernarg()
        self.mk_srd(R_X, P_X, X_BYTES); self.mk_srd(R_W, P_WQ, WQ_BYTES)
        def loadx(i):
            a(f's_add_u32 m0, s10, {REG[i]}\ns_nop 0\nbuffer_load_dwordx4 v5, {srd(R_X)}, s14 offen lds')
            a(f's_add_u32 m0, s10, {REG[i] + 1024}\ns_nop 0\nbuffer_load_dwordx4 v6, {srd(R_X)}, s14 offen lds')
            if i < 6: a('s_add_u32 s14, s14, 128\ns_cmp_eq_u32 s14, 896\ns_cselect_b32 s14, 0, s14')
        def loadw(i):
            a(f's_add_u32 m0, s10, {REG[i] + 8192}\ns_nop 0\nbuffer_load_dwordx4 v7, {srd(R_W)}, s15 offen lds')
            a(f's_add_u32 m0, s10, {REG[i] + 8192 + 1024}\ns_nop 0\nbuffer_load_dwordx4 v8, {srd(R_W)}, s15 offen lds')
            if i < 6: a(f's_add_u32 s15, s15, 57344\ns_cmp_eq_u32 s15, {7*57344}\ns_cselect_b32 s15, 0, s15')
        def load(i): loadw(i); loadx(i)
        NF = 3 if OPT('q3') else 5 if OPT('q5') else 4
        a('s_setprio 1')
        if OPT('wfirst'): loadw(0); loadw(1); loadx(0); loadx(1)
        else: loadx(0); loadw(0); loadx(1); loadw(1)
        self.a_qproj_addr()
        for i in range(2, NF): load(i)
        if not OPT('shi'): a('s_setprio 3')
        self.estamp(3)
        FX = (144, 176); FW = (160, 232); ACC = 48
        issued = NF
        def rd(i):
            hi = REG[i] >= 65536
            off = REG[i] - (65536 if hi else 0)
            for ks in range(4):
                a(f'ds_read_b128 {vr(FX[i&1]+4*ks,4)}, v{(20 if hi else 10)+ks} offset:{off}')
                for t in range(2):
                    a(f'ds_read_b64_tr_b16 {vr(FW[i&1]+4*ks+2*t,2)}, v{24 if hi else 14} offset:{off + 8192 + (16*ks+4*t)*128}')
        def mm(i, waits):
            for ks in range(4):
                c = '0' if (i == 0 and ks == 0) else vr(ACC, 16)
                if waits[ks] is not None: a(f's_waitcnt lgkmcnt({waits[ks]})')
                a(f'v_mfma_f32_32x32x16_bf16 {vr(ACC,16)}, {vr(FW[i&1]+4*ks,4)}, {vr(FX[i&1]+4*ks,4)}, {c}')
        extra = 0
        for i in range(7):
            a(f's_waitcnt vmcnt({4*(issued - 1 - i) - (2 if i == 0 and OPT("wfirst") else 0) + extra}) lgkmcnt(0)\ns_barrier')
            if i == 0: self.stamp(1); self.estamp(4)
            if i == 3: self.estamp(5)
            if i == 6: self.estamp(6)
            rd(i)
            if i and i < 6: mm(i - 1, [None] * 4)
            while issued < 7 and issued <= i + NF and (issued < 5 or issued - 5 < i): load(issued); issued += 1
            if i == 0: self.a_attn_setup()
            if i == 3:
                assert issued == 7
                a(f'buffer_store_dword v199, v248, {srd(R_WS)}, s69 offen sc1'); extra = 1
            if i == 5:
                mm(5, [9, 6, 3, 0])
                a('s_mov_b32 s14, 0')
                for x in self.fl_load(): a(x)
        mm(6, [9, 6, 3, 0])
        lno = self.L('nokv')
        for x in self.fl_test()[1:]: a(x)
        a(f's_cbranch_scc1 {lno}')
        self.kv_first([0])
        a('s_mov_b32 s75, 1')
        a.label(lno)
        for r in range(8): a(f'v_mov_b32 v{184+r}, 0')
        for r in range(8): a(f'v_cvt_pk_bf16_f32 v{224+r}, v{ACC+2*r}, v{ACC+2*r+1}')
        a('s_mov_b32 exec_lo, 0\nv_mov_b32 v230, 0\nv_mov_b32 v231, 0\ns_mov_b32 exec_lo, -1')
        a('ds_write_b128 v2, v[224:227]\nds_write_b128 v2, v[228:231] offset:1024')
        for r in range(48, 64): a(f'v_mov_b32 v{r}, 0')
        a('s_waitcnt lgkmcnt(0)\ns_barrier')
        for js in range(4):
            a(f'ds_read_b128 {vr(16+8*js,4)}, v{192+js}\nds_read_b128 {vr(20+8*js,4)}, v{192+js} offset:1024')
        lno2 = self.L('nokv')
        a(f's_cmp_eq_u32 s75, 0\ns_cbranch_scc1 {lno2}')
        self.kv_first([1, 2, 3])
        a.label(lno2)
        self.stamp(2); self.estamp(7)

    KB_ = (112, 128, 200, 216); CK = ['s32', 's33', 's34', 's35']
    def ldK(self, buf): return [f'buffer_load_dwordx4 {vr(self.KB_[buf] + 4*f, 4)}, v15, {srd(R_WS)}, s68 offen offset:{1024*f} sc1' for f in range(2)]
    def ldV(self, buf): return [f'buffer_load_dwordx4 {vr(self.KB_[buf] + 8 + 4*f, 4)}, v15, {srd(R_WS)}, s68 offen offset:{2048+1024*f} sc1' for f in range(2)]
    def fl_load(self):
        return ['s_lshr_b32 s8, s14, 8', 's_add_u32 s8, s8, s36', f's_load_dwordx8 s[16:23], {sp(P_WS)}, s8 glc', 's_add_u32 s9, s8, 128', f's_load_dwordx8 s[24:31], {sp(P_WS)}, s9 glc']
    def fl_test(self):
        out = ['s_waitcnt lgkmcnt(0)', 's_xor_b64 s[16:17], s[16:17], s[40:41]']
        for i in range(1, 8): out += [f's_xor_b64 s[{16+2*i}:{17+2*i}], s[{16+2*i}:{17+2*i}], s[40:41]', f's_or_b64 s[16:17], s[16:17], s[{16+2*i}:{17+2*i}]']
        return out
    def fl_check(self):
        lr = self.L('kvspin'); lb = self.L('kvback')
        self.spins.append((lr, lb))
        return self.fl_test() + [f's_cbranch_scc1 {lr}', lb + ':']
    def kv_first(self, bs=range(4)):
        for b in bs:
            self.a(f's_mov_b32 s68, {self.CK[b]}')
            for x in self.ldK(b) + (self.ldV(b) if b < 3 else []): self.a(x)
    def a_attn_setup(self):
        a = self.a
        self.spins = []
        a(f's_add_u32 {sNONCE}, {sNONCE}, 0x9e3779b9')
        a(f's_lshl_b32 s8, {sWAVE}, 13\ns_add_u32 s8, s8, {WS_KV}\ns_mov_b32 s37, s8')
        for k in range(4):
            a(f's_add_u32 s9, {sJ}, {k}\ns_and_b32 s12, s9, 1\ns_lshl_b32 s12, s12, 12\ns_and_b32 s9, s9, 2\ns_lshl_b32 s9, s9, 14\ns_add_u32 s9, s9, s12\ns_add_u32 s{32+k}, s8, s9')
        a(f's_and_b32 s36, s2, {NREP-1}\ns_lshl_b32 s36, s36, 10\ns_lshl_b32 s8, {sWAVE}, 5\ns_add_u32 s36, s36, s8\ns_add_u32 s36, s36, {WS_FKV}')
        a(f's_mov_b32 s40, {sNONCE}\ns_mov_b32 s41, {sNONCE}\ns_mov_b32 s38, 0x07060302')
        a(f's_and_b32 s69, s2, 255\ns_lshl_b32 s69, s69, 8\ns_add_u32 s69, s69, {WS_FA}\nv_mov_b32 v199, {sNONCE}\nv_mov_b32 v248, 0')
        a(f's_lshl_b32 s71, {sWAVE}, 10\ns_mul_i32 s8, {sWAVE}, 7168\ns_lshl_b32 s9, s7, 4\ns_sub_u32 s8, s9, s8\nv_add_u32 v249, s8, v7')
        a(f's_cmp_eq_u32 s7, 7\ns_cselect_b32 s{R_B+2}, 0, s{R_B+2}')
        a('s_mov_b32 s72, 0\ns_mov_b32 s73, 0\ns_mov_b32 s75, 0')
    def a_attn(self):
        a = self.a
        Q = 16; O = 48; SS = (144, 160); PP = (176, 184)
        KB_ = (112, 128, 200, 216)
        K = lambda buf, f: vr(KB_[buf] + 4*f, 4)
        Vv = lambda buf, f: vr(KB_[buf] + 8 + 4*f, 4)
        sG = 's14'; sF = 's36'; sOFF = 's68'; sCNT = 's70'; sSEQ = 's74'; CK = self.CK
        fl_load = self.fl_load; fl_check = self.fl_check; ldK = self.ldK; ldV = self.ldV
        for r in range(8): a(f'v_mov_b32 v{KB_[3]+8+r}, 0')
        lgo = self.L('go')
        a(f's_cmp_lg_u32 s75, 0\ns_cbranch_scc1 {lgo}')
        self.lagain = self.L('again')
        a.label(self.lagain)
        a(f's_mov_b32 {sG}, 0')
        for x in fl_load() + fl_check(): a(x)
        self.kv_first()
        a.label(lgo)
        a(f's_mov_b32 {sSEQ}, 0x462')
        self.stamp(3); self.cstamp(8)
        def nxtG(): return [f's_and_b32 {sG}, {sSEQ}, 15', f's_lshl_b32 {sG}, {sG}, 15', f's_lshr_b32 {sSEQ}, {sSEQ}, 4']
        def mA(u, buf, f):
            s = SS[u & 1]; c = '0' if f == 0 else vr(s, 16)
            return f'v_mfma_f32_32x32x16_bf16 {vr(s,16)}, {K(buf,f)}, {vr(Q + 8*(u&3) + 4*f, 4)}, {c}'
        def mC(u, buf, f):
            o = vr(O + 16*(u & 3), 16)
            return f'v_mfma_f32_32x32x16_bf16 {o}, {Vv(buf,f)}, {vr(PP[u&1] + 4*f, 4)}, {o}'
        a('s_waitcnt vmcnt(12) lgkmcnt(0)')
        a(mA(0, 0, 0)); a(mA(0, 0, 1))
        a(f's_mov_b32 {sCNT}, 3')
        def unit(u, mf, extra):
            s = SS[u & 1]; p = PP[u & 1]
            e = lambda i: f'v_exp_f32 v{s+i}, v{s+i}'
            c = (lambda i: f'v_cvt_pk_bf16_f32 v{p+i}, v{s+2*i}, v{s+2*i+1}') if OPT('cvt') else (lambda i: f'v_perm_b32 v{p+i}, v{s+2*i+1}, v{s+2*i}, s38')
            seq = [[e(0), e(1), e(2), e(3), c(0), e(4)], [e(5), c(1), e(6), e(7), c(2), e(8)],
                   [e(9), c(3), e(10), e(11), c(4), e(12)], [e(13), c(5), e(14), e(15), c(6), c(7)]]
            for i in range(4):
                for x in extra.get(('pre', i), []): a(x)
                if mf[i]: a(mf[i])
                for x in extra.get(i, []): a(x)
                for x in seq[i]: a(x)
        lloop = self.L('attn')
        TRIG = [int(x[4:]) for x in sys.argv if x.startswith('trig') and x[4:].isdigit()]
        TRIG = TRIG[0] if TRIG else 4
        TRL = [int(x[5:]) for x in sys.argv if x.startswith('trigL')]
        if TRL: TRIG = 99
        WOU = list(range(2, 10))
        W = lambda n, u, slot: n + (1 if (u, slot) > (TRIG, 0) else 0) + sum(1 for x in WOU if (u, slot) > (x, 1))
        def body(tail):
            for u in range(16):
                t = u >> 2; b = u & 3
                nu = u + 1; nbuf = (nu >> 2) & 3
                pu = u - 1; pbuf = ((pu >> 2) & 3)
                mf = [mA(nu, nbuf, 0), mA(nu, nbuf, 1), mC(pu, pbuf, 0), mC(pu, pbuf, 1)]
                ex = {}
                if tail and u == 15: mf = [mC(pu, pbuf, 0), mC(pu, pbuf, 1), None, None]
                if b == 3:
                    if not tail:
                        ex[('pre', 0)] = ['s_waitcnt vmcnt(10)']
                        ex[0] = [f's_add_u32 {sOFF}, {sG}, {CK[t]}']
                        ex[2] = [ldK(t)[0]]; ex[3] = [ldK(t)[1]]
                    elif t < 3:
                        ex[('pre', 0)] = [f's_waitcnt vmcnt({W(10 - 4*t, u, 0)})']
                if b == 1:
                    if not tail or t == 0:
                        assert TRIG >= 2
                        ex[('pre', 2)] = ['s_waitcnt vmcnt(10)']
                        ex[2] = [ldV((t - 1) & 3)[0]]; ex[3] = [ldV((t - 1) & 3)[1]]
                    else:
                        ex[('pre', 2)] = [f's_waitcnt vmcnt({W(12 - 4*t, u, 2)})']
                if tail and u == TRIG:
                    ex.setdefault(0, []).append(f'buffer_store_dword v199, v248, {srd(R_WS)}, s69 offen offset:4 sc1')
                if not tail and u == 0:
                    g_ = nxtG() + fl_load()
                    ex[0] = g_[:2]; ex[1] = g_[2:4]; ex[2] = g_[4:6]; ex[3] = g_[6:]
                if not tail and u == 1:
                    c0 = ['s_waitcnt lgkmcnt(0)', 's_xor_b64 s[16:17], s[16:17], s[40:41]']
                    for i in range(1, 4): c0 += [f's_xor_b64 s[{16+2*i}:{17+2*i}], s[{16+2*i}:{17+2*i}], s[40:41]', f's_or_b64 s[16:17], s[16:17], s[{16+2*i}:{17+2*i}]']
                    ex.setdefault(1, []).extend(c0[:4]); ex.setdefault(2, []).extend(c0[4:6]); ex.setdefault(3, []).extend(c0[6:])
                if not tail and u == 2:
                    c_ = fl_check(); self.c_ = c_
                    ex[0] = c_[8:10]; ex[1] = c_[10:12]; ex[2] = c_[12:14]; ex[3] = c_[14:]
                if not tail and TRL and u == TRL[0]:
                    lsk = self.L('tsk')
                    ex.setdefault(0, []).append(f's_cmp_lg_u32 {sCNT}, 1')
                    ex.setdefault(1, []).extend([f's_cbranch_scc1 {lsk}', f'buffer_store_dword v199, v248, {srd(R_WS)}, s69 offen offset:4 sc1', lsk + ':'])
                if tail and u in WOU:
                    i = WOU.index(u)
                    ex.setdefault(0, []).append(f's_add_u32 m0, s71, {self.WOB + 1024*(25+4*i)}')
                    ex.setdefault(('pre', 1), []).append(f's_mov_b32 s13, {(25+4*i)*7168}')
                    ex.setdefault(1, []).append(f'buffer_load_dwordx4 v249, {srd(R_B)}, s13 offen lds')
                if tail and u == 14:
                    for g in range(4): ex.setdefault((1,2,2,3)[g], []).append(f'ds_write_b128 v196, {vr(O+4*g,4)} offset:{g*1024}')
                if tail and u == 15:
                    for g in range(4): ex.setdefault((1,2,2,3)[g], []).append(f'ds_write_b128 v197, {vr(O+16+4*g,4)} offset:{4096+g*1024}')
                if not tail and u == 14:
                    ex.setdefault(0, []).append(f's_sub_u32 {sCNT}, {sCNT}, 1')
                unit(u, mf, ex)
        a('s_nop 10\n.p2align 4')
        a.label(lloop)
        body(False)
        a(f's_cmp_lg_u32 {sCNT}, 0\ns_cbranch_scc1 {lloop}')
        body(True)
        a('s_setprio 3')
        a(mC(15, 3, 0)); a(mC(15, 3, 1))
        for g in range(4): a(f'ds_write_b128 v198, {vr(O+32+4*g,4)} offset:{8192+g*1024}')
        a(f's_mul_i32 s8, {sWAVE}, 12288\nv_add_u32 v2, s8, v15')
        a('s_waitcnt lgkmcnt(0)\ns_barrier')
        self.stamp(4); self.cstamp(9); self.tstamp(1)
        RD = 112
        for i in range(12): a(f'ds_read_b128 {vr(RD+4*i,4)}, v2 offset:{i*1024}')
        F = O + 48
        for s in range(3):
            a(f's_waitcnt lgkmcnt({8-4*s})')
            for r in range(16): a(f'v_add_f32 v{F+r}, v{F+r}, v{RD+16*s+r}')
        a(f'v_mov_b32 v10, v{F+12}\nv_mov_b32 v11, v{F+12}\nv_permlane32_swap_b32 v10, v11\nv_rcp_f32 v10, v11')
        a(f's_lshl_b32 s8, s6, 1\ns_and_b32 s9, {sWAVE}, 1\ns_add_u32 s8, s8, s9\ns_lshl_b32 s8, s8, 15')
        a(f's_lshl_b32 s9, s7, 1\ns_lshr_b32 s10, {sWAVE}, 1\ns_add_u32 s9, s9, s10\ns_lshl_b32 s9, s9, 11')
        a(f's_add_u32 s8, s8, s9\ns_add_u32 s8, s8, {WS_O}')
        for r in range(16): a(f'v_mul_f32 v{F+r}, v{F+r}, v10')
        for r in range(8): a(f'v_cvt_pk_bf16_f32 v{160+r}, v{F+2*r}, v{F+2*r+1}')
        a('s_mov_b32 exec_lo, 0\nv_mov_b32 v166, 0\nv_mov_b32 v167, 0\ns_mov_b32 exec_lo, -1')
        self.lnopub = self.L('nopub')
        a(f's_mov_b32 s12, 0\ns_cmp_lg_u32 s73, 0\ns_cbranch_scc1 {self.lnopub}')
        a(f'buffer_store_dwordx4 v[160:163], v15, {srd(R_WS)}, s8 offen sc1')
        a(f'buffer_store_dwordx4 v[164:167], v15, {srd(R_WS)}, s8 offen offset:1024 sc1')
        a('s_mov_b32 s9, 0x3f803f80\nv_mov_b32 v12, 0')
        for r in range(8): a(f'v_dot2_f32_bf16 v12, v{160+r}, s9, v12')
        a(f's_mov_b32 s12, {f32(2.0**64)}\nv_mov_b32 v13, 0x207\nv_cmp_nle_f32 vcc, {f32(2.0**-64)}, v11\nv_cmp_nge_f32 s[10:11], s12, v11')
        a('s_or_b64 s[10:11], s[10:11], vcc\nv_cmp_class_f32 vcc, v12, v13\ns_or_b64 s[10:11], s[10:11], vcc')
        a('s_cmp_lg_u64 s[10:11], 0\ns_cselect_b32 s12, 1, 0\ns_andn2_b32 s12, s12, s72')
        a(f's_cbranch_scc1 {self.lnopub}')

    def a_fallback(self):
        a = self.a
        lp = self.L('fbl')
        for lr, lb in self.spins:
            l2 = self.L('kvs'); l3 = self.L('kvs')
            a.label(lr)
            a(f's_mov_b32 s47, {self.SPIN}')
            a.label(l2)
            a(f's_sleep 2\ns_sub_u32 s47, s47, 1\ns_cmp_gt_i32 s47, 0\ns_cbranch_scc0 {lb}')
            a(f's_load_dwordx8 s[16:23], {sp(P_WS)}, s8 glc\ns_load_dwordx8 s[24:31], {sp(P_WS)}, s9 glc\ns_waitcnt lgkmcnt(0)')
            for i in range(8): a(f's_cmp_eq_u64 s[{16+2*i}:{17+2*i}], s[40:41]\ns_cbranch_scc0 {l2}')
            a(f's_branch {lb}')
        a.label(self.lfb)
        a(f's_barrier\ns_mov_b32 s72, 1\ns_mov_b32 s70, 16\ns_mov_b32 s68, s37')
        for js in range(4): a(f'v_mov_b32 v{240+js}, 0xff800000')
        a.label(lp)
        a(f'buffer_load_dwordx4 v[112:115], v15, {srd(R_WS)}, s68 offen sc1\nbuffer_load_dwordx4 v[116:119], v15, {srd(R_WS)}, s68 offen offset:1024 sc1')
        a('s_bitcmp1_b32 s70, 0\ns_cselect_b32 s8, 7, 1\ns_lshl_b32 s8, s8, 12\ns_add_u32 s68, s68, s8\ns_waitcnt vmcnt(0)')
        for js in range(4):
            a(f'v_mfma_f32_32x32x16_bf16 v[144:159], v[112:115], {vr(16+8*js,4)}, 0\nv_mfma_f32_32x32x16_bf16 v[144:159], v[116:119], {vr(20+8*js,4)}, v[144:159]')
            for r in range(0, 16, 2): a(f'v_max3_f32 v{240+js}, v{240+js}, v{144+r}, v{145+r}')
        a(f's_sub_u32 s70, s70, 1\ns_cmp_lg_u32 s70, 0\ns_cbranch_scc1 {lp}')
        a(f's_lshl_b32 s8, {sWAVE}, 8\nv_lshl_add_u32 v244, v0, 2, s8\nv_lshlrev_b32 v245, 2, v0')
        for js in range(4):
            a(f'v_mov_b32 v246, v{240+js}\nv_mov_b32 v247, v{240+js}\nv_permlane32_swap_b32 v246, v247\nv_max_f32 v{240+js}, v246, v247')
            a(f's_add_u32 s8, {sWAVE}, {1+js}\ns_and_b32 s8, s8, 3\ns_lshl_b32 s8, s8, 10\nv_add_u32 v246, s8, v244\nv_add_u32 v{236+js}, s8, v245')
            a(f'ds_write_b32 v246, v{240+js} offset:1024')
        a('s_waitcnt lgkmcnt(0)\ns_barrier')
        for js in range(4):
            a(f'ds_read2st64_b32 v[246:247], v{236+js} offset0:4 offset1:5\nds_read2st64_b32 v[250:251], v{236+js} offset0:6 offset1:7\ns_waitcnt lgkmcnt(0)')
            a('v_max3_f32 v246, v246, v247, v250\nv_max_f32 v246, v246, v251')
            a('v_xor_b32 v246, 0x80000000, v246\nv_and_b32 v247, 0xffff0000, v246\nv_sub_f32 v246, v246, v247\nv_and_b32 v250, 0xffff0000, v246\nv_sub_f32 v246, v246, v250')
            a(f's_mov_b32 exec_lo, 0\nv_lshrrev_b32 v247, 16, v247\nv_or_b32 v{22+8*js}, v247, v250\nv_lshrrev_b32 v{23+8*js}, 16, v246\ns_mov_b32 exec_lo, -1')
        for r in list(range(48, 112)) + list(range(184, 192)) + list(range(224, 232)): a(f'v_mov_b32 v{r}, 0')
        a(f's_barrier\ns_branch {self.lagain}')

    WOB = 23552
    def a_outproj(self):
        a = self.a
        a(f's_cmp_eq_u32 s7, 7\ns_cbranch_scc1 {self.lend}')
        for i in range(7):
            a(f's_add_u32 m0, s71, {self.WOB + 4096*i}\ns_mov_b32 s13, {4*i*7168}\nbuffer_load_dwordx4 v249, {srd(R_B)}, s13 offen lds')
        a(f's_lshr_b32 s12, {sWAVE}, 1\ns_lshl_b32 s8, s12, 6')
        self.w128_frag('v14', 4, 's8')
        a(f's_and_b32 s9, s7, 1\ns_lshl_b32 s13, s12, 1\ns_add_u32 s14, s13, s9\ns_xor_b32 s15, s14, 1\ns_mul_i32 s8, s14, {112*128}\ns_mul_i32 s9, s15, {112*128}\ns_add_u32 s8, s8, {self.WOB}\ns_add_u32 s9, s9, {self.WOB}')
        a('v_add_u32 v12, s9, v14\nv_add_u32 v14, s8, v14\nv_xor_b32 v13, 64, v14\nv_xor_b32 v11, 64, v12')
        a(f's_lshl_b32 s8, s6, 1\ns_and_b32 s9, {sWAVE}, 1\ns_add_u32 s8, s8, s9\ns_lshl_b32 s10, s8, 15\ns_add_u32 s10, s10, {WS_O}')
        a('s_lshl_b32 s15, s15, 13\ns_lshl_b32 s14, s14, 13\ns_add_u32 s15, s15, s10\ns_add_u32 s10, s10, s14')
        XCH = 0
        a(f's_xor_b32 s9, {sWAVE}, 2\ns_lshl_b32 s9, s9, 12\ns_add_u32 s9, s9, {XCH}\nv_add_u32 v5, s9, v15')
        a(f's_lshl_b32 s9, {sWAVE}, 12\ns_add_u32 s9, s9, {XCH}\nv_add_u32 v6, s9, v15')
        a(f's_and_b32 s9, {sWAVE}, 1\ns_mul_i32 s9, s9, {32*144}\ns_lshl_b32 s13, s12, 6\ns_add_u32 s9, s9, s13\ns_add_u32 s9, s9, 16384')
        a('v_lshrrev_b32 v4, 5, v0\nv_and_b32 v9, 31, v0\nv_mul_u32_u24 v9, 144, v9\nv_lshl_add_u32 v9, v4, 4, v9\nv_add_u32 v9, s9, v9')
        a(f'v_lshrrev_b32 v2, 3, v0\nv_and_b32 v3, 7, v0\nv_lshlrev_b32 v3, 4, v3\nv_mul_u32_u24 v10, 144, v2\ns_mul_i32 s9, {sWAVE}, {16*144}\ns_add_u32 s9, s9, 16384\nv_add3_u32 v10, v10, v3, s9')
        a(f'v_mul_u32_u24 v8, 1792, v2\nv_add_u32 v8, v8, v3\ns_lshl_b32 s8, s6, 2\ns_add_u32 s8, s8, {sWAVE}\ns_mul_i32 s8, s8, {16*1792}\ns_lshl_b32 s9, s7, 7\ns_add_u32 s8, s8, s9\ns_add_u32 s37, s8, 896\ns_add_u32 s38, s37, {8*1792}')
        self.tstamp(4)
        self.wait_o()
        self.stamp(6); self.tstamp(5)
        OF = 16
        for i in range(16):
            if i == 4: a('s_add_u32 s10, s10, 4096')
            if i == 12: a('s_add_u32 s15, s15, 4096')
            a(f'buffer_load_dwordx4 {vr(OF+4*i,4)}, v15, {srd(R_WS)}, {"s10" if i < 8 else "s15"} offen offset:{(i%4)*1024} sc1')
        WF = 112
        ACC = (80, 96)
        def rd(i):
            hd, f = (i >> 1) & 3, i & 1
            b = WF + 8 * (i & 3)
            for ct in range(2):
                for t in range(2):
                    a(f'ds_read_b64_tr_b16 {vr(b+4*ct+2*t,2)}, v{(14 if i < 8 else 12)-ct} offset:{(28*hd+16*f+8*t)*128}')
        rd(0); rd(1); rd(2)
        for i in range(16):
            if i + 3 < 16: rd(i + 3)
            left = min(3, 15 - i)
            a(f's_waitcnt vmcnt({15-i}) lgkmcnt({4*left})')
            b = WF + 8 * (i & 3)
            for ct in (1, 0):
                c = '0' if i == 0 else vr(ACC[ct], 16)
                a(f'v_mfma_f32_32x32x16_bf16 {vr(ACC[ct],16)}, {vr(b+4*ct,4)}, {vr(OF+4*i,4)}, {c}')
        self.tstamp(6)
        for g in range(4): a(f'ds_write_b128 v5, {vr(ACC[1]+4*g,4)} offset:{g*1024}')
        a('s_waitcnt lgkmcnt(0)\ns_barrier')
        for g in range(4): a(f'ds_read_b128 {vr(16+4*g,4)}, v6 offset:{g*1024}')
        a('s_waitcnt lgkmcnt(0)')
        for r in range(16): a(f'v_add_f32 v{ACC[0]+r}, v{ACC[0]+r}, v{16+r}')
        for r in range(8): a(f'v_cvt_pk_bf16_f32 v{32+r}, v{ACC[0]+2*r}, v{ACC[0]+2*r+1}')
        a('v_permlane32_swap_b32 v32, v34\nv_permlane32_swap_b32 v33, v35\nv_permlane32_swap_b32 v36, v38\nv_permlane32_swap_b32 v37, v39')
        a('ds_write_b128 v9, v[32:35]\nds_write_b128 v9, v[36:39] offset:32\ns_waitcnt lgkmcnt(0)\ns_barrier')
        a(f'ds_read_b128 v[16:19], v10\nds_read_b128 v[20:23], v10 offset:{8*144}')
        a(f's_waitcnt lgkmcnt(1)\nbuffer_store_dwordx4 v[16:19], v8, {srd(R_OUT)}, s37 offen sc1\ns_waitcnt lgkmcnt(0)\nbuffer_store_dwordx4 v[20:23], v8, {srd(R_OUT)}, s38 offen sc1')
        self.stamp(7); self.tstamp(7)

    UTILE = 0; TSCR = 8192; UB = 61440; KB = 70656; SCR = 15360
    PU, PZ, PT, PB, PW, PE, PK, PKZ, PD, PUT, PA = 232, 233, 234, 235, 236, 240, 243, 244, 245, 246, 251
    def s_ids(self):
        a = self.a
        a(f's_cmp_gt_u32 {sXG}, 5\ns_cselect_b32 s8, 1, 0\ns_sub_u32 s73, {sXG}, s8')
        a(f's_lshl_b32 s8, s73, 6\ns_lshl_b32 s9, {sJ}, 1\ns_add_u32 s74, s8, s9')
        a('v_lshlrev_b32 v15, 4, v0')
        a(f's_lshl_b32 s14, s74, 1\ns_lshr_b32 s10, {sWAVE}, 1\ns_add_u32 s74, s74, s10\ns_and_b32 s9, {sWAVE}, 1')
        a('s_lshl_b32 s8, s74, 9\ns_lshl_b32 s12, s9, 8\ns_add_u32 s8, s8, s12\nv_lshl_add_u32 v2, v0, 2, s8')
    def s_params_load(self):
        a = self.a
        for i, p in enumerate((P_LAR, P_AIM, P_CRE, P_CIM)):
            a(f'global_load_dword v{16+i}, v2, {sp(p)}')
        a(f's_load_dword s71, {sp(P_LDT)}, s14\ns_load_dword s72, {sp(P_DSK)}, s14')
    def s_table_load(self, dst):
        a = self.a
        lp = self.L('pc')
        a('s_getpc_b64 s[12:13]')
        a.label(lp)
        a(f's_add_u32 s12, s12, L_table-{lp}\ns_addc_u32 s13, s13, 0')
        for i in range(4):
            a(f'global_load_dwordx4 {vr(dst+4*i,4)}, v1, s[12:13] offset:{1024*i}')
    def s_kv_addr(self):
        a = self.a
        a(f's_lshr_b32 s7, {sJ}, 1\ns_lshl_b32 s8, {sXG}, 4\ns_add_u32 s7, s7, s8\ns_lshl_b32 s6, {sXG}, 5\ns_add_u32 s6, s6, {sJ}')
        a(f's_lshl_b32 s12, s7, 1\ns_add_u32 s12, s12, s9\ns_mul_i32 s12, s12, {8*896}')
        a(f'v_lshrrev_b32 v7, 3, v0\nv_lshrrev_b32 v8, 4, v0\ns_lshl_b32 s8, s9, 2\nv_add_u32 v8, s8, v8')
        a('v_and_b32 v4, 7, v0\nv_xor_b32 v8, v4, v8\nv_mul_u32_u24 v7, 896, v7\nv_lshl_add_u32 v5, v8, 4, v7\nv_add_u32 v5, s12, v5')
        a(f's_lshl_b32 s11, {sWAVE}, 10\nv_add_u32 v6, s11, v15\ns_add_u32 s15, s11, 28672')
        a(f's_lshr_b32 s8, {sJ}, 1\ns_cmp_ge_u32 s8, 7\ns_cselect_b32 s12, 7, 0\ns_sub_u32 s8, s8, s12\ns_cmp_ge_u32 s8, 7\ns_cselect_b32 s12, 7, 0\ns_sub_u32 s8, s8, s12\ns_lshl_b32 s70, s8, 12')
    def kv_srds(self):
        a = self.a
        self.mk_srd(R_X, P_X, X_BYTES)
        a(f's_bitcmp1_b32 s6, 0\ns_cselect_b32 s{R_W}, s{P_WV}, s{P_WK}\ns_cselect_b32 s{R_W+1}, s{P_WV+1}, s{P_WK+1}')
        a(f's_mov_b32 s{R_W+2}, {WK_BYTES}\ns_mov_b32 s{R_W+3}, 0x20000')
    def s_kv_load(self):
        a = self.a
        a(f's_mul_i32 s12, s10, {3*128}\ns_mul_i32 s13, s10, {3*2048}\ns_lshl_b32 s8, s9, 10\ns_add_u32 s13, s13, s8')
        for i in range(4):
            a(f's_add_u32 m0, s13, {2048*i}\ns_nop 0\nbuffer_load_dwordx4 v5, {srd(R_X)}, s12 offen lds')
            if i < 3: a('s_add_u32 s12, s12, 128')
        for i in range(7):
            if i: a('s_add_u32 s70, s70, 4096\ns_cmp_eq_u32 s70, 28672\ns_cselect_b32 s70, 0, s70')
            a(f's_add_u32 m0, s15, s70\ns_nop 0\nbuffer_load_dwordx4 v6, {srd(R_W)}, s70 offen lds')
    def s_kv_addr2(self):
        a = self.a
        a('s_and_b32 s68, s7, 1')
        a('v_and_b32 v2, 15, v0\nv_bfe_u32 v4, v2, 1, 3\nv_lshrrev_b32 v9, 4, v0\nv_xor_b32 v4, v4, v9\nv_lshlrev_b32 v3, 7, v2')
        a('v_lshl_add_u32 v10, v4, 4, v3\nv_xor_b32 v4, 4, v4\nv_lshl_add_u32 v11, v4, 4, v3')
        a('v_bfe_u32 v3, v0, 2, 2\nv_lshl_add_u32 v3, v9, 3, v3\nv_mul_u32_u24 v3, 56, v3\nv_and_b32 v4, 3, v0\nv_lshl_add_u32 v3, v4, 3, v3')
        a(f's_lshl_b32 s8, {sWAVE}, 5\ns_add_u32 s8, s8, 28672\nv_add_u32 v12, s8, v3')
        a('v_lshlrev_b32 v13, 4, v2\nv_bfe_u32 v3, v0, 4, 1\nv_lshl_add_u32 v13, v3, 9, v13')
        a(f's_bitcmp1_b32 s6, 0\ns_cselect_b32 s12, s68, {sWAVE}\ns_cselect_b32 s13, {sWAVE}, s68\ns_cselect_b32 s8, 2048, 0')
        a(f's_lshl_b32 s12, s12, 10\ns_lshl_b32 s13, s13, 8\ns_add_u32 s12, s12, s13\ns_add_u32 s12, s12, s8\ns_lshr_b32 s13, s7, 1\ns_lshl_b32 s13, s13, 12\ns_add_u32 s12, s12, s13\ns_add_u32 s69, s12, {WS_KV}')
        a(f's_lshl_b32 s8, s6, 2\ns_add_u32 s68, s8, {WS_FKV}\nv_lshlrev_b32 v14, 10, v0')
    def s_kv(self):
        a = self.a
        lv = self.L('kvV'); lst = self.L('kvst')
        ACC = 100
        XF = lambda ks: vr(56 + 8*(ks % 5), 4); WF = lambda ks, t=None: vr(60 + 8*(ks % 5), 4) if t is None else vr(60 + 8*(ks % 5) + 2*t, 2)
        def rdk(ks):
            a(f'ds_read_b128 {XF(ks)}, v{10+(ks&1)} offset:{(ks>>1)*2048}')
            for t in range(2):
                a(f'ds_read_b64_tr_b16 {WF(ks,t)}, v12 offset:{(32*ks+4*t)*56}')
        for ks in range(4): rdk(ks)
        a('s_bitcmp1_b32 s6, 0')
        def chain(swap):
            for ks in range(14):
                if ks + 4 < 14: rdk(ks + 4)
                a(f's_waitcnt lgkmcnt({3*min(4, 13-ks)})')
                A, B = (XF(ks), WF(ks)) if swap else (WF(ks), XF(ks))
                c = '0' if ks == 0 else vr(ACC, 4)
                a(f'v_mfma_f32_16x16x32_bf16 {vr(ACC,4)}, {A}, {B}, {c}')
        a(f's_cbranch_scc1 {lv}')
        chain(False)
        a(f's_cmp_eq_u32 {sWAVE}, 1\ns_cselect_b32 s12, 0xffff0000, 0')
        for r in range(4): a(f'v_mul_f32 v{ACC+r}, {f32(CSCALE)}, v{ACC+r}')
        a(f'v_cvt_pk_bf16_f32 v96, v{ACC}, v{ACC+1}\nv_cvt_pk_bf16_f32 v97, v{ACC+2}, v{ACC+3}')
        a('s_mov_b32 exec_lo, 0\ns_mov_b32 exec_hi, s12\nv_mov_b32 v96, 0x3f803f80\nv_mov_b32 v97, 0x00003f80\ns_mov_b64 exec, -1')
        a(f's_branch {lst}')
        a.label(lv)
        chain(True)
        a(f's_cmp_eq_u32 {sWAVE}, 1\ns_cselect_b32 s12, 0xe000e000, 0\ns_cselect_b32 s13, 0x10001000, 0')
        a(f'v_cvt_pk_bf16_f32 v96, v{ACC}, v{ACC+1}\nv_cvt_pk_bf16_f32 v97, v{ACC+2}, v{ACC+3}')
        a('s_mov_b32 exec_lo, s12\ns_mov_b32 exec_hi, s12\nv_mov_b32 v96, 0\nv_mov_b32 v97, 0')
        a('s_mov_b32 exec_lo, s13\ns_mov_b32 exec_hi, s13\nv_mov_b32 v96, 0x3f803f80\nv_mov_b32 v97, 0x3f803f80\ns_mov_b64 exec, -1')
        a.label(lst)
        a('s_nop 1\nv_permlane32_swap_b32 v96, v98\nv_permlane32_swap_b32 v97, v99\ns_mov_b32 exec_hi, 0')
        a(f'buffer_store_dwordx4 v[96:99], v13, {srd(R_WS)}, s69 offen sc1\ns_mov_b32 exec_hi, -1')
    def s_kv_phase(self):
        a = self.a
        l3 = self.L('kvb'); l4 = self.L('kvf')
        a(f'v_mov_b32 v33, {sNONCE}\ns_waitcnt vmcnt(0)\ns_barrier')
        self.stamp(1); self.estamp(4)
        a(f's_cmp_ge_u32 {sWAVE}, 2\ns_cbranch_scc1 {l3}')
        self.s_kv()
        a('s_waitcnt vmcnt(0)')
        a.label(l3)
        a(f's_barrier\ns_cmp_lg_u32 {sWAVE}, 0\ns_cbranch_scc1 {l4}')
        a(f's_mov_b64 exec, {hex((1 << NREP) - 1)}\nbuffer_store_dword v33, v14, {srd(R_WS)}, s68 offen sc1\ns_mov_b64 exec, -1')
        a.label(l4)
        self.stamp(2); self.estamp(5)

    def s_addr_all(self):
        a = self.a
        PU, PZ, PT, PB, PW, PE, PK, PKZ, PD, PUT, PA = [f'v{x}' if not isinstance(x, str) else x for x in (self.PU, self.PZ, self.PT, self.PB, 'x', 'x', self.PK, self.PKZ, self.PD, 'x', 'x')]
        a(f's_lshl_b32 s8, {sJ}, 6\ns_lshl_b32 s12, {sWAVE}, 4\ns_add_u32 s8, s8, s12\ns_mul_i32 s8, s8, 896\ns_lshl_b32 s12, s73, 7\ns_add_u32 s8, s8, s12')
        a('v_and_b32 v20, 7, v0\nv_lshl_add_u32 v7, v20, 4, v7\nv_add_u32 v7, s8, v7')
        a(f's_lshl_b32 s8, s74, 12\ns_lshl_b32 s12, s9, 11\ns_add_u32 s8, s8, s12\ns_add_u32 s14, s8, {WS_UT}\ns_add_u32 s92, s8, {WS_YT}')
        a(f's_mul_i32 s11, s10, 4608\ns_add_u32 s11, s11, {self.UB}\ns_mul_i32 s8, s10, 4160\ns_add_u32 s75, s8, {self.KB}')
        a(f's_add_u32 s12, s12, s75\nv_lshl_add_u32 {PK}, v0, 5, s12\nv_lshl_add_u32 {PKZ}, v0, 2, s75')
        a('v_bfe_u32 v2, v0, 1, 2\nv_mul_u32_u24 v2, 1152, v2\nv_lshrrev_b32 v21, 3, v0\nv_lshl_add_u32 v2, v21, 5, v2\nv_and_b32 v4, 1, v0\nv_lshl_add_u32 v2, v4, 4, v2')
        a(f's_lshl_b32 s12, s9, 9\ns_add_u32 s12, s12, s11\nv_add_u32 {PU}, s12, v2')
        a(f'v_mul_u32_u24 v3, 1152, v21\nv_lshl_add_u32 v3, v20, 4, v3\nv_add_u32 {PZ}, s11, v3')
        a('v_lshlrev_b32 v4, 4, v4\nv_bfe_u32 v8, v0, 1, 1\nv_lshl_add_u32 v4, v8, 2, v4\nv_bfe_u32 v8, v0, 4, 1\nv_lshl_add_u32 v4, v8, 3, v4')
        a('v_lshrrev_b32 v22, 5, v0\nv_lshlrev_b32 v8, 5, v22\nv_sub_u32 v4, v4, v8\nv_bfe_u32 v23, v0, 2, 2\nv_lshlrev_b32 v8, 2, v23\nv_sub_u32 v4, v4, v8')
        a(f's_add_u32 s12, s75, 96\nv_lshl_add_u32 {PT}, v4, 1, s12')
        a(f'v_bfe_u32 v4, v0, 3, 2\nv_mul_u32_u24 v3, 1152, v4\nv_add_u32 v8, v20, v22\nv_lshl_add_u32 v3, v8, 4, v3\ns_add_u32 s12, s11, 16\nv_add_u32 {PB}, s12, v3')
        a('v_lshrrev_b32 v8, 1, v20\nv_and_b32 v3, 1, v20\nv_lshl_or_b32 v8, v3, 2, v8\nv_lshlrev_b32 v3, 2, v22\nv_xor_b32 v8, v8, v3')
        a('v_lshlrev_b32 v4, 13, v4\nv_lshl_add_u32 v4, v20, 7, v4\ns_lshl_b32 s13, s10, 15\nv_add_u32 v4, s13, v4')
        for g in range(4): a(f'v_xor_b32 v3, {g}, v8\nv_lshl_add_u32 v{self.PW+g}, v3, 4, v4')
        a('s_lshl_b32 s12, s9, 7\nv_add_u32 v2, s12, v0\nv_lshrrev_b32 v3, 2, v2\nv_and_b32 v4, 3, v2\nv_lshlrev_b32 v4, 1, v4')
        def fa(dst, av): a(f'v_bfe_u32 {dst}, {av}, 1, 2\nv_and_b32 v8, 1, {av}\nv_lshl_or_b32 {dst}, v8, 2, {dst}')
        fa('v9', 'v3')
        a('v_xor_b32 v9, v9, v4\nv_lshlrev_b32 v2, 7, v3\nv_add_u32 v2, s13, v2')
        a(f'v_lshl_add_u32 v{self.PE}, v9, 4, v2\nv_xor_b32 v9, 1, v9\nv_lshl_add_u32 v{self.PE+1}, v9, 4, v2')
        a('v_lshl_add_u32 v4, v3, 3, v4\nv_add_u32 v4, -1, v4\nv_ashrrev_i32 v3, 3, v4\nv_and_b32 v4, 7, v4')
        fa('v9', 'v3')
        a(f'v_xor_b32 v9, v9, v4\nv_lshlrev_b32 v2, 7, v3\nv_add_u32 v2, s13, v2\nv_lshl_add_u32 v2, v9, 4, v2\nv_add_u32 v{self.PE+2}, 8192, v2')
        a('s_cmp_eq_u32 s9, 0\ns_cselect_b32 s93, 1, 0')
        U = self.PUT
        a(f'v_lshrrev_b32 v3, 4, v0\nv_lshl_add_u32 v2, v23, 2, v3\nv_lshlrev_b32 v2, 7, v2\nv_and_b32 v9, 3, v0\nv_lshl_add_u32 v2, v9, 3, v2')
        a(f's_lshl_b32 s8, {sWAVE}, 5\ns_add_u32 s8, s8, {self.UTILE}\nv_add_u32 v{U}, s8, v2')
        a(f's_mul_i32 s12, {sWAVE}, 2304\ns_add_u32 s12, s12, {self.TSCR}')
        a(f'v_and_b32 v4, 15, v0\nv_mul_u32_u24 v4, 144, v4\nv_lshl_add_u32 v4, v3, 5, v4\nv_add_u32 v{U+1}, s12, v4')
        a(f'v_lshlrev_b32 v4, 4, v20\nv_mul_u32_u24 v2, 144, v21\nv_add3_u32 v{U+2}, v2, v4, s12')
        a(f's_lshl_b32 s8, s73, 2\ns_add_u32 s8, s8, {sWAVE}\ns_lshl_b32 s8, s8, 16\ns_lshl_b32 s12, {sJ}, 7\ns_add_u32 s8, s8, s12\ns_add_u32 s8, s8, {WS_UT}')
        a(f'v_lshl_add_u32 v{self.PA}, v21, 12, v4\nv_add_u32 v{U+3}, s8, v{self.PA}\nv_add_u32 v{U+4}, {8*4096}, v{U+3}')
        a(f's_lshl_b32 s36, s73, 9\ns_add_u32 s36, s36, {WS_FU}\ns_lshl_b32 s8, {sJ}, 2\ns_add_u32 s35, s36, s8')
        A = self.PA
        a(f's_lshl_b32 s8, s73, 6\ns_lshl_b32 s13, {sWAVE}, 3\ns_add_u32 s8, s8, s13\ns_lshl_b32 s8, s8, 12\ns_add_u32 s8, s8, s12\ns_add_u32 s37, s8, {WS_YT}\ns_add_u32 s38, s37, {32*4096}')
        a(f'v_add_u32 v2, s13, v21\nv_mul_u32_u24 v2, 160, v2\nv_add_u32 v{A+1}, v2, v4')
        a(f'v_lshl_add_u32 v2, v3, 3, v23\nv_mul_u32_u24 v2, 160, v2\nv_lshl_add_u32 v2, v9, 3, v2\ns_lshl_b32 s8, {sWAVE}, 5\nv_add_u32 v{A+2}, s8, v2')
        a(f's_lshl_b32 s8, {sJ}, 2\ns_add_u32 s8, s8, {sWAVE}\ns_mul_i32 s39, s8, {16*1792}\ns_lshl_b32 s8, s73, 7\ns_add_u32 s39, s39, s8\ns_add_u32 s94, s39, {8*1792}')
        a(f'v_mul_u32_u24 v2, 1792, v21\nv_add_u32 v{A+3}, v2, v4')
        a(f'v_and_b32 v2, 15, v0\nv_mul_u32_u24 v2, 144, v2\nv_lshl_add_u32 v2, v3, 4, v2\ns_mul_i32 s8, {sWAVE}, 2304\ns_add_u32 s8, s8, {self.TSCR + 4096}\nv_add_u32 v{A+4}, s8, v2')
        a(f's_mul_i32 s11, {sWAVE}, {self.SCR}\nv_mul_u32_u24 v2, 240, v0\nv_add_u32 v2, s11, v2')
        a(f'v_lshl_add_u32 v3, v23, 1, v22\nv_mul_u32_u24 v3, 480, v3\nv_bfe_u32 v8, v0, 4, 1\nv_lshl_add_u32 v3, v8, 5, v3\nv_lshl_add_u32 v3, v9, 3, v3\nv_add_u32 v3, s11, v3')
        a(f'v_and_b32 v4, 31, v0\nv_mul_u32_u24 v4, 144, v4\nv_lshl_add_u32 v4, v22, 4, v4\nv_add_u32 v4, s11, v4')

    def s_kgen(self, mid_r0):
        a = self.a
        RS = 240
        AW, AR, AP = 'v2', 'v3', 'v4'
        a(f's_waitcnt lgkmcnt(0)\ns_add_u32 {sNONCE}, {sNONCE}, 0x9e3779b9\ns_cmp_eq_u32 s10, 1\ns_cselect_b32 s8, 0, 16')
        a('s_lshl_b32 s12, s71, s8\ns_and_b32 s12, s12, 0xffff0000\ns_lshl_b32 s13, s72, s8\ns_and_b32 s72, s13, 0xffff0000')
        a(f'v_mov_b32 v31, s12\nv_mul_f32 v31, {f32(LOG2E)}, v31\nv_exp_f32 v31, v31\nv_mov_b32 v{self.PD}, 0\nv_cvt_pk_bf16_f32 v31, v31, v31\nv_and_b32 v31, 0xffff0000, v31')
        a(f'v_mul_f32 v32, {f32(-LOG2E)}, v31\nv_mul_f32 v30, 0.15915494309189532, v31\nv_add_f32 v31, v31, v31')
        a(f's_mov_b32 exec_lo, s93\ns_mov_b32 exec_hi, 0\nv_mov_b32 v{self.PD}, s72\ns_mov_b64 exec, -1')
        ACC = 40; FR = 56; TB = 120
        W1, W256, W8 = 24, 26, 28
        RR = (120, 176)
        def cmul(z, x, y, conj, t):
            return [f'v_pk_mul_f32 {vr(t,2)}, {vr(x,2)}, {vr(y,2)} op_sel_hi:[1,0]',
                    f'v_pk_fma_f32 {vr(z,2)}, {vr(x,2)}, {vr(y,2)}, {vr(t,2)} op_sel:[1,1,0] op_sel_hi:[0,1,1] {"neg_hi" if conj else "neg_lo"}:[1,0,0]']
        def pack(buf, i, x, y): return [f'v_cvt_pk_bf16_f32 v{buf+i}, v{x}, v{y}', f'v_cvt_pk_bf16_f32 v{buf+4+i}, v{x+1}, v{y+1}']
        def flush(rnd):
            out = []
            for g in range(4): out += [f'ds_write_b128 {AW}, {vr(RR[rnd]+8*g,4)} offset:{16*g}', f'ds_write_b128 {AW}, {vr(RR[rnd]+8*g+4,4)} offset:{64+16*g}']
            for g in range(3): out += [f'ds_write_b128 {AW}, {vr(RR[rnd]+32+8*g,4)} offset:{128+16*g}', f'ds_write_b128 {AW}, {vr(RR[rnd]+32+8*g+4,4)} offset:{176+16*g}']
            return out
        def reads(q):
            qq, part = q >> 1, q & 1
            for t in range(2): a(f'ds_read_b64_tr_b16 {vr(FR+8*q+2*t,2)}, {AR} offset:{(16*qq+t)*RS + 64*part}')
            for t in range(2): a(f'ds_read_b64_tr_b16 {vr(FR+8*q+4+2*t,2)}, {AR} offset:{(16*qq+t)*RS + 128 + 48*part}')
        l1 = self.L('wp'); l2 = self.L('wp')
        a(f's_cmp_ge_u32 {sXG}, 4\ns_cbranch_scc1 {l1}\ns_waitcnt vmcnt(16)\ns_branch {l2}')
        a.label(l1); a('s_waitcnt vmcnt(5)'); a.label(l2)
        self.fstamp(1); self.estamp(3)
        mfma = lambda q, first: f'v_mfma_f32_32x32x16_bf16 {vr(ACC,16)}, {vr(FR+8*q,4)}, {vr(FR+8*q+4,4)}, {"0" if first else vr(ACC,16)}'
        H0, H2, H4, H6, HT, HU, LA, LB, TL, TG = 34, 36, 38, 40, 42, 44, 46, 48, 50, 52
        for rnd in range(2):
            ex = (lambda d, s: f'v_lshlrev_b32 v{d}, 16, v{s}') if rnd == 0 else (lambda d, s: f'v_and_b32 v{d}, 0xffff0000, v{s}')
            setup = [ex(20, 16), ex(21, 17), ex(H0, 18), ex(H0+1, 19),
                     f'v_mul_f32 v20, {f32(LOG2E)}, v20', 'v_exp_f32 v20, v20', 'v_mul_f32 v21, v21, v30', 'v_cvt_pk_bf16_f32 v20, v20, v20', 'v_and_b32 v20, 0xffff0000, v20', 'v_mul_f32 v20, v20, v32',
                     f'v_mul_f32 v{H0}, v{H0}, v31', f'v_mul_f32 v{H0+1}, -v{H0+1}, v31']
            for W, m in ((W1, 1.0), (W256, 256.0), (W8, 8.0)):
                if m == 1.0: setup += ['v_exp_f32 v22, v20', 'v_fract_f32 v23, v21']
                else: setup += [f'v_mul_f32 v22, {f32(m)}, v20', f'v_mul_f32 v23, {f32(m)}, v21', 'v_exp_f32 v22, v22', 'v_fract_f32 v23, v23']
                setup += [f'v_cos_f32 v{W}, v23', f'v_sin_f32 v{W+1}, v23', f'v_mul_f32 v{W}, v{W}, v22', f'v_mul_f32 v{W+1}, v{W+1}, v22']
            for x in setup: a(x)
            PL = [RR[rnd] + 8*g for g in range(4)]; PG = [RR[rnd] + 32 + 8*g for g in range(3)]
            jl = [f'v_cvt_pk_bf16_f32 v{PL[0]}, 1.0, v{W8}', f'v_cvt_pk_bf16_f32 v{PL[0]+4}, 0, v{W8+1}']
            cur = W8
            for b in range(2, 32, 2):
                jl += cmul(LA, cur, W8, False, TL) + cmul(LB, LA, W8, False, TL) + pack(PL[b >> 3], (b & 7) >> 1, LA, LB); cur = LB
            jg = cmul(HT, H0, W1, True, TG) + pack(PG[0], 0, H0, HT)
            jg += cmul(H2, HT, W1, True, TG) + cmul(HT, H2, W1, True, TG) + pack(PG[0], 1, H2, HT)
            jg += cmul(H4, HT, W1, True, TG) + cmul(HT, H4, W1, True, TG) + pack(PG[0], 2, H4, HT)
            jg += cmul(H6, HT, W1, True, TG) + cmul(HT, H6, W1, True, TG) + pack(PG[0], 3, H6, HT)
            jg += cmul(H0, H0, W256, True, TG) + cmul(H2, H2, W256, True, TG) + pack(PG[1], 0, H0, H2)
            jg += cmul(H4, H4, W256, True, TG) + cmul(H6, H6, W256, True, TG) + pack(PG[1], 1, H4, H6)
            jg += cmul(H0, H0, W256, True, TG) + cmul(H4, H4, W256, True, TG) + pack(PG[1], 2, H0, H4)
            jg += cmul(H0, H0, W256, True, TG) + cmul(H4, H4, W256, True, TG) + pack(PG[1], 3, H0, H4)
            jg += cmul(HT, H0, W256, True, TG) + cmul(HU, HT, W256, True, TG) + pack(PG[2], 0, HT, HU)
            jg += cmul(HT, HU, W256, True, TG) + cmul(HU, HT, W256, True, TG) + pack(PG[2], 1, HT, HU)
            jg += cmul(HT, HU, W256, True, TG) + pack(PG[2], 2, HT, HT) + [f'v_mov_b32 v{PG[2]+3}, 0', f'v_mov_b32 v{PG[2]+7}, 0']
            for x in jg: a(x)
            if rnd == 0:
                mid_r0()
                for x in jl: a(x)
            elif not OPT('kvlate'):
                for x in jl: a(x)
                self.late_kv(True)
                for x in flush(0): a(x)
            else:
                fl = flush(0); step = len(jl) // 14
                for i, x in enumerate(jl):
                    a(x)
                    if i % step == step - 1 and fl: a(fl.pop(0))
                for x in fl: a(x)
            self.fstamp(2 + rnd)
        a(f's_mul_i32 s8, s10, {2*self.SCR}\ns_waitcnt vmcnt(0) lgkmcnt(0)')
        for q in range(6): reads(q)
        for k in range(16): a(f'v_add_u32 v{TB+k}, s8, v{104+k}')
        for q in range(6, 8): reads(q)
        a('s_waitcnt lgkmcnt(0)')
        fl = flush(1)
        for q in range(8):
            a(mfma(q, q == 0))
            for x in fl[2*q:2*q+2]: a(x)
        a('s_waitcnt lgkmcnt(0)')
        self.estamp(7)
        for q in range(8):
            reads(q)
            if q >= 3:
                a('s_waitcnt lgkmcnt(12)'); a(mfma(q - 3, False))
        for q in range(5, 8):
            a(f's_waitcnt lgkmcnt({4*(7-q)})'); a(mfma(q, False))
        for g in range(4): a(f'ds_write_b128 {AP}, {vr(ACC+4*g,4)} offset:{32*g}')
        for r in range(4): a(f'v_mov_b32 v{112+r}, 0')
        a('s_waitcnt lgkmcnt(0)\ns_barrier')
        self.fstamp(4)
        G = 56
        for k in range(16): a(f'ds_read2st64_b32 {vr(G+2*k,2)}, v{TB+k} offset1:{self.SCR//256}')
        a(f's_mov_b64 exec, 0xffff\nds_write_b32 v{self.PKZ}, v112\ns_mov_b32 exec_lo, -1\nds_write_b128 v{self.PZ}, v[112:115]\ns_mov_b64 exec, -1')
        for k in range(16):
            if k % 4 == 0: a(f's_waitcnt lgkmcnt({14-k})')
            a(f'v_add_f32 v{G+2*k}, v{G+2*k}, v{G+2*k+1}')
            if k == 0: a(f'v_add_f32 v{G}, v{G}, v{self.PD}')
        for k in range(8): a(f'v_cvt_pk_bf16_f32 v{88+k}, v{G+4*k}, v{G+4*k+2}')
        a(f'ds_write_b128 v{self.PK}, v[88:91] offset:64\nds_write_b128 v{self.PK}, v[92:95] offset:80')
        a(f'v_mov_b32 v113, {sNONCE}\ns_waitcnt lgkmcnt(0)\ns_barrier')
        self.stamp(3)

    def s_u_phase(self):
        a = self.a
        U = self.PUT
        a(f's_lshl_b32 s12, {sWAVE}, 11')
        a(f's_add_u32 m0, s12, {self.UTILE}\ns_mov_b32 s13, {8*896}\nbuffer_load_dwordx4 v7, {srd(R_B)}, 0 offen lds')
        a(f's_add_u32 m0, s12, {self.UTILE + 1024}\ns_nop 0\nbuffer_load_dwordx4 v7, {srd(R_B)}, s13 offen lds')
        a('s_waitcnt vmcnt(0)\ns_barrier')
        for half in range(2):
            for t in range(2):
                a(f'ds_read_b64_tr_b16 {vr(96+4*half+2*t,2)}, v{U} offset:{(32*half+16*t)*128}')
        a(f's_waitcnt lgkmcnt(2)\nds_write_b128 v{U+1}, v[96:99]\ns_waitcnt lgkmcnt(1)\nds_write_b128 v{U+1}, v[100:103] offset:16\ns_waitcnt lgkmcnt(0)')
        a(f'ds_read_b128 v[96:99], v{U+2}\nds_read_b128 v[100:103], v{U+2} offset:{8*144}')
        a(f's_waitcnt lgkmcnt(1)\nbuffer_store_dwordx4 v[96:99], v{U+3}, {srd(R_WS)}, 0 offen sc1')
        a(f's_waitcnt lgkmcnt(0)\nbuffer_store_dwordx4 v[100:103], v{U+4}, {srd(R_WS)}, 0 offen sc1')
        lw = self.L('wu')
        a(f's_waitcnt vmcnt(0)\ns_barrier\ns_cmp_lg_u32 {sWAVE}, 0\ns_cbranch_scc1 {lw}')
        a(f's_mov_b64 exec, 1\nbuffer_store_dword v113, v112, {srd(R_WS)}, s35 offen sc1\ns_mov_b64 exec, -1')
        self.spoll('s36', 32, 8, first_sleep=1)
        a.label(lw)
        a('s_barrier')
        for i in range(2): a(f'buffer_load_dwordx4 {vr(104+4*i,4)}, v15, {srd(R_WS)}, s14 offen offset:{1024*i} sc1')
        a(f's_waitcnt vmcnt(1)\nds_write_b128 v{self.PU}, v[104:107] offset:128\ns_waitcnt vmcnt(0)\nds_write_b128 v{self.PU}, v[108:111] offset:384')
        a('s_waitcnt lgkmcnt(0)')
        self.stamp(4)

    def s_conv(self):
        a = self.a
        self.stamp(5); self.fstamp(5); self.tstamp(1)
        D = 16; BF = (80, 112); TF = (144, 176)
        l1 = self.L('cv1'); lj = self.L('cvj')
        a(f's_cmp_eq_u32 s9, 0\ns_cbranch_scc0 {l1}')
        def variant(tset):
            mmax = max(tset)
            mf = []; reads = []
            seen = set(); started = set()
            for r in range(4):
                pb = r & 1
                for jj in range(mmax + 1):
                    for ti, t in enumerate(tset):
                        if t < jj: continue
                        m = t - jj
                        nb = ('B', r, m); nt = ('T', r, jj)
                        for k in (nt, nb):
                            if k not in seen:
                                seen.add(k)
                                if k[0] == 'B':
                                    reads.append((k, [f'ds_read_b128 {vr(BF[pb]+4*m,4)}, v{self.PB} offset:{32*(4*m - r + 3)}']))
                                else:
                                    mu = 4*jj + r
                                    reads.append((k, [f'ds_read_b64_tr_b16 {vr(TF[pb]+4*jj+2*tt,2)}, v{self.PT} offset:{128*mu + 32*(1-tt)}' for tt in range(2)]))
                        c = vr(D+16*ti, 16) if t in started else '0'
                        started.add(t)
                        mf.append((f'v_mfma_f32_32x32x16_bf16 {vr(D+16*ti,16)}, {vr(TF[pb]+4*jj,4)}, {vr(BF[pb]+4*m,4)}, {c}', (nb, nt), r))
            flat = []; endpos = {}
            for k, xs in reads:
                for x in xs: flat.append((x, k))
                endpos[k] = len(flat)
            issued = 0; done = 0
            lastmf = {}
            for i, (txt, needs, r) in enumerate(mf): lastmf[txt.split(',')[0]] = i
            pend = []; released = False
            for i, (txt, needs, r) in enumerate(mf):
                need = max(endpos[k] for k in needs)
                tgt = min(len(flat), need + (12 if r < 2 else 24))
                step = 0
                while issued < tgt and (issued < need + 12 or step < 2):
                    kk = flat[issued][1]
                    if kk[1] >= r + 2: break
                    a(flat[issued][0]); issued += 1; step += 1
                if issued == len(flat) and not released and r == 3:
                    a('s_waitcnt lgkmcnt(0)\ns_barrier'); done = issued; released = True
                    self.fstamp(6)
                if need > done:
                    n = min(14, issued - need)
                    a(f's_waitcnt lgkmcnt({n})'); done = issued - n
                a(txt)
                if released and pend and pend[0][0] <= i:
                    a(pend.pop(0)[1])
                for ti, t in enumerate(tset):
                    if lastmf[f'v_mfma_f32_32x32x16_bf16 {vr(D+16*ti,16)}'] == i:
                        pend += [(i + 5, f'ds_write_b128 v{self.PW+g}, {vr(D+16*ti+4*g,4)} offset:{t*1024}') for g in range(4)]
            assert released
            for _, x in pend: a(x)
        variant([7, 4, 3, 0]); a(f's_branch {lj}')
        a.label(l1); variant([6, 5, 2, 1])
        a.label(lj)
        a('s_setprio 2\ns_waitcnt lgkmcnt(0)\ns_barrier')
        self.tstamp(2)
        E = self.PE
        for i in range(2):
            Y = [16 + 44*i, 24 + 44*i, 36 + 44*i, 48 + 44*i]
            for ph in range(4):
                o = 4 if ph else 0
                if ph: a(f'ds_read_b128 {vr(Y[ph],4)}, v{E+2} offset:{(ph-1)*8192 + i*2048}')
                a(f'ds_read_b128 {vr(Y[ph]+o,4)}, v{E} offset:{ph*8192 + i*2048}\nds_read_b128 {vr(Y[ph]+o+4,4)}, v{E+1} offset:{ph*8192 + i*2048}')
        for i in range(2):
            Y = [16 + 44*i, 24 + 44*i, 36 + 44*i, 48 + 44*i]
            for ph in range(1, 4):
                a(f's_waitcnt lgkmcnt({min(14, 11*(1-i) + 3*(3-ph))})')
                if i == 0:
                    a('s_mov_b32 exec_lo, s93\ns_mov_b32 exec_hi, 0')
                    for k in range(4 - ph, 4): a(f'v_mov_b32 v{Y[ph]+k}, 0')
                    a('s_mov_b64 exec, -1')
                for k in range(8): a(f'v_add_f32 v{Y[0]+k}, v{Y[0]+k}, v{Y[ph]+4+k-ph}')
            for k in range(4): a(f'v_cvt_pk_bf16_f32 v{104+4*i+k}, v{Y[0]+2*k}, v{Y[0]+2*k+1}')
            a(f'buffer_store_dwordx4 {vr(104+4*i,4)}, v15, {srd(R_WS)}, s92 offen offset:{1024*i} sc1')
        self.stamp(6); self.fstamp(7); self.tstamp(3)

    def s_assemble(self):
        a = self.a
        A = self.PA
        self.wait_y()
        self.tstamp(5)
        a(f'buffer_load_dwordx4 v[16:19], v{A}, {srd(R_WS)}, s37 offen sc1')
        a(f'buffer_load_dwordx4 v[20:23], v{A}, {srd(R_WS)}, s38 offen sc1')
        a(f's_waitcnt vmcnt(1)\nds_write_b128 v{A+1}, v[16:19]\ns_waitcnt vmcnt(0)\nds_write_b128 v{A+1}, v[20:23] offset:{32*160}')
        a('s_waitcnt lgkmcnt(0)\ns_barrier')
        self.tstamp(6)
        for o in range(2):
            for t in range(2): a(f'ds_read_b64_tr_b16 {vr(24+4*o+2*t,2)}, v{A+2} offset:{(32*o+4*t)*160}')
        a(f's_waitcnt lgkmcnt(2)\nds_write_b128 v{A+4}, v[24:27]\ns_waitcnt lgkmcnt(1)\nds_write_b128 v{A+4}, v[28:31] offset:64\ns_waitcnt lgkmcnt(0)')
        a(f'ds_read_b128 v[24:27], v{self.PUT+2} offset:4096\nds_read_b128 v[28:31], v{self.PUT+2} offset:{4096 + 8*144}')
        a(f's_waitcnt lgkmcnt(1)\nbuffer_store_dwordx4 v[24:27], v{A+3}, {srd(R_OUT)}, s39 offen sc1')
        a(f's_waitcnt lgkmcnt(0)\nbuffer_store_dwordx4 v[28:31], v{A+3}, {srd(R_OUT)}, s94 offen sc1')
        self.stamp(7); self.tstamp(7)

    def kernel_head(self, name):
        self.lend = f'L_end_{name}'
        self.a(f'.globl {name}\n.p2align 8\n.type {name},@function')
        self.a.label(name)
    def kernel_tail(self):
        self.a.label(self.lend)
        self.a('s_endpgm')

    SPIN = 1 << 20
    def nonce(self):
        self.a(f's_waitcnt lgkmcnt(0)\ns_add_u32 {sNONCE}, {sNONCE}, 0x9e3779b9')
    def publish_y(self):
        a = self.a; l = self.L('pg')
        a(f's_lshl_b32 s8, s73, 12\ns_add_u32 s8, s8, {WS_PY}\nv_lshl_add_u32 v2, v0, 7, s8\ns_lshl_b32 s8, s73, 8\ns_add_u32 s8, s8, {WS_FY}\nv_writelane_b32 v2, s8, 32')
        a(f's_lshl_b32 s12, {sJ}, 2\nv_mov_b32 v3, {sNONCE}')
        a('s_waitcnt vmcnt(0)\ns_barrier')
        self.tstamp(4)
        a(f's_cmp_lg_u32 {sWAVE}, 0\ns_cbranch_scc1 {l}')
        a(f's_mov_b32 exec_hi, 1\nbuffer_store_dword v3, v2, {srd(R_WS)}, s12 offen sc1\ns_mov_b64 exec, -1')
        a.label(l)
    def poll(self, vaddr, soff, width, mask_lo, mask_hi, sleep, vt=250):
        a = self.a; lp = self.L('poll'); ld = self.L('polled')
        ld_ = {1: 'dword', 2: 'dwordx2', 4: 'dwordx4'}[width]
        a(f's_mov_b32 exec_lo, {hex(mask_lo)}\ns_mov_b32 exec_hi, {hex(mask_hi)}\ns_mov_b32 s47, {self.SPIN}')
        a.label(lp)
        a(f'buffer_load_{ld_} {vr(vt,width)}, {vaddr}, {srd(R_WS)}, {soff} offen sc1\ns_waitcnt vmcnt(0)')
        a(f'v_xor_b32 v{vt}, {sNONCE}, v{vt}')
        for i in range(1, width): a(f'v_xor_b32 v{vt+i}, {sNONCE}, v{vt+i}\nv_or_b32 v{vt}, v{vt}, v{vt+i}')
        a(f'v_cmp_ne_u32 vcc, 0, v{vt}\ns_cbranch_vccz {ld}')
        if sleep: a(f's_sleep {sleep}')
        a(f's_sub_u32 s47, s47, 1\ns_cmp_lg_u32 s47, 0\ns_cbranch_scc1 {lp}')
        a.label(ld)
        a('s_mov_b64 exec, -1')
    def spoll(self, soff, n, sleep, first_sleep=0):
        a = self.a
        a(f's_mov_b32 s40, {sNONCE}\ns_mov_b32 s41, {sNONCE}\ns_mov_b32 s47, {self.SPIN}')
        for c in range(max(1, n // 16)):
            lp = self.L('sp'); lr = self.L('spr'); ld = self.L('spd')
            if c: a(f's_add_u32 {soff}, {soff}, 64')
            elif first_sleep: a(f's_branch {lr}')
            a.label(lp)
            if n == 1:
                a(f's_load_dword s16, {sp(P_WS)}, {soff} glc\ns_waitcnt lgkmcnt(0)\ns_cmp_eq_u32 s16, {sNONCE}\ns_cbranch_scc1 {ld}')
            else:
                a(f's_load_dwordx16 s[16:31], {sp(P_WS)}, {soff} glc\ns_waitcnt lgkmcnt(0)')
                for i in range(7): a(f's_cmp_eq_u64 s[{16+2*i}:{17+2*i}], s[40:41]\ns_cbranch_scc0 {lr}')
                a(f's_cmp_eq_u64 s[30:31], s[40:41]\ns_cbranch_scc1 {ld}')
            a.label(lr)
            if sleep: a(f's_sleep {sleep}')
            a(f's_sub_u32 s47, s47, 1\ns_cmp_gt_i32 s47, 0\ns_cbranch_scc1 {lp}')
            a.label(ld)
    def wait_kv(self, sleep=1):
        a = self.a; l = self.L('wkv')
        a(f's_cmp_lg_u32 {sWAVE}, 0\ns_cbranch_scc1 {l}')
        a(f's_and_b32 s8, s2, {NREP-1}\ns_lshl_b32 s8, s8, 10\ns_add_u32 s8, s8, {WS_FKV}\nv_lshlrev_b32 v2, 4, v0')
        self.poll('v2', 's8', 4, 0xffffffff, 0xffffffff, sleep)
        a.label(l)
        a('s_barrier')
    def wait_y(self):
        a = self.a; l = self.L('wg')
        a(f's_cmp_lg_u32 {sWAVE}, 0\ns_cbranch_scc1 {l}')
        a(f's_lshl_b32 s8, s73, 5\ns_add_u32 s8, s8, {sJ}\ns_lshl_b32 s8, s8, 7\ns_add_u32 s8, s8, {WS_PY}')
        self.spoll('s8', 32, 0)
        a.label(l)
        a('s_barrier')
    def publish_o(self):
        a = self.a
        a(f's_lshl_b32 s8, s6, 10\ns_add_u32 s8, s8, {WS_PO}\nv_lshl_add_u32 v2, v0, 7, s8\ns_lshl_b32 s8, s6, 8\ns_add_u32 s8, s8, {WS_FO}\nv_writelane_b32 v2, s8, 8')
        a(f's_lshl_b32 s9, s7, 4\ns_lshl_b32 s8, {sWAVE}, 2\ns_add_u32 s9, s9, s8')
        self.tstamp(2)
        a(f'v_mov_b32 v3, {sNONCE}\ns_waitcnt vmcnt(0)')
        self.tstamp(3)
        a(f's_mov_b64 exec, 0x1ff\nbuffer_store_dword v3, v2, {srd(R_WS)}, s9 offen sc1\ns_mov_b64 exec, -1')
        a('s_mov_b32 s73, 1')
        a.label(self.lnopub)
        self.stamp(5)
        self.lfb = self.L('fallback')
        a(f's_lshl_b32 s8, {sWAVE}, 4\nv_mov_b32 v2, s8\nv_mov_b32 v3, s12\nds_write_b32 v2, v3 offset:3588\nv_mov_b32 v2, 3588')
        a('s_waitcnt lgkmcnt(0)\ns_barrier')
        a('ds_read2_b32 v[4:5], v2 offset1:4\nds_read2_b32 v[10:11], v2 offset0:8 offset1:12\ns_waitcnt lgkmcnt(0)')
        a(f'v_or3_b32 v4, v4, v5, v10\nv_or_b32 v4, v4, v11\nv_cmp_ne_u32 vcc, 0, v4\ns_cbranch_vccnz {self.lfb}')
    def wait_o(self):
        a = self.a; l = self.L('wo')
        a(f's_cmp_lg_u32 {sWAVE}, 0\ns_cbranch_scc1 {l}')
        a(f's_lshl_b32 s9, s6, 3\ns_add_u32 s9, s9, s7\ns_lshl_b32 s9, s9, 7\ns_add_u32 s9, s9, {WS_PO}')
        self.spoll('s9', 32, 0)
        a.label(l)
        a('s_waitcnt vmcnt(0)\ns_barrier')
    def e_update(self):
        a = self.a; l = self.L('eu')
        a(f's_cmp_lg_u32 s2, 253\ns_cbranch_scc1 {l}')
        a('v_lshrrev_b32 v2, 3, v0\nv_lshlrev_b32 v2, 8, v2\nv_and_b32 v3, 7, v0\nv_lshl_add_u32 v2, v3, 4, v2')
        a(f's_mov_b32 s8, {WS_FY}')
        self.poll('v2', 's8', 4, 0xffffffff, 0x00ffffff, 32)
        a(f's_lshl_b32 s8, {sWAVE}, 11\ns_add_u32 s8, s8, {WS_FO}')
        self.poll('v2', 's8', 4, 0xffffffff, 0xffffffff, 16)
        a(f's_barrier\ns_cmp_lg_u32 {sWAVE}, 0\ns_cbranch_scc1 {l}')
        a(f'v_mov_b32 v2, {WS_E}\nv_mov_b32 v3, {sNONCE}\ns_mov_b64 exec, 1\nbuffer_store_dword v3, v2, {srd(R_WS)}, 0 offen sc1')
        a.label(l)

    def wo_prefetch(self):
        a = self.a
        a(f's_mul_i32 s8, {sJ}, 12544\ns_lshl_b32 s9, {sWAVE}, 10\ns_add_u32 s8, s8, s9')
        for i in range(4):
            a(f'buffer_load_dwordx4 v[240:243], v15, {srd(R_B)}, s8 offen')
            if i < 3: a('s_add_u32 s8, s8, 4096')
    def build_fused(self):
        a = self.a
        kn = NAME + '_kernel'
        self.kernel_head(kn)
        if OPT('empty'): a('s_endpgm')
        self.prologue(512)
        la = self.L('roleA'); lidle = self.L('idle'); lnopf = self.L('nopf'); lnz = self.L('nonce')
        a(f's_cmp_ge_u32 s2, 256\ns_cbranch_scc1 {la}')
        if OPT('qonly'): a('s_endpgm')
        a('s_setprio 3')
        self.s_ids(); self.s_kv_addr()
        self.after_kernarg()
        lq = self.L('pr'); lq2 = self.L('pr'); lq3 = self.L('pr')
        a(f's_cmp_eq_u32 {sXG}, 5\ns_cbranch_scc1 {lidle}')
        self.s_params_load()
        self.kv_srds()
        a(f's_cmp_ge_u32 {sXG}, 4\ns_cbranch_scc1 {lq}')
        self.s_kv_load()
        a.label(lq)
        self.mk_srd(R_B, P_U, X_BYTES); self.mk_srd(R_OUT, P_OUT, OUT_BYTES)
        self.code_prefetch(kn)
        a('s_lshl_b32 s8, s9, 12\nv_add_u32 v1, s8, v15')
        self.s_table_load(104)
        self.s_kv_addr2(); self.s_addr_all()
        def mid_r0():
            a(f's_cmp_ge_u32 {sXG}, 4\ns_cbranch_scc1 {lq2}')
            self.s_kv_phase()
            a.label(lq2)
            a('s_setprio 2' if not OPT('shi') else 's_setprio 3')
        def late_kv(hold):
            a(f's_cmp_lt_u32 {sXG}, 4\ns_cbranch_scc1 {lq3}')
            if hold and not OPT('kvnohold'):
                a(f's_lshl_b32 s8, s2, 8\ns_add_u32 s8, s8, {WS_FA}')
                self.spoll('s8', 1, 1)
            self.s_kv_load()
            self.s_kv_phase()
            a.label(lq3)
        self.late_kv = late_kv
        self.s_kgen(mid_r0)
        if OPT('kvlate'): late_kv(False)
        self.s_u_phase()
        a('s_setprio 0')
        if not OPT('notrig') and not OPT('noA'):
            lt = self.L('trig')
            a(f's_cmp_lg_u32 {sWAVE}, 0\ns_cbranch_scc1 {lt}\ns_lshl_b32 s8, s2, 8\ns_add_u32 s8, s8, {WS_FA + 4}')
            self.spoll('s8', 1, 2)
            a.label(lt)
        a('s_barrier')
        self.s_conv()
        self.publish_y()
        self.s_assemble()
        self.stamp_flush(8)
        a('s_endpgm')
        a.label(lidle)
        self.s_kv_addr2()
        self.code_prefetch(kn)
        self.mk_srd(R_B, P_WO, WQ_BYTES)
        self.kv_srds()
        self.nonce()
        if not OPT('noA'):
            a(f's_lshl_b32 s8, s2, 8\ns_add_u32 s8, s8, {WS_FA}')
            self.spoll('s8', 1, 1)
        self.s_kv_load()
        self.s_kv_phase()
        self.wo_prefetch()
        if not OPT('noA'):
            self.e_update()
        else:
            a(f'v_mov_b32 v2, {WS_E}\nv_mov_b32 v3, {sNONCE}\ns_cmp_lg_u32 s2, 253\ns_cbranch_scc1 {self.lend}\n' + 's_sleep 127\n' * 6 + f'buffer_store_dword v3, v2, {srd(R_WS)}, 0 offen sc1')
        a('s_endpgm')
        a.label(la)
        if OPT('noA'): a('s_endpgm')
        a('s_setprio 3')
        self.a_qproj()
        if OPT('qonly'):
            self.stamp_flush(10); a('s_endpgm')
        a('s_setprio 1' if not OPT('ahigh') else 's_setprio 3')
        self.a_attn(); self.publish_o(); self.a_outproj(); self.stamp_flush(10)
        a('s_endpgm')
        self.a_fallback()
        self.kernel_tail()
        return [kn], [512]
    def code_prefetch(self, kn):
        a = self.a
        lp = self.L('pc')
        a('s_getpc_b64 s[12:13]'); a.label(lp)
        a(f's_add_u32 s12, s12, {kn}-{lp}\ns_addc_u32 s13, s13, -1')
        a(f's_lshl_b32 s8, {sJ}, 2\ns_add_u32 s8, s8, {sWAVE}\ns_mul_i32 s8, s8, 320\nv_mul_u32_u24 v9, 5, v0\nv_add_u32 v9, s8, v9\nv_and_b32 v9, -4, v9\nv_min_u32 v9, L_table-4-{kn}, v9')
        a('global_load_dword v55, v9, s[12:13]' if not OPT('nocpf') else f'global_load_dword v55, v15, {sp(P_LAR)}')
    def nonce_a(self):
        self.a(f's_add_u32 {sNONCE}, {sNONCE}, 0x9e3779b9')

def table():
    import numpy as np
    def rne_bf16(j):
        u = struct.unpack('<I', struct.pack('<f', float(j)))[0]
        u = (u + 0x7fff + ((u >> 16) & 1)) & 0xffff0000
        return int(struct.unpack('<f', struct.pack('<I', u))[0])
    hi = [0,1,2,3,4,5,6,7, 256,258,260,262, 512,516,768,772, 1024,1280,1536,1792, 2048]
    out = []
    for j in range(2048):
        p = rne_bf16(j)
        b = (p >> 3) & 31
        out.append(hi.index(p - 8 * b) * 144 + 4 * b)
    lin = []
    for mh in range(2):
        for i in range(4):
            for lane in range(64):
                lin += out[16*(64*mh+lane)+4*i:16*(64*mh+lane)+4*i+4]
    return lin

def main():
    mode = sys.argv[1]; outp = sys.argv[2]; stamps = len(sys.argv) > 3 and sys.argv[3] == 'stamps'
    g = Gen(mode, stamps)
    names, grids = g.build_multi() if mode == 'multi' else g.build_fused()
    body = g.a.finalize(verbose='-v' in sys.argv)
    head = open('cdna_kernels/' + NAME + '.s.ref').read().split('; Override launch geometry')[0]
    txt = head
    if mode == 'multi':
        for n, gr in zip(names, grids): txt += f'; @launch kernel={n} grid=({gr},1,1) block=(256,1,1) lds=81920\n'
    else:
        txt += f'; @launch grid=({grids[0]},1,1) block=(256,1,1) lds=81920\n'
    txt += '.amdgcn_target "amdgcn-amd-amdhsa--gfx950"\n.text\n' + body
    txt += '.p2align 6\n.type L_table,@object\nL_table:\n'
    t = table()
    for i in range(0, 2048, 16): txt += '.long ' + ','.join(str(x) for x in t[i:i+16]) + '\n'
    txt += '.section .rodata,"a"\n'
    for n in names:
        txt += f'''.p2align 6
.amdhsa_kernel {n}
  .amdhsa_next_free_vgpr 256
  .amdhsa_next_free_sgpr 100
  .amdhsa_accum_offset 256
  .amdhsa_group_segment_fixed_size 0
  .amdhsa_kernarg_size 120
  .amdhsa_user_sgpr_count 2
  .amdhsa_user_sgpr_kernarg_segment_ptr 1
  .amdhsa_system_sgpr_workgroup_id_x 1
.end_amdhsa_kernel
'''
    open(outp, 'w').write(txt)
    print('written', outp, 'nops inserted', g.a.n_nops, 'lines', len(g.a.lines))

if __name__ == '__main__':
    main()
```

```python
import sys, struct, math
from asmdsl import Asm

NAME = 'concat_heads__ssm_conv_s4d__grouped_kv_mqa__prompt'
X_BYTES = 2048 * 896; WQ_BYTES = 448 * 896; WK_BYTES = 448 * 56; OUT_BYTES = 2048 * 1792
WS_E = 0; WS_FKV = 0x1000; WS_FU = 0x9000; WS_FY = 0xA000; WS_FO = 0xB000
WS_FA = 0x50000; WS_PO = 0x60000; WS_PY = 0x70000; WS_KV = 0x10000; WS_O = 0x100000; WS_UT = 0x300000; WS_YT = 0x500000; WS_ST = 0x700000; WS_BYTES = 0x800000
NREP = 32
def f32(x): return '0x%08x' % struct.unpack('<I', struct.pack('<f', x))[0]
LOG2E = math.log2(math.e)
CSCALE = LOG2E / math.sqrt(28.0)

sWAVE = 's3'; sXG = 's4'; sJ = 's5'
P_U, P_LAR, P_AIM, P_CRE, P_CIM, P_LDT, P_DSK, P_X = [16 + 2 * i for i in range(8)]
P_WQ, P_WK, P_WV, P_WO = 32, 34, 36, 38
P_OUT, P_DBG, P_WS = 40, 42, 44
sNONCE = 's46'
R_X = 48; R_W = 52; R_WS = 56; R_OUT = 60; R_B = 64
def srd(r): return f's[{r}:{r+3}]'
def sp(r): return f's[{r}:{r+1}]'
def vr(a, n): return f'v[{a}:{a+n-1}]' if n > 1 else f'v{a}'

def OPT(x): return x in sys.argv
OSP = ' nt' if OPT('ont') else ' sc1' if OPT('osc1') else ' sc0 sc1' if OPT('osc01') else ''
class Gen:
    def __init__(self, mode, stamps=False):
        self.a = Asm(); self.mode = mode; self.stamps = stamps; self.uid = 0
    def L(self, base):
        self.uid += 1
        return f'L_{base}_{self.uid}'
    def mk_srd(self, r, p, nbytes):
        if r == R_OUT and OPT('nostore'): nbytes = 16
        if r == R_WS and OPT('wsbig'): nbytes = 0x10000000
        self.a(f's_mov_b32 s{r}, s{p}\ns_mov_b32 s{r+1}, s{p+1}\ns_mov_b32 s{r+2}, {hex(nbytes)}\ns_mov_b32 s{r+3}, 0x20000')
    def stamp(self, i):
        if self.stamps and not ((OPT('early') or OPT('sfine') or OPT('tail') or OPT('qst') or OPT('ast')) and i > 0):
            self.a(f's_memrealtime s[{76+2*i}:{77+2*i}]')
    def fstamp(self, i):
        if self.stamps and OPT('sfine'):
            self.a(f's_memrealtime s[{76+2*i}:{77+2*i}]')
    def tstamp(self, i):
        if self.stamps and OPT('tail'):
            self.a(f's_memrealtime s[{76+2*i}:{77+2*i}]')
    def qstamp(self, i):
        if self.stamps and OPT('qst'):
            self.a(f's_memrealtime s[{76+2*i}:{77+2*i}]')
    def astamp(self, i):
        if self.stamps and OPT('ast'):
            self.a(f'{"s_memtime" if OPT("cyc") else "s_memrealtime"} s[{76+2*i}:{77+2*i}]')
    def estamp(self, i):
        if self.stamps and OPT('early'):
            self.a(f's_memrealtime s[{76+2*i}:{77+2*i}]')
    def cstamp(self, i):
        if self.stamps:
            self.a(f's_memtime s[{76+2*i}:{77+2*i}]')
    def stamp_flush(self, n):
        if not self.stamps: return
        a = self.a
        a('s_waitcnt lgkmcnt(0)')
        if OPT('dbgst'):
            l = self.L('dbg')
            a(f's_cmp_lg_u32 {sWAVE}, 0\ns_cbranch_scc1 {l}')
            self.mk_srd(R_X, P_DBG, 256)
            a('v_mov_b32 v2, 0')
            isA = n == 10
            for i in range(8):
                if i == 0 and isA: a('s_not_b32 s6, s76\nv_writelane_b32 v2, s6, 0')
                else: a(f'v_writelane_b32 v2, s{76+2*i}, {i}')
            a(f'v_lshlrev_b32 v1, 2, v0\nv_add_u32 v1, {0 if isA else 32}, v1\ns_mov_b64 exec, 0xff')
            a(f'buffer_atomic_umax v2, v1, {srd(R_X)}, 0 offen\ns_mov_b64 exec, -1')
            a.label(l)
            return
        a(f's_lshl_b32 s6, s2, 2\ns_add_u32 s6, s6, {sWAVE}\ns_lshl_b32 s6, s6, 6\ns_add_u32 s6, s6, {WS_ST}')
        a('v_mov_b32 v1, s6')
        for i in range(n):
            a(f'v_mov_b32 v2, s{76+2*i}\nbuffer_store_dword v2, v1, {srd(R_WS)}, 0 offen offset:{4*i}')
        a('s_getreg_b32 s7, hwreg(HW_REG_XCC_ID)\nv_mov_b32 v2, s7')
        a(f'buffer_store_dword v2, v1, {srd(R_WS)}, 0 offen offset:60')

    def prologue(self, nwg):
        a = self.a
        if self.stamps:
            for i in range(1, 10): a(f's_mov_b64 s[{76+2*i}:{77+2*i}], 0')
        self.stamp(0)
        a(f's_cmp_ge_u32 s2, {nwg}\ns_cbranch_scc1 {self.lend}')
        a('s_load_dwordx16 s[16:31], s[0:1], 0\ns_load_dwordx8 s[32:39], s[0:1], 64')
        a('s_load_dwordx4 s[40:43], s[0:1], 96\ns_load_dwordx2 s[44:45], s[0:1], 112')
        a('v_lshrrev_b32 v1, 6, v0\nv_and_b32 v0, 63, v0')
        a(f's_and_b32 {sXG}, s2, 7\ns_bfe_u32 {sJ}, s2, 0x50003')
        a(f'v_readfirstlane_b32 {sWAVE}, v1')

    def after_kernarg(self):
        a = self.a
        self.estamp(1)
        a('s_waitcnt lgkmcnt(0)')
        self.estamp(2)
        if self.mode == 'fused':
            a(f's_load_dword {sNONCE}, {sp(P_WS)}, {WS_E}')
        self.mk_srd(R_WS, P_WS, WS_BYTES)

    def row7_addr(self, v0, v1, tmp, rowstride):
        a = self.a
        for v, add in ((v0, 0), (v1, 64)):
            if add: a(f'v_add_u32 {tmp}, {add}, v0')
            else: a(f'v_mov_b32 {tmp}, v0')
            a(f'v_mul_u32_u24 {v}, 147, {tmp}\nv_lshrrev_b32 {v}, 10, {v}')
            a(f'v_mul_u32_u24 {v}, {rowstride - 112}, {v}')
            a(f'v_lshl_add_u32 {v}, {tmp}, 4, {v}')

    def w128_src(self):
        a = self.a
        a(f's_lshl_b32 s8, {sWAVE}, 4\ns_mul_i32 s9, s8, 896\ns_mul_i32 s11, s7, 112\ns_add_u32 s9, s9, s11')
        a('v_lshrrev_b32 v2, 3, v0\nv_mul_u32_u24 v2, 896, v2\nv_bfe_u32 v3, v0, 4, 1\nv_lshlrev_b32 v3, 2, v3\nv_and_b32 v4, 7, v0\nv_xor_b32 v3, v3, v4')
        a('v_lshl_add_u32 v7, v3, 4, v2\nv_add_u32 v7, s9, v7\nv_add_u32 v8, 7168, v7')
    def w128_frag(self, dst, rowmul_h, sbyte):
        a = self.a
        a(f'v_bfe_u32 v2, v0, 4, 1\nv_lshlrev_b32 v2, 5, v2\nv_and_b32 v3, 3, v0\nv_lshl_add_u32 v2, v3, 3, v2\nv_add_u32 v2, {sbyte}, v2')
        a(f'v_bfe_u32 v3, v0, 3, 1\nv_lshlrev_b32 v3, 6, v3\nv_xor_b32 v2, v2, v3')
        a(f'v_lshrrev_b32 v3, 5, v0\nv_mul_u32_u24 v3, {rowmul_h}, v3\nv_bfe_u32 v4, v0, 2, 2\nv_add_u32 v3, v3, v4\nv_lshl_add_u32 {dst}, v3, 7, v2')
    def a_qproj_addr(self):
        a = self.a
        QX = 32768
        self.mk_srd(R_B, P_WO, WQ_BYTES); self.mk_srd(R_OUT, P_OUT, OUT_BYTES)
        a(f's_and_b32 s8, {sWAVE}, 1\ns_lshl_b32 s8, s8, 5')
        a('v_and_b32 v2, 31, v0\nv_add_u32 v2, s8, v2\nv_bfe_u32 v3, v2, 1, 3\nv_lshrrev_b32 v4, 5, v0\nv_xor_b32 v3, v3, v4\nv_lshlrev_b32 v2, 7, v2')
        for ks in range(4):
            a(f'v_xor_b32 v9, {2*ks}, v3\nv_lshl_add_u32 v{10+ks}, v9, 4, v2\nv_add_u32 v{20+ks}, 0x10000, v{10+ks}')
        a(f's_lshr_b32 s8, {sWAVE}, 1\ns_mul_i32 s8, s8, 56')
        self.w128_frag('v14', 8, 's8')
        a('v_add_u32 v24, 0x10000, v14\nv_lshlrev_b32 v15, 4, v0')
        a(f's_lshl_b32 s8, {sWAVE}, 11\ns_add_u32 s8, s8, {QX}\nv_add_u32 v2, s8, v15')
        for js in range(4):
            a(f's_add_u32 s8, {sWAVE}, {1+js}\ns_and_b32 s8, s8, 3\ns_lshl_b32 s9, s8, 11\ns_add_u32 s9, s9, {QX}\nv_add_u32 v{192+js}, s9, v15')
            if js < 3:
                a(f's_mul_i32 s9, s8, 12288\nv_add_u32 v{196+js}, s9, v15')
        for r in range(64, 112): a(f'v_mov_b32 v{r}, 0')
    def a_qproj(self):
        a = self.a
        QX = 32768
        REG = [0, 16384, 32768, 49152, 65536, 0, 16384]
        sQB = 's6'; sHP = 's7'
        a(f's_lshr_b32 s8, {sJ}, 3\ns_lshl_b32 {sQB}, {sXG}, 2\ns_add_u32 {sQB}, {sQB}, s8\ns_and_b32 {sHP}, {sJ}, 7')
        a(f's_lshl_b32 s8, {sWAVE}, 4\ns_lshl_b32 s9, {sQB}, 6\ns_add_u32 s9, s9, s8\ns_mul_i32 s9, s9, 896')
        a('v_lshrrev_b32 v2, 3, v0\nv_lshrrev_b32 v3, 4, v0\nv_and_b32 v4, 7, v0')
        a('v_xor_b32 v4, v4, v3\nv_mul_u32_u24 v2, 896, v2')
        a('v_lshl_add_u32 v5, v4, 4, v2\nv_add_u32 v5, s9, v5')
        a('v_xor_b32 v4, 4, v4\nv_lshl_add_u32 v6, v4, 4, v2\nv_add_u32 v6, s9, v6\nv_add_u32 v6, 7168, v6')
        a(f's_lshl_b32 s10, {sWAVE}, 11')
        self.w128_src()
        a(f's_lshr_b32 s8, {sJ}, 3\ns_lshl_b32 s8, s8, 1\ns_add_u32 s8, s8, {sHP}\ns_cmp_ge_u32 s8, 7\ns_cselect_b32 s9, 7, 0\ns_sub_u32 s8, s8, s9')
        a('s_cmp_ge_u32 s8, 7\ns_cselect_b32 s9, 7, 0\ns_sub_u32 s8, s8, s9')
        a('s_lshl_b32 s14, s8, 7\ns_mul_i32 s15, s8, 57344')
        self.after_kernarg()
        self.mk_srd(R_X, P_X, X_BYTES); self.mk_srd(R_W, P_WQ, WQ_BYTES)
        def loadx(i):
            a(f's_add_u32 m0, s10, {REG[i]}\ns_nop 0\nbuffer_load_dwordx4 v5, {srd(R_X)}, s14 offen lds')
            a(f's_add_u32 m0, s10, {REG[i] + 1024}\ns_nop 0\nbuffer_load_dwordx4 v6, {srd(R_X)}, s14 offen lds')
            if i < 6: a('s_add_u32 s14, s14, 128\ns_cmp_eq_u32 s14, 896\ns_cselect_b32 s14, 0, s14')
        def loadw(i):
            a(f's_add_u32 m0, s10, {REG[i] + 8192}\ns_nop 0\nbuffer_load_dwordx4 v7, {srd(R_W)}, s15 offen lds')
            a(f's_add_u32 m0, s10, {REG[i] + 8192 + 1024}\ns_nop 0\nbuffer_load_dwordx4 v8, {srd(R_W)}, s15 offen lds')
            if i < 6: a(f's_add_u32 s15, s15, 57344\ns_cmp_eq_u32 s15, {7*57344}\ns_cselect_b32 s15, 0, s15')
        def load(i): loadw(i); loadx(i)
        NF = 3 if OPT('q3') else 5 if OPT('q5') else 4
        a('s_setprio 1')
        if OPT('wfirst'): loadw(0); loadw(1); loadx(0); loadx(1)
        else: loadx(0); loadw(0); loadx(1); loadw(1)
        self.a_qproj_addr()
        for i in range(2, NF): load(i)
        if not OPT('shi'): a('s_setprio 3')
        self.estamp(3)
        FX = (144, 176); FW = (160, 232); ACC = 48
        issued = NF
        def rd(i):
            hi = REG[i] >= 65536
            off = REG[i] - (65536 if hi else 0)
            for ks in range(4):
                a(f'ds_read_b128 {vr(FX[i&1]+4*ks,4)}, v{(20 if hi else 10)+ks} offset:{off}')
                for t in range(2):
                    a(f'ds_read_b64_tr_b16 {vr(FW[i&1]+4*ks+2*t,2)}, v{24 if hi else 14} offset:{off + 8192 + (16*ks+4*t)*128}')
        def mm(i, waits):
            for ks in range(4):
                c = '0' if (i == 0 and ks == 0) else vr(ACC, 16)
                if waits[ks] is not None: a(f's_waitcnt lgkmcnt({waits[ks]})')
                a(f'v_mfma_f32_32x32x16_bf16 {vr(ACC,16)}, {vr(FW[i&1]+4*ks,4)}, {vr(FX[i&1]+4*ks,4)}, {c}')
        extra = 0; FLS = 4 if OPT('fl4') else 5
        for i in range(7):
            a(f's_waitcnt vmcnt({4*(issued - 1 - i) - (2 if i == 0 and OPT("wfirst") else 0) + extra}) lgkmcnt(0)\ns_barrier')
            if i == 0: self.stamp(1); self.estamp(4)
            if i == 3: self.estamp(5)
            if i == 6: self.estamp(6)
            self.qstamp(i + 1)
            rd(i)
            if i and i < 6: mm(i - 1, [None] * 4)
            while issued < 7 and issued <= i + NF and (issued < 5 or issued - 5 < i): load(issued); issued += 1
            if i == 0: self.a_attn_setup()
            if i == (5 if OPT('fa5') else 3):
                assert issued == 7
                a(f'buffer_store_dword v199, v248, {srd(R_WS)}, s69 offen sc1'); extra += 1
            if i == 5:
                mm(5, [9, 6, 3, 0])
                if OPT('flpre'):
                    a('s_mov_b32 s14, 0')
                    for x in self.fl_load(): a(x)
        mm(6, [9, 6, 3, 0])
        if OPT('flpre'):
            lno = self.L('nokv')
            for x in self.fl_test()[1:]: a(x)
            a(f's_cbranch_scc1 {lno}')
            self.kv_first([0])
            a('s_mov_b32 s75, 1')
            a.label(lno)
        for r in range(8): a(f'v_mov_b32 v{184+r}, 0')
        for r in range(8): a(f'v_cvt_pk_bf16_f32 v{224+r}, v{ACC+2*r}, v{ACC+2*r+1}')
        a('s_mov_b32 exec_lo, 0\nv_mov_b32 v230, 0\nv_mov_b32 v231, 0\ns_mov_b32 exec_lo, -1')
        a('ds_write_b128 v2, v[224:227]\nds_write_b128 v2, v[228:231] offset:1024')
        for r in range(48, 64): a(f'v_mov_b32 v{r}, 0')
        a('s_waitcnt lgkmcnt(0)')
        if not OPT('flpre'):
            a('s_mov_b32 s14, 0')
            for x in self.fl_load(): a(x)
        a('s_barrier')
        for js in range(4):
            a(f'ds_read_b128 {vr(16+8*js,4)}, v{192+js}\nds_read_b128 {vr(20+8*js,4)}, v{192+js} offset:1024')
        lno2 = self.L('nokv')
        if not OPT('flpre'):
            for x in self.fl_test(): a(x)
            a(f's_cbranch_scc1 {lno2}\ns_mov_b32 s75, 1')
            self.kv_first([0])
        else: a(f's_cmp_eq_u32 s75, 0\ns_cbranch_scc1 {lno2}')
        self.kv_first([1, 2, 3])
        a.label(lno2)
        self.stamp(2); self.estamp(7)

    KB_ = (112, 128, 200, 216); CK = ['s32', 's33', 's34', 's35']
    def ldK(self, buf): return ['s_nop 0', 's_nop 0'] if OPT('nold') and getattr(self, 'inloop', 0) else [f'buffer_load_dwordx4 {vr(self.KB_[buf] + 4*f, 4)}, v15, {srd(R_WS)}, s68 offen offset:{1024*f} sc1' for f in range(2)]
    def ldV(self, buf): return ['s_nop 0', 's_nop 0'] if OPT('nold') and getattr(self, 'inloop', 0) else [f'buffer_load_dwordx4 {vr(self.KB_[buf] + 8 + 4*f, 4)}, v15, {srd(R_WS)}, s68 offen offset:{2048+1024*f} sc1' for f in range(2)]
    def fl_load(self, g='s14'):
        return [f's_lshr_b32 s8, {g}, 8', 's_add_u32 s8, s8, s36', f's_load_dwordx8 s[16:23], {sp(P_WS)}, s8 glc', 's_add_u32 s9, s8, 128', f's_load_dwordx8 s[24:31], {sp(P_WS)}, s9 glc']
    def fl_test(self):
        out = ['s_waitcnt lgkmcnt(0)', 's_xor_b64 s[16:17], s[16:17], s[40:41]']
        for i in range(1, 8): out += [f's_xor_b64 s[{16+2*i}:{17+2*i}], s[{16+2*i}:{17+2*i}], s[40:41]', f's_or_b64 s[16:17], s[16:17], s[{16+2*i}:{17+2*i}]']
        return out
    def fl_check(self):
        lr = self.L('kvspin'); lb = self.L('kvback')
        self.spins.append((lr, lb))
        return self.fl_test() + [f's_cbranch_scc1 {lr}', lb + ':']
    def kv_first(self, bs=range(4)):
        for b in bs:
            self.a(f's_mov_b32 s68, {self.CK[b]}')
            for x in self.ldK(b) + (self.ldV(b) if b < 3 else []): self.a(x)
    def a_attn_setup(self):
        a = self.a
        self.spins = []
        a(f's_add_u32 {sNONCE}, {sNONCE}, 0x9e3779b9')
        a(f's_lshl_b32 s8, {sWAVE}, 13\ns_add_u32 s8, s8, {WS_KV}\ns_mov_b32 s37, s8')
        for k in range(4):
            a(f's_add_u32 s9, {sJ}, {k}\ns_and_b32 s12, s9, 1\ns_lshl_b32 s12, s12, 12\ns_and_b32 s9, s9, 2\ns_lshl_b32 s9, s9, 14\ns_add_u32 s9, s9, s12\ns_add_u32 s{32+k}, s8, s9')
        a(f's_and_b32 s36, s2, {NREP-1}\ns_lshl_b32 s36, s36, 10\ns_lshl_b32 s8, {sWAVE}, 5\ns_add_u32 s36, s36, s8\ns_add_u32 s36, s36, {WS_FKV}')
        a(f's_mov_b32 s40, {sNONCE}\ns_mov_b32 s41, {sNONCE}\ns_mov_b32 s38, 0x07060302')
        a(f's_and_b32 s69, s2, 255\ns_lshl_b32 s69, s69, 8\ns_add_u32 s69, s69, {WS_FA}\nv_mov_b32 v199, {sNONCE}\nv_mov_b32 v248, 0')
        a(f's_lshl_b32 s71, {sWAVE}, 10\ns_mul_i32 s8, {sWAVE}, 7168\ns_lshl_b32 s9, s7, 4\ns_sub_u32 s8, s9, s8\nv_add_u32 v249, s8, v7')
        a(f's_cmp_eq_u32 s7, 7\ns_cselect_b32 s{R_B+2}, 0, s{R_B+2}')
        a('s_mov_b32 s72, 0\ns_mov_b32 s73, 0\ns_mov_b32 s75, 0')
    def a_attn(self):
        a = self.a
        Q = 16; O = 48; SS = (144, 160); PP = (176, 184)
        KB_ = (112, 128, 200, 216)
        K = lambda buf, f: vr(KB_[buf] + 4*f, 4)
        Vv = lambda buf, f: vr(KB_[buf] + 8 + 4*f, 4)
        sG = 's14'; sF = 's36'; sOFF = 's68'; sCNT = 's70'; sSEQ = 's74'; CK = self.CK
        fl_load = self.fl_load; fl_check = self.fl_check; ldK = self.ldK; ldV = self.ldV
        for r in range(8): a(f'v_mov_b32 v{KB_[3]+8+r}, 0')
        lgo = self.L('go')
        a(f's_cmp_lg_u32 s75, 0\ns_cbranch_scc1 {lgo}')
        self.lagain = self.L('again')
        a.label(self.lagain)
        a(f's_mov_b32 {sG}, 0')
        for x in fl_load() + fl_check(): a(x)
        self.kv_first()
        a.label(lgo)
        a(f's_mov_b32 {sSEQ}, 0x462')
        self.stamp(3); self.cstamp(8); self.astamp(1)
        def nxtG(): return [f's_and_b32 s39, {sSEQ}, 15', 's_lshl_b32 s39, s39, 15', f's_lshr_b32 {sSEQ}, {sSEQ}, 4']
        def mA(u, buf, f):
            s = SS[u & 1]; c = '0' if f == 0 else vr(s, 16)
            return f'v_mfma_f32_32x32x16_bf16 {vr(s,16)}, {K(buf,f)}, {vr(Q + 8*(u&3) + 4*f, 4)}, {c}'
        def mC(u, buf, f):
            o = vr(O + 16*(u & 3), 16)
            return f'v_mfma_f32_32x32x16_bf16 {o}, {Vv(buf,f)}, {vr(PP[u&1] + 4*f, 4)}, {o}'
        a('s_waitcnt lgkmcnt(0)')
        for x in nxtG() + fl_load('s39'): a(x)
        a('s_waitcnt vmcnt(12)')
        self.astamp(2)
        a(mA(0, 0, 0)); a(mA(0, 0, 1))
        a(f's_mov_b32 {sCNT}, 3')
        def unit(u, mf, extra):
            s = SS[u & 1]; p = PP[u & 1]
            e = lambda i: f'v_exp_f32 v{s+i}, v{s+i}'
            c = (lambda i: f'v_cvt_pk_bf16_f32 v{p+i}, v{s+2*i}, v{s+2*i+1}') if OPT('cvt') else (lambda i: f'v_perm_b32 v{p+i}, v{s+2*i+1}, v{s+2*i}, s38')
            Lq = [e(0), e(1), e(2), e(3), c(0), e(4), e(5), c(1), e(6), e(7), c(2), e(8), e(9), c(3), e(10), e(11), c(4), e(12), e(13), c(5), e(14), e(15), c(6), c(7)]
            sp_ = (6, 6, 6, 6) if OPT('even') else (4, 4, 4, 12)
            seq = [Lq[sum(sp_[:i]):sum(sp_[:i+1])] for i in range(4)]
            for i in range(4):
                for x in extra.get(('pre', i), []): a(x)
                if mf[i]: a(mf[i])
                for x in extra.get(i, []): a(x)
                for x in seq[i]: a(x)
        lloop = self.L('attn'); self.inloop = 1
        TRIG = [int(x[4:]) for x in sys.argv if x.startswith('trig') and x[4:].isdigit()]
        TRL = [int(x[5:]) for x in sys.argv if x.startswith('trigL')]
        if not TRIG and not TRL: TRL = [0]
        TRI = 2 if OPT('trigIt2') else 1
        TRIG = TRIG[0] if TRIG else 99
        WOU = list(range(2, 10))
        W = lambda n, u, slot: n + (1 if (u, slot) > (TRIG, 0) else 0) + sum(1 for x in WOU if (u, slot) > (x, 1))
        def body(tail):
            for u in range(16):
                t = u >> 2; b = u & 3
                nu = u + 1; nbuf = (nu >> 2) & 3
                pu = u - 1; pbuf = ((pu >> 2) & 3)
                mf = [mA(nu, nbuf, 0), mA(nu, nbuf, 1), mC(pu, pbuf, 0), mC(pu, pbuf, 1)]
                ex = {}
                if tail and u == 15: mf = [mC(pu, pbuf, 0), mC(pu, pbuf, 1), None, None]
                if b == 3:
                    if not tail:
                        ex[('pre', 0)] = ['s_waitcnt vmcnt(10)']
                        ex[0] = [f's_add_u32 {sOFF}, {sG}, {CK[t]}']
                        ex[2] = [ldK(t)[0]]; ex[3] = [ldK(t)[1]]
                    elif t < 3:
                        ex[('pre', 0)] = [f's_waitcnt vmcnt({W(10 - 4*t, u, 0)})']
                if b == 1:
                    if not tail or t == 0:
                        assert TRIG >= 2
                        ex[('pre', 2)] = ['s_waitcnt vmcnt(10)']
                        ex[2] = [ldV((t - 1) & 3)[0]]; ex[3] = [ldV((t - 1) & 3)[1]]
                    else:
                        ex[('pre', 2)] = [f's_waitcnt vmcnt({W(12 - 4*t, u, 2)})']
                if tail and u == TRIG:
                    ex.setdefault(0, []).append(f'buffer_store_dword v199, v248, {srd(R_WS)}, s69 offen offset:4 sc1')
                if not tail and u == 0:
                    ex[0] = [f's_mov_b32 {sG}, s39']
                if not tail and u == 14:
                    g_ = nxtG() + fl_load('s39')
                    ex.setdefault(1, []).extend(g_[:2]); ex.setdefault(2, []).extend(g_[2:4]); ex.setdefault(3, []).extend(g_[4:6])
                    self.g_rest = g_[6:]
                if not tail and u == 15:
                    ex.setdefault(1, []).extend(self.g_rest)
                if not tail and u == 1:
                    c0 = ['s_waitcnt lgkmcnt(0)', 's_xor_b64 s[16:17], s[16:17], s[40:41]']
                    for i in range(1, 4): c0 += [f's_xor_b64 s[{16+2*i}:{17+2*i}], s[{16+2*i}:{17+2*i}], s[40:41]', f's_or_b64 s[16:17], s[16:17], s[{16+2*i}:{17+2*i}]']
                    ex.setdefault(0, []).extend(c0[:2]); ex.setdefault(1, []).extend(c0[2:4]); ex.setdefault(2, []).extend(c0[4:6]); ex.setdefault(3, []).extend(c0[6:])
                if not tail and u == 2:
                    c_ = fl_check(); self.c_ = c_
                    ex[0] = c_[8:10]; ex[1] = c_[10:12]; ex[2] = c_[12:14]; ex[3] = c_[14:]
                if not tail and TRL and u == TRL[0]:
                    lsk = self.L('tsk')
                    assert u not in (1, 2, 14, 15)
                    ex.setdefault(1, []).extend([f's_cmp_lg_u32 {sCNT}, {TRI}', f's_cbranch_scc1 {lsk}', f'buffer_store_dword v199, v248, {srd(R_WS)}, s69 offen offset:4 sc1', lsk + ':'])
                if tail and u in WOU:
                    i = WOU.index(u)
                    ex.setdefault(0, []).append(f's_add_u32 m0, s71, {self.WOB + 1024*(25+4*i)}')
                    ex.setdefault(('pre', 1), []).append(f's_mov_b32 s13, {(25+4*i)*7168}')
                    ex.setdefault(1, []).append(f'buffer_load_dwordx4 v249, {srd(R_B)}, s13 offen lds')
                if tail and u == 14:
                    for g in range(4): ex.setdefault((1,2,2,3)[g], []).append(f'ds_write_b128 v196, {vr(O+4*g,4)} offset:{g*1024}')
                if tail and u == 15:
                    for g in range(4): ex.setdefault((1,2,2,3)[g], []).append(f'ds_write_b128 v197, {vr(O+16+4*g,4)} offset:{4096+g*1024}')
                if not tail and u == 14:
                    ex.setdefault(0, []).append(f's_sub_u32 {sCNT}, {sCNT}, 1')
                unit(u, mf, ex)
        a('s_nop 10\n.p2align 4')
        a.label(lloop)
        body(False)
        if self.stamps and OPT('ast'):
            for k in range(3):
                l = self.L('ast')
                a(f's_cmp_lg_u32 {sCNT}, {2-k}\ns_cbranch_scc1 {l}'); self.astamp(3 + k); a.label(l)
        a(f's_cmp_lg_u32 {sCNT}, 0\ns_cbranch_scc1 {lloop}')
        body(True)
        self.astamp(6)
        a('s_setprio 3')
        a(mC(15, 3, 0)); a(mC(15, 3, 1))
        for g in range(4): a(f'ds_write_b128 v198, {vr(O+32+4*g,4)} offset:{8192+g*1024}')
        a(f's_mul_i32 s8, {sWAVE}, 12288\nv_add_u32 v2, s8, v15')
        a('s_waitcnt lgkmcnt(0)\ns_barrier')
        self.stamp(4); self.cstamp(9); self.tstamp(1); self.astamp(7)
        RD = 112
        for i in range(12): a(f'ds_read_b128 {vr(RD+4*i,4)}, v2 offset:{i*1024}')
        F = O + 48
        for s in range(3):
            a(f's_waitcnt lgkmcnt({8-4*s})')
            for r in range(16): a(f'v_add_f32 v{F+r}, v{F+r}, v{RD+16*s+r}')
        a(f'v_mov_b32 v10, v{F+12}\nv_mov_b32 v11, v{F+12}\nv_permlane32_swap_b32 v10, v11\nv_rcp_f32 v10, v11')
        a(f's_lshl_b32 s8, s6, 1\ns_and_b32 s9, {sWAVE}, 1\ns_add_u32 s8, s8, s9\ns_lshl_b32 s8, s8, 15')
        a(f's_lshl_b32 s9, s7, 1\ns_lshr_b32 s10, {sWAVE}, 1\ns_add_u32 s9, s9, s10\ns_lshl_b32 s9, s9, 11')
        a(f's_add_u32 s8, s8, s9\ns_add_u32 s8, s8, {WS_O}')
        for r in range(16): a(f'v_mul_f32 v{F+r}, v{F+r}, v10')
        for r in range(8): a(f'v_cvt_pk_bf16_f32 v{160+r}, v{F+2*r}, v{F+2*r+1}')
        a('s_mov_b32 exec_lo, 0\nv_mov_b32 v166, 0\nv_mov_b32 v167, 0\ns_mov_b32 exec_lo, -1')
        self.lnopub = self.L('nopub')
        a(f's_mov_b32 s12, 0\ns_cmp_lg_u32 s73, 0\ns_cbranch_scc1 {self.lnopub}')
        a(f'buffer_store_dwordx4 v[160:163], v15, {srd(R_WS)}, s8 offen sc1')
        a(f'buffer_store_dwordx4 v[164:167], v15, {srd(R_WS)}, s8 offen offset:1024 sc1')
        a('s_mov_b32 s9, 0x3f803f80\nv_mov_b32 v12, 0')
        for r in range(8): a(f'v_dot2_f32_bf16 v12, v{160+r}, s9, v12')
        a(f's_mov_b32 s12, {f32(2.0**64)}\nv_mov_b32 v13, 0x207\nv_cmp_nle_f32 vcc, {f32(2.0**-64)}, v11\nv_cmp_nge_f32 s[10:11], s12, v11')
        a('s_or_b64 s[10:11], s[10:11], vcc\nv_cmp_class_f32 vcc, v12, v13\ns_or_b64 s[10:11], s[10:11], vcc')
        a('s_cmp_lg_u64 s[10:11], 0\ns_cselect_b32 s12, 1, 0\ns_andn2_b32 s12, s12, s72')
        a(f's_cbranch_scc1 {self.lnopub}')

    def a_fallback(self):
        a = self.a
        lp = self.L('fbl')
        for lr, lb in self.spins:
            l2 = self.L('kvs'); l3 = self.L('kvs')
            a.label(lr)
            a(f's_mov_b32 s47, {self.SPIN}')
            a.label(l2)
            a(f's_sleep 2\ns_sub_u32 s47, s47, 1\ns_cmp_gt_i32 s47, 0\ns_cbranch_scc0 {lb}')
            a(f's_load_dwordx8 s[16:23], {sp(P_WS)}, s8 glc\ns_load_dwordx8 s[24:31], {sp(P_WS)}, s9 glc\ns_waitcnt lgkmcnt(0)')
            for i in range(8): a(f's_cmp_eq_u64 s[{16+2*i}:{17+2*i}], s[40:41]\ns_cbranch_scc0 {l2}')
            a(f's_branch {lb}')
        a.label(self.lfb)
        a(f's_barrier\ns_mov_b32 s72, 1\ns_mov_b32 s70, 16\ns_mov_b32 s68, s37')
        for js in range(4): a(f'v_mov_b32 v{240+js}, 0xff800000')
        a.label(lp)
        a(f'buffer_load_dwordx4 v[112:115], v15, {srd(R_WS)}, s68 offen sc1\nbuffer_load_dwordx4 v[116:119], v15, {srd(R_WS)}, s68 offen offset:1024 sc1')
        a('s_bitcmp1_b32 s70, 0\ns_cselect_b32 s8, 7, 1\ns_lshl_b32 s8, s8, 12\ns_add_u32 s68, s68, s8\ns_waitcnt vmcnt(0)')
        for js in range(4):
            a(f'v_mfma_f32_32x32x16_bf16 v[144:159], v[112:115], {vr(16+8*js,4)}, 0\nv_mfma_f32_32x32x16_bf16 v[144:159], v[116:119], {vr(20+8*js,4)}, v[144:159]')
            for r in range(0, 16, 2): a(f'v_max3_f32 v{240+js}, v{240+js}, v{144+r}, v{145+r}')
        a(f's_sub_u32 s70, s70, 1\ns_cmp_lg_u32 s70, 0\ns_cbranch_scc1 {lp}')
        a(f's_lshl_b32 s8, {sWAVE}, 8\nv_lshl_add_u32 v244, v0, 2, s8\nv_lshlrev_b32 v245, 2, v0')
        for js in range(4):
            a(f'v_mov_b32 v246, v{240+js}\nv_mov_b32 v247, v{240+js}\nv_permlane32_swap_b32 v246, v247\nv_max_f32 v{240+js}, v246, v247')
            a(f's_add_u32 s8, {sWAVE}, {1+js}\ns_and_b32 s8, s8, 3\ns_lshl_b32 s8, s8, 10\nv_add_u32 v246, s8, v244\nv_add_u32 v{236+js}, s8, v245')
            a(f'ds_write_b32 v246, v{240+js} offset:1024')
        a('s_waitcnt lgkmcnt(0)\ns_barrier')
        for js in range(4):
            a(f'ds_read2st64_b32 v[246:247], v{236+js} offset0:4 offset1:5\nds_read2st64_b32 v[250:251], v{236+js} offset0:6 offset1:7\ns_waitcnt lgkmcnt(0)')
            a('v_max3_f32 v246, v246, v247, v250\nv_max_f32 v246, v246, v251')
            a('v_xor_b32 v246, 0x80000000, v246\nv_and_b32 v247, 0xffff0000, v246\nv_sub_f32 v246, v246, v247\nv_and_b32 v250, 0xffff0000, v246\nv_sub_f32 v246, v246, v250')
            a(f's_mov_b32 exec_lo, 0\nv_lshrrev_b32 v247, 16, v247\nv_or_b32 v{22+8*js}, v247, v250\nv_lshrrev_b32 v{23+8*js}, 16, v246\ns_mov_b32 exec_lo, -1')
        for r in list(range(48, 112)) + list(range(184, 192)) + list(range(224, 232)): a(f'v_mov_b32 v{r}, 0')
        a(f's_barrier\ns_branch {self.lagain}')

    WOB = 23552
    def a_outproj(self):
        a = self.a
        a(f's_cmp_eq_u32 s7, 7\ns_cbranch_scc1 {self.lend}')
        for i in range(7):
            a(f's_add_u32 m0, s71, {self.WOB + 4096*i}\ns_mov_b32 s13, {4*i*7168}\nbuffer_load_dwordx4 v249, {srd(R_B)}, s13 offen lds')
        a(f's_lshr_b32 s12, {sWAVE}, 1\ns_lshl_b32 s8, s12, 6')
        self.w128_frag('v14', 4, 's8')
        a(f's_and_b32 s9, s7, 1\ns_lshl_b32 s13, s12, 1\ns_add_u32 s14, s13, s9\ns_xor_b32 s15, s14, 1\ns_mul_i32 s8, s14, {112*128}\ns_mul_i32 s9, s15, {112*128}\ns_add_u32 s8, s8, {self.WOB}\ns_add_u32 s9, s9, {self.WOB}')
        a('v_add_u32 v12, s9, v14\nv_add_u32 v14, s8, v14\nv_xor_b32 v13, 64, v14\nv_xor_b32 v11, 64, v12')
        a(f's_lshl_b32 s8, s6, 1\ns_and_b32 s9, {sWAVE}, 1\ns_add_u32 s8, s8, s9\ns_lshl_b32 s10, s8, 15\ns_add_u32 s10, s10, {WS_O}')
        a('s_lshl_b32 s15, s15, 13\ns_lshl_b32 s14, s14, 13\ns_add_u32 s15, s15, s10\ns_add_u32 s10, s10, s14')
        XCH = 0
        a(f's_xor_b32 s9, {sWAVE}, 2\ns_lshl_b32 s9, s9, 12\ns_add_u32 s9, s9, {XCH}\nv_add_u32 v5, s9, v15')
        a(f's_lshl_b32 s9, {sWAVE}, 12\ns_add_u32 s9, s9, {XCH}\nv_add_u32 v6, s9, v15')
        a(f's_and_b32 s9, {sWAVE}, 1\ns_mul_i32 s9, s9, {32*144}\ns_lshl_b32 s13, s12, 6\ns_add_u32 s9, s9, s13\ns_add_u32 s9, s9, 16384')
        a('v_lshrrev_b32 v4, 5, v0\nv_and_b32 v9, 31, v0\nv_mul_u32_u24 v9, 144, v9\nv_lshl_add_u32 v9, v4, 4, v9\nv_add_u32 v9, s9, v9')
        a(f'v_lshrrev_b32 v2, 3, v0\nv_and_b32 v3, 7, v0\nv_lshlrev_b32 v3, 4, v3\nv_mul_u32_u24 v10, 144, v2\ns_mul_i32 s9, {sWAVE}, {16*144}\ns_add_u32 s9, s9, 16384\nv_add3_u32 v10, v10, v3, s9')
        a(f'v_mul_u32_u24 v8, 1792, v2\nv_add_u32 v8, v8, v3\ns_lshl_b32 s8, s6, 2\ns_add_u32 s8, s8, {sWAVE}\ns_mul_i32 s8, s8, {16*1792}\ns_lshl_b32 s9, s7, 7\ns_add_u32 s8, s8, s9\ns_add_u32 s37, s8, 896\ns_add_u32 s38, s37, {8*1792}')
        self.tstamp(4)
        self.wait_o()
        self.stamp(6); self.tstamp(5)
        OF = 16
        for i in range(16):
            if i == 4: a('s_add_u32 s10, s10, 4096')
            if i == 12: a('s_add_u32 s15, s15, 4096')
            a(f'buffer_load_dwordx4 {vr(OF+4*i,4)}, v15, {srd(R_WS)}, {"s10" if i < 8 else "s15"} offen offset:{(i%4)*1024} sc1')
        WF = 112
        ACC = (80, 96)
        def rd(i):
            hd, f = (i >> 1) & 3, i & 1
            b = WF + 8 * (i & 3)
            for ct in range(2):
                for t in range(2):
                    a(f'ds_read_b64_tr_b16 {vr(b+4*ct+2*t,2)}, v{(14 if i < 8 else 12)-ct} offset:{(28*hd+16*f+8*t)*128}')
        rd(0); rd(1); rd(2)
        for i in range(16):
            if i + 3 < 16: rd(i + 3)
            left = min(3, 15 - i)
            a(f's_waitcnt vmcnt({15-i}) lgkmcnt({4*left})')
            b = WF + 8 * (i & 3)
            for ct in (1, 0):
                c = '0' if i == 0 else vr(ACC[ct], 16)
                a(f'v_mfma_f32_32x32x16_bf16 {vr(ACC[ct],16)}, {vr(b+4*ct,4)}, {vr(OF+4*i,4)}, {c}')
        self.tstamp(6)
        for g in range(4): a(f'ds_write_b128 v5, {vr(ACC[1]+4*g,4)} offset:{g*1024}')
        a('s_waitcnt lgkmcnt(0)\ns_barrier')
        for g in range(4): a(f'ds_read_b128 {vr(16+4*g,4)}, v6 offset:{g*1024}')
        a('s_waitcnt lgkmcnt(0)')
        for r in range(16): a(f'v_add_f32 v{ACC[0]+r}, v{ACC[0]+r}, v{16+r}')
        for r in range(8): a(f'v_cvt_pk_bf16_f32 v{32+r}, v{ACC[0]+2*r}, v{ACC[0]+2*r+1}')
        a('v_permlane32_swap_b32 v32, v34\nv_permlane32_swap_b32 v33, v35\nv_permlane32_swap_b32 v36, v38\nv_permlane32_swap_b32 v37, v39')
        a('ds_write_b128 v9, v[32:35]\nds_write_b128 v9, v[36:39] offset:32\ns_waitcnt lgkmcnt(0)\ns_barrier')
        a(f'ds_read_b128 v[16:19], v10\nds_read_b128 v[20:23], v10 offset:{8*144}')
        a(f's_waitcnt lgkmcnt(1)\nbuffer_store_dwordx4 v[16:19], v8, {srd(R_OUT)}, s37 offen sc1\ns_waitcnt lgkmcnt(0)\nbuffer_store_dwordx4 v[20:23], v8, {srd(R_OUT)}, s38 offen sc1')
        self.stamp(7); self.tstamp(7)

    UTILE = 0; TSCR = 8192; UB = 61440; KB = 70656; SCR = 15360
    PU, PZ, PT, PB, PW, PE, PK, PKZ, PD, PUT, PA = 232, 233, 234, 235, 236, 240, 243, 244, 245, 246, 251
    def s_ids(self):
        a = self.a
        a(f's_cmp_gt_u32 {sXG}, 5\ns_cselect_b32 s8, 1, 0\ns_sub_u32 s73, {sXG}, s8')
        a(f's_lshl_b32 s8, s73, 6\ns_lshl_b32 s9, {sJ}, 1\ns_add_u32 s74, s8, s9')
        a('v_lshlrev_b32 v15, 4, v0')
        a(f's_lshl_b32 s14, s74, 1\ns_lshr_b32 s10, {sWAVE}, 1\ns_add_u32 s74, s74, s10\ns_and_b32 s9, {sWAVE}, 1')
        a('s_lshl_b32 s8, s74, 9\ns_lshl_b32 s12, s9, 8\ns_add_u32 s8, s8, s12\nv_lshl_add_u32 v2, v0, 2, s8')
    def s_params_load(self):
        a = self.a
        for i, p in enumerate((P_LAR, P_AIM, P_CRE, P_CIM)):
            a(f'global_load_dword v{16+i}, v2, {sp(p)}')
        a(f's_load_dword s71, {sp(P_LDT)}, s14\ns_load_dword s72, {sp(P_DSK)}, s14')
    def s_table_load(self, dst):
        a = self.a
        lp = self.L('pc')
        a('s_getpc_b64 s[12:13]')
        a.label(lp)
        a(f's_add_u32 s12, s12, L_table-{lp}\ns_addc_u32 s13, s13, 0')
        for i in range(4):
            a(f'global_load_dwordx4 {vr(dst+4*i,4)}, v1, s[12:13] offset:{1024*i}')
    def s_kv_addr(self):
        a = self.a
        a(f's_lshr_b32 s7, {sJ}, 1\ns_lshl_b32 s8, {sXG}, 4\ns_add_u32 s7, s7, s8\ns_lshl_b32 s6, {sXG}, 5\ns_add_u32 s6, s6, {sJ}')
        a(f's_lshl_b32 s12, s7, 1\ns_add_u32 s12, s12, s9\ns_mul_i32 s12, s12, {8*896}')
        a(f'v_lshrrev_b32 v7, 3, v0\nv_lshrrev_b32 v8, 4, v0\ns_lshl_b32 s8, s9, 2\nv_add_u32 v8, s8, v8')
        a('v_and_b32 v4, 7, v0\nv_xor_b32 v8, v4, v8\nv_mul_u32_u24 v7, 896, v7\nv_lshl_add_u32 v5, v8, 4, v7\nv_add_u32 v5, s12, v5')
        a(f's_lshl_b32 s11, {sWAVE}, 10\nv_add_u32 v6, s11, v15\ns_add_u32 s15, s11, 28672')
        a(f's_lshr_b32 s8, {sJ}, 1\ns_cmp_ge_u32 s8, 7\ns_cselect_b32 s12, 7, 0\ns_sub_u32 s8, s8, s12\ns_cmp_ge_u32 s8, 7\ns_cselect_b32 s12, 7, 0\ns_sub_u32 s8, s8, s12\ns_lshl_b32 s70, s8, 12')
    def kv_srds(self):
        a = self.a
        self.mk_srd(R_X, P_X, X_BYTES)
        a(f's_bitcmp1_b32 s6, 0\ns_cselect_b32 s{R_W}, s{P_WV}, s{P_WK}\ns_cselect_b32 s{R_W+1}, s{P_WV+1}, s{P_WK+1}')
        a(f's_mov_b32 s{R_W+2}, {WK_BYTES}\ns_mov_b32 s{R_W+3}, 0x20000')
    def s_kv_load(self):
        a = self.a
        a(f's_mul_i32 s12, s10, {3*128}\ns_mul_i32 s13, s10, {3*2048}\ns_lshl_b32 s8, s9, 10\ns_add_u32 s13, s13, s8')
        for i in range(4):
            a(f's_add_u32 m0, s13, {2048*i}\ns_nop 0\nbuffer_load_dwordx4 v5, {srd(R_X)}, s12 offen lds')
            if i < 3: a('s_add_u32 s12, s12, 128')
        for i in range(7):
            if i: a('s_add_u32 s70, s70, 4096\ns_cmp_eq_u32 s70, 28672\ns_cselect_b32 s70, 0, s70')
            a(f's_add_u32 m0, s15, s70\ns_nop 0\nbuffer_load_dwordx4 v6, {srd(R_W)}, s70 offen lds')
    def s_kv_addr2(self):
        a = self.a
        a('s_and_b32 s68, s7, 1')
        a('v_and_b32 v2, 15, v0\nv_bfe_u32 v4, v2, 1, 3\nv_lshrrev_b32 v9, 4, v0\nv_xor_b32 v4, v4, v9\nv_lshlrev_b32 v3, 7, v2')
        a('v_lshl_add_u32 v10, v4, 4, v3\nv_xor_b32 v4, 4, v4\nv_lshl_add_u32 v11, v4, 4, v3')
        a('v_bfe_u32 v3, v0, 2, 2\nv_lshl_add_u32 v3, v9, 3, v3\nv_mul_u32_u24 v3, 56, v3\nv_and_b32 v4, 3, v0\nv_lshl_add_u32 v3, v4, 3, v3')
        a(f's_lshl_b32 s8, {sWAVE}, 5\ns_add_u32 s8, s8, 28672\nv_add_u32 v12, s8, v3')
        a('v_lshlrev_b32 v13, 4, v2\nv_bfe_u32 v3, v0, 4, 1\nv_lshl_add_u32 v13, v3, 9, v13')
        a(f's_bitcmp1_b32 s6, 0\ns_cselect_b32 s12, s68, {sWAVE}\ns_cselect_b32 s13, {sWAVE}, s68\ns_cselect_b32 s8, 2048, 0')
        a(f's_lshl_b32 s12, s12, 10\ns_lshl_b32 s13, s13, 8\ns_add_u32 s12, s12, s13\ns_add_u32 s12, s12, s8\ns_lshr_b32 s13, s7, 1\ns_lshl_b32 s13, s13, 12\ns_add_u32 s12, s12, s13\ns_add_u32 s69, s12, {WS_KV}')
        a(f's_lshl_b32 s8, s6, 2\ns_add_u32 s68, s8, {WS_FKV}\nv_lshlrev_b32 v14, 10, v0')
    def s_kv(self):
        a = self.a
        lv = self.L('kvV'); lst = self.L('kvst')
        ACC = 100
        XF = lambda ks: vr(56 + 8*(ks % 5), 4); WF = lambda ks, t=None: vr(60 + 8*(ks % 5), 4) if t is None else vr(60 + 8*(ks % 5) + 2*t, 2)
        def rdk(ks):
            a(f'ds_read_b128 {XF(ks)}, v{10+(ks&1)} offset:{(ks>>1)*2048}')
            for t in range(2):
                a(f'ds_read_b64_tr_b16 {WF(ks,t)}, v12 offset:{(32*ks+4*t)*56}')
        for ks in range(4): rdk(ks)
        a('s_bitcmp1_b32 s6, 0')
        def chain(swap):
            for ks in range(14):
                if ks + 4 < 14: rdk(ks + 4)
                a(f's_waitcnt lgkmcnt({3*min(4, 13-ks)})')
                A, B = (XF(ks), WF(ks)) if swap else (WF(ks), XF(ks))
                c = '0' if ks == 0 else vr(ACC, 4)
                a(f'v_mfma_f32_16x16x32_bf16 {vr(ACC,4)}, {A}, {B}, {c}')
        a(f's_cbranch_scc1 {lv}')
        chain(False)
        a(f's_cmp_eq_u32 {sWAVE}, 1\ns_cselect_b32 s12, 0xffff0000, 0')
        for r in range(4): a(f'v_mul_f32 v{ACC+r}, {f32(CSCALE)}, v{ACC+r}')
        a(f'v_cvt_pk_bf16_f32 v96, v{ACC}, v{ACC+1}\nv_cvt_pk_bf16_f32 v97, v{ACC+2}, v{ACC+3}')
        a('s_mov_b32 exec_lo, 0\ns_mov_b32 exec_hi, s12\nv_mov_b32 v96, 0x3f803f80\nv_mov_b32 v97, 0x00003f80\ns_mov_b64 exec, -1')
        a(f's_branch {lst}')
        a.label(lv)
        chain(True)
        a(f's_cmp_eq_u32 {sWAVE}, 1\ns_cselect_b32 s12, 0xe000e000, 0\ns_cselect_b32 s13, 0x10001000, 0')
        a(f'v_cvt_pk_bf16_f32 v96, v{ACC}, v{ACC+1}\nv_cvt_pk_bf16_f32 v97, v{ACC+2}, v{ACC+3}')
        a('s_mov_b32 exec_lo, s12\ns_mov_b32 exec_hi, s12\nv_mov_b32 v96, 0\nv_mov_b32 v97, 0')
        a('s_mov_b32 exec_lo, s13\ns_mov_b32 exec_hi, s13\nv_mov_b32 v96, 0x3f803f80\nv_mov_b32 v97, 0x3f803f80\ns_mov_b64 exec, -1')
        a.label(lst)
        a('s_nop 1\nv_permlane32_swap_b32 v96, v98\nv_permlane32_swap_b32 v97, v99\ns_mov_b32 exec_hi, 0')
        a(f'buffer_store_dwordx4 v[96:99], v13, {srd(R_WS)}, s69 offen sc1\ns_mov_b32 exec_hi, -1')
    def s_kv_phase(self):
        a = self.a
        l3 = self.L('kvb'); l4 = self.L('kvf')
        a(f'v_mov_b32 v33, {sNONCE}\ns_waitcnt vmcnt(0)\ns_barrier')
        self.stamp(1); self.estamp(4)
        a(f's_cmp_ge_u32 {sWAVE}, 2\ns_cbranch_scc1 {l3}')
        self.s_kv()
        a('s_waitcnt vmcnt(0)')
        a.label(l3)
        a(f's_barrier\ns_cmp_lg_u32 {sWAVE}, 0\ns_cbranch_scc1 {l4}')
        a(f's_mov_b64 exec, {hex((1 << NREP) - 1)}\nbuffer_store_dword v33, v14, {srd(R_WS)}, s68 offen sc1\ns_mov_b64 exec, -1')
        a.label(l4)
        self.stamp(2); self.estamp(5)

    def s_addr_all(self):
        a = self.a
        PU, PZ, PT, PB, PW, PE, PK, PKZ, PD, PUT, PA = [f'v{x}' if not isinstance(x, str) else x for x in (self.PU, self.PZ, self.PT, self.PB, 'x', 'x', self.PK, self.PKZ, self.PD, 'x', 'x')]
        a(f's_lshl_b32 s8, {sJ}, 6\ns_lshl_b32 s12, {sWAVE}, 4\ns_add_u32 s8, s8, s12\ns_mul_i32 s8, s8, 896\ns_lshl_b32 s12, s73, 7\ns_add_u32 s8, s8, s12')
        a('v_and_b32 v20, 7, v0\nv_lshl_add_u32 v7, v20, 4, v7\nv_add_u32 v7, s8, v7')
        a(f's_lshl_b32 s8, s74, 12\ns_lshl_b32 s12, s9, 11\ns_add_u32 s8, s8, s12\ns_add_u32 s14, s8, {WS_UT}\ns_add_u32 s92, s8, {WS_YT}')
        a(f's_mul_i32 s11, s10, 4608\ns_add_u32 s11, s11, {self.UB}\ns_mul_i32 s8, s10, 4160\ns_add_u32 s75, s8, {self.KB}')
        a(f's_add_u32 s12, s12, s75\nv_lshl_add_u32 {PK}, v0, 5, s12\nv_lshl_add_u32 {PKZ}, v0, 2, s75')
        a('v_bfe_u32 v2, v0, 1, 2\nv_mul_u32_u24 v2, 1152, v2\nv_lshrrev_b32 v21, 3, v0\nv_lshl_add_u32 v2, v21, 5, v2\nv_and_b32 v4, 1, v0\nv_lshl_add_u32 v2, v4, 4, v2')
        a(f's_lshl_b32 s12, s9, 9\ns_add_u32 s12, s12, s11\nv_add_u32 {PU}, s12, v2')
        a(f'v_mul_u32_u24 v3, 1152, v21\nv_lshl_add_u32 v3, v20, 4, v3\nv_add_u32 {PZ}, s11, v3')
        a('v_lshlrev_b32 v4, 4, v4\nv_bfe_u32 v8, v0, 1, 1\nv_lshl_add_u32 v4, v8, 2, v4\nv_bfe_u32 v8, v0, 4, 1\nv_lshl_add_u32 v4, v8, 3, v4')
        a('v_lshrrev_b32 v22, 5, v0\nv_lshlrev_b32 v8, 5, v22\nv_sub_u32 v4, v4, v8\nv_bfe_u32 v23, v0, 2, 2\nv_lshlrev_b32 v8, 2, v23\nv_sub_u32 v4, v4, v8')
        a(f's_add_u32 s12, s75, 96\nv_lshl_add_u32 {PT}, v4, 1, s12')
        a(f'v_bfe_u32 v4, v0, 3, 2\nv_mul_u32_u24 v3, 1152, v4\nv_add_u32 v8, v20, v22\nv_lshl_add_u32 v3, v8, 4, v3\ns_add_u32 s12, s11, 16\nv_add_u32 {PB}, s12, v3')
        a('v_lshrrev_b32 v8, 1, v20\nv_and_b32 v3, 1, v20\nv_lshl_or_b32 v8, v3, 2, v8\nv_lshlrev_b32 v3, 2, v22\nv_xor_b32 v8, v8, v3')
        a('v_lshlrev_b32 v4, 13, v4\nv_lshl_add_u32 v4, v20, 7, v4\ns_lshl_b32 s13, s10, 15\nv_add_u32 v4, s13, v4')
        for g in range(4): a(f'v_xor_b32 v3, {g}, v8\nv_lshl_add_u32 v{self.PW+g}, v3, 4, v4')
        a('s_lshl_b32 s12, s9, 7\nv_add_u32 v2, s12, v0\nv_lshrrev_b32 v3, 2, v2\nv_and_b32 v4, 3, v2\nv_lshlrev_b32 v4, 1, v4')
        def fa(dst, av): a(f'v_bfe_u32 {dst}, {av}, 1, 2\nv_and_b32 v8, 1, {av}\nv_lshl_or_b32 {dst}, v8, 2, {dst}')
        fa('v9', 'v3')
        a('v_xor_b32 v9, v9, v4\nv_lshlrev_b32 v2, 7, v3\nv_add_u32 v2, s13, v2')
        a(f'v_lshl_add_u32 v{self.PE}, v9, 4, v2\nv_xor_b32 v9, 1, v9\nv_lshl_add_u32 v{self.PE+1}, v9, 4, v2')
        a('v_lshl_add_u32 v4, v3, 3, v4\nv_add_u32 v4, -1, v4\nv_ashrrev_i32 v3, 3, v4\nv_and_b32 v4, 7, v4')
        fa('v9', 'v3')
        a(f'v_xor_b32 v9, v9, v4\nv_lshlrev_b32 v2, 7, v3\nv_add_u32 v2, s13, v2\nv_lshl_add_u32 v2, v9, 4, v2\nv_add_u32 v{self.PE+2}, 8192, v2')
        a('s_cmp_eq_u32 s9, 0\ns_cselect_b32 s93, 1, 0')
        U = self.PUT
        a(f'v_lshrrev_b32 v3, 4, v0\nv_lshl_add_u32 v2, v23, 2, v3\nv_lshlrev_b32 v2, 7, v2\nv_and_b32 v9, 3, v0\nv_lshl_add_u32 v2, v9, 3, v2')
        a(f's_lshl_b32 s8, {sWAVE}, 5\ns_add_u32 s8, s8, {self.UTILE}\nv_add_u32 v{U}, s8, v2')
        a(f's_mul_i32 s12, {sWAVE}, 2304\ns_add_u32 s12, s12, {self.TSCR}')
        a(f'v_and_b32 v4, 15, v0\nv_mul_u32_u24 v4, 144, v4\nv_lshl_add_u32 v4, v3, 5, v4\nv_add_u32 v{U+1}, s12, v4')
        a(f'v_lshlrev_b32 v4, 4, v20\nv_mul_u32_u24 v2, 144, v21\nv_add3_u32 v{U+2}, v2, v4, s12')
        a(f's_lshl_b32 s8, s73, 2\ns_add_u32 s8, s8, {sWAVE}\ns_lshl_b32 s8, s8, 16\ns_lshl_b32 s12, {sJ}, 7\ns_add_u32 s8, s8, s12\ns_add_u32 s8, s8, {WS_UT}')
        a(f'v_lshl_add_u32 v{self.PA}, v21, 12, v4\nv_add_u32 v{U+3}, s8, v{self.PA}\nv_add_u32 v{U+4}, {8*4096}, v{U+3}')
        a(f's_lshl_b32 s36, s73, 9\ns_add_u32 s36, s36, {WS_FU}\ns_lshl_b32 s8, {sJ}, 2\ns_add_u32 s35, s36, s8')
        A = self.PA
        a(f's_lshl_b32 s8, s73, 6\ns_lshl_b32 s13, {sWAVE}, 3\ns_add_u32 s8, s8, s13\ns_lshl_b32 s8, s8, 12\ns_add_u32 s8, s8, s12\ns_add_u32 s37, s8, {WS_YT}\ns_add_u32 s38, s37, {32*4096}')
        a(f'v_add_u32 v2, s13, v21\nv_mul_u32_u24 v2, 160, v2\nv_add_u32 v{A+1}, v2, v4')
        a(f'v_lshl_add_u32 v2, v3, 3, v23\nv_mul_u32_u24 v2, 160, v2\nv_lshl_add_u32 v2, v9, 3, v2\ns_lshl_b32 s8, {sWAVE}, 5\nv_add_u32 v{A+2}, s8, v2')
        a(f's_lshl_b32 s8, {sJ}, 2\ns_add_u32 s8, s8, {sWAVE}\ns_mul_i32 s39, s8, {16*1792}\ns_lshl_b32 s8, s73, 7\ns_add_u32 s39, s39, s8\ns_add_u32 s94, s39, {8*1792}')
        a(f'v_mul_u32_u24 v2, 1792, v21\nv_add_u32 v{A+3}, v2, v4')
        a(f'v_and_b32 v2, 15, v0\nv_mul_u32_u24 v2, 144, v2\nv_lshl_add_u32 v2, v3, 4, v2\ns_mul_i32 s8, {sWAVE}, 2304\ns_add_u32 s8, s8, {self.TSCR + 4096}\nv_add_u32 v{A+4}, s8, v2')
        a(f's_mul_i32 s11, {sWAVE}, {self.SCR}\nv_mul_u32_u24 v2, 240, v0\nv_add_u32 v2, s11, v2')
        a(f'v_lshl_add_u32 v3, v23, 1, v22\nv_mul_u32_u24 v3, 480, v3\nv_bfe_u32 v8, v0, 4, 1\nv_lshl_add_u32 v3, v8, 5, v3\nv_lshl_add_u32 v3, v9, 3, v3\nv_add_u32 v3, s11, v3')
        a(f'v_and_b32 v4, 31, v0\nv_mul_u32_u24 v4, 144, v4\nv_lshl_add_u32 v4, v22, 4, v4\nv_add_u32 v4, s11, v4')

    def s_kgen(self, mid_r0):
        a = self.a
        RS = 240
        AW, AR, AP = 'v2', 'v3', 'v4'
        a(f's_waitcnt lgkmcnt(0)\ns_add_u32 {sNONCE}, {sNONCE}, 0x9e3779b9\ns_cmp_eq_u32 s10, 1\ns_cselect_b32 s8, 0, 16')
        a('s_lshl_b32 s12, s71, s8\ns_and_b32 s12, s12, 0xffff0000\ns_lshl_b32 s13, s72, s8\ns_and_b32 s72, s13, 0xffff0000')
        a(f'v_mov_b32 v31, s12\nv_mul_f32 v31, {f32(LOG2E)}, v31\nv_exp_f32 v31, v31\nv_mov_b32 v{self.PD}, 0\nv_cvt_pk_bf16_f32 v31, v31, v31\nv_and_b32 v31, 0xffff0000, v31')
        a(f'v_mul_f32 v32, {f32(-LOG2E)}, v31\nv_mul_f32 v30, 0.15915494309189532, v31\nv_add_f32 v31, v31, v31')
        a(f's_mov_b32 exec_lo, s93\ns_mov_b32 exec_hi, 0\nv_mov_b32 v{self.PD}, s72\ns_mov_b64 exec, -1')
        ACC = 40; FR = 56; TB = 120
        W1, W256, W8 = 24, 26, 28
        RR = (120, 176)
        def cmul(z, x, y, conj, t):
            return [f'v_pk_mul_f32 {vr(t,2)}, {vr(x,2)}, {vr(y,2)} op_sel_hi:[1,0]',
                    f'v_pk_fma_f32 {vr(z,2)}, {vr(x,2)}, {vr(y,2)}, {vr(t,2)} op_sel:[1,1,0] op_sel_hi:[0,1,1] {"neg_hi" if conj else "neg_lo"}:[1,0,0]']
        def pack(buf, i, x, y): return [f'v_cvt_pk_bf16_f32 v{buf+i}, v{x}, v{y}', f'v_cvt_pk_bf16_f32 v{buf+4+i}, v{x+1}, v{y+1}']
        def flush(rnd):
            out = []
            for g in range(4): out += [f'ds_write_b128 {AW}, {vr(RR[rnd]+8*g,4)} offset:{16*g}', f'ds_write_b128 {AW}, {vr(RR[rnd]+8*g+4,4)} offset:{64+16*g}']
            for g in range(3): out += [f'ds_write_b128 {AW}, {vr(RR[rnd]+32+8*g,4)} offset:{128+16*g}', f'ds_write_b128 {AW}, {vr(RR[rnd]+32+8*g+4,4)} offset:{176+16*g}']
            return out
        def reads(q):
            qq, part = q >> 1, q & 1
            for t in range(2): a(f'ds_read_b64_tr_b16 {vr(FR+8*q+2*t,2)}, {AR} offset:{(16*qq+t)*RS + 64*part}')
            for t in range(2): a(f'ds_read_b64_tr_b16 {vr(FR+8*q+4+2*t,2)}, {AR} offset:{(16*qq+t)*RS + 128 + 48*part}')
        l1 = self.L('wp'); l2 = self.L('wp')
        a(f's_cmp_ge_u32 {sXG}, 4\ns_cbranch_scc1 {l1}\ns_waitcnt vmcnt(16)\ns_branch {l2}')
        a.label(l1); a('s_waitcnt vmcnt(5)'); a.label(l2)
        self.fstamp(1); self.estamp(3)
        mfma = lambda q, first: f'v_mfma_f32_32x32x16_bf16 {vr(ACC,16)}, {vr(FR+8*q,4)}, {vr(FR+8*q+4,4)}, {"0" if first else vr(ACC,16)}'
        H0, H2, H4, H6, HT, HU, LA, LB, TL, TG = 34, 36, 38, 40, 42, 44, 46, 48, 50, 52
        for rnd in range(2):
            ex = (lambda d, s: f'v_lshlrev_b32 v{d}, 16, v{s}') if rnd == 0 else (lambda d, s: f'v_and_b32 v{d}, 0xffff0000, v{s}')
            setup = [ex(20, 16), ex(21, 17), ex(H0, 18), ex(H0+1, 19),
                     f'v_mul_f32 v20, {f32(LOG2E)}, v20', 'v_exp_f32 v20, v20', 'v_mul_f32 v21, v21, v30', 'v_cvt_pk_bf16_f32 v20, v20, v20', 'v_and_b32 v20, 0xffff0000, v20', 'v_mul_f32 v20, v20, v32',
                     f'v_mul_f32 v{H0}, v{H0}, v31', f'v_mul_f32 v{H0+1}, -v{H0+1}, v31']
            for W, m in ((W1, 1.0), (W256, 256.0), (W8, 8.0)):
                if m == 1.0: setup += ['v_exp_f32 v22, v20', 'v_fract_f32 v23, v21']
                else: setup += [f'v_mul_f32 v22, {f32(m)}, v20', f'v_mul_f32 v23, {f32(m)}, v21', 'v_exp_f32 v22, v22', 'v_fract_f32 v23, v23']
                setup += [f'v_cos_f32 v{W}, v23', f'v_sin_f32 v{W+1}, v23', f'v_mul_f32 v{W}, v{W}, v22', f'v_mul_f32 v{W+1}, v{W+1}, v22']
            for x in setup: a(x)
            PL = [RR[rnd] + 8*g for g in range(4)]; PG = [RR[rnd] + 32 + 8*g for g in range(3)]
            jl = [f'v_cvt_pk_bf16_f32 v{PL[0]}, 1.0, v{W8}', f'v_cvt_pk_bf16_f32 v{PL[0]+4}, 0, v{W8+1}']
            cur = W8
            for b in range(2, 32, 2):
                jl += cmul(LA, cur, W8, False, TL) + cmul(LB, LA, W8, False, TL) + pack(PL[b >> 3], (b & 7) >> 1, LA, LB); cur = LB
            jg = cmul(HT, H0, W1, True, TG) + pack(PG[0], 0, H0, HT)
            jg += cmul(H2, HT, W1, True, TG) + cmul(HT, H2, W1, True, TG) + pack(PG[0], 1, H2, HT)
            jg += cmul(H4, HT, W1, True, TG) + cmul(HT, H4, W1, True, TG) + pack(PG[0], 2, H4, HT)
            jg += cmul(H6, HT, W1, True, TG) + cmul(HT, H6, W1, True, TG) + pack(PG[0], 3, H6, HT)
            jg += cmul(H0, H0, W256, True, TG) + cmul(H2, H2, W256, True, TG) + pack(PG[1], 0, H0, H2)
            jg += cmul(H4, H4, W256, True, TG) + cmul(H6, H6, W256, True, TG) + pack(PG[1], 1, H4, H6)
            jg += cmul(H0, H0, W256, True, TG) + cmul(H4, H4, W256, True, TG) + pack(PG[1], 2, H0, H4)
            jg += cmul(H0, H0, W256, True, TG) + cmul(H4, H4, W256, True, TG) + pack(PG[1], 3, H0, H4)
            jg += cmul(HT, H0, W256, True, TG) + cmul(HU, HT, W256, True, TG) + pack(PG[2], 0, HT, HU)
            jg += cmul(HT, HU, W256, True, TG) + cmul(HU, HT, W256, True, TG) + pack(PG[2], 1, HT, HU)
            jg += cmul(HT, HU, W256, True, TG) + pack(PG[2], 2, HT, HT) + [f'v_mov_b32 v{PG[2]+3}, 0', f'v_mov_b32 v{PG[2]+7}, 0']
            for x in jg: a(x)
            if rnd == 0:
                mid_r0()
                for x in jl: a(x)
            elif not OPT('kvlate'):
                for x in jl: a(x)
                self.late_kv(True)
                if OPT('xs0'): self.stamp_flush(8); a('s_endpgm')
                for x in flush(0): a(x)
            else:
                fl = flush(0); step = len(jl) // 14
                for i, x in enumerate(jl):
                    a(x)
                    if i % step == step - 1 and fl: a(fl.pop(0))
                for x in fl: a(x)
            self.fstamp(2 + rnd)
        a(f's_mul_i32 s8, s10, {2*self.SCR}\ns_waitcnt vmcnt(0) lgkmcnt(0)')
        for q in range(6): reads(q)
        for k in range(16): a(f'v_add_u32 v{TB+k}, s8, v{104+k}')
        for q in range(6, 8): reads(q)
        a('s_waitcnt lgkmcnt(0)')
        fl = flush(1)
        for q in range(8):
            a(mfma(q, q == 0))
            for x in fl[2*q:2*q+2]: a(x)
        a('s_waitcnt lgkmcnt(0)')
        self.estamp(7)
        for q in range(8):
            reads(q)
            if q >= 3:
                a('s_waitcnt lgkmcnt(12)'); a(mfma(q - 3, False))
        for q in range(5, 8):
            a(f's_waitcnt lgkmcnt({4*(7-q)})'); a(mfma(q, False))
        for g in range(4): a(f'ds_write_b128 {AP}, {vr(ACC+4*g,4)} offset:{32*g}')
        for r in range(4): a(f'v_mov_b32 v{112+r}, 0')
        a('s_waitcnt lgkmcnt(0)\ns_barrier')
        self.fstamp(4)
        G = 56
        for k in range(16): a(f'ds_read2st64_b32 {vr(G+2*k,2)}, v{TB+k} offset1:{self.SCR//256}')
        a(f's_mov_b64 exec, 0xffff\nds_write_b32 v{self.PKZ}, v112\ns_mov_b32 exec_lo, -1\nds_write_b128 v{self.PZ}, v[112:115]\ns_mov_b64 exec, -1')
        for k in range(16):
            if k % 4 == 0: a(f's_waitcnt lgkmcnt({14-k})')
            a(f'v_add_f32 v{G+2*k}, v{G+2*k}, v{G+2*k+1}')
            if k == 0: a(f'v_add_f32 v{G}, v{G}, v{self.PD}')
        for k in range(8): a(f'v_cvt_pk_bf16_f32 v{88+k}, v{G+4*k}, v{G+4*k+2}')
        a(f'ds_write_b128 v{self.PK}, v[88:91] offset:64\nds_write_b128 v{self.PK}, v[92:95] offset:80')
        a(f'v_mov_b32 v113, {sNONCE}\ns_waitcnt lgkmcnt(0)\ns_barrier')
        self.stamp(3)

    def s_u_phase(self):
        a = self.a
        U = self.PUT
        a(f's_lshl_b32 s12, {sWAVE}, 11')
        a(f's_add_u32 m0, s12, {self.UTILE}\ns_mov_b32 s13, {8*896}\nbuffer_load_dwordx4 v7, {srd(R_B)}, 0 offen lds')
        a(f's_add_u32 m0, s12, {self.UTILE + 1024}\ns_nop 0\nbuffer_load_dwordx4 v7, {srd(R_B)}, s13 offen lds')
        a('s_waitcnt vmcnt(0)\ns_barrier')
        for half in range(2):
            for t in range(2):
                a(f'ds_read_b64_tr_b16 {vr(96+4*half+2*t,2)}, v{U} offset:{(32*half+16*t)*128}')
        a(f's_waitcnt lgkmcnt(2)\nds_write_b128 v{U+1}, v[96:99]\ns_waitcnt lgkmcnt(1)\nds_write_b128 v{U+1}, v[100:103] offset:16\ns_waitcnt lgkmcnt(0)')
        a(f'ds_read_b128 v[96:99], v{U+2}\nds_read_b128 v[100:103], v{U+2} offset:{8*144}')
        a(f's_waitcnt lgkmcnt(1)\nbuffer_store_dwordx4 v[96:99], v{U+3}, {srd(R_WS)}, 0 offen sc1')
        a(f's_waitcnt lgkmcnt(0)\nbuffer_store_dwordx4 v[100:103], v{U+4}, {srd(R_WS)}, 0 offen sc1')
        lw = self.L('wu')
        a(f's_waitcnt vmcnt(0)\ns_barrier\ns_cmp_lg_u32 {sWAVE}, 0\ns_cbranch_scc1 {lw}')
        a(f's_mov_b64 exec, 1\nbuffer_store_dword v113, v112, {srd(R_WS)}, s35 offen sc1\ns_mov_b64 exec, -1')
        self.spoll('s36', 32, 8, first_sleep=1)
        a.label(lw)
        a('s_barrier')
        for i in range(2): a(f'buffer_load_dwordx4 {vr(104+4*i,4)}, v15, {srd(R_WS)}, s14 offen offset:{1024*i} sc1')
        a(f's_waitcnt vmcnt(1)\nds_write_b128 v{self.PU}, v[104:107] offset:128\ns_waitcnt vmcnt(0)\nds_write_b128 v{self.PU}, v[108:111] offset:384')
        a('s_waitcnt lgkmcnt(0)')
        self.stamp(4)

    def s_conv(self):
        a = self.a
        self.stamp(5); self.fstamp(5); self.tstamp(1)
        D = 16; BF = (80, 112); TF = (144, 176)
        l1 = self.L('cv1'); lj = self.L('cvj')
        a(f's_cmp_eq_u32 s9, 0\ns_cbranch_scc0 {l1}')
        def variant(tset):
            mmax = max(tset)
            mf = []; reads = []
            seen = set(); started = set()
            for r in range(4):
                pb = r & 1
                for jj in range(mmax + 1):
                    for ti, t in enumerate(tset):
                        if t < jj: continue
                        m = t - jj
                        nb = ('B', r, m); nt = ('T', r, jj)
                        for k in (nt, nb):
                            if k not in seen:
                                seen.add(k)
                                if k[0] == 'B':
                                    reads.append((k, [f'ds_read_b128 {vr(BF[pb]+4*m,4)}, v{self.PB} offset:{32*(4*m - r + 3)}']))
                                else:
                                    mu = 4*jj + r
                                    reads.append((k, [f'ds_read_b64_tr_b16 {vr(TF[pb]+4*jj+2*tt,2)}, v{self.PT} offset:{128*mu + 32*(1-tt)}' for tt in range(2)]))
                        c = vr(D+16*ti, 16) if t in started else '0'
                        started.add(t)
                        mf.append((f'v_mfma_f32_32x32x16_bf16 {vr(D+16*ti,16)}, {vr(TF[pb]+4*jj,4)}, {vr(BF[pb]+4*m,4)}, {c}', (nb, nt), r))
            flat = []; endpos = {}
            for k, xs in reads:
                for x in xs: flat.append((x, k))
                endpos[k] = len(flat)
            issued = 0; done = 0
            lastmf = {}
            for i, (txt, needs, r) in enumerate(mf): lastmf[txt.split(',')[0]] = i
            pend = []; released = False
            for i, (txt, needs, r) in enumerate(mf):
                need = max(endpos[k] for k in needs)
                tgt = min(len(flat), need + (12 if r < 2 else 24))
                step = 0
                while issued < tgt and (issued < need + 12 or step < 2):
                    kk = flat[issued][1]
                    if kk[1] >= r + 2: break
                    a(flat[issued][0]); issued += 1; step += 1
                if issued == len(flat) and not released and r == 3:
                    a('s_waitcnt lgkmcnt(0)\ns_barrier'); done = issued; released = True
                    self.fstamp(6)
                if need > done:
                    n = min(14, issued - need)
                    a(f's_waitcnt lgkmcnt({n})'); done = issued - n
                a(txt)
                if released and pend and pend[0][0] <= i:
                    a(pend.pop(0)[1])
                for ti, t in enumerate(tset):
                    if lastmf[f'v_mfma_f32_32x32x16_bf16 {vr(D+16*ti,16)}'] == i:
                        pend += [(i + 5, f'ds_write_b128 v{self.PW+g}, {vr(D+16*ti+4*g,4)} offset:{t*1024}') for g in range(4)]
            assert released
            for _, x in pend: a(x)
        variant([7, 4, 3, 0]); a(f's_branch {lj}')
        a.label(l1); variant([6, 5, 2, 1])
        a.label(lj)
        a('s_setprio 2\ns_waitcnt lgkmcnt(0)\ns_barrier')
        self.tstamp(2)
        E = self.PE
        for i in range(2):
            Y = [16 + 44*i, 24 + 44*i, 36 + 44*i, 48 + 44*i]
            for ph in range(4):
                o = 4 if ph else 0
                if ph: a(f'ds_read_b128 {vr(Y[ph],4)}, v{E+2} offset:{(ph-1)*8192 + i*2048}')
                a(f'ds_read_b128 {vr(Y[ph]+o,4)}, v{E} offset:{ph*8192 + i*2048}\nds_read_b128 {vr(Y[ph]+o+4,4)}, v{E+1} offset:{ph*8192 + i*2048}')
        for i in range(2):
            Y = [16 + 44*i, 24 + 44*i, 36 + 44*i, 48 + 44*i]
            for ph in range(1, 4):
                a(f's_waitcnt lgkmcnt({min(14, 11*(1-i) + 3*(3-ph))})')
                if i == 0:
                    a('s_mov_b32 exec_lo, s93\ns_mov_b32 exec_hi, 0')
                    for k in range(4 - ph, 4): a(f'v_mov_b32 v{Y[ph]+k}, 0')
                    a('s_mov_b64 exec, -1')
                for k in range(8): a(f'v_add_f32 v{Y[0]+k}, v{Y[0]+k}, v{Y[ph]+4+k-ph}')
            for k in range(4): a(f'v_cvt_pk_bf16_f32 v{104+4*i+k}, v{Y[0]+2*k}, v{Y[0]+2*k+1}')
            a(f'buffer_store_dwordx4 {vr(104+4*i,4)}, v15, {srd(R_WS)}, s92 offen offset:{1024*i} sc1')
        self.stamp(6); self.fstamp(7); self.tstamp(3)

    def s_assemble(self):
        a = self.a
        A = self.PA
        self.wait_y()
        self.tstamp(5)
        a(f'buffer_load_dwordx4 v[16:19], v{A}, {srd(R_WS)}, s37 offen sc1')
        a(f'buffer_load_dwordx4 v[20:23], v{A}, {srd(R_WS)}, s38 offen sc1')
        a(f's_waitcnt vmcnt(1)\nds_write_b128 v{A+1}, v[16:19]\ns_waitcnt vmcnt(0)\nds_write_b128 v{A+1}, v[20:23] offset:{32*160}')
        a('s_waitcnt lgkmcnt(0)\ns_barrier')
        self.tstamp(6)
        for o in range(2):
            for t in range(2): a(f'ds_read_b64_tr_b16 {vr(24+4*o+2*t,2)}, v{A+2} offset:{(32*o+4*t)*160}')
        a(f's_waitcnt lgkmcnt(2)\nds_write_b128 v{A+4}, v[24:27]\ns_waitcnt lgkmcnt(1)\nds_write_b128 v{A+4}, v[28:31] offset:64\ns_waitcnt lgkmcnt(0)')
        a(f'ds_read_b128 v[24:27], v{self.PUT+2} offset:4096\nds_read_b128 v[28:31], v{self.PUT+2} offset:{4096 + 8*144}')
        a(f's_waitcnt lgkmcnt(1)\nbuffer_store_dwordx4 v[24:27], v{A+3}, {srd(R_OUT)}, s39 offen sc1')
        a(f's_waitcnt lgkmcnt(0)\nbuffer_store_dwordx4 v[28:31], v{A+3}, {srd(R_OUT)}, s94 offen sc1')
        self.stamp(7); self.tstamp(7)

    def kernel_head(self, name):
        self.lend = f'L_end_{name}'
        self.a(f'.globl {name}\n.p2align 8\n.type {name},@function')
        self.a.label(name)
    def kernel_tail(self):
        self.a.label(self.lend)
        self.a('s_endpgm')

    SPIN = 1 << 20
    def nonce(self):
        self.a(f's_waitcnt lgkmcnt(0)\ns_add_u32 {sNONCE}, {sNONCE}, 0x9e3779b9')
    def publish_y(self):
        a = self.a; l = self.L('pg')
        a(f's_lshl_b32 s8, s73, 12\ns_add_u32 s8, s8, {WS_PY}\nv_lshl_add_u32 v2, v0, 7, s8\ns_lshl_b32 s8, s73, 8\ns_add_u32 s8, s8, {WS_FY}\nv_writelane_b32 v2, s8, 32')
        a(f's_lshl_b32 s12, {sJ}, 2\nv_mov_b32 v3, {sNONCE}')
        a('s_waitcnt vmcnt(0)\ns_barrier')
        self.tstamp(4)
        a(f's_cmp_lg_u32 {sWAVE}, 0\ns_cbranch_scc1 {l}')
        a(f's_mov_b32 exec_hi, 1\nbuffer_store_dword v3, v2, {srd(R_WS)}, s12 offen sc1\ns_mov_b64 exec, -1')
        a.label(l)
    def poll(self, vaddr, soff, width, mask_lo, mask_hi, sleep, vt=250):
        a = self.a; lp = self.L('poll'); ld = self.L('polled')
        ld_ = {1: 'dword', 2: 'dwordx2', 4: 'dwordx4'}[width]
        a(f's_mov_b32 exec_lo, {hex(mask_lo)}\ns_mov_b32 exec_hi, {hex(mask_hi)}\ns_mov_b32 s47, {self.SPIN}')
        a.label(lp)
        a(f'buffer_load_{ld_} {vr(vt,width)}, {vaddr}, {srd(R_WS)}, {soff} offen sc1\ns_waitcnt vmcnt(0)')
        a(f'v_xor_b32 v{vt}, {sNONCE}, v{vt}')
        for i in range(1, width): a(f'v_xor_b32 v{vt+i}, {sNONCE}, v{vt+i}\nv_or_b32 v{vt}, v{vt}, v{vt+i}')
        a(f'v_cmp_ne_u32 vcc, 0, v{vt}\ns_cbranch_vccz {ld}')
        if sleep: a(f's_sleep {sleep}')
        a(f's_sub_u32 s47, s47, 1\ns_cmp_lg_u32 s47, 0\ns_cbranch_scc1 {lp}')
        a.label(ld)
        a('s_mov_b64 exec, -1')
    def spoll(self, soff, n, sleep, first_sleep=0):
        a = self.a
        a(f's_mov_b32 s40, {sNONCE}\ns_mov_b32 s41, {sNONCE}\ns_mov_b32 s47, {self.SPIN}')
        for c in range(max(1, n // 16)):
            lp = self.L('sp'); lr = self.L('spr'); ld = self.L('spd')
            if c: a(f's_add_u32 {soff}, {soff}, 64')
            elif first_sleep: a(f's_branch {lr}')
            a.label(lp)
            if n == 1:
                a(f's_load_dword s16, {sp(P_WS)}, {soff} glc\ns_waitcnt lgkmcnt(0)\ns_cmp_eq_u32 s16, {sNONCE}\ns_cbranch_scc1 {ld}')
            else:
                a(f's_load_dwordx16 s[16:31], {sp(P_WS)}, {soff} glc\ns_waitcnt lgkmcnt(0)')
                for i in range(7): a(f's_cmp_eq_u64 s[{16+2*i}:{17+2*i}], s[40:41]\ns_cbranch_scc0 {lr}')
                a(f's_cmp_eq_u64 s[30:31], s[40:41]\ns_cbranch_scc1 {ld}')
            a.label(lr)
            if sleep: a(f's_sleep {sleep}')
            a(f's_sub_u32 s47, s47, 1\ns_cmp_gt_i32 s47, 0\ns_cbranch_scc1 {lp}')
            a.label(ld)
    def wait_kv(self, sleep=1):
        a = self.a; l = self.L('wkv')
        a(f's_cmp_lg_u32 {sWAVE}, 0\ns_cbranch_scc1 {l}')
        a(f's_and_b32 s8, s2, {NREP-1}\ns_lshl_b32 s8, s8, 10\ns_add_u32 s8, s8, {WS_FKV}\nv_lshlrev_b32 v2, 4, v0')
        self.poll('v2', 's8', 4, 0xffffffff, 0xffffffff, sleep)
        a.label(l)
        a('s_barrier')
    def wait_y(self):
        a = self.a; l = self.L('wg')
        a(f's_cmp_lg_u32 {sWAVE}, 0\ns_cbranch_scc1 {l}')
        a(f's_lshl_b32 s8, s73, 5\ns_add_u32 s8, s8, {sJ}\ns_lshl_b32 s8, s8, 7\ns_add_u32 s8, s8, {WS_PY}')
        self.spoll('s8', 32, 0)
        a.label(l)
        a('s_barrier')
    def publish_o(self):
        a = self.a
        a(f's_lshl_b32 s8, s6, 10\ns_add_u32 s8, s8, {WS_PO}\nv_lshl_add_u32 v2, v0, 7, s8\ns_lshl_b32 s8, s6, 8\ns_add_u32 s8, s8, {WS_FO}\nv_writelane_b32 v2, s8, 8')
        a(f's_lshl_b32 s9, s7, 4\ns_lshl_b32 s8, {sWAVE}, 2\ns_add_u32 s9, s9, s8')
        self.tstamp(2)
        a(f'v_mov_b32 v3, {sNONCE}\ns_waitcnt vmcnt(0)')
        self.tstamp(3)
        a(f's_mov_b64 exec, 0x1ff\nbuffer_store_dword v3, v2, {srd(R_WS)}, s9 offen sc1\ns_mov_b64 exec, -1')
        a('s_mov_b32 s73, 1')
        a.label(self.lnopub)
        self.stamp(5)
        self.lfb = self.L('fallback')
        a(f's_lshl_b32 s8, {sWAVE}, 4\nv_mov_b32 v2, s8\nv_mov_b32 v3, s12\nds_write_b32 v2, v3 offset:3588\nv_mov_b32 v2, 3588')
        a('s_waitcnt lgkmcnt(0)\ns_barrier')
        a('ds_read2_b32 v[4:5], v2 offset1:4\nds_read2_b32 v[10:11], v2 offset0:8 offset1:12\ns_waitcnt lgkmcnt(0)')
        a(f'v_or3_b32 v4, v4, v5, v10\nv_or_b32 v4, v4, v11\nv_cmp_ne_u32 vcc, 0, v4\ns_cbranch_vccnz {self.lfb}')
    def wait_o(self):
        a = self.a; l = self.L('wo')
        a(f's_cmp_lg_u32 {sWAVE}, 0\ns_cbranch_scc1 {l}')
        a(f's_lshl_b32 s9, s6, 3\ns_add_u32 s9, s9, s7\ns_lshl_b32 s9, s9, 7\ns_add_u32 s9, s9, {WS_PO}')
        self.spoll('s9', 32, 0)
        a.label(l)
        a('s_waitcnt vmcnt(0)\ns_barrier')
    def e_update(self):
        a = self.a; l = self.L('eu')
        a(f's_cmp_lg_u32 s2, 253\ns_cbranch_scc1 {l}')
        a('v_lshrrev_b32 v2, 3, v0\nv_lshlrev_b32 v2, 8, v2\nv_and_b32 v3, 7, v0\nv_lshl_add_u32 v2, v3, 4, v2')
        a(f's_mov_b32 s8, {WS_FY}')
        if not (OPT('xs0') or OPT('xs1') or OPT('xs2')): self.poll('v2', 's8', 4, 0xffffffff, 0x00ffffff, 32)
        a(f's_lshl_b32 s8, {sWAVE}, 11\ns_add_u32 s8, s8, {WS_FO}')
        self.poll('v2', 's8', 4, 0xffffffff, 0xffffffff, 16)
        a(f's_barrier\ns_cmp_lg_u32 {sWAVE}, 0\ns_cbranch_scc1 {l}')
        a(f'v_mov_b32 v2, {WS_E}\nv_mov_b32 v3, {sNONCE}\ns_mov_b64 exec, 1\nbuffer_store_dword v3, v2, {srd(R_WS)}, 0 offen sc1')
        a.label(l)

    def wo_prefetch(self):
        a = self.a
        a(f's_mul_i32 s8, {sJ}, 12544\ns_lshl_b32 s9, {sWAVE}, 10\ns_add_u32 s8, s8, s9')
        for i in range(4):
            a(f'buffer_load_dwordx4 v[240:243], v15, {srd(R_B)}, s8 offen')
            if i < 3: a('s_add_u32 s8, s8, 4096')
    def build_fused(self):
        a = self.a
        kn = NAME + '_kernel'
        self.kernel_head(kn)
        if OPT('empty'): a('s_endpgm')
        self.prologue(512)
        la = self.L('roleA'); lidle = self.L('idle'); lnopf = self.L('nopf'); lnz = self.L('nonce')
        a(f's_cmp_ge_u32 s2, 256\ns_cbranch_scc1 {la}')
        if OPT('qonly'): a('s_endpgm')
        a('s_setprio 3')
        self.s_ids(); self.s_kv_addr()
        self.after_kernarg()
        lq = self.L('pr'); lq2 = self.L('pr'); lq3 = self.L('pr')
        a(f's_cmp_eq_u32 {sXG}, 5\ns_cbranch_scc1 {lidle}')
        self.s_params_load()
        self.kv_srds()
        a(f's_cmp_ge_u32 {sXG}, 4\ns_cbranch_scc1 {lq}')
        self.s_kv_load()
        a.label(lq)
        self.mk_srd(R_B, P_U, X_BYTES); self.mk_srd(R_OUT, P_OUT, OUT_BYTES)
        self.code_prefetch(kn)
        a('s_lshl_b32 s8, s9, 12\nv_add_u32 v1, s8, v15')
        self.s_table_load(104)
        self.s_kv_addr2(); self.s_addr_all()
        def mid_r0():
            a(f's_cmp_ge_u32 {sXG}, 4\ns_cbranch_scc1 {lq2}')
            self.s_kv_phase()
            a.label(lq2)
            a('s_setprio 2' if not OPT('shi') else 's_setprio 3')
        def late_kv(hold):
            a(f's_cmp_lt_u32 {sXG}, 4\ns_cbranch_scc1 {lq3}')
            if hold and not OPT('kvnohold'):
                a(f's_lshl_b32 s8, s2, 8\ns_add_u32 s8, s8, {WS_FA}')
                self.spoll('s8', 1, 1)
            self.s_kv_load()
            self.s_kv_phase()
            a.label(lq3)
        self.late_kv = late_kv
        self.s_kgen(mid_r0)
        if OPT('kvlate'): late_kv(False)
        if OPT('xs1'): self.stamp_flush(8); a('s_endpgm')
        self.s_u_phase()
        if OPT('xs2'): self.stamp_flush(8); a('s_endpgm')
        a('s_setprio 0')
        if not OPT('notrig') and not OPT('noA'):
            lt = self.L('trig')
            a(f's_cmp_lg_u32 {sWAVE}, 0\ns_cbranch_scc1 {lt}\ns_lshl_b32 s8, s2, 8\ns_add_u32 s8, s8, {WS_FA + 4}')
            self.spoll('s8', 1, 2)
            a.label(lt)
        a('s_barrier')
        self.s_conv()
        self.publish_y()
        self.s_assemble()
        self.stamp_flush(8)
        a('s_endpgm')
        a.label(lidle)
        self.s_kv_addr2()
        self.code_prefetch(kn)
        self.mk_srd(R_B, P_WO, WQ_BYTES)
        self.kv_srds()
        self.nonce()
        if not OPT('noA'):
            a(f's_lshl_b32 s8, s2, 8\ns_add_u32 s8, s8, {WS_FA}')
            self.spoll('s8', 1, 1)
        self.s_kv_load()
        self.s_kv_phase()
        self.wo_prefetch()
        if not OPT('noA'):
            self.e_update()
        else:
            a(f'v_mov_b32 v2, {WS_E}\nv_mov_b32 v3, {sNONCE}\ns_cmp_lg_u32 s2, 253\ns_cbranch_scc1 {self.lend}\n' + 's_sleep 127\n' * 6 + f'buffer_store_dword v3, v2, {srd(R_WS)}, 0 offen sc1')
        a('s_endpgm')
        a.label(la)
        if OPT('noA'): a('s_endpgm')
        a('s_setprio 3')
        self.a_qproj()
        if OPT('qonly'):
            self.stamp_flush(10); a('s_endpgm')
        a('s_setprio 1' if not OPT('ahigh') else 's_setprio 3')
        self.a_attn(); self.publish_o(); self.a_outproj(); self.stamp_flush(10)
        a('s_endpgm')
        self.a_fallback()
        self.kernel_tail()
        return [kn], [512]
    def code_prefetch(self, kn):
        a = self.a
        lp = self.L('pc')
        a('s_getpc_b64 s[12:13]'); a.label(lp)
        a(f's_add_u32 s12, s12, {kn}-{lp}\ns_addc_u32 s13, s13, -1')
        a(f's_lshl_b32 s8, {sJ}, 2\ns_add_u32 s8, s8, {sWAVE}\ns_mul_i32 s8, s8, 320\nv_mul_u32_u24 v9, 5, v0\nv_add_u32 v9, s8, v9\nv_and_b32 v9, -4, v9\nv_min_u32 v9, L_table-4-{kn}, v9')
        a('global_load_dword v55, v9, s[12:13]' if not OPT('nocpf') else f'global_load_dword v55, v15, {sp(P_LAR)}')
    def nonce_a(self):
        self.a(f's_add_u32 {sNONCE}, {sNONCE}, 0x9e3779b9')

def table():
    import numpy as np
    def rne_bf16(j):
        u = struct.unpack('<I', struct.pack('<f', float(j)))[0]
        u = (u + 0x7fff + ((u >> 16) & 1)) & 0xffff0000
        return int(struct.unpack('<f', struct.pack('<I', u))[0])
    hi = [0,1,2,3,4,5,6,7, 256,258,260,262, 512,516,768,772, 1024,1280,1536,1792, 2048]
    out = []
    for j in range(2048):
        p = rne_bf16(j)
        b = (p >> 3) & 31
        out.append(hi.index(p - 8 * b) * 144 + 4 * b)
    lin = []
    for mh in range(2):
        for i in range(4):
            for lane in range(64):
                lin += out[16*(64*mh+lane)+4*i:16*(64*mh+lane)+4*i+4]
    return lin

def main():
    mode = sys.argv[1]; outp = sys.argv[2]; stamps = len(sys.argv) > 3 and sys.argv[3] == 'stamps'
    g = Gen(mode, stamps)
    names, grids = g.build_multi() if mode == 'multi' else g.build_fused()
    body = g.a.finalize(verbose='-v' in sys.argv)
    head = open('cdna_kernels/' + NAME + '.s.ref').read().split('; Override launch geometry')[0]
    txt = head
    if mode == 'multi':
        for n, gr in zip(names, grids): txt += f'; @launch kernel={n} grid=({gr},1,1) block=(256,1,1) lds=81920\n'
    else:
        txt += f'; @launch grid=({grids[0]},1,1) block=(256,1,1) lds=81920\n'
    txt += '.amdgcn_target "amdgcn-amd-amdhsa--gfx950"\n.text\n' + body
    txt += '.p2align 6\n.type L_table,@object\nL_table:\n'
    t = table()
    for i in range(0, 2048, 16): txt += '.long ' + ','.join(str(x) for x in t[i:i+16]) + '\n'
    txt += '.section .rodata,"a"\n'
    for n in names:
        txt += f'''.p2align 6
.amdhsa_kernel {n}
  .amdhsa_next_free_vgpr 256
  .amdhsa_next_free_sgpr 100
  .amdhsa_accum_offset 256
  .amdhsa_group_segment_fixed_size 0
  .amdhsa_kernarg_size 120
  .amdhsa_user_sgpr_count 2
  .amdhsa_user_sgpr_kernarg_segment_ptr 1
  .amdhsa_system_sgpr_workgroup_id_x 1
.end_amdhsa_kernel
'''
    open(outp, 'w').write(txt)
    print('written', outp, 'nops inserted', g.a.n_nops, 'lines', len(g.a.lines))

if __name__ == '__main__':
    main()
```

```python
import sys, struct, math
from asmdsl import Asm

NAME = 'concat_heads__ssm_conv_s4d__grouped_kv_mqa__prompt'
X_BYTES = 2048 * 896; WQ_BYTES = 448 * 896; WK_BYTES = 448 * 56; OUT_BYTES = 2048 * 1792
WS_E = 0; WS_FKV = 0x80000; WS_FU = 0x9000; WS_FY = 0xA000; WS_FO = 0xB000
WS_FA = 0x50000; WS_PO = 0xA0000; WS_PY = 0xC0000; WS_KV = 0x10000; WS_O = 0x100000; WS_UT = 0x300000; WS_YT = 0x500000; WS_ST = 0x700000; WS_BYTES = 0x800000
NREP = 32
def f32(x): return '0x%08x' % struct.unpack('<I', struct.pack('<f', x))[0]
LOG2E = math.log2(math.e)
CSCALE = LOG2E / math.sqrt(28.0)

sWAVE = 's3'; sXG = 's4'; sJ = 's5'; sM = 's96'
P_U, P_LAR, P_AIM, P_CRE, P_CIM, P_LDT, P_DSK, P_X = [16 + 2 * i for i in range(8)]
P_WQ, P_WK, P_WV, P_WO = 32, 34, 36, 38
P_OUT, P_DBG, P_WS = 40, 42, 44
sNONCE = 's46'
R_X = 48; R_W = 52; R_WS = 56; R_OUT = 60; R_B = 64
def srd(r): return f's[{r}:{r+3}]'
def sp(r): return f's[{r}:{r+1}]'
def vr(a, n): return f'v[{a}:{a+n-1}]' if n > 1 else f'v{a}'

def OPT(x): return x in sys.argv
OSP = ' nt' if OPT('ont') else ' sc1' if OPT('osc1') else ' sc0 sc1' if OPT('osc01') else ''
class Gen:
    def __init__(self, mode, stamps=False):
        self.a = Asm(); self.mode = mode; self.stamps = stamps; self.uid = 0
    def L(self, base):
        self.uid += 1
        return f'L_{base}_{self.uid}'
    def mk_srd(self, r, p, nbytes):
        if r == R_OUT and OPT('nostore'): nbytes = 16
        if r == R_WS and OPT('wsbig'): nbytes = 0x10000000
        self.a(f's_mov_b32 s{r}, s{p}\ns_mov_b32 s{r+1}, s{p+1}\ns_mov_b32 s{r+2}, {hex(nbytes)}\ns_mov_b32 s{r+3}, 0x20000')
    def stamp(self, i):
        if self.stamps and not ((OPT('early') or OPT('sfine') or OPT('tail') or OPT('qst') or OPT('ast')) and i > 0):
            self.a(f's_memrealtime s[{76+2*i}:{77+2*i}]')
    def fstamp(self, i):
        if self.stamps and OPT('sfine'):
            self.a(f's_memrealtime s[{76+2*i}:{77+2*i}]')
    def tstamp(self, i):
        if self.stamps and OPT('tail'):
            self.a(f's_memrealtime s[{76+2*i}:{77+2*i}]')
    def qstamp(self, i):
        if self.stamps and OPT('qst'):
            self.a(f's_memrealtime s[{76+2*i}:{77+2*i}]')
    def astamp(self, i):
        if self.stamps and OPT('ast'):
            self.a(f'{"s_memtime" if OPT("cyc") else "s_memrealtime"} s[{76+2*i}:{77+2*i}]')
    def estamp(self, i):
        if self.stamps and OPT('early'):
            self.a(f's_memrealtime s[{76+2*i}:{77+2*i}]')
    def cstamp(self, i):
        if self.stamps:
            self.a(f's_memtime s[{76+2*i}:{77+2*i}]')
    def stamp_flush(self, n):
        if not self.stamps: return
        a = self.a
        a('s_waitcnt lgkmcnt(0)')
        if OPT('dbgst'):
            l = self.L('dbg')
            a(f's_cmp_lg_u32 {sWAVE}, 0\ns_cbranch_scc1 {l}')
            self.mk_srd(R_X, P_DBG, 256)
            a('v_mov_b32 v2, 0')
            isA = n == 10
            for i in range(8):
                if i == 0 and isA: a('s_not_b32 s6, s76\nv_writelane_b32 v2, s6, 0')
                else: a(f'v_writelane_b32 v2, s{76+2*i}, {i}')
            a(f'v_lshlrev_b32 v1, 2, v0\nv_add_u32 v1, {0 if isA else 32}, v1\ns_mov_b64 exec, 0xff')
            a(f'buffer_atomic_umax v2, v1, {srd(R_X)}, 0 offen\ns_mov_b64 exec, -1')
            a.label(l)
            return
        a(f's_lshl_b32 s6, s2, 2\ns_add_u32 s6, s6, {sWAVE}\ns_lshl_b32 s6, s6, 6\ns_add_u32 s6, s6, {WS_ST}')
        a('v_mov_b32 v1, s6')
        for i in range(n):
            a(f'v_mov_b32 v2, s{76+2*i}\nbuffer_store_dword v2, v1, {srd(R_WS)}, 0 offen offset:{4*i}')
        a('s_getreg_b32 s7, hwreg(HW_REG_XCC_ID)\nv_mov_b32 v2, s7')
        a(f'buffer_store_dword v2, v1, {srd(R_WS)}, 0 offen offset:60')

    def prologue(self, nwg):
        a = self.a
        if self.stamps:
            for i in range(1, 10): a(f's_mov_b64 s[{76+2*i}:{77+2*i}], 0')
        self.stamp(0)
        a(f's_cmp_ge_u32 s2, {nwg}\ns_cbranch_scc1 {self.lend}')
        a('s_load_dwordx16 s[16:31], s[0:1], 0\ns_load_dwordx8 s[32:39], s[0:1], 64')
        a('s_load_dwordx4 s[40:43], s[0:1], 96\ns_load_dwordx2 s[44:45], s[0:1], 112')
        a('v_lshrrev_b32 v1, 6, v0\nv_and_b32 v0, 63, v0')
        a(f's_and_b32 {sXG}, s2, 7\ns_bfe_u32 {sJ}, s2, 0x50003')
        a(f'v_readfirstlane_b32 {sWAVE}, v1')

    def after_kernarg(self):
        a = self.a
        self.estamp(1)
        a('s_waitcnt lgkmcnt(0)')
        self.estamp(2)
        self.mk_srd(R_WS, P_WS, WS_BYTES)
        a(f'buffer_load_dword v54, off, {srd(R_WS)}, 0 offset:{WS_E} sc1')

    def row7_addr(self, v0, v1, tmp, rowstride):
        a = self.a
        for v, add in ((v0, 0), (v1, 64)):
            if add: a(f'v_add_u32 {tmp}, {add}, v0')
            else: a(f'v_mov_b32 {tmp}, v0')
            a(f'v_mul_u32_u24 {v}, 147, {tmp}\nv_lshrrev_b32 {v}, 10, {v}')
            a(f'v_mul_u32_u24 {v}, {rowstride - 112}, {v}')
            a(f'v_lshl_add_u32 {v}, {tmp}, 4, {v}')

    def w128_src(self):
        a = self.a
        a(f's_lshl_b32 s8, {sWAVE}, 4\ns_mul_i32 s9, s8, 896\ns_mul_i32 s11, s7, 112\ns_add_u32 s9, s9, s11')
        a('v_lshrrev_b32 v2, 3, v0\nv_mul_u32_u24 v2, 896, v2\nv_bfe_u32 v3, v0, 4, 1\nv_lshlrev_b32 v3, 2, v3\nv_and_b32 v4, 7, v0\nv_xor_b32 v3, v3, v4')
        a('v_lshl_add_u32 v7, v3, 4, v2\nv_add_u32 v7, s9, v7\nv_add_u32 v8, 7168, v7')
    def w128_frag(self, dst, rowmul_h, sbyte):
        a = self.a
        a(f'v_bfe_u32 v2, v0, 4, 1\nv_lshlrev_b32 v2, 5, v2\nv_and_b32 v3, 3, v0\nv_lshl_add_u32 v2, v3, 3, v2\nv_add_u32 v2, {sbyte}, v2')
        a(f'v_bfe_u32 v3, v0, 3, 1\nv_lshlrev_b32 v3, 6, v3\nv_xor_b32 v2, v2, v3')
        a(f'v_lshrrev_b32 v3, 5, v0\nv_mul_u32_u24 v3, {rowmul_h}, v3\nv_bfe_u32 v4, v0, 2, 2\nv_add_u32 v3, v3, v4\nv_lshl_add_u32 {dst}, v3, 7, v2')
    def a_qproj_addr(self):
        a = self.a
        QX = 32768
        self.mk_srd(R_B, P_WO, WQ_BYTES); self.mk_srd(R_OUT, P_OUT, OUT_BYTES)
        a(f's_and_b32 s8, {sWAVE}, 1\ns_lshl_b32 s8, s8, 5')
        a('v_and_b32 v2, 31, v0\nv_add_u32 v2, s8, v2\nv_bfe_u32 v3, v2, 1, 3\nv_lshrrev_b32 v4, 5, v0\nv_xor_b32 v3, v3, v4\nv_lshlrev_b32 v2, 7, v2')
        for ks in range(4):
            a(f'v_xor_b32 v9, {2*ks}, v3\nv_lshl_add_u32 v{10+ks}, v9, 4, v2\nv_add_u32 v{20+ks}, 0x10000, v{10+ks}')
        a(f's_lshr_b32 s8, {sWAVE}, 1\ns_mul_i32 s8, s8, 56')
        self.w128_frag('v14', 8, 's8')
        a('v_add_u32 v24, 0x10000, v14\nv_lshlrev_b32 v15, 4, v0')
        a(f's_lshl_b32 s8, {sWAVE}, 11\ns_add_u32 s8, s8, {QX}\nv_add_u32 v2, s8, v15')
        for js in range(4):
            a(f's_add_u32 s8, {sWAVE}, {1+js}\ns_and_b32 s8, s8, 3\ns_lshl_b32 s9, s8, 11\ns_add_u32 s9, s9, {QX}\nv_add_u32 v{192+js}, s9, v15')
            if js < 3:
                a(f's_mul_i32 s9, s8, 12288\nv_add_u32 v{196+js}, s9, v15')
        for r in range(64, 112): a(f'v_mov_b32 v{r}, 0')
    def a_qproj(self):
        a = self.a
        QX = 32768
        REG = [0, 16384, 32768, 49152, 65536, 0, 16384]
        sQB = 's6'; sHP = 's7'
        a(f's_lshr_b32 s8, {sJ}, 3\ns_lshl_b32 {sQB}, {sXG}, 2\ns_add_u32 {sQB}, {sQB}, s8\ns_and_b32 {sHP}, {sJ}, 7')
        a(f's_lshl_b32 s8, {sWAVE}, 4\ns_lshl_b32 s9, {sQB}, 6\ns_add_u32 s9, s9, s8\ns_mul_i32 s9, s9, 896')
        a('v_lshrrev_b32 v2, 3, v0\nv_lshrrev_b32 v3, 4, v0\nv_and_b32 v4, 7, v0')
        a('v_xor_b32 v4, v4, v3\nv_mul_u32_u24 v2, 896, v2')
        a('v_lshl_add_u32 v5, v4, 4, v2\nv_add_u32 v5, s9, v5')
        a('v_xor_b32 v4, 4, v4\nv_lshl_add_u32 v6, v4, 4, v2\nv_add_u32 v6, s9, v6\nv_add_u32 v6, 7168, v6')
        a(f's_lshl_b32 s10, {sWAVE}, 11')
        self.w128_src()
        a(f's_lshr_b32 s8, {sJ}, 3\ns_lshl_b32 s8, s8, 1\ns_add_u32 s8, s8, {sHP}\ns_cmp_ge_u32 s8, 7\ns_cselect_b32 s9, 7, 0\ns_sub_u32 s8, s8, s9')
        a('s_cmp_ge_u32 s8, 7\ns_cselect_b32 s9, 7, 0\ns_sub_u32 s8, s8, s9')
        a('s_lshl_b32 s14, s8, 7\ns_mul_i32 s15, s8, 57344')
        self.after_kernarg()
        self.mk_srd(R_X, P_X, X_BYTES); self.mk_srd(R_W, P_WQ, WQ_BYTES)
        def loadx(i):
            a(f's_add_u32 m0, s10, {REG[i]}\ns_nop 0\nbuffer_load_dwordx4 v5, {srd(R_X)}, s14 offen lds')
            a(f's_add_u32 m0, s10, {REG[i] + 1024}\ns_nop 0\nbuffer_load_dwordx4 v6, {srd(R_X)}, s14 offen lds')
            if i < 6: a('s_add_u32 s14, s14, 128\ns_cmp_eq_u32 s14, 896\ns_cselect_b32 s14, 0, s14')
        def loadw(i):
            a(f's_add_u32 m0, s10, {REG[i] + 8192}\ns_nop 0\nbuffer_load_dwordx4 v7, {srd(R_W)}, s15 offen lds')
            a(f's_add_u32 m0, s10, {REG[i] + 8192 + 1024}\ns_nop 0\nbuffer_load_dwordx4 v8, {srd(R_W)}, s15 offen lds')
            if i < 6: a(f's_add_u32 s15, s15, 57344\ns_cmp_eq_u32 s15, {7*57344}\ns_cselect_b32 s15, 0, s15')
        def load(i): loadw(i); loadx(i)
        NF = 3 if OPT('q3') else 5 if OPT('q5') else 4
        a('s_setprio 1')
        if OPT('wfirst'): loadw(0); loadw(1); loadx(0); loadx(1)
        else: loadx(0); loadw(0); loadx(1); loadw(1)
        self.a_qproj_addr()
        for i in range(2, NF): load(i)
        if not OPT('shi'): a('s_setprio 3')
        self.estamp(3)
        FX = (144, 176); FW = (160, 232); ACC = 48
        issued = NF
        def rd(i):
            hi = REG[i] >= 65536
            off = REG[i] - (65536 if hi else 0)
            for ks in range(4):
                a(f'ds_read_b128 {vr(FX[i&1]+4*ks,4)}, v{(20 if hi else 10)+ks} offset:{off}')
                for t in range(2):
                    a(f'ds_read_b64_tr_b16 {vr(FW[i&1]+4*ks+2*t,2)}, v{24 if hi else 14} offset:{off + 8192 + (16*ks+4*t)*128}')
        def mm(i, waits):
            for ks in range(4):
                c = '0' if (i == 0 and ks == 0) else vr(ACC, 16)
                if waits[ks] is not None: a(f's_waitcnt lgkmcnt({waits[ks]})')
                a(f'v_mfma_f32_32x32x16_bf16 {vr(ACC,16)}, {vr(FW[i&1]+4*ks,4)}, {vr(FX[i&1]+4*ks,4)}, {c}')
        extra = 0; FLS = 4 if OPT('fl4') else 5
        for i in range(7):
            a(f's_waitcnt vmcnt({4*(issued - 1 - i) - (2 if i == 0 and OPT("wfirst") else 0) + extra}) lgkmcnt(0)\ns_barrier')
            if i == 0: self.stamp(1); self.estamp(4)
            if i == 3: self.estamp(5)
            if i == 6: self.estamp(6)
            self.qstamp(i + 1)
            if (i == 6 and OPT('flvec')) or (i == 5 and OPT('flvec5')) or (i == 6 and OPT('flvec6')):
                a(f's_mov_b64 exec, 0xffff\nbuffer_load_dword v250, v251, {srd(R_WS)}, s36 offen sc1\ns_mov_b64 exec, -1'); extra += 1
            rd(i)
            if i and i < 6: mm(i - 1, [None] * 4)
            while issued < 7 and issued <= i + NF and (issued < 5 or issued - 5 < i): load(issued); issued += 1
            if i == 0: self.a_attn_setup()
            if i == (5 if OPT('fa5') else 3):
                assert issued == 7
                a(f'buffer_store_dword v199, v248, {srd(R_WS)}, s69 offen sc1'); extra += 1
            if i == 5:
                mm(5, [9, 6, 3, 0])
                if OPT('flpre'):
                    a('s_mov_b32 s14, 0')
                    for x in self.fl_load(): a(x)
        mm(6, [9, 6, 3, 0])
        V2 = OPT('flvec5') or OPT('flvec6')
        if V2:
            lno = self.L('nokv')
            a(f's_waitcnt vmcnt(0)\ns_mov_b64 exec, 0xffff\nv_cmp_ne_u32 vcc, v250, v199\ns_mov_b64 exec, -1\ns_cbranch_vccnz {lno}')
            self.kv_first([0])
            a('s_mov_b32 s75, 1')
            a.label(lno)
        if OPT('flpre'):
            lno = self.L('nokv')
            for x in self.fl_test()[1:]: a(x)
            a(f's_cbranch_scc1 {lno}')
            self.kv_first([0])
            a('s_mov_b32 s75, 1')
            a.label(lno)
        for r in range(8): a(f'v_mov_b32 v{184+r}, 0')
        for r in range(8): a(f'v_cvt_pk_bf16_f32 v{224+r}, v{ACC+2*r}, v{ACC+2*r+1}')
        a('s_mov_b32 exec_lo, 0\nv_mov_b32 v230, 0\nv_mov_b32 v231, 0\ns_mov_b32 exec_lo, -1')
        a('ds_write_b128 v2, v[224:227]\nds_write_b128 v2, v[228:231] offset:1024')
        for r in range(48, 64): a(f'v_mov_b32 v{r}, 0')
        a('s_waitcnt lgkmcnt(0)')
        if not OPT('flpre') and not OPT('flvec') and not V2:
            a('s_mov_b32 s14, 0')
            for x in self.fl_load(): a(x)
        a('s_barrier')
        for js in range(4):
            a(f'ds_read_b128 {vr(16+8*js,4)}, v{192+js}\nds_read_b128 {vr(20+8*js,4)}, v{192+js} offset:1024')
        lno2 = self.L('nokv')
        if OPT('flvec'):
            a(f's_waitcnt vmcnt(0)\ns_mov_b64 exec, 0xffff\nv_cmp_ne_u32 vcc, v250, v199\ns_mov_b64 exec, -1\ns_cbranch_vccnz {lno2}\ns_mov_b32 s75, 1')
            self.kv_first([0])
        elif not OPT('flpre') and not V2:
            for x in self.fl_test(): a(x)
            a(f's_cbranch_scc1 {lno2}\ns_mov_b32 s75, 1')
            self.kv_first([0])
        else: a(f's_cmp_eq_u32 s75, 0\ns_cbranch_scc1 {lno2}')
        self.kv_first([1, 2, 3])
        a.label(lno2)
        self.stamp(2); self.estamp(7)

    KB_ = (112, 128, 200, 216); CK = ['s32', 's33', 's34', 's35']
    def ldK(self, buf): return ['s_nop 0', 's_nop 0'] if OPT('nold') and getattr(self, 'inloop', 0) else [f'buffer_load_dwordx4 {vr(self.KB_[buf] + 4*f, 4)}, v15, {srd(R_WS)}, s68 offen offset:{1024*f} sc1' for f in range(2)]
    def ldV(self, buf): return ['s_nop 0', 's_nop 0'] if OPT('nold') and getattr(self, 'inloop', 0) else [f'buffer_load_dwordx4 {vr(self.KB_[buf] + 8 + 4*f, 4)}, v15, {srd(R_WS)}, s68 offen offset:{2048+1024*f} sc1' for f in range(2)]
    def fl_load(self, g='s14'):
        return [f's_lshr_b32 s8, {g}, 6', 's_add_u32 s8, s8, s36', f's_load_dwordx8 s[16:23], {sp(P_WS)}, s8 glc', 's_add_u32 s9, s8, 512', f's_load_dwordx8 s[24:31], {sp(P_WS)}, s9 glc']
    def fl_test(self):
        out = ['s_waitcnt lgkmcnt(0)', 's_xor_b64 s[16:17], s[16:17], s[40:41]']
        for i in range(1, 8): out += [f's_xor_b64 s[{16+2*i}:{17+2*i}], s[{16+2*i}:{17+2*i}], s[40:41]', f's_or_b64 s[16:17], s[16:17], s[{16+2*i}:{17+2*i}]']
        return out
    def fl_check(self):
        lr = self.L('kvspin'); lb = self.L('kvback')
        self.spins.append((lr, lb))
        return self.fl_test() + [f's_cbranch_scc1 {lr}', lb + ':']
    def kv_first(self, bs=range(4)):
        for b in bs:
            self.a(f's_mov_b32 s68, {self.CK[b]}')
            for x in self.ldK(b) + (self.ldV(b) if b < 3 else []): self.a(x)
    def a_attn_setup(self):
        a = self.a
        self.spins = []
        a(f'v_readfirstlane_b32 {sNONCE}, v54\ns_add_u32 {sNONCE}, {sNONCE}, 0x9e3779b9')
        a(f's_lshl_b32 s8, {sWAVE}, 13\ns_add_u32 s8, s8, {WS_KV}\ns_mov_b32 s37, s8')
        for k in range(4):
            a(f's_add_u32 s9, {sJ}, {k}\ns_and_b32 s12, s9, 1\ns_lshl_b32 s12, s12, 12\ns_and_b32 s9, s9, 2\ns_lshl_b32 s9, s9, 14\ns_add_u32 s9, s9, s12\ns_add_u32 s{32+k}, s8, s9')
        a(f's_and_b32 s36, s2, {NREP-1}\ns_lshl_b32 s36, s36, 12\ns_lshl_b32 s8, {sWAVE}, 7\ns_add_u32 s36, s36, s8\ns_add_u32 s36, s36, {WS_FKV}')
        a(f's_mov_b32 s40, {sNONCE}\ns_mov_b32 s41, {sNONCE}\ns_mov_b32 s38, 0x07060302')
        a(f's_and_b32 s69, s2, 255\ns_lshl_b32 s69, s69, 8\ns_add_u32 s69, s69, {WS_FA}\nv_mov_b32 v199, {sNONCE}\nv_mov_b32 v248, 0')
        if OPT('flvec') or OPT('flvec5') or OPT('flvec6'): a('v_and_b32 v251, 7, v0\nv_lshlrev_b32 v251, 2, v251\nv_bfe_u32 v250, v0, 3, 1\nv_lshl_add_u32 v251, v250, 9, v251')
        a(f's_lshl_b32 s71, {sWAVE}, 10\ns_mul_i32 s8, {sWAVE}, 7168\ns_lshl_b32 s9, s7, 4\ns_sub_u32 s8, s9, s8\nv_add_u32 v249, s8, v7')
        a(f's_cmp_eq_u32 s7, 7\ns_cselect_b32 s{R_B+2}, 0, s{R_B+2}')
        a('s_mov_b32 s72, 0\ns_mov_b32 s73, 0\ns_mov_b32 s75, 0')
    def a_attn(self):
        a = self.a
        Q = 16; O = 48; SS = (144, 160); PP = (176, 184)
        KB_ = (112, 128, 200, 216)
        K = lambda buf, f: vr(KB_[buf] + 4*f, 4)
        Vv = lambda buf, f: vr(KB_[buf] + 8 + 4*f, 4)
        sG = 's14'; sF = 's36'; sOFF = 's68'; sCNT = 's70'; sSEQ = 's74'; CK = self.CK
        fl_load = self.fl_load; fl_check = self.fl_check; ldK = self.ldK; ldV = self.ldV
        for r in range(8): a(f'v_mov_b32 v{KB_[3]+8+r}, 0')
        lgo = self.L('go')
        a(f's_cmp_lg_u32 s75, 0\ns_cbranch_scc1 {lgo}')
        self.lagain = self.L('again')
        a.label(self.lagain)
        a(f's_mov_b32 {sG}, 0')
        for x in fl_load() + fl_check(): a(x)
        self.kv_first()
        a.label(lgo)
        a(f's_mov_b32 {sSEQ}, 0x462')
        self.stamp(3); self.cstamp(8); self.astamp(1)
        def nxtG(): return [f's_and_b32 s39, {sSEQ}, 15', 's_lshl_b32 s39, s39, 15', f's_lshr_b32 {sSEQ}, {sSEQ}, 4']
        def mA(u, buf, f):
            s = SS[u & 1]; c = '0' if f == 0 else vr(s, 16)
            return f'v_mfma_f32_32x32x16_bf16 {vr(s,16)}, {K(buf,f)}, {vr(Q + 8*(u&3) + 4*f, 4)}, {c}'
        def mC(u, buf, f):
            o = vr(O + 16*(u & 3), 16)
            return f'v_mfma_f32_32x32x16_bf16 {o}, {Vv(buf,f)}, {vr(PP[u&1] + 4*f, 4)}, {o}'
        a('s_waitcnt lgkmcnt(0)')
        self.a_tail_addr()
        if OPT('tlb'):
            a(f's_mov_b64 exec, 1\nbuffer_load_dword v252, v248, {srd(R_WS)}, s48 offen\nbuffer_load_dword v253, v248, {srd(R_OUT)}, s52 offen\ns_mov_b64 exec, -1')
        for x in nxtG() + fl_load('s39'): a(x)
        a(f's_waitcnt vmcnt({14 if OPT("tlb") else 12})')
        self.astamp(2)
        a(mA(0, 0, 0)); a(mA(0, 0, 1))
        a(f's_mov_b32 {sCNT}, 3')
        def unit(u, mf, extra):
            s = SS[u & 1]; p = PP[u & 1]
            e = lambda i: f'v_exp_f32 v{s+i}, v{s+i}'
            c = (lambda i: f'v_cvt_pk_bf16_f32 v{p+i}, v{s+2*i}, v{s+2*i+1}') if OPT('cvt') else (lambda i: f'v_perm_b32 v{p+i}, v{s+2*i+1}, v{s+2*i}, s38')
            Lq = [e(0), e(1), e(2), e(3), c(0), e(4), e(5), c(1), e(6), e(7), c(2), e(8), e(9), c(3), e(10), e(11), c(4), e(12), e(13), c(5), e(14), e(15), c(6), c(7)]
            sp_ = (4, 4, 4, 12) if OPT('hole') else (6, 6, 6, 6)
            seq = [Lq[sum(sp_[:i]):sum(sp_[:i+1])] for i in range(4)]
            for i in range(4):
                for x in extra.get(('pre', i), []): a(x)
                if mf[i]: a(mf[i])
                for x in extra.get(i, []): a(x)
                for x in seq[i]: a(x)
        lloop = self.L('attn'); self.inloop = 1
        TRIG = [int(x[4:]) for x in sys.argv if x.startswith('trig') and x[4:].isdigit()]
        TRL = [int(x[5:]) for x in sys.argv if x.startswith('trigL')]
        if not TRIG and not TRL: TRIG = [4]
        TRI = 2 if OPT('trigIt2') else 1
        TRIG = TRIG[0] if TRIG else 99
        WOR = list(range(8, 15))
        WOU = list(range(2, 10))
        W = lambda n, u, slot: n + (1 if (u, slot) > (TRIG, 0) else 0) + sum(1 for x in WOU if (u, slot) > (x, 1)) + sum(1 for x in WOR if (u, slot) > (x, 3))
        def body(tail):
            for u in range(16):
                t = u >> 2; b = u & 3
                nu = u + 1; nbuf = (nu >> 2) & 3
                pu = u - 1; pbuf = ((pu >> 2) & 3)
                mf = [mA(nu, nbuf, 0), mA(nu, nbuf, 1), mC(pu, pbuf, 0), mC(pu, pbuf, 1)]
                ex = {}
                if tail and u == 15: mf = [mC(pu, pbuf, 0), mC(pu, pbuf, 1), None, None]
                if b == 3:
                    if not tail:
                        ex[('pre', 0)] = ['s_waitcnt vmcnt(10)']
                        ex[0] = [f's_add_u32 {sOFF}, {sG}, {CK[t]}']
                        ex[2] = [ldK(t)[0]]; ex[3] = [ldK(t)[1]]
                    elif t < 3:
                        ex[('pre', 0)] = [f's_waitcnt vmcnt({W(10 - 4*t, u, 0)})']
                if b == 1:
                    if not tail or t == 0:
                        assert TRIG >= 2
                        ex[('pre', 2)] = ['s_waitcnt vmcnt(10)']
                        ex[2] = [ldV((t - 1) & 3)[0]]; ex[3] = [ldV((t - 1) & 3)[1]]
                    else:
                        ex[('pre', 2)] = [f's_waitcnt vmcnt({W(12 - 4*t, u, 2)})']
                if tail and u == TRIG:
                    ex.setdefault(0, []).append(f'buffer_store_dword v199, v248, {srd(R_WS)}, s69 offen offset:4 sc1')
                if not tail and OPT('spread'):
                    if u == 0: self.c_ = fl_check()
                    g_ = nxtG() + fl_load('s39')
                    plan = {(12, 0): g_[0:1], (12, 1): g_[1:2], (12, 2): g_[2:3], (12, 3): g_[3:4], (13, 0): g_[4:5], (13, 1): g_[5:6], (14, 1): g_[6:7], (14, 2): g_[7:8]}
                    c_ = self.c_
                    slots = [(0, 1), (0, 2), (0, 3), (1, 0), (1, 1), (2, 0), (2, 1), (2, 2), (2, 3)]
                    per = [2, 2, 2, 2, 2, 2, 2, 2, 3]; k = 0
                    for sl, n in zip(slots, per): plan[sl] = c_[k:k+n]; k += n
                    plan[(0, 0)] = [f's_mov_b32 {sG}, s39']
                    for (uu, sl), xs in plan.items():
                        if uu == u: ex.setdefault(sl, []).extend(xs)
                if not tail and not OPT('spread'):
                    if u == 0:
                        ex[0] = [f's_mov_b32 {sG}, s39']
                    if u == 14:
                        g_ = nxtG() + fl_load('s39')
                        ex.setdefault(1, []).extend(g_[:2]); ex.setdefault(2, []).extend(g_[2:4]); ex.setdefault(3, []).extend(g_[4:6])
                        self.g_rest = g_[6:]
                    if u == 15:
                        ex.setdefault(1, []).extend(self.g_rest)
                    if u == 1:
                        c0 = ['s_waitcnt lgkmcnt(0)', 's_xor_b64 s[16:17], s[16:17], s[40:41]']
                        for i in range(1, 4): c0 += [f's_xor_b64 s[{16+2*i}:{17+2*i}], s[{16+2*i}:{17+2*i}], s[40:41]', f's_or_b64 s[16:17], s[16:17], s[{16+2*i}:{17+2*i}]']
                        ex.setdefault(0, []).extend(c0[:2]); ex.setdefault(1, []).extend(c0[2:4]); ex.setdefault(2, []).extend(c0[4:6]); ex.setdefault(3, []).extend(c0[6:])
                    if u == 2:
                        c_ = fl_check(); self.c_ = c_
                        ex[0] = c_[8:10]; ex[1] = c_[10:12]; ex[2] = c_[12:14]; ex[3] = c_[14:]
                if not tail and TRL and u == TRL[0]:
                    lsk = self.L('tsk')
                    assert u not in (1, 2, 14, 15)
                    ex.setdefault(1, []).extend([f's_cmp_lg_u32 {sCNT}, {TRI}', f's_cbranch_scc1 {lsk}', f'buffer_store_dword v199, v248, {srd(R_WS)}, s69 offen offset:4 sc1', lsk + ':'])
                if tail and u in WOU:
                    i = WOU.index(u)
                    ex.setdefault(0, []).append(f's_add_u32 m0, s71, {self.WOB + 1024*(25+4*i)}')
                    ex.setdefault(('pre', 1), []).append(f's_mov_b32 s13, {(25+4*i)*7168}')
                    ex.setdefault(1, []).append(f'buffer_load_dwordx4 v249, {srd(R_B)}, s13 offen lds')
                if tail and u in WOR:
                    i = WOR.index(u)
                    ex.setdefault(2, []).append(f's_mov_b32 s11, {4*i*7168}')
                    ex.setdefault(3, []).append(f'buffer_load_dwordx4 {vr(112+4*i,4)}, v249, {srd(R_B)}, s11 offen')
                if tail and u == 14:
                    for g in range(4): ex.setdefault((1,2,2,3)[g], []).append(f'ds_write_b128 v196, {vr(O+4*g,4)} offset:{g*1024}')
                if tail and u == 15:
                    for g in range(4): ex.setdefault((1,2,2,3)[g], []).append(f'ds_write_b128 v197, {vr(O+16+4*g,4)} offset:{4096+g*1024}')
                if not tail and u == 14:
                    ex.setdefault(0, []).append(f's_sub_u32 {sCNT}, {sCNT}, 1')
                unit(u, mf, ex)
        a('s_nop 10\n.p2align 4')
        a.label(lloop)
        body(False)
        if self.stamps and OPT('ast'):
            for k in range(3):
                l = self.L('ast')
                a(f's_cmp_lg_u32 {sCNT}, {2-k}\ns_cbranch_scc1 {l}'); self.astamp(3 + k); a.label(l)
        a(f's_cmp_lg_u32 {sCNT}, 0\ns_cbranch_scc1 {lloop}')
        body(True)
        self.astamp(6)
        a('s_setprio 3')
        a(mC(15, 3, 0)); a(mC(15, 3, 1))
        for g in range(4): a(f'ds_write_b128 v198, {vr(O+32+4*g,4)} offset:{8192+g*1024}')
        a('s_waitcnt lgkmcnt(0)\ns_barrier')
        self.stamp(4); self.cstamp(9); self.tstamp(1); self.astamp(7)
        RD = 144
        for i in range(12): a(f'ds_read_b128 {vr(RD+4*i,4)}, v2 offset:{i*1024}')
        F = O + 48
        for s in range(3):
            a(f's_waitcnt lgkmcnt({8-4*s})')
            order = [12] + [r for r in range(16) if r != 12] if s == 2 else range(16)
            for n, r in enumerate(order):
                a(f'v_add_f32 v{F+r}, v{F+r}, v{RD+16*s+r}')
                if s == 2 and n == 1: a(f'v_mov_b32 v208, v{F+12}\nv_mov_b32 v209, v{F+12}')
                if s == 2 and n == 4: a('v_permlane32_swap_b32 v208, v209')
                if s == 2 and n == 7: a('v_rcp_f32 v208, v209')
        for r in range(16): a(f'v_mul_f32 v{F+r}, v{F+r}, v208')
        for r in range(8): a(f'v_cvt_pk_bf16_f32 v{200+r}, v{F+2*r}, v{F+2*r+1}')
        a('s_mov_b32 exec_lo, 0\nv_mov_b32 v206, 0\nv_mov_b32 v207, 0\ns_mov_b32 exec_lo, -1')
        self.lnopub = self.L('nopub'); self.lskip = self.L('skip')
        a(f's_mov_b32 s12, 0\ns_cmp_lg_u32 s73, 0\ns_cbranch_scc1 {self.lskip}')
        a(f'buffer_store_dwordx4 v[200:203], v15, {srd(R_WS)}, s48 offen sc1')
        a(f'buffer_store_dwordx4 v[204:207], v15, {srd(R_WS)}, s48 offen offset:1024 sc1')
        a('s_mov_b32 s9, 0x3f803f80\nv_mov_b32 v210, 0')
        for r in range(8): a(f'v_dot2_f32_bf16 v210, v{200+r}, s9, v210')
        a(f's_mov_b32 s12, {f32(2.0**64)}\nv_mov_b32 v211, 0x207\nv_cmp_nle_f32 vcc, {f32(2.0**-64)}, v209\nv_cmp_nge_f32 s[10:11], s12, v209')
        a('s_or_b64 s[10:11], s[10:11], vcc\nv_cmp_class_f32 vcc, v210, v211\ns_or_b64 s[10:11], s[10:11], vcc')
        a('s_cmp_lg_u64 s[10:11], 0\ns_cselect_b32 s12, 1, 0\ns_andn2_b32 s12, s12, s72')
        a(f's_cbranch_scc1 {self.lskip}')
        self.tstamp(2)
        a('s_waitcnt vmcnt(0)')
        self.tstamp(3)
        a(f's_mov_b64 exec, 0x7f\nbuffer_store_dword v199, v7, {srd(R_WS)}, s49 offen sc1\ns_mov_b64 exec, -1\ns_mov_b32 s73, 1')
        a.label(self.lnopub)
        self.stamp(5)
        self.lfb = self.L('fallback')
        if OPT('oearly'): a(f's_load_dwordx8 s[16:23], {sp(P_WS)}, s54 glc')
        a('v_mov_b32 v210, s12\nds_write_b32 v4, v210 offset:3588')
        a('s_waitcnt lgkmcnt(0)\ns_barrier')
        if not OPT('oearly'): a(f's_load_dwordx8 s[16:23], {sp(P_WS)}, s54 glc')
        for k in range(4): a(f'ds_read_b32 v{212+k}, v248 offset:{3588+16*k}')
        a(f's_waitcnt lgkmcnt(0)\nv_or3_b32 v212, v212, v213, v214\nv_or_b32 v212, v212, v215\nv_cmp_ne_u32 vcc, 0, v212\ns_cbranch_vccnz {self.lfb}')

    def a_tail_addr(self):
        a = self.a
        XCH = 0
        a(f's_lshr_b32 s12, {sWAVE}, 1\ns_and_b32 s13, {sWAVE}, 1')
        a(f's_lshl_b32 s8, s6, 1\ns_add_u32 s8, s8, s13\ns_lshl_b32 s10, s8, 15\ns_add_u32 s10, s10, {WS_O}')
        a('s_lshl_b32 s9, s7, 1\ns_add_u32 s9, s9, s12\ns_lshl_b32 s9, s9, 11\ns_add_u32 s48, s10, s9')
        a(f's_lshl_b32 s8, s6, 12\ns_add_u32 s8, s8, {WS_PO}\ns_lshr_b32 s9, s7, 2\ns_and_b32 s11, s7, 3\ns_cmp_eq_u32 s9, s12\ns_cselect_b32 s55, s11, 9')
        a('s_lshl_b32 s9, s9, 1\ns_add_u32 s9, s9, s13\ns_lshl_b32 s9, s9, 7\ns_add_u32 s9, s9, s8\nv_lshl_add_u32 v7, v0, 9, s9')
        a(f's_lshl_b32 s9, s7, 2\ns_add_u32 s9, s9, {sWAVE}\ns_lshl_b32 s9, s9, 7\ns_add_u32 s54, s8, s9')
        a('s_lshl_b32 s9, s11, 1\ns_add_u32 s9, s9, s12\ns_lshl_b32 s49, s9, 2')
        a('s_lshl_b32 s8, s12, 6')
        self.w128_frag('v14', 4, 's8')
        a(f's_and_b32 s9, s7, 1\ns_lshl_b32 s11, s12, 1\ns_add_u32 s11, s11, s9\ns_xor_b32 s9, s11, 1\ns_lshl_b32 s50, s11, 13\ns_lshl_b32 s51, s9, 13\ns_add_u32 s50, s50, s10\ns_add_u32 s51, s51, s10')
        a(f's_mul_i32 s8, s11, {112*128}\ns_mul_i32 s9, s9, {112*128}\ns_add_u32 s8, s8, {self.WOB}\ns_add_u32 s9, s9, {self.WOB}')
        a('v_add_u32 v12, s9, v14\nv_add_u32 v14, s8, v14\nv_xor_b32 v13, 64, v14\nv_xor_b32 v11, 64, v12')
        a(f's_xor_b32 s9, {sWAVE}, 2\ns_lshl_b32 s9, s9, 12\nv_add_u32 v5, s9, v15\ns_lshl_b32 s9, {sWAVE}, 12\nv_add_u32 v6, s9, v15')
        a(f's_mul_i32 s9, s13, {32*144}\ns_lshl_b32 s11, s12, 6\ns_add_u32 s9, s9, s11\ns_add_u32 s9, s9, 16384')
        a('v_lshrrev_b32 v4, 5, v0\nv_and_b32 v9, 31, v0\nv_mul_u32_u24 v9, 144, v9\nv_lshl_add_u32 v9, v4, 4, v9\nv_add_u32 v9, s9, v9')
        a(f'v_lshrrev_b32 v2, 3, v0\nv_and_b32 v3, 7, v0\nv_lshlrev_b32 v3, 4, v3\nv_mul_u32_u24 v10, 144, v2\ns_mul_i32 s9, {sWAVE}, {16*144}\ns_add_u32 s9, s9, 16384\nv_add3_u32 v10, v10, v3, s9')
        a(f'v_mul_u32_u24 v8, 1792, v2\nv_add_u32 v8, v8, v3\ns_lshl_b32 s8, s6, 2\ns_add_u32 s8, s8, {sWAVE}\ns_mul_i32 s8, s8, {16*1792}\ns_lshl_b32 s9, s7, 7\ns_add_u32 s8, s8, s9\ns_add_u32 s52, s8, 896\ns_add_u32 s53, s52, {8*1792}')
        a(f'v_add_u32 v1, s71, v15\ns_mul_i32 s8, {sWAVE}, 12288\nv_add_u32 v2, s8, v15\ns_lshl_b32 s8, {sWAVE}, 4\nv_mov_b32 v4, s8')

    def a_fallback(self):
        a = self.a
        lp = self.L('fbl')
        for lr, lb in self.spins:
            l2 = self.L('kvs'); l3 = self.L('kvs')
            a.label(lr)
            a(f's_mov_b32 s47, {self.SPIN}')
            a.label(l2)
            a(f's_sleep 2\ns_sub_u32 s47, s47, 1\ns_cmp_gt_i32 s47, 0\ns_cbranch_scc0 {lb}')
            a(f's_load_dwordx8 s[16:23], {sp(P_WS)}, s8 glc\ns_load_dwordx8 s[24:31], {sp(P_WS)}, s9 glc\ns_waitcnt lgkmcnt(0)')
            for i in range(8): a(f's_cmp_eq_u64 s[{16+2*i}:{17+2*i}], s[40:41]\ns_cbranch_scc0 {l2}')
            a(f's_branch {lb}')
        a.label(self.lskip)
        a(f's_waitcnt vmcnt(0)\ns_branch {self.lnopub}')
        a.label(self.lfb)
        a(f's_barrier\ns_mov_b32 s72, 1\ns_mov_b32 s70, 16\ns_mov_b32 s68, s37')
        for js in range(4): a(f'v_mov_b32 v{240+js}, 0xff800000')
        a.label(lp)
        a(f'buffer_load_dwordx4 v[112:115], v15, {srd(R_WS)}, s68 offen sc1\nbuffer_load_dwordx4 v[116:119], v15, {srd(R_WS)}, s68 offen offset:1024 sc1')
        a('s_bitcmp1_b32 s70, 0\ns_cselect_b32 s8, 7, 1\ns_lshl_b32 s8, s8, 12\ns_add_u32 s68, s68, s8\ns_waitcnt vmcnt(0)')
        for js in range(4):
            a(f'v_mfma_f32_32x32x16_bf16 v[144:159], v[112:115], {vr(16+8*js,4)}, 0\nv_mfma_f32_32x32x16_bf16 v[144:159], v[116:119], {vr(20+8*js,4)}, v[144:159]')
            for r in range(0, 16, 2): a(f'v_max3_f32 v{240+js}, v{240+js}, v{144+r}, v{145+r}')
        a(f's_sub_u32 s70, s70, 1\ns_cmp_lg_u32 s70, 0\ns_cbranch_scc1 {lp}')
        a(f's_lshl_b32 s8, {sWAVE}, 8\nv_lshl_add_u32 v244, v0, 2, s8\nv_lshlrev_b32 v245, 2, v0')
        for js in range(4):
            a(f'v_mov_b32 v246, v{240+js}\nv_mov_b32 v247, v{240+js}\nv_permlane32_swap_b32 v246, v247\nv_max_f32 v{240+js}, v246, v247')
            a(f's_add_u32 s8, {sWAVE}, {1+js}\ns_and_b32 s8, s8, 3\ns_lshl_b32 s8, s8, 10\nv_add_u32 v246, s8, v244\nv_add_u32 v{236+js}, s8, v245')
            a(f'ds_write_b32 v246, v{240+js} offset:1024')
        a('s_waitcnt lgkmcnt(0)\ns_barrier')
        for js in range(4):
            a(f'ds_read2st64_b32 v[246:247], v{236+js} offset0:4 offset1:5\nds_read2st64_b32 v[250:251], v{236+js} offset0:6 offset1:7\ns_waitcnt lgkmcnt(0)')
            a('v_max3_f32 v246, v246, v247, v250\nv_max_f32 v246, v246, v251')
            a('v_xor_b32 v246, 0x80000000, v246\nv_and_b32 v247, 0xffff0000, v246\nv_sub_f32 v246, v246, v247\nv_and_b32 v250, 0xffff0000, v246\nv_sub_f32 v246, v246, v250')
            a(f's_mov_b32 exec_lo, 0\nv_lshrrev_b32 v247, 16, v247\nv_or_b32 v{22+8*js}, v247, v250\nv_lshrrev_b32 v{23+8*js}, 16, v246\ns_mov_b32 exec_lo, -1')
        for r in list(range(48, 112)) + list(range(184, 192)) + list(range(224, 232)): a(f'v_mov_b32 v{r}, 0')
        a(f's_barrier\ns_branch {self.lagain}')

    WOB = 23552
    def a_outproj(self):
        a = self.a
        a(f's_cmp_eq_u32 s7, 7\ns_cbranch_scc1 {self.lend}')
        self.tstamp(4)
        lp = self.L('wo'); lok = self.L('wok')
        a(f's_mov_b32 s47, {self.SPIN}')
        a.label(lp)
        for i in range(4):
            a(f's_cmp_eq_u32 s55, {i}\ns_cselect_b64 s[{16+2*i}:{17+2*i}], s[40:41], s[{16+2*i}:{17+2*i}]\ns_xor_b64 s[{16+2*i}:{17+2*i}], s[{16+2*i}:{17+2*i}], s[40:41]')
        a(f's_or_b64 s[16:17], s[16:17], s[18:19]\ns_or_b64 s[20:21], s[20:21], s[22:23]\ns_or_b64 s[16:17], s[16:17], s[20:21]\ns_cbranch_scc0 {lok}')
        if OPT('osleep'): a('s_sleep 2')
        a(f's_load_dwordx8 s[16:23], {sp(P_WS)}, s54 glc\ns_sub_u32 s47, s47, 1\ns_cmp_gt_i32 s47, 0\ns_waitcnt lgkmcnt(0)\ns_cbranch_scc1 {lp}')
        a.label(lok)
        self.stamp(6); self.tstamp(5)
        OF = 16
        for i in range(16):
            if i == 4: a('s_add_u32 s50, s50, 4096')
            if i == 12: a('s_add_u32 s51, s51, 4096')
            a(f'buffer_load_dwordx4 {vr(OF+4*i,4)}, v15, {srd(R_WS)}, {"s50" if i < 8 else "s51"} offen offset:{(i%4)*1024} sc1')
            if i < 7: a(f'ds_write_b128 v1, {vr(112+4*i,4)} offset:{self.WOB + 4096*i}')
        a('s_waitcnt lgkmcnt(0)\ns_barrier')
        WF = 144
        ACC = (80, 96)
        def rd(i):
            hd, f = (i >> 1) & 3, i & 1
            b = WF + 8 * (i & 3)
            for ct in range(2):
                for t in range(2):
                    a(f'ds_read_b64_tr_b16 {vr(b+4*ct+2*t,2)}, v{(14 if i < 8 else 12)-ct} offset:{(28*hd+16*f+8*t)*128}')
        rd(0); rd(1); rd(2)
        for i in range(16):
            if i + 3 < 16: rd(i + 3)
            left = min(3, 15 - i)
            a(f's_waitcnt vmcnt({15-i}) lgkmcnt({4*left})')
            b = WF + 8 * (i & 3)
            for ct in (1, 0):
                c = '0' if i == 0 else vr(ACC[ct], 16)
                a(f'v_mfma_f32_32x32x16_bf16 {vr(ACC[ct],16)}, {vr(b+4*ct,4)}, {vr(OF+4*i,4)}, {c}')
        self.tstamp(6)
        for g in range(4): a(f'ds_write_b128 v5, {vr(ACC[1]+4*g,4)} offset:{g*1024}')
        a('s_waitcnt lgkmcnt(0)\ns_barrier')
        for g in range(4): a(f'ds_read_b128 {vr(16+4*g,4)}, v6 offset:{g*1024}')
        a('s_waitcnt lgkmcnt(0)')
        for r in range(16): a(f'v_add_f32 v{ACC[0]+r}, v{ACC[0]+r}, v{16+r}')
        for r in range(8): a(f'v_cvt_pk_bf16_f32 v{32+r}, v{ACC[0]+2*r}, v{ACC[0]+2*r+1}')
        a('v_permlane32_swap_b32 v32, v34\nv_permlane32_swap_b32 v33, v35\nv_permlane32_swap_b32 v36, v38\nv_permlane32_swap_b32 v37, v39')
        a('ds_write_b128 v9, v[32:35]\nds_write_b128 v9, v[36:39] offset:32\ns_waitcnt lgkmcnt(0)\ns_barrier')
        a(f'ds_read_b128 v[16:19], v10\nds_read_b128 v[20:23], v10 offset:{8*144}')
        a(f's_waitcnt lgkmcnt(1)\nbuffer_store_dwordx4 v[16:19], v8, {srd(R_OUT)}, s52 offen sc1\ns_waitcnt lgkmcnt(0)\nbuffer_store_dwordx4 v[20:23], v8, {srd(R_OUT)}, s53 offen sc1')
        self.stamp(7); self.tstamp(7)

    UTILE = 0; TSCR = 8192; UB = 61440; KB = 70656; SCR = 15360
    PU, PZ, PT, PB, PW, PE, PK, PKZ, PD, PUT, PA = 232, 233, 234, 235, 236, 240, 243, 244, 245, 246, 251
    def s_ids(self):
        a = self.a
        if OPT('x5idle'):
            a(f's_cmp_gt_u32 {sXG}, 5\ns_cselect_b32 s8, 1, 0\ns_sub_u32 s73, {sXG}, s8\ns_mov_b32 {sM}, {sJ}')
        else:
            a(f's_mul_i32 s8, {sXG}, 28\ns_add_u32 s8, s8, {sJ}\ns_lshr_b32 s73, s8, 5\ns_and_b32 {sM}, s8, 31')
        a(f's_lshl_b32 s8, s73, 6\ns_lshl_b32 s9, {sM}, 1\ns_add_u32 s74, s8, s9')
        a('v_lshlrev_b32 v15, 4, v0')
        a(f's_lshl_b32 s14, s74, 1\ns_lshr_b32 s10, {sWAVE}, 1\ns_add_u32 s74, s74, s10\ns_and_b32 s9, {sWAVE}, 1')
        a('s_lshl_b32 s8, s74, 9\ns_lshl_b32 s12, s9, 8\ns_add_u32 s8, s8, s12\nv_lshl_add_u32 v2, v0, 2, s8')
    def s_params_load(self):
        a = self.a
        for i, p in enumerate((P_LAR, P_AIM, P_CRE, P_CIM)):
            a(f'global_load_dword v{16+i}, v2, {sp(p)}')
        a(f's_load_dword s71, {sp(P_LDT)}, s14\ns_load_dword s72, {sp(P_DSK)}, s14')
    def s_table_load(self, dst):
        a = self.a
        lp = self.L('pc')
        a('s_getpc_b64 s[12:13]')
        a.label(lp)
        a(f's_add_u32 s12, s12, L_table-{lp}\ns_addc_u32 s13, s13, 0')
        for i in range(4):
            a(f'global_load_dwordx4 {vr(dst+4*i,4)}, v1, s[12:13] offset:{1024*i}')
    def s_kv_addr(self):
        a = self.a
        a(f's_lshr_b32 s7, {sJ}, 1\ns_lshl_b32 s8, {sXG}, 4\ns_add_u32 s7, s7, s8\ns_lshl_b32 s6, {sXG}, 5\ns_add_u32 s6, s6, {sJ}')
        a(f's_lshl_b32 s12, s7, 1\ns_add_u32 s12, s12, s9\ns_mul_i32 s12, s12, {8*896}')
        a(f'v_lshrrev_b32 v7, 3, v0\nv_lshrrev_b32 v8, 4, v0\ns_lshl_b32 s8, s9, 2\nv_add_u32 v8, s8, v8')
        a('v_and_b32 v4, 7, v0\nv_xor_b32 v8, v4, v8\nv_mul_u32_u24 v7, 896, v7\nv_lshl_add_u32 v5, v8, 4, v7\nv_add_u32 v5, s12, v5')
        a(f's_lshl_b32 s11, {sWAVE}, 10\nv_add_u32 v6, s11, v15\ns_add_u32 s15, s11, 28672')
        a(f's_lshr_b32 s8, {sJ}, 1\ns_cmp_ge_u32 s8, 7\ns_cselect_b32 s12, 7, 0\ns_sub_u32 s8, s8, s12\ns_cmp_ge_u32 s8, 7\ns_cselect_b32 s12, 7, 0\ns_sub_u32 s8, s8, s12\ns_lshl_b32 s70, s8, 12')
    def kv_srds(self):
        a = self.a
        self.mk_srd(R_X, P_X, X_BYTES)
        a(f's_bitcmp1_b32 s6, 0\ns_cselect_b32 s{R_W}, s{P_WV}, s{P_WK}\ns_cselect_b32 s{R_W+1}, s{P_WV+1}, s{P_WK+1}')
        a(f's_mov_b32 s{R_W+2}, {WK_BYTES}\ns_mov_b32 s{R_W+3}, 0x20000')
    def s_kv_load(self):
        a = self.a
        a(f's_mul_i32 s12, s10, {3*128}\ns_mul_i32 s13, s10, {3*2048}\ns_lshl_b32 s8, s9, 10\ns_add_u32 s13, s13, s8')
        for i in range(4):
            a(f's_add_u32 m0, s13, {2048*i}\ns_nop 0\nbuffer_load_dwordx4 v5, {srd(R_X)}, s12 offen lds')
            if i < 3: a('s_add_u32 s12, s12, 128')
        for i in range(7):
            if i: a('s_add_u32 s70, s70, 4096\ns_cmp_eq_u32 s70, 28672\ns_cselect_b32 s70, 0, s70')
            a(f's_add_u32 m0, s15, s70\ns_nop 0\nbuffer_load_dwordx4 v6, {srd(R_W)}, s70 offen lds')
    def s_kv_addr2(self):
        a = self.a
        a('s_and_b32 s68, s7, 1')
        a('v_and_b32 v2, 15, v0\nv_bfe_u32 v4, v2, 1, 3\nv_lshrrev_b32 v9, 4, v0\nv_xor_b32 v4, v4, v9\nv_lshlrev_b32 v3, 7, v2')
        a('v_lshl_add_u32 v10, v4, 4, v3\nv_xor_b32 v4, 4, v4\nv_lshl_add_u32 v11, v4, 4, v3')
        a('v_bfe_u32 v3, v0, 2, 2\nv_lshl_add_u32 v3, v9, 3, v3\nv_mul_u32_u24 v3, 56, v3\nv_and_b32 v4, 3, v0\nv_lshl_add_u32 v3, v4, 3, v3')
        a(f's_lshl_b32 s8, {sWAVE}, 5\ns_add_u32 s8, s8, 28672\nv_add_u32 v12, s8, v3')
        a('v_lshlrev_b32 v13, 4, v2\nv_bfe_u32 v3, v0, 4, 1\nv_lshl_add_u32 v13, v3, 9, v13')
        a(f's_bitcmp1_b32 s6, 0\ns_cselect_b32 s12, s68, {sWAVE}\ns_cselect_b32 s13, {sWAVE}, s68\ns_cselect_b32 s8, 2048, 0')
        a(f's_lshl_b32 s12, s12, 10\ns_lshl_b32 s13, s13, 8\ns_add_u32 s12, s12, s13\ns_add_u32 s12, s12, s8\ns_lshr_b32 s13, s7, 1\ns_lshl_b32 s13, s13, 12\ns_add_u32 s12, s12, s13\ns_add_u32 s69, s12, {WS_KV}')
        a(f's_lshr_b32 s8, s6, 3\ns_lshl_b32 s8, s8, 7\ns_and_b32 s12, s6, 7\ns_lshl_b32 s12, s12, 2\ns_add_u32 s8, s8, s12\ns_add_u32 s68, s8, {WS_FKV}\nv_lshlrev_b32 v14, 12, v0')
    def s_kv(self):
        a = self.a
        lv = self.L('kvV'); lst = self.L('kvst')
        ACC = 100
        XF = lambda ks: vr(56 + 8*(ks % 5), 4); WF = lambda ks, t=None: vr(60 + 8*(ks % 5), 4) if t is None else vr(60 + 8*(ks % 5) + 2*t, 2)
        def rdk(ks):
            a(f'ds_read_b128 {XF(ks)}, v{10+(ks&1)} offset:{(ks>>1)*2048}')
            for t in range(2):
                a(f'ds_read_b64_tr_b16 {WF(ks,t)}, v12 offset:{(32*ks+4*t)*56}')
        for ks in range(4): rdk(ks)
        a('s_bitcmp1_b32 s6, 0')
        def chain(swap):
            for ks in range(14):
                if ks + 4 < 14: rdk(ks + 4)
                a(f's_waitcnt lgkmcnt({3*min(4, 13-ks)})')
                A, B = (XF(ks), WF(ks)) if swap else (WF(ks), XF(ks))
                c = '0' if ks == 0 else vr(ACC, 4)
                a(f'v_mfma_f32_16x16x32_bf16 {vr(ACC,4)}, {A}, {B}, {c}')
        a(f's_cbranch_scc1 {lv}')
        chain(False)
        a(f's_cmp_eq_u32 {sWAVE}, 1\ns_cselect_b32 s12, 0xffff0000, 0')
        for r in range(4): a(f'v_mul_f32 v{ACC+r}, {f32(CSCALE)}, v{ACC+r}')
        a(f'v_cvt_pk_bf16_f32 v96, v{ACC}, v{ACC+1}\nv_cvt_pk_bf16_f32 v97, v{ACC+2}, v{ACC+3}')
        a('s_mov_b32 exec_lo, 0\ns_mov_b32 exec_hi, s12\nv_mov_b32 v96, 0x3f803f80\nv_mov_b32 v97, 0x00003f80\ns_mov_b64 exec, -1')
        a(f's_branch {lst}')
        a.label(lv)
        chain(True)
        a(f's_cmp_eq_u32 {sWAVE}, 1\ns_cselect_b32 s12, 0xe000e000, 0\ns_cselect_b32 s13, 0x10001000, 0')
        a(f'v_cvt_pk_bf16_f32 v96, v{ACC}, v{ACC+1}\nv_cvt_pk_bf16_f32 v97, v{ACC+2}, v{ACC+3}')
        a('s_mov_b32 exec_lo, s12\ns_mov_b32 exec_hi, s12\nv_mov_b32 v96, 0\nv_mov_b32 v97, 0')
        a('s_mov_b32 exec_lo, s13\ns_mov_b32 exec_hi, s13\nv_mov_b32 v96, 0x3f803f80\nv_mov_b32 v97, 0x3f803f80\ns_mov_b64 exec, -1')
        a.label(lst)
        a('s_nop 1\nv_permlane32_swap_b32 v96, v98\nv_permlane32_swap_b32 v97, v99\ns_mov_b32 exec_hi, 0')
        a(f'buffer_store_dwordx4 v[96:99], v13, {srd(R_WS)}, s69 offen sc1\ns_mov_b32 exec_hi, -1')
    def s_kv_phase(self, n=0, part=3):
        a = self.a
        l3 = self.L('kvb'); l4 = self.L('kvf')
        if part & 1:
            a(f's_waitcnt vmcnt({n})\ns_barrier')
            self.stamp(1); self.estamp(4)
            a(f's_cmp_ge_u32 {sWAVE}, 2\ns_cbranch_scc1 {l3}')
            self.s_kv()
            a.label(l3)
        if part & 2:
            a(f'v_mov_b32 v33, {sNONCE}\ns_waitcnt vmcnt(0)\ns_barrier\ns_cmp_lg_u32 {sWAVE}, 0\ns_cbranch_scc1 {l4}')
            a(f's_mov_b64 exec, {hex((1 << NREP) - 1)}\nbuffer_store_dword v33, v14, {srd(R_WS)}, s68 offen sc1\ns_mov_b64 exec, -1')
            a.label(l4)
            self.stamp(2); self.estamp(5)

    def s_addr_all(self):
        a = self.a
        PU, PZ, PT, PB, PW, PE, PK, PKZ, PD, PUT, PA = [f'v{x}' if not isinstance(x, str) else x for x in (self.PU, self.PZ, self.PT, self.PB, 'x', 'x', self.PK, self.PKZ, self.PD, 'x', 'x')]
        a(f's_lshl_b32 s8, {sM}, 6\ns_lshl_b32 s12, {sWAVE}, 4\ns_add_u32 s8, s8, s12\ns_mul_i32 s8, s8, 896\ns_lshl_b32 s12, s73, 7\ns_add_u32 s8, s8, s12')
        a('v_and_b32 v20, 7, v0\nv_lshl_add_u32 v7, v20, 4, v7\nv_add_u32 v7, s8, v7')
        a(f's_lshl_b32 s8, s74, 12\ns_lshl_b32 s12, s9, 11\ns_add_u32 s8, s8, s12\ns_add_u32 s14, s8, {WS_UT}\ns_add_u32 s92, s8, {WS_YT}')
        a(f's_mul_i32 s11, s10, 4608\ns_add_u32 s11, s11, {self.UB}\ns_mul_i32 s8, s10, 4160\ns_add_u32 s75, s8, {self.KB}')
        a(f's_add_u32 s12, s12, s75\nv_lshl_add_u32 {PK}, v0, 5, s12\nv_lshl_add_u32 {PKZ}, v0, 2, s75')
        a('v_bfe_u32 v2, v0, 1, 2\nv_mul_u32_u24 v2, 1152, v2\nv_lshrrev_b32 v21, 3, v0\nv_lshl_add_u32 v2, v21, 5, v2\nv_and_b32 v4, 1, v0\nv_lshl_add_u32 v2, v4, 4, v2')
        a(f's_lshl_b32 s12, s9, 9\ns_add_u32 s12, s12, s11\nv_add_u32 {PU}, s12, v2')
        a(f'v_mul_u32_u24 v3, 1152, v21\nv_lshl_add_u32 v3, v20, 4, v3\nv_add_u32 {PZ}, s11, v3')
        a('v_lshlrev_b32 v4, 4, v4\nv_bfe_u32 v8, v0, 1, 1\nv_lshl_add_u32 v4, v8, 2, v4\nv_bfe_u32 v8, v0, 4, 1\nv_lshl_add_u32 v4, v8, 3, v4')
        a('v_lshrrev_b32 v22, 5, v0\nv_lshlrev_b32 v8, 5, v22\nv_sub_u32 v4, v4, v8\nv_bfe_u32 v23, v0, 2, 2\nv_lshlrev_b32 v8, 2, v23\nv_sub_u32 v4, v4, v8')
        a(f's_add_u32 s12, s75, 96\nv_lshl_add_u32 {PT}, v4, 1, s12')
        a(f'v_bfe_u32 v4, v0, 3, 2\nv_mul_u32_u24 v3, 1152, v4\nv_add_u32 v8, v20, v22\nv_lshl_add_u32 v3, v8, 4, v3\ns_add_u32 s12, s11, 16\nv_add_u32 {PB}, s12, v3')
        a('v_lshrrev_b32 v8, 1, v20\nv_and_b32 v3, 1, v20\nv_lshl_or_b32 v8, v3, 2, v8\nv_lshlrev_b32 v3, 2, v22\nv_xor_b32 v8, v8, v3')
        a('v_lshlrev_b32 v4, 13, v4\nv_lshl_add_u32 v4, v20, 7, v4\ns_lshl_b32 s13, s10, 15\nv_add_u32 v4, s13, v4')
        for g in range(4): a(f'v_xor_b32 v3, {g}, v8\nv_lshl_add_u32 v{self.PW+g}, v3, 4, v4')
        a('s_lshl_b32 s12, s9, 7\nv_add_u32 v2, s12, v0\nv_lshrrev_b32 v3, 2, v2\nv_and_b32 v4, 3, v2\nv_lshlrev_b32 v4, 1, v4')
        def fa(dst, av): a(f'v_bfe_u32 {dst}, {av}, 1, 2\nv_and_b32 v8, 1, {av}\nv_lshl_or_b32 {dst}, v8, 2, {dst}')
        fa('v9', 'v3')
        a('v_xor_b32 v9, v9, v4\nv_lshlrev_b32 v2, 7, v3\nv_add_u32 v2, s13, v2')
        a(f'v_lshl_add_u32 v{self.PE}, v9, 4, v2\nv_xor_b32 v9, 1, v9\nv_lshl_add_u32 v{self.PE+1}, v9, 4, v2')
        a('v_lshl_add_u32 v4, v3, 3, v4\nv_add_u32 v4, -1, v4\nv_ashrrev_i32 v3, 3, v4\nv_and_b32 v4, 7, v4')
        fa('v9', 'v3')
        a(f'v_xor_b32 v9, v9, v4\nv_lshlrev_b32 v2, 7, v3\nv_add_u32 v2, s13, v2\nv_lshl_add_u32 v2, v9, 4, v2\nv_add_u32 v{self.PE+2}, 8192, v2')
        a('s_cmp_eq_u32 s9, 0\ns_cselect_b32 s93, 1, 0')
        U = self.PUT
        a(f'v_lshrrev_b32 v3, 4, v0\nv_lshl_add_u32 v2, v23, 2, v3\nv_lshlrev_b32 v2, 7, v2\nv_and_b32 v9, 3, v0\nv_lshl_add_u32 v2, v9, 3, v2')
        a(f's_lshl_b32 s8, {sWAVE}, 5\ns_add_u32 s8, s8, {self.UTILE}\nv_add_u32 v{U}, s8, v2')
        a(f's_mul_i32 s12, {sWAVE}, 2304\ns_add_u32 s12, s12, {self.TSCR}')
        a(f'v_and_b32 v4, 15, v0\nv_mul_u32_u24 v4, 144, v4\nv_lshl_add_u32 v4, v3, 5, v4\nv_add_u32 v{U+1}, s12, v4')
        a(f'v_lshlrev_b32 v4, 4, v20\nv_mul_u32_u24 v2, 144, v21\nv_add3_u32 v{U+2}, v2, v4, s12')
        a(f's_lshl_b32 s8, s73, 2\ns_add_u32 s8, s8, {sWAVE}\ns_lshl_b32 s8, s8, 16\ns_lshl_b32 s12, {sM}, 7\ns_add_u32 s8, s8, s12\ns_add_u32 s8, s8, {WS_UT}')
        a(f'v_lshl_add_u32 v{self.PA}, v21, 12, v4\nv_add_u32 v{U+3}, s8, v{self.PA}\nv_add_u32 v{U+4}, {8*4096}, v{U+3}')
        a(f's_lshl_b32 s36, s73, 9\ns_add_u32 s36, s36, {WS_FU}\ns_lshl_b32 s8, {sM}, 2\ns_add_u32 s35, s36, s8')
        A = self.PA
        a(f's_lshl_b32 s8, s73, 6\ns_lshl_b32 s13, {sWAVE}, 3\ns_add_u32 s8, s8, s13\ns_lshl_b32 s8, s8, 12\ns_add_u32 s8, s8, s12\ns_add_u32 s37, s8, {WS_YT}\ns_add_u32 s38, s37, {32*4096}')
        a(f'v_add_u32 v2, s13, v21\nv_mul_u32_u24 v2, 160, v2\nv_add_u32 v{A+1}, v2, v4')
        a(f'v_lshl_add_u32 v2, v3, 3, v23\nv_mul_u32_u24 v2, 160, v2\nv_lshl_add_u32 v2, v9, 3, v2\ns_lshl_b32 s8, {sWAVE}, 5\nv_add_u32 v{A+2}, s8, v2')
        a(f's_lshl_b32 s8, {sM}, 2\ns_add_u32 s8, s8, {sWAVE}\ns_mul_i32 s39, s8, {16*1792}\ns_lshl_b32 s8, s73, 7\ns_add_u32 s39, s39, s8\ns_add_u32 s94, s39, {8*1792}')
        a(f'v_mul_u32_u24 v2, 1792, v21\nv_add_u32 v{A+3}, v2, v4')
        a(f'v_and_b32 v2, 15, v0\nv_mul_u32_u24 v2, 144, v2\nv_lshl_add_u32 v2, v3, 4, v2\ns_mul_i32 s8, {sWAVE}, 2304\ns_add_u32 s8, s8, {self.TSCR + 4096}\nv_add_u32 v{A+4}, s8, v2')
        a(f's_mul_i32 s11, {sWAVE}, {self.SCR}\nv_mul_u32_u24 v2, 240, v0\nv_add_u32 v2, s11, v2')
        a(f'v_lshl_add_u32 v3, v23, 1, v22\nv_mul_u32_u24 v3, 480, v3\nv_bfe_u32 v8, v0, 4, 1\nv_lshl_add_u32 v3, v8, 5, v3\nv_lshl_add_u32 v3, v9, 3, v3\nv_add_u32 v3, s11, v3')
        a(f'v_and_b32 v4, 31, v0\nv_mul_u32_u24 v4, 144, v4\nv_lshl_add_u32 v4, v22, 4, v4\nv_add_u32 v4, s11, v4')

    def s_kgen(self, mid_r0):
        a = self.a
        RS = 240
        AW, AR, AP = 'v2', 'v3', 'v4'
        if OPT('nokvfirst'): raise SystemExit('option removed')
        a(f's_cmp_eq_u32 s10, 1\ns_cselect_b32 s8, 0, 16')
        a('s_lshl_b32 s12, s71, s8\ns_and_b32 s12, s12, 0xffff0000\ns_lshl_b32 s13, s72, s8\ns_and_b32 s72, s13, 0xffff0000')
        a(f'v_mov_b32 v31, s12\nv_mul_f32 v31, {f32(LOG2E)}, v31\nv_exp_f32 v31, v31\nv_mov_b32 v{self.PD}, 0\nv_cvt_pk_bf16_f32 v31, v31, v31\nv_and_b32 v31, 0xffff0000, v31')
        a(f'v_mul_f32 v32, {f32(-LOG2E)}, v31\nv_mul_f32 v30, 0.15915494309189532, v31\nv_add_f32 v31, v31, v31')
        a(f's_mov_b32 exec_lo, s93\ns_mov_b32 exec_hi, 0\nv_mov_b32 v{self.PD}, s72\ns_mov_b64 exec, -1')
        ACC = 40; FR = 56; TB = 120
        W1, W256, W8 = 24, 26, 28
        RR = (120, 176)
        def cmul(z, x, y, conj, t):
            return [f'v_pk_mul_f32 {vr(t,2)}, {vr(x,2)}, {vr(y,2)} op_sel_hi:[1,0]',
                    f'v_pk_fma_f32 {vr(z,2)}, {vr(x,2)}, {vr(y,2)}, {vr(t,2)} op_sel:[1,1,0] op_sel_hi:[0,1,1] {"neg_hi" if conj else "neg_lo"}:[1,0,0]']
        def pack(buf, i, x, y): return [f'v_cvt_pk_bf16_f32 v{buf+i}, v{x}, v{y}', f'v_cvt_pk_bf16_f32 v{buf+4+i}, v{x+1}, v{y+1}']
        def flush(rnd):
            out = []
            for g in range(4): out += [f'ds_write_b128 {AW}, {vr(RR[rnd]+8*g,4)} offset:{16*g}', f'ds_write_b128 {AW}, {vr(RR[rnd]+8*g+4,4)} offset:{64+16*g}']
            for g in range(3): out += [f'ds_write_b128 {AW}, {vr(RR[rnd]+32+8*g,4)} offset:{128+16*g}', f'ds_write_b128 {AW}, {vr(RR[rnd]+32+8*g+4,4)} offset:{176+16*g}']
            return out
        def reads(q):
            qq, part = q >> 1, q & 1
            for t in range(2): a(f'ds_read_b64_tr_b16 {vr(FR+8*q+2*t,2)}, {AR} offset:{(16*qq+t)*RS + 64*part}')
            for t in range(2): a(f'ds_read_b64_tr_b16 {vr(FR+8*q+4+2*t,2)}, {AR} offset:{(16*qq+t)*RS + 128 + 48*part}')
        l1 = self.L('wp'); l2 = self.L('wp')
        a(f's_cmp_ge_u32 {sXG}, 4\ns_cbranch_scc1 {l1}\ns_waitcnt vmcnt({5 if OPT("noov") else 1})\ns_branch {l2}')
        a.label(l1); a(f's_waitcnt vmcnt({5 if OPT("noov") else 0})'); a.label(l2)
        self.fstamp(1); self.estamp(3)
        mfma = lambda q, first: f'v_mfma_f32_32x32x16_bf16 {vr(ACC,16)}, {vr(FR+8*q,4)}, {vr(FR+8*q+4,4)}, {"0" if first else vr(ACC,16)}'
        H0, H2, H4, H6, HT, HU, LA, LB, TL, TG = 34, 36, 38, 40, 42, 44, 46, 48, 50, 52
        for rnd in range(2):
            ex = (lambda d, s: f'v_lshlrev_b32 v{d}, 16, v{s}') if rnd == 0 else (lambda d, s: f'v_and_b32 v{d}, 0xffff0000, v{s}')
            setup = [ex(20, 16), ex(21, 17), ex(H0, 18), ex(H0+1, 19),
                     f'v_mul_f32 v20, {f32(LOG2E)}, v20', 'v_exp_f32 v20, v20', 'v_mul_f32 v21, v21, v30', 'v_cvt_pk_bf16_f32 v20, v20, v20', 'v_and_b32 v20, 0xffff0000, v20', 'v_mul_f32 v20, v20, v32',
                     f'v_mul_f32 v{H0}, v{H0}, v31', f'v_mul_f32 v{H0+1}, -v{H0+1}, v31']
            for W, m in ((W1, 1.0), (W256, 256.0), (W8, 8.0)):
                if m == 1.0: setup += ['v_exp_f32 v22, v20', 'v_fract_f32 v23, v21']
                else: setup += [f'v_mul_f32 v22, {f32(m)}, v20', f'v_mul_f32 v23, {f32(m)}, v21', 'v_exp_f32 v22, v22', 'v_fract_f32 v23, v23']
                setup += [f'v_cos_f32 v{W}, v23', f'v_sin_f32 v{W+1}, v23', f'v_mul_f32 v{W}, v{W}, v22', f'v_mul_f32 v{W+1}, v{W+1}, v22']
            for x in setup: a(x)
            PL = [RR[rnd] + 8*g for g in range(4)]; PG = [RR[rnd] + 32 + 8*g for g in range(3)]
            jl = [f'v_cvt_pk_bf16_f32 v{PL[0]}, 1.0, v{W8}', f'v_cvt_pk_bf16_f32 v{PL[0]+4}, 0, v{W8+1}']
            cur = W8
            for b in range(2, 32, 2):
                jl += cmul(LA, cur, W8, False, TL) + cmul(LB, LA, W8, False, TL) + pack(PL[b >> 3], (b & 7) >> 1, LA, LB); cur = LB
            jg = cmul(HT, H0, W1, True, TG) + pack(PG[0], 0, H0, HT)
            jg += cmul(H2, HT, W1, True, TG) + cmul(HT, H2, W1, True, TG) + pack(PG[0], 1, H2, HT)
            jg += cmul(H4, HT, W1, True, TG) + cmul(HT, H4, W1, True, TG) + pack(PG[0], 2, H4, HT)
            jg += cmul(H6, HT, W1, True, TG) + cmul(HT, H6, W1, True, TG) + pack(PG[0], 3, H6, HT)
            jg += cmul(H0, H0, W256, True, TG) + cmul(H2, H2, W256, True, TG) + pack(PG[1], 0, H0, H2)
            jg += cmul(H4, H4, W256, True, TG) + cmul(H6, H6, W256, True, TG) + pack(PG[1], 1, H4, H6)
            jg += cmul(H0, H0, W256, True, TG) + cmul(H4, H4, W256, True, TG) + pack(PG[1], 2, H0, H4)
            jg += cmul(H0, H0, W256, True, TG) + cmul(H4, H4, W256, True, TG) + pack(PG[1], 3, H0, H4)
            jg += cmul(HT, H0, W256, True, TG) + cmul(HU, HT, W256, True, TG) + pack(PG[2], 0, HT, HU)
            jg += cmul(HT, HU, W256, True, TG) + cmul(HU, HT, W256, True, TG) + pack(PG[2], 1, HT, HU)
            jg += cmul(HT, HU, W256, True, TG) + pack(PG[2], 2, HT, HT) + [f'v_mov_b32 v{PG[2]+3}, 0', f'v_mov_b32 v{PG[2]+7}, 0']
            for x in jg: a(x)
            if rnd == 0:
                mid_r0()
                for x in jl: a(x)
            elif not OPT('kvlate'):
                for x in jl: a(x)
                self.late_kv(True)
                if OPT('xs0'): self.stamp_flush(8); a('s_endpgm')
                for x in flush(0): a(x)
            else:
                fl = flush(0); step = len(jl) // 14
                for i, x in enumerate(jl):
                    a(x)
                    if i % step == step - 1 and fl: a(fl.pop(0))
                for x in fl: a(x)
            self.fstamp(2 + rnd)
        a(f's_mul_i32 s8, s10, {2*self.SCR}\ns_waitcnt vmcnt(0) lgkmcnt(0)')
        for q in range(6): reads(q)
        for k in range(16): a(f'v_add_u32 v{TB+k}, s8, v{104+k}')
        for q in range(6, 8): reads(q)
        if OPT('kgp0'): a('s_setprio 0')
        a('s_waitcnt lgkmcnt(0)')
        fl = flush(1)
        for q in range(8):
            a(mfma(q, q == 0))
            for x in fl[2*q:2*q+2]: a(x)
        a('s_waitcnt lgkmcnt(0)')
        self.estamp(7)
        for q in range(8):
            reads(q)
            if q >= 3:
                a('s_waitcnt lgkmcnt(12)'); a(mfma(q - 3, False))
        for q in range(5, 8):
            a(f's_waitcnt lgkmcnt({4*(7-q)})'); a(mfma(q, False))
        if OPT('kgp0'): a('s_setprio 2')
        for g in range(4): a(f'ds_write_b128 {AP}, {vr(ACC+4*g,4)} offset:{32*g}')
        for r in range(4): a(f'v_mov_b32 v{112+r}, 0')
        a('s_waitcnt lgkmcnt(0)\ns_barrier')
        self.fstamp(4)
        G = 56
        for k in range(16): a(f'ds_read2st64_b32 {vr(G+2*k,2)}, v{TB+k} offset1:{self.SCR//256}')
        a(f's_mov_b64 exec, 0xffff\nds_write_b32 v{self.PKZ}, v112\ns_mov_b32 exec_lo, -1\nds_write_b128 v{self.PZ}, v[112:115]\ns_mov_b64 exec, -1')
        for k in range(16):
            if k % 4 == 0: a(f's_waitcnt lgkmcnt({14-k})')
            a(f'v_add_f32 v{G+2*k}, v{G+2*k}, v{G+2*k+1}')
            if k == 0: a(f'v_add_f32 v{G}, v{G}, v{self.PD}')
        for k in range(8): a(f'v_cvt_pk_bf16_f32 v{88+k}, v{G+4*k}, v{G+4*k+2}')
        a(f'ds_write_b128 v{self.PK}, v[88:91] offset:64\nds_write_b128 v{self.PK}, v[92:95] offset:80')
        a(f'v_mov_b32 v113, {sNONCE}\ns_waitcnt lgkmcnt(0)\ns_barrier')
        self.stamp(3)

    def s_u_phase(self):
        a = self.a
        U = self.PUT
        a(f's_lshl_b32 s12, {sWAVE}, 11')
        a(f's_add_u32 m0, s12, {self.UTILE}\ns_mov_b32 s13, {8*896}\nbuffer_load_dwordx4 v7, {srd(R_B)}, 0 offen lds')
        a(f's_add_u32 m0, s12, {self.UTILE + 1024}\ns_nop 0\nbuffer_load_dwordx4 v7, {srd(R_B)}, s13 offen lds')
        a('s_waitcnt vmcnt(0)\ns_barrier')
        for half in range(2):
            for t in range(2):
                a(f'ds_read_b64_tr_b16 {vr(96+4*half+2*t,2)}, v{U} offset:{(32*half+16*t)*128}')
        a(f's_waitcnt lgkmcnt(2)\nds_write_b128 v{U+1}, v[96:99]\ns_waitcnt lgkmcnt(1)\nds_write_b128 v{U+1}, v[100:103] offset:16\ns_waitcnt lgkmcnt(0)')
        a(f'ds_read_b128 v[96:99], v{U+2}\nds_read_b128 v[100:103], v{U+2} offset:{8*144}')
        a(f's_waitcnt lgkmcnt(1)\nbuffer_store_dwordx4 v[96:99], v{U+3}, {srd(R_WS)}, 0 offen sc1')
        a(f's_waitcnt lgkmcnt(0)\nbuffer_store_dwordx4 v[100:103], v{U+4}, {srd(R_WS)}, 0 offen sc1')
        lw = self.L('wu')
        a(f's_waitcnt vmcnt(0)\ns_barrier\ns_cmp_lg_u32 {sWAVE}, 0\ns_cbranch_scc1 {lw}')
        a(f's_mov_b64 exec, 1\nbuffer_store_dword v113, v112, {srd(R_WS)}, s35 offen sc1\ns_mov_b64 exec, -1')
        self.spoll('s36', 32, 8, first_sleep=1)
        a.label(lw)
        a('s_barrier')
        for i in range(2): a(f'buffer_load_dwordx4 {vr(104+4*i,4)}, v15, {srd(R_WS)}, s14 offen offset:{1024*i} sc1')
        a(f's_waitcnt vmcnt(1)\nds_write_b128 v{self.PU}, v[104:107] offset:128\ns_waitcnt vmcnt(0)\nds_write_b128 v{self.PU}, v[108:111] offset:384')
        if OPT('tlb'):
            a(f's_mov_b64 exec, 1\nbuffer_load_dword v116, v112, {srd(R_WS)}, s92 offen\nbuffer_load_dword v117, v112, {srd(R_WS)}, s37 offen\nbuffer_load_dword v118, v112, {srd(R_OUT)}, s39 offen\ns_mov_b64 exec, -1')
        a('s_waitcnt lgkmcnt(0)')
        self.stamp(4)

    def s_conv(self):
        a = self.a
        self.stamp(5); self.fstamp(5); self.tstamp(1)
        D = 16; BF = (80, 112); TF = (144, 176)
        l1 = self.L('cv1'); lj = self.L('cvj')
        a(f's_cmp_eq_u32 s9, 0\ns_cbranch_scc0 {l1}')
        def variant(tset):
            mmax = max(tset)
            mf = []; reads = []
            seen = set(); started = set()
            for r in range(4):
                pb = r & 1
                for jj in range(mmax + 1):
                    for ti, t in enumerate(tset):
                        if t < jj: continue
                        m = t - jj
                        nb = ('B', r, m); nt = ('T', r, jj)
                        for k in (nt, nb):
                            if k not in seen:
                                seen.add(k)
                                if k[0] == 'B':
                                    reads.append((k, [f'ds_read_b128 {vr(BF[pb]+4*m,4)}, v{self.PB} offset:{32*(4*m - r + 3)}']))
                                else:
                                    mu = 4*jj + r
                                    reads.append((k, [f'ds_read_b64_tr_b16 {vr(TF[pb]+4*jj+2*tt,2)}, v{self.PT} offset:{128*mu + 32*(1-tt)}' for tt in range(2)]))
                        c = vr(D+16*ti, 16) if t in started else '0'
                        started.add(t)
                        mf.append((f'v_mfma_f32_32x32x16_bf16 {vr(D+16*ti,16)}, {vr(TF[pb]+4*jj,4)}, {vr(BF[pb]+4*m,4)}, {c}', (nb, nt), r))
            flat = []; endpos = {}
            for k, xs in reads:
                for x in xs: flat.append((x, k))
                endpos[k] = len(flat)
            issued = 0; done = 0
            lastmf = {}
            for i, (txt, needs, r) in enumerate(mf): lastmf[txt.split(',')[0]] = i
            pend = []; released = False
            for i, (txt, needs, r) in enumerate(mf):
                need = max(endpos[k] for k in needs)
                tgt = min(len(flat), need + (12 if r < 2 else 24))
                step = 0
                while issued < tgt and (issued < need + 12 or step < 2):
                    kk = flat[issued][1]
                    if kk[1] >= r + 2: break
                    a(flat[issued][0]); issued += 1; step += 1
                if issued == len(flat) and not released and r == 3:
                    a('s_waitcnt lgkmcnt(0)\ns_barrier'); done = issued; released = True
                    self.fstamp(6)
                if need > done:
                    n = min(14, issued - need)
                    a(f's_waitcnt lgkmcnt({n})'); done = issued - n
                a(txt)
                if released and pend and pend[0][0] <= i:
                    a(pend.pop(0)[1])
                for ti, t in enumerate(tset):
                    if lastmf[f'v_mfma_f32_32x32x16_bf16 {vr(D+16*ti,16)}'] == i:
                        pend += [(i + 5, f'ds_write_b128 v{self.PW+g}, {vr(D+16*ti+4*g,4)} offset:{t*1024}') for g in range(4)]
            assert released
            for _, x in pend: a(x)
        variant([7, 4, 3, 0]); a(f's_branch {lj}')
        a.label(l1); variant([6, 5, 2, 1])
        a.label(lj)
        a(f's_setprio {2 if OPT("epi2") else 3}\ns_waitcnt lgkmcnt(0)\ns_barrier')
        self.tstamp(2)
        E = self.PE
        for i in range(2):
            Y = [16 + 44*i, 24 + 44*i, 36 + 44*i, 48 + 44*i]
            for ph in range(4):
                o = 4 if ph else 0
                if ph: a(f'ds_read_b128 {vr(Y[ph],4)}, v{E+2} offset:{(ph-1)*8192 + i*2048}')
                a(f'ds_read_b128 {vr(Y[ph]+o,4)}, v{E} offset:{ph*8192 + i*2048}\nds_read_b128 {vr(Y[ph]+o+4,4)}, v{E+1} offset:{ph*8192 + i*2048}')
        for i in range(2):
            Y = [16 + 44*i, 24 + 44*i, 36 + 44*i, 48 + 44*i]
            for ph in range(1, 4):
                a(f's_waitcnt lgkmcnt({min(14, 11*(1-i) + 3*(3-ph))})')
                if i == 0:
                    a('s_mov_b32 exec_lo, s93\ns_mov_b32 exec_hi, 0')
                    for k in range(4 - ph, 4): a(f'v_mov_b32 v{Y[ph]+k}, 0')
                    a('s_mov_b64 exec, -1')
                for k in range(8): a(f'v_add_f32 v{Y[0]+k}, v{Y[0]+k}, v{Y[ph]+4+k-ph}')
            for k in range(4): a(f'v_cvt_pk_bf16_f32 v{104+4*i+k}, v{Y[0]+2*k}, v{Y[0]+2*k+1}')
            a(f'buffer_store_dwordx4 {vr(104+4*i,4)}, v15, {srd(R_WS)}, s92 offen offset:{1024*i} sc1')
        self.stamp(6); self.fstamp(7); self.tstamp(3)

    def s_assemble(self):
        a = self.a
        A = self.PA
        self.wait_y()
        self.tstamp(5)
        a(f'buffer_load_dwordx4 v[16:19], v{A}, {srd(R_WS)}, s37 offen sc1')
        a(f'buffer_load_dwordx4 v[20:23], v{A}, {srd(R_WS)}, s38 offen sc1')
        a(f's_waitcnt vmcnt(1)\nds_write_b128 v{A+1}, v[16:19]\ns_waitcnt vmcnt(0)\nds_write_b128 v{A+1}, v[20:23] offset:{32*160}')
        a('s_waitcnt lgkmcnt(0)\ns_barrier')
        self.tstamp(6)
        for o in range(2):
            for t in range(2): a(f'ds_read_b64_tr_b16 {vr(24+4*o+2*t,2)}, v{A+2} offset:{(32*o+4*t)*160}')
        a(f's_waitcnt lgkmcnt(2)\nds_write_b128 v{A+4}, v[24:27]\ns_waitcnt lgkmcnt(1)\nds_write_b128 v{A+4}, v[28:31] offset:64\ns_waitcnt lgkmcnt(0)')
        a(f'ds_read_b128 v[24:27], v{self.PUT+2} offset:4096\nds_read_b128 v[28:31], v{self.PUT+2} offset:{4096 + 8*144}')
        a(f's_waitcnt lgkmcnt(1)\nbuffer_store_dwordx4 v[24:27], v{A+3}, {srd(R_OUT)}, s39 offen sc1')
        a(f's_waitcnt lgkmcnt(0)\nbuffer_store_dwordx4 v[28:31], v{A+3}, {srd(R_OUT)}, s94 offen sc1')
        self.stamp(7); self.tstamp(7)

    def kernel_head(self, name):
        self.lend = f'L_end_{name}'
        self.a(f'.globl {name}\n.p2align 8\n.type {name},@function')
        self.a.label(name)
    def kernel_tail(self):
        self.a.label(self.lend)
        self.a('s_endpgm')

    SPIN = 1 << 20
    def nonce(self, n):
        self.a(f's_waitcnt vmcnt({n}) lgkmcnt(0)\nv_readfirstlane_b32 {sNONCE}, v54\ns_add_u32 {sNONCE}, {sNONCE}, 0x9e3779b9')
    def publish_y(self):
        a = self.a; l = self.L('pg')
        a(f's_lshl_b32 s8, s73, 14\ns_lshr_b32 s12, {sM}, 3\ns_lshl_b32 s13, s12, 7\ns_add_u32 s8, s8, s13\ns_add_u32 s8, s8, {WS_PY}\nv_lshl_add_u32 v2, v0, 9, s8')
        a(f's_and_b32 s12, {sM}, 7\ns_lshl_b32 s12, s12, 2\nv_mov_b32 v3, {sNONCE}')
        a('s_waitcnt vmcnt(0)\ns_barrier')
        self.tstamp(4)
        a(f's_cmp_lg_u32 {sWAVE}, 0\ns_cbranch_scc1 {l}')
        a(f's_mov_b32 exec_hi, 0\nbuffer_store_dword v3, v2, {srd(R_WS)}, s12 offen sc1\ns_mov_b64 exec, -1')
        a.label(l)
    def poll(self, vaddr, soff, width, mask_lo, mask_hi, sleep, vt=250):
        a = self.a; lp = self.L('poll'); ld = self.L('polled')
        ld_ = {1: 'dword', 2: 'dwordx2', 4: 'dwordx4'}[width]
        a(f's_mov_b32 exec_lo, {hex(mask_lo)}\ns_mov_b32 exec_hi, {hex(mask_hi)}\ns_mov_b32 s47, {self.SPIN}')
        a.label(lp)
        a(f'buffer_load_{ld_} {vr(vt,width)}, {vaddr}, {srd(R_WS)}, {soff} offen sc1\ns_waitcnt vmcnt(0)')
        a(f'v_xor_b32 v{vt}, {sNONCE}, v{vt}')
        for i in range(1, width): a(f'v_xor_b32 v{vt+i}, {sNONCE}, v{vt+i}\nv_or_b32 v{vt}, v{vt}, v{vt+i}')
        a(f'v_cmp_ne_u32 vcc, 0, v{vt}\ns_cbranch_vccz {ld}')
        if sleep: a(f's_sleep {sleep}')
        a(f's_sub_u32 s47, s47, 1\ns_cmp_lg_u32 s47, 0\ns_cbranch_scc1 {lp}')
        a.label(ld)
        a('s_mov_b64 exec, -1')
    def spoll(self, soff, n, sleep, first_sleep=0):
        a = self.a
        a(f's_mov_b32 s40, {sNONCE}\ns_mov_b32 s41, {sNONCE}\ns_mov_b32 s47, {self.SPIN}')
        for c in range(max(1, n // 16)):
            lp = self.L('sp'); lr = self.L('spr'); ld = self.L('spd')
            if c: a(f's_add_u32 {soff}, {soff}, 64')
            elif first_sleep: a(f's_branch {lr}')
            a.label(lp)
            if n == 8:
                a(f's_load_dwordx8 s[16:23], {sp(P_WS)}, {soff} glc\ns_waitcnt lgkmcnt(0)')
                for i in range(3): a(f's_cmp_eq_u64 s[{16+2*i}:{17+2*i}], s[40:41]\ns_cbranch_scc0 {lr}')
                a(f's_cmp_eq_u64 s[22:23], s[40:41]\ns_cbranch_scc1 {ld}')
            elif n == 1:
                a(f's_load_dword s16, {sp(P_WS)}, {soff} glc\ns_waitcnt lgkmcnt(0)\ns_cmp_eq_u32 s16, {sNONCE}\ns_cbranch_scc1 {ld}')
            else:
                a(f's_load_dwordx16 s[16:31], {sp(P_WS)}, {soff} glc\ns_waitcnt lgkmcnt(0)')
                for i in range(7): a(f's_cmp_eq_u64 s[{16+2*i}:{17+2*i}], s[40:41]\ns_cbranch_scc0 {lr}')
                a(f's_cmp_eq_u64 s[30:31], s[40:41]\ns_cbranch_scc1 {ld}')
            a.label(lr)
            if sleep: a(f's_sleep {sleep}')
            a(f's_sub_u32 s47, s47, 1\ns_cmp_gt_i32 s47, 0\ns_cbranch_scc1 {lp}')
            a.label(ld)
    def wait_kv(self, sleep=1):
        a = self.a; l = self.L('wkv')
        a(f's_cmp_lg_u32 {sWAVE}, 0\ns_cbranch_scc1 {l}')
        a(f's_and_b32 s8, s2, {NREP-1}\ns_lshl_b32 s8, s8, 10\ns_add_u32 s8, s8, {WS_FKV}\nv_lshlrev_b32 v2, 4, v0')
        self.poll('v2', 's8', 4, 0xffffffff, 0xffffffff, sleep)
        a.label(l)
        a('s_barrier')
    def wait_y(self):
        a = self.a
        a(f's_lshl_b32 s8, s73, 5\ns_add_u32 s8, s8, {sM}\ns_lshl_b32 s8, s8, 2\ns_add_u32 s8, s8, {sWAVE}\ns_lshl_b32 s8, s8, 7\ns_add_u32 s8, s8, {WS_PY}')
        self.spoll('s8', 8, 2 if OPT('osleep') else 0)
        a('s_barrier')
    def e_update(self):
        a = self.a; l = self.L('eu')
        a(f's_cmp_lg_u32 s2, 253\ns_cbranch_scc1 {l}')
        a(f'v_lshlrev_b32 v2, 8, v0\ns_lshl_b32 s8, {sWAVE}, 14\ns_add_u32 s8, s8, {WS_FA}')
        self.poll('v2', 's8', 1, 0xffffffff, 0xffffffff, 16)
        a(f'v_lshrrev_b32 v2, 3, v0\nv_lshlrev_b32 v2, 7, v2\nv_and_b32 v3, 7, v0\nv_lshl_add_u32 v2, v3, 2, v2\ns_lshl_b32 s8, {sWAVE}, 10\ns_add_u32 s8, s8, {WS_FKV}')
        self.poll('v2', 's8', 1, 0xffffffff, 0xffffffff, 16)
        a(f's_barrier\ns_cmp_lg_u32 {sWAVE}, 0\ns_cbranch_scc1 {l}')
        a(f'v_mov_b32 v2, {WS_E}\nv_mov_b32 v3, {sNONCE}\ns_mov_b64 exec, 1\nbuffer_store_dword v3, v2, {srd(R_WS)}, 0 offen sc1')
        a.label(l)
    def wo_prefetch(self):
        a = self.a
        if OPT('x5idle'): a(f's_mul_i32 s8, {sJ}, 12544')
        else: a(f's_lshl_b32 s8, {sXG}, 2\ns_and_b32 s12, {sJ}, 3\ns_add_u32 s8, s8, s12\ns_mul_i32 s8, s8, 12544')
        a(f's_lshl_b32 s12, {sWAVE}, 10\ns_add_u32 s8, s8, s12')
        for i in range(4):
            a(f'buffer_load_dwordx4 v[240:243], v15, {srd(R_B)}, s8 offen')
            if i < 3: a('s_add_u32 s8, s8, 4096')
    def build_fused(self):
        a = self.a
        kn = NAME + '_kernel'
        self.kernel_head(kn)
        if OPT('empty'): a('s_endpgm')
        self.prologue(512)
        la = self.L('roleA'); lidle = self.L('idle'); lnopf = self.L('nopf'); lnz = self.L('nonce')
        def emit_S():
            if OPT('qonly'): a('s_endpgm')
            a('s_setprio 3')
            self.s_ids(); self.s_kv_addr()
            self.after_kernarg()
            lq = self.L('pr'); lq2 = self.L('pr'); lq3 = self.L('pr')
            a(f's_cmp_eq_u32 {sXG}, 5\ns_cbranch_scc1 {lidle}' if OPT('x5idle') else f's_cmp_ge_u32 {sJ}, 28\ns_cbranch_scc1 {lidle}')
            KF = OPT('noov')
            if not KF: self.s_params_load()
            self.kv_srds()
            a(f's_cmp_ge_u32 {sXG}, 4\ns_cbranch_scc1 {lq}')
            self.s_kv_load()
            a.label(lq)
            if KF: self.s_params_load()
            self.s_kv_addr2()
            self.mk_srd(R_B, P_U, X_BYTES); self.mk_srd(R_OUT, P_OUT, OUT_BYTES)
            def early_kv(n, part):
                l = self.L('ekv')
                a(f's_cmp_ge_u32 {sXG}, 4\ns_cbranch_scc1 {l}')
                self.s_kv_phase(n, part)
                a.label(l)
            OV = not OPT('noov')
            if OV:
                a('s_lshl_b32 s8, s9, 12\nv_add_u32 v1, s8, v15')
                self.s_addr_all()
                early_kv(0, 1)
                self.nonce(4)
            else:
                self.nonce(4)
                early_kv(4, 3)
                a('s_setprio 2')
                self.code_prefetch(kn)
                a('s_lshl_b32 s8, s9, 12\nv_add_u32 v1, s8, v15')
                self.s_table_load(104)
                self.s_addr_all()
            def mid_r0():
                if OV:
                    early_kv(0, 2)
                    a('s_setprio 2')
                    self.code_prefetch(kn)
                    self.s_table_load(104)
            def late_kv(hold):
                a(f's_cmp_lt_u32 {sXG}, 4\ns_cbranch_scc1 {lq3}')
                if hold and not OPT('kvnohold'):
                    a(f's_lshl_b32 s8, s2, 8\ns_add_u32 s8, s8, {WS_FA}')
                    self.spoll('s8', 1, 1)
                self.s_kv_load()
                self.s_kv_phase()
                a.label(lq3)
            self.late_kv = late_kv
            self.s_kgen(mid_r0)
            if OPT('kvlate'): late_kv(False)
            if OPT('xs1'): self.stamp_flush(8); a('s_endpgm')
            self.s_u_phase()
            if OPT('xs2'): self.stamp_flush(8); a('s_endpgm')
            a('s_setprio 0')
            if not OPT('notrig') and not OPT('noA'):
                lt = self.L('trig')
                a(f's_cmp_lg_u32 {sWAVE}, 0\ns_cbranch_scc1 {lt}\ns_lshl_b32 s8, s2, 8\ns_add_u32 s8, s8, {WS_FA + 4}')
                self.spoll('s8', 1, 2)
                a.label(lt)
            a('s_barrier')
            self.s_conv()
            self.publish_y()
            self.s_assemble()
            self.stamp_flush(8)
            a('s_endpgm')
            a.label(lidle)
            self.s_kv_addr2()
            self.code_prefetch(kn)
            self.mk_srd(R_B, P_WO, WQ_BYTES)
            self.kv_srds()
            li = self.L('ih')
            a(f's_cmp_lt_u32 {sXG}, 4\ns_cbranch_scc1 {li}')
            self.nonce(1)
            if not OPT('noA'):
                a(f's_lshl_b32 s8, s2, 8\ns_add_u32 s8, s8, {WS_FA}')
                self.spoll('s8', 1, 1)
            a.label(li)
            self.s_kv_load()
            self.s_kv_phase(0, 1)
            self.nonce(1)
            self.s_kv_phase(0, 2)
            if not OPT('noA'):
                a(f's_lshl_b32 s8, s2, 8\ns_add_u32 s8, s8, {WS_FA}')
                self.spoll('s8', 1, 1)
            self.wo_prefetch()
            if not OPT('noA'):
                self.e_update()
            else:
                a(f'v_mov_b32 v2, {WS_E}\nv_mov_b32 v3, {sNONCE}\ns_cmp_lg_u32 s2, 253\ns_cbranch_scc1 {self.lend}\n' + 's_sleep 127\n' * 6 + f'buffer_store_dword v3, v2, {srd(R_WS)}, 0 offen sc1')
            a('s_endpgm')
        def emit_A():
            a.label(la)
            if OPT('noA'): a('s_endpgm')
            a('s_setprio 3')
            self.a_qproj()
            if OPT('qonly'):
                self.stamp_flush(10); a('s_endpgm')
            a('s_setprio 1' if not OPT('ahigh') else 's_setprio 3')
            self.a_attn(); self.a_outproj(); self.stamp_flush(10)
            a('s_endpgm')
            self.a_fallback()
            a('s_endpgm')
        if not OPT('afirst'):
            a(f's_cmp_ge_u32 s2, 256\ns_cbranch_scc1 {la}')
            emit_S(); emit_A()
        else:
            ls = self.L('roleS')
            a(f's_cmp_lt_u32 s2, 256\ns_cbranch_scc1 {ls}')
            emit_A(); a.label(ls); emit_S()
        self.kernel_tail()
        return [kn], [512]
    def code_prefetch(self, kn):
        a = self.a
        lp = self.L('pc')
        a('s_getpc_b64 s[12:13]'); a.label(lp)
        a(f's_add_u32 s12, s12, {kn}-{lp}\ns_addc_u32 s13, s13, -1')
        a(f's_lshl_b32 s8, {sJ}, 2\ns_add_u32 s8, s8, {sWAVE}\ns_mul_i32 s8, s8, 320\nv_mul_u32_u24 v9, 5, v0\nv_add_u32 v9, s8, v9\nv_and_b32 v9, -4, v9\nv_min_u32 v9, L_table-4-{kn}, v9')
        a('global_load_dword v55, v9, s[12:13]' if not OPT('nocpf') else f'global_load_dword v55, v15, {sp(P_LAR)}')
    def nonce_a(self):
        self.a(f's_add_u32 {sNONCE}, {sNONCE}, 0x9e3779b9')

def table():
    import numpy as np
    def rne_bf16(j):
        u = struct.unpack('<I', struct.pack('<f', float(j)))[0]
        u = (u + 0x7fff + ((u >> 16) & 1)) & 0xffff0000
        return int(struct.unpack('<f', struct.pack('<I', u))[0])
    hi = [0,1,2,3,4,5,6,7, 256,258,260,262, 512,516,768,772, 1024,1280,1536,1792, 2048]
    out = []
    for j in range(2048):
        p = rne_bf16(j)
        b = (p >> 3) & 31
        out.append(hi.index(p - 8 * b) * 144 + 4 * b)
    lin = []
    for mh in range(2):
        for i in range(4):
            for lane in range(64):
                lin += out[16*(64*mh+lane)+4*i:16*(64*mh+lane)+4*i+4]
    return lin

def main():
    mode = sys.argv[1]; outp = sys.argv[2]; stamps = len(sys.argv) > 3 and sys.argv[3] == 'stamps'
    g = Gen(mode, stamps)
    names, grids = g.build_multi() if mode == 'multi' else g.build_fused()
    body = g.a.finalize(verbose='-v' in sys.argv)
    head = open('cdna_kernels/' + NAME + '.s.ref').read().split('; Override launch geometry')[0]
    txt = head
    if mode == 'multi':
        for n, gr in zip(names, grids): txt += f'; @launch kernel={n} grid=({gr},1,1) block=(256,1,1) lds=81920\n'
    else:
        txt += f'; @launch grid=({grids[0]},1,1) block=(256,1,1) lds=81920\n'
    txt += '.amdgcn_target "amdgcn-amd-amdhsa--gfx950"\n.text\n' + body
    txt += '.p2align 6\n.type L_table,@object\nL_table:\n'
    t = table()
    for i in range(0, 2048, 16): txt += '.long ' + ','.join(str(x) for x in t[i:i+16]) + '\n'
    txt += '.section .rodata,"a"\n'
    for n in names:
        txt += f'''.p2align 6
.amdhsa_kernel {n}
  .amdhsa_next_free_vgpr 256
  .amdhsa_next_free_sgpr 100
  .amdhsa_accum_offset 256
  .amdhsa_group_segment_fixed_size 0
  .amdhsa_kernarg_size 120
  .amdhsa_user_sgpr_count 2
  .amdhsa_user_sgpr_kernarg_segment_ptr 1
  .amdhsa_system_sgpr_workgroup_id_x 1
.end_amdhsa_kernel
'''
    open(outp, 'w').write(txt)
    print('written', outp, 'nops inserted', g.a.n_nops, 'lines', len(g.a.lines))

if __name__ == '__main__':
    main()
```

```python
import sys, struct, math
from asmdsl import Asm

NAME = 'concat_heads__ssm_conv_s4d__grouped_kv_mqa__prompt'
X_BYTES = 2048 * 896; WQ_BYTES = 448 * 896; WK_BYTES = 448 * 56; OUT_BYTES = 2048 * 1792
WS_E = 0; WS_FKV = 0x80000; WS_FU = 0x9000; WS_FY = 0xA000; WS_FO = 0xB000
WS_FA = 0x50000; WS_PO = 0xC0000; WS_PY = 0xE0000; WS_PU = 0x6C0000; WS_KV = 0x10000; WS_O = 0x100000; WS_UT = 0x300000; WS_YT = 0x500000; WS_ST = 0x700000; WS_BYTES = 0x800000
NREP = 32
def f32(x): return '0x%08x' % struct.unpack('<I', struct.pack('<f', x))[0]
LOG2E = math.log2(math.e)
CSCALE = LOG2E / math.sqrt(28.0)

sWAVE = 's3'; sXG = 's4'; sJ = 's5'; sM = 's96'
P_U, P_LAR, P_AIM, P_CRE, P_CIM, P_LDT, P_DSK, P_X = [16 + 2 * i for i in range(8)]
P_WQ, P_WK, P_WV, P_WO = 32, 34, 36, 38
P_OUT, P_DBG, P_WS = 40, 42, 44
sNONCE = 's46'
R_X = 48; R_W = 52; R_WS = 56; R_OUT = 60; R_B = 64
def srd(r): return f's[{r}:{r+3}]'
def sp(r): return f's[{r}:{r+1}]'
def vr(a, n): return f'v[{a}:{a+n-1}]' if n > 1 else f'v{a}'

def OPT(x): return x in sys.argv
OSP = ' nt' if OPT('ont') else ' sc1' if OPT('osc1') else ' sc0 sc1' if OPT('osc01') else ''
class Gen:
    def __init__(self, mode, stamps=False):
        self.a = Asm(); self.mode = mode; self.stamps = stamps; self.uid = 0
    def L(self, base):
        self.uid += 1
        return f'L_{base}_{self.uid}'
    def mk_srd(self, r, p, nbytes):
        if r == R_OUT and OPT('nostore'): nbytes = 16
        if r == R_WS and OPT('wsbig'): nbytes = 0x10000000
        self.a(f's_mov_b32 s{r}, s{p}\ns_mov_b32 s{r+1}, s{p+1}\ns_mov_b32 s{r+2}, {hex(nbytes)}\ns_mov_b32 s{r+3}, 0x20000')
    def stamp(self, i):
        if self.stamps and not ((OPT('early') or OPT('sfine') or OPT('tail') or OPT('qst') or OPT('ast') or OPT('ust')) and i > 0):
            self.a(f's_memrealtime s[{76+2*i}:{77+2*i}]')
    def fstamp(self, i):
        if self.stamps and OPT('sfine'):
            self.a(f's_memrealtime s[{76+2*i}:{77+2*i}]')
    def tstamp(self, i):
        if self.stamps and OPT('tail'):
            self.a(f's_memrealtime s[{76+2*i}:{77+2*i}]')
    def qstamp(self, i):
        if self.stamps and OPT('qst'):
            self.a(f's_memrealtime s[{76+2*i}:{77+2*i}]')
    def astamp(self, i):
        if self.stamps and OPT('ast'):
            self.a(f'{"s_memtime" if OPT("cyc") else "s_memrealtime"} s[{76+2*i}:{77+2*i}]')
    def ustamp(self, i):
        if self.stamps and OPT('ust'):
            self.a(f's_memrealtime s[{76+2*i}:{77+2*i}]')
    def estamp(self, i):
        if self.stamps and OPT('early'):
            self.a(f's_memrealtime s[{76+2*i}:{77+2*i}]')
    def cstamp(self, i):
        if self.stamps:
            self.a(f's_memtime s[{76+2*i}:{77+2*i}]')
    def stamp_flush(self, n):
        if not self.stamps: return
        a = self.a
        a('s_waitcnt lgkmcnt(0)')
        if OPT('dbgst'):
            l = self.L('dbg')
            a(f's_cmp_lg_u32 {sWAVE}, 0\ns_cbranch_scc1 {l}')
            self.mk_srd(R_X, P_DBG, 256)
            a('v_mov_b32 v2, 0')
            isA = n == 10
            for i in range(8):
                if i == 0 and isA: a('s_not_b32 s6, s76\nv_writelane_b32 v2, s6, 0')
                else: a(f'v_writelane_b32 v2, s{76+2*i}, {i}')
            a(f'v_lshlrev_b32 v1, 2, v0\nv_add_u32 v1, {0 if isA else 32}, v1\ns_mov_b64 exec, 0xff')
            a(f'buffer_atomic_umax v2, v1, {srd(R_X)}, 0 offen\ns_mov_b64 exec, -1')
            a.label(l)
            return
        a(f's_lshl_b32 s6, s2, 2\ns_add_u32 s6, s6, {sWAVE}\ns_lshl_b32 s6, s6, 6\ns_add_u32 s6, s6, {WS_ST}')
        a('v_mov_b32 v1, s6')
        for i in range(n):
            a(f'v_mov_b32 v2, s{76+2*i}\nbuffer_store_dword v2, v1, {srd(R_WS)}, 0 offen offset:{4*i}')
        a('s_getreg_b32 s7, hwreg(HW_REG_XCC_ID)\nv_mov_b32 v2, s7')
        a(f'buffer_store_dword v2, v1, {srd(R_WS)}, 0 offen offset:60')

    def prologue(self, nwg):
        a = self.a
        if self.stamps:
            for i in range(1, 10): a(f's_mov_b64 s[{76+2*i}:{77+2*i}], 0')
        self.stamp(0)
        a(f's_cmp_ge_u32 s2, {nwg}\ns_cbranch_scc1 {self.lend}')
        a('s_load_dwordx16 s[16:31], s[0:1], 0\ns_load_dwordx8 s[32:39], s[0:1], 64')
        a('s_load_dwordx4 s[40:43], s[0:1], 96\ns_load_dwordx2 s[44:45], s[0:1], 112')
        a('v_lshrrev_b32 v1, 6, v0\nv_and_b32 v0, 63, v0')
        a(f's_and_b32 {sXG}, s2, 7\ns_bfe_u32 {sJ}, s2, 0x50003')
        a(f'v_readfirstlane_b32 {sWAVE}, v1')

    def after_kernarg(self, role):
        a = self.a
        self.estamp(1)
        a('s_waitcnt lgkmcnt(0)')
        self.estamp(2)
        if OPT('stlb') and role == 'S' or OPT('atlb') and role == 'A':
            for p in (P_X, P_WQ, P_WK, P_WV, P_WS, P_LAR, P_AIM, P_CRE, P_CIM, P_U, P_WO, P_OUT):
                a(f's_load_dword s47, {sp(p)}, 0')
        self.mk_srd(R_WS, P_WS, WS_BYTES)
        a(f'buffer_load_dword v54, off, {srd(R_WS)}, 0 offset:{WS_E} sc1')

    def row7_addr(self, v0, v1, tmp, rowstride):
        a = self.a
        for v, add in ((v0, 0), (v1, 64)):
            if add: a(f'v_add_u32 {tmp}, {add}, v0')
            else: a(f'v_mov_b32 {tmp}, v0')
            a(f'v_mul_u32_u24 {v}, 147, {tmp}\nv_lshrrev_b32 {v}, 10, {v}')
            a(f'v_mul_u32_u24 {v}, {rowstride - 112}, {v}')
            a(f'v_lshl_add_u32 {v}, {tmp}, 4, {v}')

    def w128_src(self):
        a = self.a
        a(f's_lshl_b32 s8, {sWAVE}, 4\ns_mul_i32 s9, s8, 896\ns_mul_i32 s11, s7, 112\ns_add_u32 s9, s9, s11')
        a('v_lshrrev_b32 v2, 3, v0\nv_mul_u32_u24 v2, 896, v2\nv_bfe_u32 v3, v0, 4, 1\nv_lshlrev_b32 v3, 2, v3\nv_and_b32 v4, 7, v0\nv_xor_b32 v3, v3, v4')
        a('v_lshl_add_u32 v114, v3, 4, v2\nv_add_u32 v114, s9, v114\nv_add_u32 v115, 7168, v114')
    def w128_frag(self, dst, rowmul_h, sbyte):
        a = self.a
        a(f'v_bfe_u32 v2, v0, 4, 1\nv_lshlrev_b32 v2, 5, v2\nv_and_b32 v3, 3, v0\nv_lshl_add_u32 v2, v3, 3, v2\nv_add_u32 v2, {sbyte}, v2')
        a(f'v_bfe_u32 v3, v0, 3, 1\nv_lshlrev_b32 v3, 6, v3\nv_xor_b32 v2, v2, v3')
        a(f'v_lshrrev_b32 v3, 5, v0\nv_mul_u32_u24 v3, {rowmul_h}, v3\nv_bfe_u32 v4, v0, 2, 2\nv_add_u32 v3, v3, v4\nv_lshl_add_u32 {dst}, v3, 7, v2')
    def a_qproj_addr(self):
        a = self.a
        QX = 32768
        self.mk_srd(R_B, P_WO, WQ_BYTES); self.mk_srd(R_OUT, P_OUT, OUT_BYTES)
        a(f's_and_b32 s8, {sWAVE}, 1\ns_lshl_b32 s8, s8, 5')
        a('v_and_b32 v2, 31, v0\nv_add_u32 v2, s8, v2\nv_bfe_u32 v3, v2, 1, 3\nv_lshrrev_b32 v4, 5, v0\nv_xor_b32 v3, v3, v4\nv_lshlrev_b32 v2, 7, v2')
        for ks in range(4):
            a(f'v_xor_b32 v9, {2*ks}, v3\nv_lshl_add_u32 v{116+ks}, v9, 4, v2\nv_add_u32 v{121+ks}, 0x10000, v{116+ks}')
        a(f's_lshr_b32 s8, {sWAVE}, 1\ns_mul_i32 s8, s8, 56')
        self.w128_frag('v120', 8, 's8')
        a('v_add_u32 v125, 0x10000, v120\nv_lshlrev_b32 v15, 4, v0')
        a(f's_lshl_b32 s8, {sWAVE}, 11\ns_add_u32 s8, s8, {QX}\nv_add_u32 v126, s8, v15')
        for js in range(4):
            a(f's_add_u32 s8, {sWAVE}, {1+js}\ns_and_b32 s8, s8, 3\ns_lshl_b32 s9, s8, 11\ns_add_u32 s9, s9, {QX}\nv_add_u32 v{192+js}, s9, v15')
            if js < 3:
                a(f's_mul_i32 s9, s8, 12288\nv_add_u32 v{196+js}, s9, v15')
        for r in range(64, 112): a(f'v_mov_b32 v{r}, 0')
    def a_qproj(self):
        a = self.a
        QX = 32768
        REG = [0, 16384, 32768, 49152, 65536, 0, 16384]
        sQB = 's6'; sHP = 's7'
        a(f's_lshr_b32 s8, {sJ}, 3\ns_lshl_b32 {sQB}, {sXG}, 2\ns_add_u32 {sQB}, {sQB}, s8\ns_and_b32 {sHP}, {sJ}, 7')
        a(f's_lshl_b32 s8, {sWAVE}, 4\ns_lshl_b32 s9, {sQB}, 6\ns_add_u32 s9, s9, s8\ns_mul_i32 s9, s9, 896')
        a('v_lshrrev_b32 v2, 3, v0\nv_lshrrev_b32 v3, 4, v0\nv_and_b32 v4, 7, v0')
        a('v_xor_b32 v4, v4, v3\nv_mul_u32_u24 v2, 896, v2')
        a('v_lshl_add_u32 v112, v4, 4, v2\nv_add_u32 v112, s9, v112')
        a('v_xor_b32 v4, 4, v4\nv_lshl_add_u32 v113, v4, 4, v2\nv_add_u32 v113, s9, v113\nv_add_u32 v113, 7168, v113')
        a(f's_lshl_b32 s10, {sWAVE}, 11')
        self.w128_src()
        a(f's_lshr_b32 s8, {sJ}, 3\ns_lshl_b32 s8, s8, 1\ns_add_u32 s8, s8, {sHP}\ns_cmp_ge_u32 s8, 7\ns_cselect_b32 s9, 7, 0\ns_sub_u32 s8, s8, s9')
        a('s_cmp_ge_u32 s8, 7\ns_cselect_b32 s9, 7, 0\ns_sub_u32 s8, s8, s9')
        a('s_lshl_b32 s14, s8, 7\ns_mul_i32 s15, s8, 57344')
        self.after_kernarg('A')
        self.mk_srd(R_X, P_X, X_BYTES); self.mk_srd(R_W, P_WQ, WQ_BYTES)
        def loadx(i):
            a(f's_add_u32 m0, s10, {REG[i]}\ns_nop 0\nbuffer_load_dwordx4 v112, {srd(R_X)}, s14 offen lds')
            a(f's_add_u32 m0, s10, {REG[i] + 1024}\ns_nop 0\nbuffer_load_dwordx4 v113, {srd(R_X)}, s14 offen lds')
            if i < 6: a('s_add_u32 s14, s14, 128\ns_cmp_eq_u32 s14, 896\ns_cselect_b32 s14, 0, s14')
        def loadw(i):
            a(f's_add_u32 m0, s10, {REG[i] + 8192}\ns_nop 0\nbuffer_load_dwordx4 v114, {srd(R_W)}, s15 offen lds')
            a(f's_add_u32 m0, s10, {REG[i] + 8192 + 1024}\ns_nop 0\nbuffer_load_dwordx4 v115, {srd(R_W)}, s15 offen lds')
            if i < 6: a(f's_add_u32 s15, s15, 57344\ns_cmp_eq_u32 s15, {7*57344}\ns_cselect_b32 s15, 0, s15')
        def load(i): loadw(i); loadx(i)
        NF = 3 if OPT('q3') else 5 if OPT('q5') else 4
        a('s_setprio 1')
        if OPT('wfirst'): loadw(0); loadw(1); loadx(0); loadx(1)
        else: loadx(0); loadw(0); loadx(1); loadw(1)
        a('@CUT A')
        self.a_qproj_addr()
        for i in range(2, NF): load(i)
        if not OPT('shi'): a('s_setprio 3')
        self.estamp(3)
        FX = (144, 176); FW = (160, 232); ACC = 48
        issued = NF
        def rd(i):
            hi = REG[i] >= 65536
            off = REG[i] - (65536 if hi else 0)
            for ks in range(4):
                a(f'ds_read_b128 {vr(FX[i&1]+4*ks,4)}, v{(121 if hi else 116)+ks} offset:{off}')
                for t in range(2):
                    a(f'ds_read_b64_tr_b16 {vr(FW[i&1]+4*ks+2*t,2)}, v{125 if hi else 120} offset:{off + 8192 + (16*ks+4*t)*128}')
        def mm(i, waits):
            for ks in range(4):
                c = '0' if (i == 0 and ks == 0) else vr(ACC, 16)
                if waits[ks] is not None: a(f's_waitcnt lgkmcnt({waits[ks]})')
                a(f'v_mfma_f32_32x32x16_bf16 {vr(ACC,16)}, {vr(FW[i&1]+4*ks,4)}, {vr(FX[i&1]+4*ks,4)}, {c}')
        extra = 0; FLS = 4 if OPT('fl4') else 5
        for i in range(7):
            a(f's_waitcnt vmcnt({4*(issued - 1 - i) - (2 if i == 0 and OPT("wfirst") else 0) + extra}) lgkmcnt(0)\ns_barrier')
            if i == 0: self.stamp(1); self.estamp(4)
            if i == 3: self.estamp(5)
            if i == 6: self.estamp(6)
            self.qstamp(i + 1)
            if (i == 6 and OPT('flvec')) or (i == 5 and OPT('flvec5')) or (i == 6 and OPT('flvec6')):
                a(f's_mov_b64 exec, 0xffff\nbuffer_load_dword v250, v251, {srd(R_WS)}, s36 offen sc1\ns_mov_b64 exec, -1'); extra += 1
            rd(i)
            if i and i < 6: mm(i - 1, [None] * 4)
            while issued < 7 and issued <= i + NF and (issued < 5 or issued - 5 < i): load(issued); issued += 1
            if i == 0:
                self.a_attn_setup()
                keep = self.a; self.a = Asm(); self.a_tail_addr(); tl = self.a.lines; self.a = keep
            if 1 <= i <= 4:
                n = (len(tl) + 3) // 4
                for x in tl[(i-1)*n:i*n]: a(x)
            if i == (5 if OPT('fa5') else 3):
                assert issued == 7
                a(f'buffer_store_dword v199, v248, {srd(R_WS)}, s69 offen sc1'); extra += 1
            if i == 5:
                mm(5, [9, 6, 3, 0])
                if OPT('flpre'):
                    a('s_mov_b32 s14, 0')
                    for x in self.fl_load(): a(x)
        mm(6, [9, 6, 3, 0])
        V2 = OPT('flvec5') or OPT('flvec6')
        if V2:
            lno = self.L('nokv')
            a(f's_waitcnt vmcnt(0)\ns_mov_b64 exec, 0xffff\nv_cmp_ne_u32 vcc, v250, v199\ns_mov_b64 exec, -1\ns_cbranch_vccnz {lno}')
            self.kv_first([0])
            a('s_mov_b32 s75, 1')
            a.label(lno)
        if OPT('flpre'):
            lno = self.L('nokv')
            for x in self.fl_test()[1:]: a(x)
            a(f's_cbranch_scc1 {lno}')
            self.kv_first([0])
            a('s_mov_b32 s75, 1')
            a.label(lno)
        for r in range(8): a(f'v_mov_b32 v{184+r}, 0')
        for r in range(8): a(f'v_cvt_pk_bf16_f32 v{224+r}, v{ACC+2*r}, v{ACC+2*r+1}')
        a('s_mov_b32 exec_lo, 0\nv_mov_b32 v230, 0\nv_mov_b32 v231, 0\ns_mov_b32 exec_lo, -1')
        a('ds_write_b128 v126, v[224:227]\nds_write_b128 v126, v[228:231] offset:1024')
        for r in range(48, 64): a(f'v_mov_b32 v{r}, 0')
        a('s_waitcnt lgkmcnt(0)')
        if not OPT('flpre') and not OPT('flvec') and not V2:
            a('s_mov_b32 s14, 0')
            for x in self.fl_load(): a(x)
        a('s_barrier')
        for js in range(4):
            a(f'ds_read_b128 {vr(16+8*js,4)}, v{192+js}\nds_read_b128 {vr(20+8*js,4)}, v{192+js} offset:1024')
        lno2 = self.L('nokv')
        if OPT('flvec'):
            a(f's_waitcnt vmcnt(0)\ns_mov_b64 exec, 0xffff\nv_cmp_ne_u32 vcc, v250, v199\ns_mov_b64 exec, -1\ns_cbranch_vccnz {lno2}\ns_mov_b32 s75, 1')
            self.kv_first([0])
        elif not OPT('flpre') and not V2:
            for x in self.fl_test(): a(x)
            a(f's_cbranch_scc1 {lno2}\ns_mov_b32 s75, 1')
            self.kv_first([0])
        else: a(f's_cmp_eq_u32 s75, 0\ns_cbranch_scc1 {lno2}')
        self.kv_first([1, 2, 3])
        a.label(lno2)
        self.stamp(2); self.estamp(7)

    KB_ = (112, 128, 200, 216); CK = ['s32', 's33', 's34', 's35']
    def ldK(self, buf): return ['s_nop 0', 's_nop 0'] if OPT('nold') and getattr(self, 'inloop', 0) else [f'buffer_load_dwordx4 {vr(self.KB_[buf] + 4*f, 4)}, v15, {srd(R_WS)}, s68 offen offset:{1024*f} sc1' for f in range(2)]
    def ldV(self, buf): return ['s_nop 0', 's_nop 0'] if OPT('nold') and getattr(self, 'inloop', 0) else [f'buffer_load_dwordx4 {vr(self.KB_[buf] + 8 + 4*f, 4)}, v15, {srd(R_WS)}, s68 offen offset:{2048+1024*f} sc1' for f in range(2)]
    def fl_load(self, g='s14'):
        return [f's_lshr_b32 s8, {g}, 6', 's_add_u32 s8, s8, s36', f's_load_dwordx8 s[16:23], {sp(P_WS)}, s8 glc', 's_add_u32 s9, s8, 512', f's_load_dwordx8 s[24:31], {sp(P_WS)}, s9 glc']
    def fl_test(self):
        out = ['s_waitcnt lgkmcnt(0)', 's_xor_b64 s[16:17], s[16:17], s[40:41]']
        for i in range(1, 8): out += [f's_xor_b64 s[{16+2*i}:{17+2*i}], s[{16+2*i}:{17+2*i}], s[40:41]', f's_or_b64 s[16:17], s[16:17], s[{16+2*i}:{17+2*i}]']
        return out
    def fl_check(self):
        lr = self.L('kvspin'); lb = self.L('kvback')
        self.spins.append((lr, lb))
        return self.fl_test() + [f's_cbranch_scc1 {lr}', lb + ':']
    def kv_first(self, bs=range(4)):
        for b in bs:
            self.a(f's_mov_b32 s68, {self.CK[b]}')
            for x in self.ldK(b) + (self.ldV(b) if b < 3 else []): self.a(x)
    def a_attn_setup(self):
        a = self.a
        self.spins = []
        a(f'v_readfirstlane_b32 {sNONCE}, v54\ns_add_u32 {sNONCE}, {sNONCE}, 0x9e3779b9')
        a(f's_lshl_b32 s8, {sWAVE}, 13\ns_add_u32 s8, s8, {WS_KV}\ns_mov_b32 s37, s8')
        for k in range(4):
            a(f's_add_u32 s9, {sJ}, {k}\ns_and_b32 s12, s9, 1\ns_lshl_b32 s12, s12, 12\ns_and_b32 s9, s9, 2\ns_lshl_b32 s9, s9, 14\ns_add_u32 s9, s9, s12\ns_add_u32 s{32+k}, s8, s9')
        a(f's_and_b32 s36, s2, {NREP-1}\ns_lshl_b32 s36, s36, 12\ns_lshl_b32 s8, {sWAVE}, 7\ns_add_u32 s36, s36, s8\ns_add_u32 s36, s36, {WS_FKV}')
        a(f's_mov_b32 s40, {sNONCE}\ns_mov_b32 s41, {sNONCE}\ns_mov_b32 s38, 0x07060302')
        a(f's_and_b32 s69, s2, 255\ns_lshl_b32 s69, s69, 8\ns_add_u32 s69, s69, {WS_FA}\nv_mov_b32 v199, {sNONCE}\nv_mov_b32 v248, 0')
        if OPT('flvec') or OPT('flvec5') or OPT('flvec6'): a('v_and_b32 v251, 7, v0\nv_lshlrev_b32 v251, 2, v251\nv_bfe_u32 v250, v0, 3, 1\nv_lshl_add_u32 v251, v250, 9, v251')
        a(f's_lshl_b32 s71, {sWAVE}, 10\ns_mul_i32 s8, {sWAVE}, 7168\ns_lshl_b32 s9, s7, 4\ns_sub_u32 s8, s9, s8\nv_add_u32 v249, s8, v114')
        a(f's_cmp_eq_u32 s7, 7\ns_cselect_b32 s{R_B+2}, 0, s{R_B+2}')
        a('s_mov_b32 s72, 0\ns_mov_b32 s73, 0\ns_mov_b32 s75, 0')
    def a_attn(self):
        a = self.a
        Q = 16; O = 48; SS = (144, 160); PP = (176, 184)
        KB_ = (112, 128, 200, 216)
        K = lambda buf, f: vr(KB_[buf] + 4*f, 4)
        Vv = lambda buf, f: vr(KB_[buf] + 8 + 4*f, 4)
        sG = 's14'; sF = 's36'; sOFF = 's68'; sCNT = 's70'; sSEQ = 's74'; CK = self.CK
        fl_load = self.fl_load; fl_check = self.fl_check; ldK = self.ldK; ldV = self.ldV
        for r in range(8): a(f'v_mov_b32 v{KB_[3]+8+r}, 0')
        lgo = self.L('go')
        a(f's_cmp_lg_u32 s75, 0\ns_cbranch_scc1 {lgo}')
        self.lagain = self.L('again')
        a.label(self.lagain)
        a(f's_mov_b32 {sG}, 0')
        for x in fl_load() + fl_check(): a(x)
        self.kv_first()
        a.label(lgo)
        a(f's_mov_b32 {sSEQ}, 0x462')
        self.stamp(3); self.cstamp(8); self.astamp(1)
        def nxtG(): return [f's_and_b32 s39, {sSEQ}, 15', 's_lshl_b32 s39, s39, 15', f's_lshr_b32 {sSEQ}, {sSEQ}, 4']
        def mA(u, buf, f):
            s = SS[u & 1]; c = '0' if f == 0 else vr(s, 16)
            return f'v_mfma_f32_32x32x16_bf16 {vr(s,16)}, {K(buf,f)}, {vr(Q + 8*(u&3) + 4*f, 4)}, {c}'
        def mC(u, buf, f):
            o = vr(O + 16*(u & 3), 16)
            return f'v_mfma_f32_32x32x16_bf16 {o}, {Vv(buf,f)}, {vr(PP[u&1] + 4*f, 4)}, {o}'
        a('s_waitcnt lgkmcnt(0)')
        if OPT('tlb'):
            a(f's_mov_b64 exec, 1\nbuffer_load_dword v252, v248, {srd(R_WS)}, s42 offen\nbuffer_load_dword v253, v248, {srd(R_OUT)}, s98 offen\ns_mov_b64 exec, -1')
        for x in nxtG() + fl_load('s39'): a(x)
        a(f's_waitcnt vmcnt({14 if OPT("tlb") else 12})')
        self.astamp(2)
        a(mA(0, 0, 0)); a(mA(0, 0, 1))
        a(f's_mov_b32 {sCNT}, 3')
        def unit(u, mf, extra):
            s = SS[u & 1]; p = PP[u & 1]
            e = lambda i: f'v_exp_f32 v{s+i}, v{s+i}'
            c = (lambda i: f'v_cvt_pk_bf16_f32 v{p+i}, v{s+2*i}, v{s+2*i+1}') if OPT('cvt') else (lambda i: f'v_perm_b32 v{p+i}, v{s+2*i+1}, v{s+2*i}, s38')
            Lq = [e(0), e(1), e(2), e(3), c(0), e(4), e(5), c(1), e(6), e(7), c(2), e(8), e(9), c(3), e(10), e(11), c(4), e(12), e(13), c(5), e(14), e(15), c(6), c(7)]
            sp_ = (4, 4, 4, 12) if OPT('hole') else (6, 6, 6, 6)
            seq = [Lq[sum(sp_[:i]):sum(sp_[:i+1])] for i in range(4)]
            for i in range(4):
                for x in extra.get(('pre', i), []): a(x)
                if mf[i]: a(mf[i])
                for x in extra.get(i, []): a(x)
                for x in seq[i]: a(x)
        lloop = self.L('attn'); self.inloop = 1
        TRIG = [int(x[4:]) for x in sys.argv if x.startswith('trig') and x[4:].isdigit()]
        TRL = [int(x[5:]) for x in sys.argv if x.startswith('trigL')]
        if not TRIG and not TRL: TRIG = [2]
        TRI = 2 if OPT('trigIt2') else 1
        TRIG = TRIG[0] if TRIG else 99
        WOR = list(range(8, 15))
        WOU = list(range(2, 10))
        W = lambda n, u, slot: n + (1 if (u, slot) > (TRIG, 0) else 0) + sum(1 for x in WOU if (u, slot) > (x, 1)) + sum(1 for x in WOR if (u, slot) > (x, 3))
        def body(tail):
            for u in range(16):
                t = u >> 2; b = u & 3
                nu = u + 1; nbuf = (nu >> 2) & 3
                pu = u - 1; pbuf = ((pu >> 2) & 3)
                mf = [mA(nu, nbuf, 0), mA(nu, nbuf, 1), mC(pu, pbuf, 0), mC(pu, pbuf, 1)]
                ex = {}
                if tail and u == 15: mf = [mC(pu, pbuf, 0), mC(pu, pbuf, 1), None, None]
                if b == 3:
                    if not tail:
                        ex[('pre', 0)] = ['s_waitcnt vmcnt(10)']
                        ex[0] = [f's_add_u32 {sOFF}, {sG}, {CK[t]}']
                        ex[2] = [ldK(t)[0]]; ex[3] = [ldK(t)[1]]
                    elif t < 3:
                        ex[('pre', 0)] = [f's_waitcnt vmcnt({W(10 - 4*t, u, 0)})']
                if b == 1:
                    if not tail or t == 0:
                        assert TRIG >= 2
                        ex[('pre', 2)] = ['s_waitcnt vmcnt(10)']
                        ex[2] = [ldV((t - 1) & 3)[0]]; ex[3] = [ldV((t - 1) & 3)[1]]
                    else:
                        ex[('pre', 2)] = [f's_waitcnt vmcnt({W(12 - 4*t, u, 2)})']
                if tail and u == TRIG:
                    ex.setdefault(0, []).append(f'buffer_store_dword v199, v248, {srd(R_WS)}, s69 offen offset:4 sc1')
                if not tail and OPT('spread'):
                    if u == 0: self.c_ = fl_check()
                    g_ = nxtG() + fl_load('s39')
                    plan = {(12, 0): g_[0:1], (12, 1): g_[1:2], (12, 2): g_[2:3], (12, 3): g_[3:4], (13, 0): g_[4:5], (13, 1): g_[5:6], (14, 1): g_[6:7], (14, 2): g_[7:8]}
                    c_ = self.c_
                    slots = [(0, 1), (0, 2), (0, 3), (1, 0), (1, 1), (2, 0), (2, 1), (2, 2), (2, 3)]
                    per = [2, 2, 2, 2, 2, 2, 2, 2, 3]; k = 0
                    for sl, n in zip(slots, per): plan[sl] = c_[k:k+n]; k += n
                    plan[(0, 0)] = [f's_mov_b32 {sG}, s39']
                    for (uu, sl), xs in plan.items():
                        if uu == u: ex.setdefault(sl, []).extend(xs)
                if not tail and not OPT('spread'):
                    if u == 0:
                        ex[0] = [f's_mov_b32 {sG}, s39']
                    if u == 14:
                        g_ = nxtG() + fl_load('s39')
                        ex.setdefault(1, []).extend(g_[:2]); ex.setdefault(2, []).extend(g_[2:4]); ex.setdefault(3, []).extend(g_[4:6])
                        self.g_rest = g_[6:]
                    if u == 15:
                        ex.setdefault(1, []).extend(self.g_rest)
                    if u == 1:
                        c0 = ['s_waitcnt lgkmcnt(0)', 's_xor_b64 s[16:17], s[16:17], s[40:41]']
                        for i in range(1, 4): c0 += [f's_xor_b64 s[{16+2*i}:{17+2*i}], s[{16+2*i}:{17+2*i}], s[40:41]', f's_or_b64 s[16:17], s[16:17], s[{16+2*i}:{17+2*i}]']
                        ex.setdefault(0, []).extend(c0[:2]); ex.setdefault(1, []).extend(c0[2:4]); ex.setdefault(2, []).extend(c0[4:6]); ex.setdefault(3, []).extend(c0[6:])
                    if u == 2:
                        c_ = fl_check(); self.c_ = c_
                        ex[0] = c_[8:10]; ex[1] = c_[10:12]; ex[2] = c_[12:14]; ex[3] = c_[14:]
                if not tail and TRL and u == TRL[0]:
                    lsk = self.L('tsk')
                    assert u not in (1, 2, 14, 15)
                    ex.setdefault(1, []).extend([f's_cmp_lg_u32 {sCNT}, {TRI}', f's_cbranch_scc1 {lsk}', f'buffer_store_dword v199, v248, {srd(R_WS)}, s69 offen offset:4 sc1', lsk + ':'])
                if tail and u in WOU:
                    i = WOU.index(u)
                    ex.setdefault(0, []).append(f's_add_u32 m0, s71, {self.WOB + 1024*(25+4*i)}')
                    ex.setdefault(('pre', 1), []).append(f's_mov_b32 s13, {(25+4*i)*7168}')
                    ex.setdefault(1, []).append(f'buffer_load_dwordx4 v249, {srd(R_B)}, s13 offen lds')
                if tail and u in WOR:
                    i = WOR.index(u)
                    ex.setdefault(2, []).append(f's_mov_b32 s11, {4*i*7168}')
                    ex.setdefault(3, []).append(f'buffer_load_dwordx4 {vr(112+4*i,4)}, v249, {srd(R_B)}, s11 offen')
                if tail and u == 14:
                    for g in range(4): ex.setdefault((1,2,2,3)[g], []).append(f'ds_write_b128 v196, {vr(O+4*g,4)} offset:{g*1024}')
                if tail and u == 15:
                    for g in range(4): ex.setdefault((1,2,2,3)[g], []).append(f'ds_write_b128 v197, {vr(O+16+4*g,4)} offset:{4096+g*1024}')
                if not tail and u == 14:
                    ex.setdefault(0, []).append(f's_sub_u32 {sCNT}, {sCNT}, 1')
                unit(u, mf, ex)
        a('s_nop 10\n.p2align 4')
        a.label(lloop)
        body(False)
        if self.stamps and OPT('ast'):
            for k in range(3):
                l = self.L('ast')
                a(f's_cmp_lg_u32 {sCNT}, {2-k}\ns_cbranch_scc1 {l}'); self.astamp(3 + k); a.label(l)
        a(f's_cmp_lg_u32 {sCNT}, 0\ns_cbranch_scc1 {lloop}')
        body(True)
        self.astamp(6)
        a('s_setprio 3')
        a(mC(15, 3, 0)); a(mC(15, 3, 1))
        for g in range(4): a(f'ds_write_b128 v198, {vr(O+32+4*g,4)} offset:{8192+g*1024}')
        a('s_waitcnt lgkmcnt(0)\ns_barrier')
        self.stamp(4); self.cstamp(9); self.tstamp(1); self.astamp(7)
        RD = 144
        for i in range(12): a(f'ds_read_b128 {vr(RD+4*i,4)}, v2 offset:{i*1024}')
        F = O + 48
        for s in range(3):
            a(f's_waitcnt lgkmcnt({8-4*s})')
            order = [12] + [r for r in range(16) if r != 12] if s == 2 else range(16)
            for n, r in enumerate(order):
                a(f'v_add_f32 v{F+r}, v{F+r}, v{RD+16*s+r}')
                if s == 2 and n == 1: a(f'v_mov_b32 v208, v{F+12}\nv_mov_b32 v209, v{F+12}')
                if s == 2 and n == 4: a('v_permlane32_swap_b32 v208, v209')
                if s == 2 and n == 7: a('v_rcp_f32 v208, v209')
        if not OPT('olate'): a(f's_load_dwordx8 s[16:23], {sp(P_WS)}, s100 glc')
        for r in range(16): a(f'v_mul_f32 v{F+r}, v{F+r}, v208')
        for r in range(8): a(f'v_cvt_pk_bf16_f32 v{200+r}, v{F+2*r}, v{F+2*r+1}')
        a('s_mov_b32 exec_lo, 0\nv_mov_b32 v206, 0\nv_mov_b32 v207, 0\ns_mov_b32 exec_lo, -1')
        self.lnopub = self.L('nopub'); self.lskip = self.L('skip')
        a(f's_mov_b32 s12, 0\ns_cmp_lg_u32 s73, 0\ns_cbranch_scc1 {self.lskip}')
        a(f'buffer_store_dwordx4 v[200:203], v15, {srd(R_WS)}, s42 offen sc1')
        a(f'buffer_store_dwordx4 v[204:207], v15, {srd(R_WS)}, s42 offen offset:1024 sc1')
        a('s_mov_b32 s9, 0x3f803f80\nv_mov_b32 v210, 0')
        for r in range(8): a(f'v_dot2_f32_bf16 v210, v{200+r}, s9, v210')
        a(f's_mov_b32 s12, {f32(2.0**64)}\nv_mov_b32 v211, 0x207\nv_cmp_nle_f32 vcc, {f32(2.0**-64)}, v209\nv_cmp_nge_f32 s[10:11], s12, v209')
        a('s_or_b64 s[10:11], s[10:11], vcc\nv_cmp_class_f32 vcc, v210, v211\ns_or_b64 s[10:11], s[10:11], vcc')
        a('s_cmp_lg_u64 s[10:11], 0\ns_cselect_b32 s12, 1, 0\ns_andn2_b32 s12, s12, s72')
        a(f's_cbranch_scc1 {self.lskip}')
        self.tstamp(2)
        a('s_waitcnt vmcnt(0)')
        self.tstamp(3)
        a(f's_mov_b64 exec, 0x7f\nbuffer_store_dword v199, v7, {srd(R_WS)}, s43 offen sc1\ns_mov_b64 exec, -1\ns_mov_b32 s73, 1')
        a.label(self.lnopub)
        self.stamp(5)
        self.lfb = self.L('fallback')
        a('v_mov_b32 v210, s12\nds_write_b32 v4, v210 offset:3588')
        a('s_waitcnt lgkmcnt(0)\ns_barrier')
        if OPT('olate'): a(f's_load_dwordx8 s[16:23], {sp(P_WS)}, s100 glc')
        for k in range(4): a(f'ds_read_b32 v{212+k}, v248 offset:{3588+16*k}')
        a(f's_waitcnt lgkmcnt(0)\nv_or3_b32 v212, v212, v213, v214\nv_or_b32 v212, v212, v215\nv_cmp_ne_u32 vcc, 0, v212\ns_cbranch_vccnz {self.lfb}')

    def a_tail_addr(self):
        a = self.a
        XCH = 0
        a(f's_lshr_b32 s12, {sWAVE}, 1\ns_and_b32 s13, {sWAVE}, 1')
        a(f's_lshl_b32 s8, s6, 1\ns_add_u32 s8, s8, s13\ns_lshl_b32 s39, s8, 15\ns_add_u32 s39, s39, {WS_O}')
        a('s_lshl_b32 s9, s7, 1\ns_add_u32 s9, s9, s12\ns_lshl_b32 s9, s9, 11\ns_add_u32 s42, s39, s9')
        a(f's_lshl_b32 s8, s6, 12\ns_add_u32 s8, s8, {WS_PO}\ns_lshr_b32 s9, s7, 2\ns_and_b32 s11, s7, 3\ns_cmp_eq_u32 s9, s12\ns_cselect_b32 s101, s11, 9')
        a('s_lshl_b32 s9, s9, 1\ns_add_u32 s9, s9, s13\ns_lshl_b32 s9, s9, 7\ns_add_u32 s9, s9, s8\nv_lshl_add_u32 v7, v0, 9, s9')
        a(f's_lshl_b32 s9, s7, 2\ns_add_u32 s9, s9, {sWAVE}\ns_lshl_b32 s9, s9, 7\ns_add_u32 s100, s8, s9')
        a('s_lshl_b32 s9, s11, 1\ns_add_u32 s9, s9, s12\ns_lshl_b32 s43, s9, 2')
        a('s_lshl_b32 s8, s12, 6')
        self.w128_frag('v14', 4, 's8')
        a(f's_and_b32 s9, s7, 1\ns_lshl_b32 s11, s12, 1\ns_add_u32 s11, s11, s9\ns_xor_b32 s9, s11, 1\ns_lshl_b32 s96, s11, 13\ns_lshl_b32 s97, s9, 13\ns_add_u32 s96, s96, s39\ns_add_u32 s97, s97, s39')
        a(f's_mul_i32 s8, s11, {112*128}\ns_mul_i32 s9, s9, {112*128}\ns_add_u32 s8, s8, {self.WOB}\ns_add_u32 s9, s9, {self.WOB}')
        a('v_add_u32 v12, s9, v14\nv_add_u32 v14, s8, v14\nv_xor_b32 v13, 64, v14\nv_xor_b32 v11, 64, v12')
        a(f's_xor_b32 s9, {sWAVE}, 2\ns_lshl_b32 s9, s9, 12\nv_add_u32 v5, s9, v15\ns_lshl_b32 s9, {sWAVE}, 12\nv_add_u32 v6, s9, v15')
        a(f's_mul_i32 s9, s13, {32*144}\ns_lshl_b32 s11, s12, 6\ns_add_u32 s9, s9, s11\ns_add_u32 s9, s9, 16384')
        a('v_lshrrev_b32 v4, 5, v0\nv_and_b32 v9, 31, v0\nv_mul_u32_u24 v9, 144, v9\nv_lshl_add_u32 v9, v4, 4, v9\nv_add_u32 v9, s9, v9')
        a(f'v_lshrrev_b32 v2, 3, v0\nv_and_b32 v3, 7, v0\nv_lshlrev_b32 v3, 4, v3\nv_mul_u32_u24 v10, 144, v2\ns_mul_i32 s9, {sWAVE}, {16*144}\ns_add_u32 s9, s9, 16384\nv_add3_u32 v10, v10, v3, s9')
        a(f'v_mul_u32_u24 v8, 1792, v2\nv_add_u32 v8, v8, v3\ns_lshl_b32 s8, s6, 2\ns_add_u32 s8, s8, {sWAVE}\ns_mul_i32 s8, s8, {16*1792}\ns_lshl_b32 s9, s7, 7\ns_add_u32 s8, s8, s9\ns_add_u32 s98, s8, 896\ns_add_u32 s99, s98, {8*1792}')
        a(f'v_add_u32 v1, s71, v15\ns_mul_i32 s8, {sWAVE}, 12288\nv_add_u32 v2, s8, v15\ns_lshl_b32 s8, {sWAVE}, 4\nv_mov_b32 v4, s8')

    def a_fallback(self):
        a = self.a
        lp = self.L('fbl')
        for lr, lb in self.spins:
            l2 = self.L('kvs'); l3 = self.L('kvs')
            a.label(lr)
            a(f's_mov_b32 s47, {self.SPIN}')
            a.label(l2)
            a(f's_sleep 2\ns_sub_u32 s47, s47, 1\ns_cmp_gt_i32 s47, 0\ns_cbranch_scc0 {lb}')
            a(f's_load_dwordx8 s[16:23], {sp(P_WS)}, s8 glc\ns_load_dwordx8 s[24:31], {sp(P_WS)}, s9 glc\ns_waitcnt lgkmcnt(0)')
            for i in range(8): a(f's_cmp_eq_u64 s[{16+2*i}:{17+2*i}], s[40:41]\ns_cbranch_scc0 {l2}')
            a(f's_branch {lb}')
        a.label(self.lskip)
        a(f's_waitcnt vmcnt(0)\ns_branch {self.lnopub}')
        a.label(self.lfb)
        a(f's_barrier\ns_mov_b32 s72, 1\ns_mov_b32 s70, 16\ns_mov_b32 s68, s37')
        for js in range(4): a(f'v_mov_b32 v{240+js}, 0xff800000')
        a.label(lp)
        a(f'buffer_load_dwordx4 v[112:115], v15, {srd(R_WS)}, s68 offen sc1\nbuffer_load_dwordx4 v[116:119], v15, {srd(R_WS)}, s68 offen offset:1024 sc1')
        a('s_bitcmp1_b32 s70, 0\ns_cselect_b32 s8, 7, 1\ns_lshl_b32 s8, s8, 12\ns_add_u32 s68, s68, s8\ns_waitcnt vmcnt(0)')
        for js in range(4):
            a(f'v_mfma_f32_32x32x16_bf16 v[144:159], v[112:115], {vr(16+8*js,4)}, 0\nv_mfma_f32_32x32x16_bf16 v[144:159], v[116:119], {vr(20+8*js,4)}, v[144:159]')
            for r in range(0, 16, 2): a(f'v_max3_f32 v{240+js}, v{240+js}, v{144+r}, v{145+r}')
        a(f's_sub_u32 s70, s70, 1\ns_cmp_lg_u32 s70, 0\ns_cbranch_scc1 {lp}')
        a(f's_lshl_b32 s8, {sWAVE}, 8\nv_lshl_add_u32 v244, v0, 2, s8\nv_lshlrev_b32 v245, 2, v0')
        for js in range(4):
            a(f'v_mov_b32 v246, v{240+js}\nv_mov_b32 v247, v{240+js}\nv_permlane32_swap_b32 v246, v247\nv_max_f32 v{240+js}, v246, v247')
            a(f's_add_u32 s8, {sWAVE}, {1+js}\ns_and_b32 s8, s8, 3\ns_lshl_b32 s8, s8, 10\nv_add_u32 v246, s8, v244\nv_add_u32 v{236+js}, s8, v245')
            a(f'ds_write_b32 v246, v{240+js} offset:1024')
        a('s_waitcnt lgkmcnt(0)\ns_barrier')
        for js in range(4):
            a(f'ds_read2st64_b32 v[246:247], v{236+js} offset0:4 offset1:5\nds_read2st64_b32 v[250:251], v{236+js} offset0:6 offset1:7\ns_waitcnt lgkmcnt(0)')
            a('v_max3_f32 v246, v246, v247, v250\nv_max_f32 v246, v246, v251')
            a('v_xor_b32 v246, 0x80000000, v246\nv_and_b32 v247, 0xffff0000, v246\nv_sub_f32 v246, v246, v247\nv_and_b32 v250, 0xffff0000, v246\nv_sub_f32 v246, v246, v250')
            a(f's_mov_b32 exec_lo, 0\nv_lshrrev_b32 v247, 16, v247\nv_or_b32 v{22+8*js}, v247, v250\nv_lshrrev_b32 v{23+8*js}, 16, v246\ns_mov_b32 exec_lo, -1')
        for r in list(range(48, 112)) + list(range(184, 192)) + list(range(224, 232)): a(f'v_mov_b32 v{r}, 0')
        a(f's_barrier\ns_branch {self.lagain}')

    WOB = 23552
    def a_outproj(self):
        a = self.a
        a(f's_cmp_eq_u32 s7, 7\ns_cbranch_scc1 {self.lend}')
        self.tstamp(4)
        OF = 16; WF = 144; ACC = (80, 96)
        lp = self.L('wo'); lall = self.L('wall'); lone = self.L('wone'); ljoin = self.L('wjoin'); lp2 = self.L('wo'); lok2 = self.L('wok')
        def test():
            for i in range(4):
                a(f's_cmp_eq_u32 s101, {i}\ns_cselect_b64 s[{16+2*i}:{17+2*i}], s[40:41], s[{16+2*i}:{17+2*i}]\ns_xor_b64 s[{16+2*i}:{17+2*i}], s[{16+2*i}:{17+2*i}], s[40:41]')
            a('s_or_b64 s[16:17], s[16:17], s[18:19]\ns_or_b64 s[20:21], s[20:21], s[22:23]')
        def rd(i, lo, hi):
            hd, f = (i >> 1) & 3, i & 1
            b = WF + 8 * (i & 3)
            for ct in range(2):
                for t in range(2):
                    a(f'ds_read_b64_tr_b16 {vr(b+4*ct+2*t,2)}, v{(lo if i < 8 else hi)-ct} offset:{(28*hd+16*f+8*t)*128}')
        def stage(n, first, srcs, lo, hi, wo):
            for i in range(n):
                if i == 4: a(f's_add_u32 {srcs[0]}, {srcs[0]}, 4096')
                if i == 12: a(f's_add_u32 {srcs[1]}, {srcs[1]}, 4096')
                a(f'buffer_load_dwordx4 {vr(OF+4*i,4)}, v15, {srd(R_WS)}, {srcs[0] if i < 8 else srcs[1]} offen offset:{(i%4)*1024} sc1')
                if wo and i < 7: a(f'ds_write_b128 v1, {vr(112+4*i,4)} offset:{self.WOB + 4096*i}')
            if wo: a('s_waitcnt lgkmcnt(0)\ns_barrier')
            for i in range(3): rd(i, lo, hi)
            for i in range(n):
                if i + 3 < n: rd(i + 3, lo, hi)
                left = min(3, n - 1 - i)
                a(f's_waitcnt vmcnt({n-1-i}) lgkmcnt({4*left})')
                b = WF + 8 * (i & 3)
                for ct in (1, 0):
                    c = '0' if (i == 0 and first) else vr(ACC[ct], 16)
                    a(f'v_mfma_f32_32x32x16_bf16 {vr(ACC[ct],16)}, {vr(b+4*ct,4)}, {vr(OF+4*i,4)}, {c}')
        a(f's_mov_b32 s47, {self.SPIN}')
        a.label(lp)
        test()
        a(f's_or_b64 s[18:19], s[16:17], s[20:21]\ns_cbranch_scc0 {lall}')
        a(f's_load_dwordx8 s[16:23], {sp(P_WS)}, s100 glc\ns_sub_u32 s47, s47, 1\ns_cmp_gt_i32 s47, 0\ns_waitcnt lgkmcnt(0)\ns_cbranch_scc1 {lp}')
        a.label(lall)
        self.stamp(6); self.tstamp(5)
        stage(16, True, ('s96', 's97'), 14, 12, True)
        self.tstamp(6)
        for g in range(4): a(f'ds_write_b128 v5, {vr(ACC[1]+4*g,4)} offset:{g*1024}')
        a('s_waitcnt lgkmcnt(0)\ns_barrier')
        for g in range(4): a(f'ds_read_b128 {vr(16+4*g,4)}, v6 offset:{g*1024}')
        a('s_waitcnt lgkmcnt(0)')
        for r in range(16): a(f'v_add_f32 v{ACC[0]+r}, v{ACC[0]+r}, v{16+r}')
        for r in range(8): a(f'v_cvt_pk_bf16_f32 v{32+r}, v{ACC[0]+2*r}, v{ACC[0]+2*r+1}')
        a('v_permlane32_swap_b32 v32, v34\nv_permlane32_swap_b32 v33, v35\nv_permlane32_swap_b32 v36, v38\nv_permlane32_swap_b32 v37, v39')
        a('ds_write_b128 v9, v[32:35]\nds_write_b128 v9, v[36:39] offset:32\ns_waitcnt lgkmcnt(0)\ns_barrier')
        a(f'ds_read_b128 v[16:19], v10\nds_read_b128 v[20:23], v10 offset:{8*144}')
        a(f's_waitcnt lgkmcnt(1)\nbuffer_store_dwordx4 v[16:19], v8, {srd(R_OUT)}, s98 offen sc1\ns_waitcnt lgkmcnt(0)\nbuffer_store_dwordx4 v[20:23], v8, {srd(R_OUT)}, s99 offen sc1')
        self.stamp(7); self.tstamp(7)

    UTILE = 0; TSCR = 8192; UB = 61440; KB = 70656; SCR = 15360
    PU, PZ, PT, PB, PW, PE, PK, PKZ, PD, PUT, PA = 232, 233, 234, 235, 236, 240, 243, 244, 245, 246, 251
    def s_ids(self):
        a = self.a
        if OPT('x5idle'):
            a(f's_cmp_gt_u32 {sXG}, 5\ns_cselect_b32 s8, 1, 0\ns_sub_u32 s73, {sXG}, s8\ns_mov_b32 {sM}, {sJ}')
        else:
            a(f's_mul_i32 s8, {sXG}, 28\ns_add_u32 s8, s8, {sJ}\ns_lshr_b32 s73, s8, 5\ns_and_b32 {sM}, s8, 31')
        a(f's_lshl_b32 s8, s73, 6\ns_lshl_b32 s9, {sM}, 1\ns_add_u32 s74, s8, s9')
        a('v_lshlrev_b32 v15, 4, v0')
        a(f's_lshl_b32 s14, s74, 1\ns_lshr_b32 s10, {sWAVE}, 1\ns_add_u32 s74, s74, s10\ns_and_b32 s9, {sWAVE}, 1')
        a('s_lshl_b32 s8, s74, 9\ns_lshl_b32 s12, s9, 8\ns_add_u32 s8, s8, s12\nv_lshl_add_u32 v2, v0, 2, s8')
    def s_params_load(self):
        a = self.a
        for i, p in enumerate((P_LAR, P_AIM, P_CRE, P_CIM)):
            a(f'global_load_dword v{16+i}, v2, {sp(p)}')
        a(f's_load_dword s71, {sp(P_LDT)}, s14\ns_load_dword s72, {sp(P_DSK)}, s14')
    def s_table_load(self, dst):
        a = self.a
        lp = self.L('pc')
        a('s_getpc_b64 s[12:13]')
        a.label(lp)
        a(f's_add_u32 s12, s12, L_table-{lp}\ns_addc_u32 s13, s13, 0')
        for i in range(4):
            a(f'global_load_dwordx4 {vr(dst+4*i,4)}, v1, s[12:13] offset:{1024*i}')
    def s_kv_addr(self):
        a = self.a
        a(f's_lshr_b32 s7, {sJ}, 1\ns_lshl_b32 s8, {sXG}, 4\ns_add_u32 s7, s7, s8\ns_lshl_b32 s6, {sXG}, 5\ns_add_u32 s6, s6, {sJ}')
        a(f's_lshl_b32 s12, s7, 1\ns_add_u32 s12, s12, s9\ns_mul_i32 s12, s12, {8*896}')
        a(f'v_lshrrev_b32 v7, 3, v0\nv_lshrrev_b32 v8, 4, v0\ns_lshl_b32 s8, s9, 2\nv_add_u32 v8, s8, v8')
        a('v_and_b32 v4, 7, v0\nv_xor_b32 v8, v4, v8\nv_mul_u32_u24 v7, 896, v7\nv_lshl_add_u32 v5, v8, 4, v7\nv_add_u32 v5, s12, v5')
        a(f's_lshl_b32 s11, {sWAVE}, 10\nv_add_u32 v6, s11, v15\ns_add_u32 s15, s11, 28672')
        a(f's_lshr_b32 s8, {sJ}, 1\ns_cmp_ge_u32 s8, 7\ns_cselect_b32 s12, 7, 0\ns_sub_u32 s8, s8, s12\ns_cmp_ge_u32 s8, 7\ns_cselect_b32 s12, 7, 0\ns_sub_u32 s8, s8, s12\ns_lshl_b32 s70, s8, 12')
    def kv_srds(self):
        a = self.a
        self.mk_srd(R_X, P_X, X_BYTES)
        a(f's_bitcmp1_b32 s6, 0\ns_cselect_b32 s{R_W}, s{P_WV}, s{P_WK}\ns_cselect_b32 s{R_W+1}, s{P_WV+1}, s{P_WK+1}')
        a(f's_mov_b32 s{R_W+2}, {WK_BYTES}\ns_mov_b32 s{R_W+3}, 0x20000')
    def s_kv_load(self, part=3):
        a = self.a
        if part & 1:
            a(f's_mul_i32 s12, s10, {3*128}\ns_mul_i32 s13, s10, {3*2048}\ns_lshl_b32 s8, s9, 10\ns_add_u32 s13, s13, s8')
            for i in range(4):
                a(f's_add_u32 m0, s13, {2048*i}\ns_nop 0\nbuffer_load_dwordx4 v5, {srd(R_X)}, s12 offen lds')
                if i < 3: a('s_add_u32 s12, s12, 128')
        for i in range(7):
            if not part & (1 if i == 0 else 2): continue
            if i: a('s_add_u32 s70, s70, 4096\ns_cmp_eq_u32 s70, 28672\ns_cselect_b32 s70, 0, s70')
            a(f's_add_u32 m0, s15, s70\ns_nop 0\nbuffer_load_dwordx4 v6, {srd(R_W)}, s70 offen lds')
    def s_kv_addr2(self):
        a = self.a
        a('s_and_b32 s68, s7, 1')
        a('v_and_b32 v2, 15, v0\nv_bfe_u32 v4, v2, 1, 3\nv_lshrrev_b32 v9, 4, v0\nv_xor_b32 v4, v4, v9\nv_lshlrev_b32 v3, 7, v2')
        a('v_lshl_add_u32 v10, v4, 4, v3\nv_xor_b32 v4, 4, v4\nv_lshl_add_u32 v11, v4, 4, v3')
        a('v_bfe_u32 v3, v0, 2, 2\nv_lshl_add_u32 v3, v9, 3, v3\nv_mul_u32_u24 v3, 56, v3\nv_and_b32 v4, 3, v0\nv_lshl_add_u32 v3, v4, 3, v3')
        a(f's_lshl_b32 s8, {sWAVE}, 5\ns_add_u32 s8, s8, 28672\nv_add_u32 v12, s8, v3')
        a('v_lshlrev_b32 v13, 4, v2\nv_bfe_u32 v3, v0, 4, 1\nv_lshl_add_u32 v13, v3, 9, v13')
        a(f's_bitcmp1_b32 s6, 0\ns_cselect_b32 s12, s68, {sWAVE}\ns_cselect_b32 s13, {sWAVE}, s68\ns_cselect_b32 s8, 2048, 0')
        a(f's_lshl_b32 s12, s12, 10\ns_lshl_b32 s13, s13, 8\ns_add_u32 s12, s12, s13\ns_add_u32 s12, s12, s8\ns_lshr_b32 s13, s7, 1\ns_lshl_b32 s13, s13, 12\ns_add_u32 s12, s12, s13\ns_add_u32 s69, s12, {WS_KV}')
        a(f's_lshr_b32 s8, s6, 3\ns_lshl_b32 s8, s8, 7\ns_and_b32 s12, s6, 7\ns_lshl_b32 s12, s12, 2\ns_add_u32 s8, s8, s12\ns_add_u32 s68, s8, {WS_FKV}\nv_lshlrev_b32 v14, 12, v0')
    def s_kv(self):
        a = self.a
        lv = self.L('kvV'); lst = self.L('kvst')
        ACC = 100
        XF = lambda ks: vr(56 + 8*(ks % 5), 4); WF = lambda ks, t=None: vr(60 + 8*(ks % 5), 4) if t is None else vr(60 + 8*(ks % 5) + 2*t, 2)
        def rdk(ks):
            a(f'ds_read_b128 {XF(ks)}, v{10+(ks&1)} offset:{(ks>>1)*2048}')
            for t in range(2):
                a(f'ds_read_b64_tr_b16 {WF(ks,t)}, v12 offset:{(32*ks+4*t)*56}')
        for ks in range(4): rdk(ks)
        a('s_bitcmp1_b32 s6, 0')
        def chain(swap):
            for ks in range(14):
                if ks + 4 < 14: rdk(ks + 4)
                a(f's_waitcnt lgkmcnt({3*min(4, 13-ks)})')
                A, B = (XF(ks), WF(ks)) if swap else (WF(ks), XF(ks))
                c = '0' if ks == 0 else vr(ACC, 4)
                a(f'v_mfma_f32_16x16x32_bf16 {vr(ACC,4)}, {A}, {B}, {c}')
        a(f's_cbranch_scc1 {lv}')
        chain(False)
        a(f's_cmp_eq_u32 {sWAVE}, 1\ns_cselect_b32 s12, 0xffff0000, 0')
        for r in range(4): a(f'v_mul_f32 v{ACC+r}, {f32(CSCALE)}, v{ACC+r}')
        a(f'v_cvt_pk_bf16_f32 v96, v{ACC}, v{ACC+1}\nv_cvt_pk_bf16_f32 v97, v{ACC+2}, v{ACC+3}')
        a('s_mov_b32 exec_lo, 0\ns_mov_b32 exec_hi, s12\nv_mov_b32 v96, 0x3f803f80\nv_mov_b32 v97, 0x00003f80\ns_mov_b64 exec, -1')
        a(f's_branch {lst}')
        a.label(lv)
        chain(True)
        a(f's_cmp_eq_u32 {sWAVE}, 1\ns_cselect_b32 s12, 0xe000e000, 0\ns_cselect_b32 s13, 0x10001000, 0')
        a(f'v_cvt_pk_bf16_f32 v96, v{ACC}, v{ACC+1}\nv_cvt_pk_bf16_f32 v97, v{ACC+2}, v{ACC+3}')
        a('s_mov_b32 exec_lo, s12\ns_mov_b32 exec_hi, s12\nv_mov_b32 v96, 0\nv_mov_b32 v97, 0')
        a('s_mov_b32 exec_lo, s13\ns_mov_b32 exec_hi, s13\nv_mov_b32 v96, 0x3f803f80\nv_mov_b32 v97, 0x3f803f80\ns_mov_b64 exec, -1')
        a.label(lst)
        a('s_nop 1\nv_permlane32_swap_b32 v96, v98\nv_permlane32_swap_b32 v97, v99\ns_mov_b32 exec_hi, 0')
        a(f'buffer_store_dwordx4 v[96:99], v13, {srd(R_WS)}, s69 offen sc1\ns_mov_b32 exec_hi, -1')
    def s_kv_phase(self, n=0, part=3):
        a = self.a
        l3 = self.L('kvb'); l4 = self.L('kvf')
        if part & 1:
            a(f's_waitcnt vmcnt({n})\ns_barrier')
            self.stamp(1); self.estamp(4)
            a(f's_cmp_ge_u32 {sWAVE}, 2\ns_cbranch_scc1 {l3}')
            self.s_kv()
            a.label(l3)
        if part & 2:
            a(f'v_mov_b32 v33, {sNONCE}\ns_waitcnt vmcnt(0)\ns_barrier\ns_cmp_lg_u32 {sWAVE}, 0\ns_cbranch_scc1 {l4}')
            a(f's_mov_b64 exec, {hex((1 << NREP) - 1) if NREP < 64 else -1}\nbuffer_store_dword v33, v14, {srd(R_WS)}, s68 offen sc1\ns_mov_b64 exec, -1')
            a.label(l4)
            self.stamp(2); self.estamp(5)

    def s_addr_all(self):
        a = self.a
        PU, PZ, PT, PB, PW, PE, PK, PKZ, PD, PUT, PA = [f'v{x}' if not isinstance(x, str) else x for x in (self.PU, self.PZ, self.PT, self.PB, 'x', 'x', self.PK, self.PKZ, self.PD, 'x', 'x')]
        a(f's_lshl_b32 s8, {sM}, 6\ns_lshl_b32 s12, {sWAVE}, 4\ns_add_u32 s8, s8, s12\ns_mul_i32 s8, s8, 896\ns_lshl_b32 s12, s73, 7\ns_add_u32 s8, s8, s12')
        a('v_and_b32 v20, 7, v0\nv_lshl_add_u32 v7, v20, 4, v7\nv_add_u32 v7, s8, v7')
        a(f's_lshl_b32 s8, s74, 12\ns_lshl_b32 s12, s9, 11\ns_add_u32 s8, s8, s12\ns_add_u32 s14, s8, {WS_UT}\ns_add_u32 s92, s8, {WS_YT}')
        a(f's_mul_i32 s11, s10, 4608\ns_add_u32 s11, s11, {self.UB}\ns_mul_i32 s8, s10, 4160\ns_add_u32 s75, s8, {self.KB}')
        a(f's_add_u32 s12, s12, s75\nv_lshl_add_u32 {PK}, v0, 5, s12\nv_lshl_add_u32 {PKZ}, v0, 2, s75')
        a('v_bfe_u32 v2, v0, 1, 2\nv_mul_u32_u24 v2, 1152, v2\nv_lshrrev_b32 v21, 3, v0\nv_lshl_add_u32 v2, v21, 5, v2\nv_and_b32 v4, 1, v0\nv_lshl_add_u32 v2, v4, 4, v2')
        a(f's_lshl_b32 s12, s9, 9\ns_add_u32 s12, s12, s11\nv_add_u32 {PU}, s12, v2')
        a(f'v_mul_u32_u24 v3, 1152, v21\nv_lshl_add_u32 v3, v20, 4, v3\nv_add_u32 {PZ}, s11, v3')
        a('v_lshlrev_b32 v4, 4, v4\nv_bfe_u32 v8, v0, 1, 1\nv_lshl_add_u32 v4, v8, 2, v4\nv_bfe_u32 v8, v0, 4, 1\nv_lshl_add_u32 v4, v8, 3, v4')
        a('v_lshrrev_b32 v22, 5, v0\nv_lshlrev_b32 v8, 5, v22\nv_sub_u32 v4, v4, v8\nv_bfe_u32 v23, v0, 2, 2\nv_lshlrev_b32 v8, 2, v23\nv_sub_u32 v4, v4, v8')
        a(f's_add_u32 s12, s75, 96\nv_lshl_add_u32 {PT}, v4, 1, s12')
        a(f'v_bfe_u32 v4, v0, 3, 2\nv_mul_u32_u24 v3, 1152, v4\nv_add_u32 v8, v20, v22\nv_lshl_add_u32 v3, v8, 4, v3\ns_add_u32 s12, s11, 16\nv_add_u32 {PB}, s12, v3')
        a('v_lshrrev_b32 v8, 1, v20\nv_and_b32 v3, 1, v20\nv_lshl_or_b32 v8, v3, 2, v8\nv_lshlrev_b32 v3, 2, v22\nv_xor_b32 v8, v8, v3')
        a('v_lshlrev_b32 v4, 13, v4\nv_lshl_add_u32 v4, v20, 7, v4\ns_lshl_b32 s13, s10, 15\nv_add_u32 v4, s13, v4')
        for g in range(4): a(f'v_xor_b32 v3, {g}, v8\nv_lshl_add_u32 v{self.PW+g}, v3, 4, v4')
        a('s_lshl_b32 s12, s9, 7\nv_add_u32 v2, s12, v0\nv_lshrrev_b32 v3, 2, v2\nv_and_b32 v4, 3, v2\nv_lshlrev_b32 v4, 1, v4')
        def fa(dst, av): a(f'v_bfe_u32 {dst}, {av}, 1, 2\nv_and_b32 v8, 1, {av}\nv_lshl_or_b32 {dst}, v8, 2, {dst}')
        fa('v9', 'v3')
        a('v_xor_b32 v9, v9, v4\nv_lshlrev_b32 v2, 7, v3\nv_add_u32 v2, s13, v2')
        a(f'v_lshl_add_u32 v{self.PE}, v9, 4, v2\nv_xor_b32 v9, 1, v9\nv_lshl_add_u32 v{self.PE+1}, v9, 4, v2')
        a('v_lshl_add_u32 v4, v3, 3, v4\nv_add_u32 v4, -1, v4\nv_ashrrev_i32 v3, 3, v4\nv_and_b32 v4, 7, v4')
        fa('v9', 'v3')
        a(f'v_xor_b32 v9, v9, v4\nv_lshlrev_b32 v2, 7, v3\nv_add_u32 v2, s13, v2\nv_lshl_add_u32 v2, v9, 4, v2\nv_add_u32 v{self.PE+2}, 8192, v2')
        a('s_cmp_eq_u32 s9, 0\ns_cselect_b32 s93, 1, 0')
        U = self.PUT
        a(f'v_lshrrev_b32 v3, 4, v0\nv_lshl_add_u32 v2, v23, 2, v3\nv_lshlrev_b32 v2, 7, v2\nv_and_b32 v9, 3, v0\nv_lshl_add_u32 v2, v9, 3, v2')
        a(f's_lshl_b32 s8, {sWAVE}, 5\ns_add_u32 s8, s8, {self.UTILE}\nv_add_u32 v{U}, s8, v2')
        a(f's_mul_i32 s12, {sWAVE}, 2304\ns_add_u32 s12, s12, {self.TSCR}')
        a(f'v_and_b32 v4, 15, v0\nv_mul_u32_u24 v4, 144, v4\nv_lshl_add_u32 v4, v3, 5, v4\nv_add_u32 v{U+1}, s12, v4')
        a(f'v_lshlrev_b32 v4, 4, v20\nv_mul_u32_u24 v2, 144, v21\nv_add3_u32 v{U+2}, v2, v4, s12')
        a(f's_lshl_b32 s8, s73, 2\ns_add_u32 s8, s8, {sWAVE}\ns_lshl_b32 s8, s8, 16\ns_lshl_b32 s12, {sM}, 7\ns_add_u32 s8, s8, s12\ns_add_u32 s8, s8, {WS_UT}')
        a(f'v_lshl_add_u32 v{self.PA}, v21, 12, v4\nv_add_u32 v{U+3}, s8, v{self.PA}\nv_add_u32 v{U+4}, {8*4096}, v{U+3}')
        a(f's_lshl_b32 s36, s73, 9\ns_add_u32 s36, s36, {WS_FU}\ns_lshl_b32 s8, {sM}, 2\ns_add_u32 s35, s36, s8')
        A = self.PA
        a(f's_lshl_b32 s8, s73, 6\ns_lshl_b32 s13, {sWAVE}, 3\ns_add_u32 s8, s8, s13\ns_lshl_b32 s8, s8, 12\ns_add_u32 s8, s8, s12\ns_add_u32 s37, s8, {WS_YT}\ns_add_u32 s38, s37, {32*4096}')
        a(f'v_add_u32 v2, s13, v21\nv_mul_u32_u24 v2, 160, v2\nv_add_u32 v{A+1}, v2, v4')
        a(f'v_lshl_add_u32 v2, v3, 3, v23\nv_mul_u32_u24 v2, 160, v2\nv_lshl_add_u32 v2, v9, 3, v2\ns_lshl_b32 s8, {sWAVE}, 5\nv_add_u32 v{A+2}, s8, v2')
        a(f's_lshl_b32 s8, {sM}, 2\ns_add_u32 s8, s8, {sWAVE}\ns_mul_i32 s39, s8, {16*1792}\ns_lshl_b32 s8, s73, 7\ns_add_u32 s39, s39, s8\ns_add_u32 s94, s39, {8*1792}')
        a(f'v_mul_u32_u24 v2, 1792, v21\nv_add_u32 v{A+3}, v2, v4')
        a(f'v_and_b32 v2, 15, v0\nv_mul_u32_u24 v2, 144, v2\nv_lshl_add_u32 v2, v3, 4, v2\ns_mul_i32 s8, {sWAVE}, 2304\ns_add_u32 s8, s8, {self.TSCR + 4096}\nv_add_u32 v{A+4}, s8, v2')
        a(f's_mul_i32 s11, {sWAVE}, {self.SCR}\nv_mul_u32_u24 v2, 240, v0\nv_add_u32 v2, s11, v2')
        a(f'v_lshl_add_u32 v3, v23, 1, v22\nv_mul_u32_u24 v3, 480, v3\nv_bfe_u32 v8, v0, 4, 1\nv_lshl_add_u32 v3, v8, 5, v3\nv_lshl_add_u32 v3, v9, 3, v3\nv_add_u32 v3, s11, v3')
        a(f'v_and_b32 v4, 31, v0\nv_mul_u32_u24 v4, 144, v4\nv_lshl_add_u32 v4, v22, 4, v4\nv_add_u32 v4, s11, v4')

    def s_kgen(self, mid_r0):
        a = self.a
        RS = 240
        AW, AR, AP = 'v2', 'v3', 'v4'
        if OPT('nokvfirst'): raise SystemExit('option removed')
        a(f's_cmp_eq_u32 s10, 1\ns_cselect_b32 s8, 0, 16')
        a('s_lshl_b32 s12, s71, s8\ns_and_b32 s12, s12, 0xffff0000\ns_lshl_b32 s13, s72, s8\ns_and_b32 s72, s13, 0xffff0000')
        a(f'v_mov_b32 v31, s12\nv_mul_f32 v31, {f32(LOG2E)}, v31\nv_exp_f32 v31, v31\nv_mov_b32 v{self.PD}, 0\nv_cvt_pk_bf16_f32 v31, v31, v31\nv_and_b32 v31, 0xffff0000, v31')
        a(f'v_mul_f32 v32, {f32(-LOG2E)}, v31\nv_mul_f32 v30, 0.15915494309189532, v31\nv_add_f32 v31, v31, v31')
        a(f's_mov_b32 exec_lo, s93\ns_mov_b32 exec_hi, 0\nv_mov_b32 v{self.PD}, s72\ns_mov_b64 exec, -1')
        ACC = 40; FR = 56; TB = 120
        W1, W256, W8 = 24, 26, 28
        RR = (120, 176)
        def cmul(z, x, y, conj, t):
            return [f'v_pk_mul_f32 {vr(t,2)}, {vr(x,2)}, {vr(y,2)} op_sel_hi:[1,0]',
                    f'v_pk_fma_f32 {vr(z,2)}, {vr(x,2)}, {vr(y,2)}, {vr(t,2)} op_sel:[1,1,0] op_sel_hi:[0,1,1] {"neg_hi" if conj else "neg_lo"}:[1,0,0]']
        def pack(buf, i, x, y): return [f'v_cvt_pk_bf16_f32 v{buf+i}, v{x}, v{y}', f'v_cvt_pk_bf16_f32 v{buf+4+i}, v{x+1}, v{y+1}']
        def flush(rnd):
            out = []
            for g in range(4): out += [f'ds_write_b128 {AW}, {vr(RR[rnd]+8*g,4)} offset:{16*g}', f'ds_write_b128 {AW}, {vr(RR[rnd]+8*g+4,4)} offset:{64+16*g}']
            for g in range(3): out += [f'ds_write_b128 {AW}, {vr(RR[rnd]+32+8*g,4)} offset:{128+16*g}', f'ds_write_b128 {AW}, {vr(RR[rnd]+32+8*g+4,4)} offset:{176+16*g}']
            return out
        def reads(q):
            qq, part = q >> 1, q & 1
            for t in range(2): a(f'ds_read_b64_tr_b16 {vr(FR+8*q+2*t,2)}, {AR} offset:{(16*qq+t)*RS + 64*part}')
            for t in range(2): a(f'ds_read_b64_tr_b16 {vr(FR+8*q+4+2*t,2)}, {AR} offset:{(16*qq+t)*RS + 128 + 48*part}')
        l1 = self.L('wp'); l2 = self.L('wp')
        a(f's_cmp_ge_u32 {sXG}, 4\ns_cbranch_scc1 {l1}\ns_waitcnt vmcnt({5 if OPT("noov") else 2})\ns_branch {l2}')
        a.label(l1); a(f's_waitcnt vmcnt({5 if OPT("noov") else 1 if (not OPT("cplate")) else 0})'); a.label(l2)
        self.fstamp(1); self.estamp(3)
        mfma = lambda q, first: f'v_mfma_f32_32x32x16_bf16 {vr(ACC,16)}, {vr(FR+8*q,4)}, {vr(FR+8*q+4,4)}, {"0" if first else vr(ACC,16)}'
        H0, H2, H4, H6, HT, HU, LA, LB, TL, TG = 34, 36, 38, 40, 42, 44, 46, 48, 50, 52
        for rnd in range(2):
            ex = (lambda d, s: f'v_lshlrev_b32 v{d}, 16, v{s}') if rnd == 0 else (lambda d, s: f'v_and_b32 v{d}, 0xffff0000, v{s}')
            setup = [ex(20, 16), ex(21, 17), ex(H0, 18), ex(H0+1, 19),
                     f'v_mul_f32 v20, {f32(LOG2E)}, v20', 'v_exp_f32 v20, v20', 'v_mul_f32 v21, v21, v30', 'v_cvt_pk_bf16_f32 v20, v20, v20', 'v_and_b32 v20, 0xffff0000, v20', 'v_mul_f32 v20, v20, v32',
                     f'v_mul_f32 v{H0}, v{H0}, v31', f'v_mul_f32 v{H0+1}, -v{H0+1}, v31']
            for W, m in ((W1, 1.0), (W256, 256.0), (W8, 8.0)):
                if m == 1.0: setup += ['v_exp_f32 v22, v20', 'v_fract_f32 v23, v21']
                else: setup += [f'v_mul_f32 v22, {f32(m)}, v20', f'v_mul_f32 v23, {f32(m)}, v21', 'v_exp_f32 v22, v22', 'v_fract_f32 v23, v23']
                setup += [f'v_cos_f32 v{W}, v23', f'v_sin_f32 v{W+1}, v23', f'v_mul_f32 v{W}, v{W}, v22', f'v_mul_f32 v{W+1}, v{W+1}, v22']
            for x in setup: a(x)
            PL = [RR[rnd] + 8*g for g in range(4)]; PG = [RR[rnd] + 32 + 8*g for g in range(3)]
            jl = [f'v_cvt_pk_bf16_f32 v{PL[0]}, 1.0, v{W8}', f'v_cvt_pk_bf16_f32 v{PL[0]+4}, 0, v{W8+1}']
            cur = W8
            for b in range(2, 32, 2):
                jl += cmul(LA, cur, W8, False, TL) + cmul(LB, LA, W8, False, TL) + pack(PL[b >> 3], (b & 7) >> 1, LA, LB); cur = LB
            jg = cmul(HT, H0, W1, True, TG) + pack(PG[0], 0, H0, HT)
            jg += cmul(H2, HT, W1, True, TG) + cmul(HT, H2, W1, True, TG) + pack(PG[0], 1, H2, HT)
            jg += cmul(H4, HT, W1, True, TG) + cmul(HT, H4, W1, True, TG) + pack(PG[0], 2, H4, HT)
            jg += cmul(H6, HT, W1, True, TG) + cmul(HT, H6, W1, True, TG) + pack(PG[0], 3, H6, HT)
            jg += cmul(H0, H0, W256, True, TG) + cmul(H2, H2, W256, True, TG) + pack(PG[1], 0, H0, H2)
            jg += cmul(H4, H4, W256, True, TG) + cmul(H6, H6, W256, True, TG) + pack(PG[1], 1, H4, H6)
            jg += cmul(H0, H0, W256, True, TG) + cmul(H4, H4, W256, True, TG) + pack(PG[1], 2, H0, H4)
            jg += cmul(H0, H0, W256, True, TG) + cmul(H4, H4, W256, True, TG) + pack(PG[1], 3, H0, H4)
            jg += cmul(HT, H0, W256, True, TG) + cmul(HU, HT, W256, True, TG) + pack(PG[2], 0, HT, HU)
            jg += cmul(HT, HU, W256, True, TG) + cmul(HU, HT, W256, True, TG) + pack(PG[2], 1, HT, HU)
            jg += cmul(HT, HU, W256, True, TG) + pack(PG[2], 2, HT, HT) + [f'v_mov_b32 v{PG[2]+3}, 0', f'v_mov_b32 v{PG[2]+7}, 0']
            for x in jg: a(x)
            if rnd == 0:
                mid_r0()
                for x in jl: a(x)
            elif not OPT('kvlate'):
                for x in jl: a(x)
                self.late_kv(True)
                if OPT('xs0'): self.stamp_flush(8); a('s_endpgm')
                for x in flush(0): a(x)
            else:
                fl = flush(0); step = len(jl) // 14
                for i, x in enumerate(jl):
                    a(x)
                    if i % step == step - 1 and fl: a(fl.pop(0))
                for x in fl: a(x)
            self.fstamp(2 + rnd)
        a(f's_mul_i32 s8, s10, {2*self.SCR}\ns_waitcnt vmcnt(0) lgkmcnt(0)')
        for q in range(6): reads(q)
        for k in range(16): a(f'v_add_u32 v{TB+k}, s8, v{104+k}')
        for q in range(6, 8): reads(q)
        if OPT('kgp0'): a('s_setprio 0')
        a('s_waitcnt lgkmcnt(0)')
        fl = flush(1)
        for q in range(8):
            a(mfma(q, q == 0))
            for x in fl[2*q:2*q+2]: a(x)
        a('s_waitcnt lgkmcnt(0)')
        self.estamp(7)
        for q in range(8):
            reads(q)
            if q >= 3:
                a('s_waitcnt lgkmcnt(12)'); a(mfma(q - 3, False))
        for q in range(5, 8):
            a(f's_waitcnt lgkmcnt({4*(7-q)})'); a(mfma(q, False))
        if OPT('kgp0'): a('s_setprio 2')
        for g in range(4): a(f'ds_write_b128 {AP}, {vr(ACC+4*g,4)} offset:{32*g}')
        for r in range(4): a(f'v_mov_b32 v{112+r}, 0')
        a('s_waitcnt lgkmcnt(0)\ns_barrier')
        self.fstamp(4)
        G = 56
        for k in range(16): a(f'ds_read2st64_b32 {vr(G+2*k,2)}, v{TB+k} offset1:{self.SCR//256}')
        a(f's_mov_b64 exec, 0xffff\nds_write_b32 v{self.PKZ}, v112\ns_mov_b32 exec_lo, -1\nds_write_b128 v{self.PZ}, v[112:115]\ns_mov_b64 exec, -1')
        for k in range(16):
            if k % 4 == 0: a(f's_waitcnt lgkmcnt({14-k})')
            a(f'v_add_f32 v{G+2*k}, v{G+2*k}, v{G+2*k+1}')
            if k == 0: a(f'v_add_f32 v{G}, v{G}, v{self.PD}')
        for k in range(8): a(f'v_cvt_pk_bf16_f32 v{88+k}, v{G+4*k}, v{G+4*k+2}')
        a(f'ds_write_b128 v{self.PK}, v[88:91] offset:64\nds_write_b128 v{self.PK}, v[92:95] offset:80')
        a(f'v_mov_b32 v113, {sNONCE}\ns_waitcnt lgkmcnt(0)\ns_barrier')
        self.stamp(3)

    def s_u_phase(self):
        a = self.a
        U = self.PUT
        self.ustamp(5)
        a(f's_lshl_b32 s12, {sWAVE}, 11')
        a(f's_add_u32 m0, s12, {self.UTILE}\ns_mov_b32 s13, {8*896}\nbuffer_load_dwordx4 v7, {srd(R_B)}, 0 offen lds')
        a(f's_add_u32 m0, s12, {self.UTILE + 1024}\ns_nop 0\nbuffer_load_dwordx4 v7, {srd(R_B)}, s13 offen lds')
        a('s_waitcnt vmcnt(0)\ns_barrier')
        self.ustamp(1)
        for half in range(2):
            for t in range(2):
                a(f'ds_read_b64_tr_b16 {vr(96+4*half+2*t,2)}, v{U} offset:{(32*half+16*t)*128}')
        a(f's_waitcnt lgkmcnt(2)\nds_write_b128 v{U+1}, v[96:99]\ns_waitcnt lgkmcnt(1)\nds_write_b128 v{U+1}, v[100:103] offset:16\ns_waitcnt lgkmcnt(0)')
        a(f'ds_read_b128 v[96:99], v{U+2}\nds_read_b128 v[100:103], v{U+2} offset:{8*144}')
        a(f's_waitcnt lgkmcnt(1)\nbuffer_store_dwordx4 v[96:99], v{U+3}, {srd(R_WS)}, 0 offen sc1')
        a(f's_waitcnt lgkmcnt(0)\nbuffer_store_dwordx4 v[100:103], v{U+4}, {srd(R_WS)}, 0 offen sc1')
        self.publish_y(WS_PU)
        self.wait_y(WS_PU, 4)
        self.ustamp(3)
        for i in range(2): a(f'buffer_load_dwordx4 {vr(104+4*i,4)}, v15, {srd(R_WS)}, s14 offen offset:{1024*i} sc1')
        a(f's_waitcnt vmcnt(1)\nds_write_b128 v{self.PU}, v[104:107] offset:128\ns_waitcnt vmcnt(0)\nds_write_b128 v{self.PU}, v[108:111] offset:384')
        if OPT('tlb'):
            a(f's_mov_b64 exec, 1\nbuffer_load_dword v116, v112, {srd(R_WS)}, s92 offen\nbuffer_load_dword v117, v112, {srd(R_WS)}, s37 offen\nbuffer_load_dword v118, v112, {srd(R_OUT)}, s39 offen\ns_mov_b64 exec, -1')
        a('s_waitcnt lgkmcnt(0)')
        self.stamp(4); self.ustamp(4)

    def s_conv(self):
        a = self.a
        self.stamp(5); self.fstamp(5); self.tstamp(1)
        D = 16; BF = (80, 112); TF = (144, 176)
        l1 = self.L('cv1'); lj = self.L('cvj')
        a(f's_cmp_eq_u32 s9, 0\ns_cbranch_scc0 {l1}')
        def variant(tset):
            mmax = max(tset)
            mf = []; reads = []
            seen = set(); started = set()
            for r in range(4):
                pb = r & 1
                for jj in range(mmax + 1):
                    for ti, t in enumerate(tset):
                        if t < jj: continue
                        m = t - jj
                        nb = ('B', r, m); nt = ('T', r, jj)
                        for k in (nt, nb):
                            if k not in seen:
                                seen.add(k)
                                if k[0] == 'B':
                                    reads.append((k, [f'ds_read_b128 {vr(BF[pb]+4*m,4)}, v{self.PB} offset:{32*(4*m - r + 3)}']))
                                else:
                                    mu = 4*jj + r
                                    reads.append((k, [f'ds_read_b64_tr_b16 {vr(TF[pb]+4*jj+2*tt,2)}, v{self.PT} offset:{128*mu + 32*(1-tt)}' for tt in range(2)]))
                        c = vr(D+16*ti, 16) if t in started else '0'
                        started.add(t)
                        mf.append((f'v_mfma_f32_32x32x16_bf16 {vr(D+16*ti,16)}, {vr(TF[pb]+4*jj,4)}, {vr(BF[pb]+4*m,4)}, {c}', (nb, nt), r))
            flat = []; endpos = {}
            for k, xs in reads:
                for x in xs: flat.append((x, k))
                endpos[k] = len(flat)
            issued = 0; done = 0
            lastmf = {}
            for i, (txt, needs, r) in enumerate(mf): lastmf[txt.split(',')[0]] = i
            pend = []; released = False
            for i, (txt, needs, r) in enumerate(mf):
                need = max(endpos[k] for k in needs)
                tgt = min(len(flat), need + (12 if r < 2 else 24))
                step = 0
                while issued < tgt and (issued < need + 12 or step < 2):
                    kk = flat[issued][1]
                    if kk[1] >= r + 2: break
                    a(flat[issued][0]); issued += 1; step += 1
                if issued == len(flat) and not released and r == 3:
                    a('s_waitcnt lgkmcnt(0)\ns_barrier'); done = issued; released = True
                    self.fstamp(6)
                if need > done:
                    n = min(14, issued - need)
                    a(f's_waitcnt lgkmcnt({n})'); done = issued - n
                a(txt)
                if released and pend and pend[0][0] <= i:
                    a(pend.pop(0)[1])
                for ti, t in enumerate(tset):
                    if lastmf[f'v_mfma_f32_32x32x16_bf16 {vr(D+16*ti,16)}'] == i:
                        pend += [(i + 5, f'ds_write_b128 v{self.PW+g}, {vr(D+16*ti+4*g,4)} offset:{t*1024}') for g in range(4)]
            assert released
            for _, x in pend: a(x)
        variant([7, 4, 3, 0]); a(f's_branch {lj}')
        a.label(l1); variant([6, 5, 2, 1])
        a.label(lj)
        a(f's_setprio {2 if OPT("epi2") else 3}\ns_waitcnt lgkmcnt(0)\ns_barrier')
        self.tstamp(2)
        E = self.PE
        for i in range(2):
            Y = [16 + 44*i, 24 + 44*i, 36 + 44*i, 48 + 44*i]
            for ph in range(4):
                o = 4 if ph else 0
                if ph: a(f'ds_read_b128 {vr(Y[ph],4)}, v{E+2} offset:{(ph-1)*8192 + i*2048}')
                a(f'ds_read_b128 {vr(Y[ph]+o,4)}, v{E} offset:{ph*8192 + i*2048}\nds_read_b128 {vr(Y[ph]+o+4,4)}, v{E+1} offset:{ph*8192 + i*2048}')
        for i in range(2):
            Y = [16 + 44*i, 24 + 44*i, 36 + 44*i, 48 + 44*i]
            for ph in range(1, 4):
                a(f's_waitcnt lgkmcnt({min(14, 11*(1-i) + 3*(3-ph))})')
                if i == 0:
                    a('s_mov_b32 exec_lo, s93\ns_mov_b32 exec_hi, 0')
                    for k in range(4 - ph, 4): a(f'v_mov_b32 v{Y[ph]+k}, 0')
                    a('s_mov_b64 exec, -1')
                for k in range(8): a(f'v_add_f32 v{Y[0]+k}, v{Y[0]+k}, v{Y[ph]+4+k-ph}')
            for k in range(4): a(f'v_cvt_pk_bf16_f32 v{104+4*i+k}, v{Y[0]+2*k}, v{Y[0]+2*k+1}')
            a(f'buffer_store_dwordx4 {vr(104+4*i,4)}, v15, {srd(R_WS)}, s92 offen offset:{1024*i} sc1')
        self.stamp(6); self.fstamp(7); self.tstamp(3)

    def s_assemble(self):
        a = self.a
        A = self.PA
        self.wait_y()
        self.tstamp(5)
        a(f'buffer_load_dwordx4 v[16:19], v{A}, {srd(R_WS)}, s37 offen sc1')
        a(f'buffer_load_dwordx4 v[20:23], v{A}, {srd(R_WS)}, s38 offen sc1')
        a(f's_waitcnt vmcnt(1)\nds_write_b128 v{A+1}, v[16:19]\ns_waitcnt vmcnt(0)\nds_write_b128 v{A+1}, v[20:23] offset:{32*160}')
        a('s_waitcnt lgkmcnt(0)\ns_barrier')
        self.tstamp(6)
        for o in range(2):
            for t in range(2): a(f'ds_read_b64_tr_b16 {vr(24+4*o+2*t,2)}, v{A+2} offset:{(32*o+4*t)*160}')
        a(f's_waitcnt lgkmcnt(2)\nds_write_b128 v{A+4}, v[24:27]\ns_waitcnt lgkmcnt(1)\nds_write_b128 v{A+4}, v[28:31] offset:64\ns_waitcnt lgkmcnt(0)')
        a(f'ds_read_b128 v[24:27], v{self.PUT+2} offset:4096\nds_read_b128 v[28:31], v{self.PUT+2} offset:{4096 + 8*144}')
        a(f's_waitcnt lgkmcnt(1)\nbuffer_store_dwordx4 v[24:27], v{A+3}, {srd(R_OUT)}, s39 offen sc1')
        a(f's_waitcnt lgkmcnt(0)\nbuffer_store_dwordx4 v[28:31], v{A+3}, {srd(R_OUT)}, s94 offen sc1')
        self.stamp(7); self.tstamp(7)

    def kernel_head(self, name):
        self.lend = f'L_end_{name}'
        self.a(f'.globl {name}\n.p2align 8\n.type {name},@function')
        self.a.label(name)
    def kernel_tail(self):
        self.a.label(self.lend)
        self.a('s_endpgm')

    SPIN = 1 << 20
    def nonce(self, n):
        self.a(f's_waitcnt vmcnt({n}) lgkmcnt(0)\nv_readfirstlane_b32 {sNONCE}, v54\ns_add_u32 {sNONCE}, {sNONCE}, 0x9e3779b9')
    def publish_y(self, WS_PY=WS_PY):
        a = self.a; l = self.L('pg')
        a(f's_lshl_b32 s8, s73, 14\ns_lshr_b32 s12, {sM}, 3\ns_lshl_b32 s13, s12, 7\ns_add_u32 s8, s8, s13\ns_add_u32 s8, s8, {WS_PY}\nv_lshl_add_u32 v2, v0, 9, s8')
        a(f's_and_b32 s12, {sM}, 7\ns_lshl_b32 s12, s12, 2\nv_mov_b32 v3, {sNONCE}')
        a('s_waitcnt vmcnt(0)\ns_barrier')
        if WS_PY != WS_PU: self.tstamp(4)
        else: self.ustamp(2)
        a(f's_cmp_lg_u32 {sWAVE}, 0\ns_cbranch_scc1 {l}')
        a(f's_mov_b32 exec_hi, 0\nbuffer_store_dword v3, v2, {srd(R_WS)}, s12 offen sc1\ns_mov_b64 exec, -1')
        a.label(l)
    def poll(self, vaddr, soff, width, mask_lo, mask_hi, sleep, vt=250):
        a = self.a; lp = self.L('poll'); ld = self.L('polled')
        ld_ = {1: 'dword', 2: 'dwordx2', 4: 'dwordx4'}[width]
        a(f's_mov_b32 exec_lo, {hex(mask_lo)}\ns_mov_b32 exec_hi, {hex(mask_hi)}\ns_mov_b32 s47, {self.SPIN}')
        a.label(lp)
        a(f'buffer_load_{ld_} {vr(vt,width)}, {vaddr}, {srd(R_WS)}, {soff} offen sc1\ns_waitcnt vmcnt(0)')
        a(f'v_xor_b32 v{vt}, {sNONCE}, v{vt}')
        for i in range(1, width): a(f'v_xor_b32 v{vt+i}, {sNONCE}, v{vt+i}\nv_or_b32 v{vt}, v{vt}, v{vt+i}')
        a(f'v_cmp_ne_u32 vcc, 0, v{vt}\ns_cbranch_vccz {ld}')
        if sleep: a(f's_sleep {sleep}')
        a(f's_sub_u32 s47, s47, 1\ns_cmp_lg_u32 s47, 0\ns_cbranch_scc1 {lp}')
        a.label(ld)
        a('s_mov_b64 exec, -1')
    def spoll(self, soff, n, sleep, first_sleep=0):
        a = self.a
        a(f's_mov_b32 s40, {sNONCE}\ns_mov_b32 s41, {sNONCE}\ns_mov_b32 s47, {self.SPIN}')
        for c in range(max(1, n // 16)):
            lp = self.L('sp'); lr = self.L('spr'); ld = self.L('spd')
            if c: a(f's_add_u32 {soff}, {soff}, 64')
            elif first_sleep: a(f's_branch {lr}')
            a.label(lp)
            if n == 8:
                a(f's_load_dwordx8 s[16:23], {sp(P_WS)}, {soff} glc\ns_waitcnt lgkmcnt(0)')
                for i in range(3): a(f's_cmp_eq_u64 s[{16+2*i}:{17+2*i}], s[40:41]\ns_cbranch_scc0 {lr}')
                a(f's_cmp_eq_u64 s[22:23], s[40:41]\ns_cbranch_scc1 {ld}')
            elif n == 1:
                a(f's_load_dword s16, {sp(P_WS)}, {soff} glc\ns_waitcnt lgkmcnt(0)\ns_cmp_eq_u32 s16, {sNONCE}\ns_cbranch_scc1 {ld}')
            else:
                a(f's_load_dwordx16 s[16:31], {sp(P_WS)}, {soff} glc\ns_waitcnt lgkmcnt(0)')
                for i in range(7): a(f's_cmp_eq_u64 s[{16+2*i}:{17+2*i}], s[40:41]\ns_cbranch_scc0 {lr}')
                a(f's_cmp_eq_u64 s[30:31], s[40:41]\ns_cbranch_scc1 {ld}')
            a.label(lr)
            if sleep: a(f's_sleep {sleep}')
            a(f's_sub_u32 s47, s47, 1\ns_cmp_gt_i32 s47, 0\ns_cbranch_scc1 {lp}')
            a.label(ld)
    def wait_kv(self, sleep=1):
        a = self.a; l = self.L('wkv')
        a(f's_cmp_lg_u32 {sWAVE}, 0\ns_cbranch_scc1 {l}')
        a(f's_and_b32 s8, s2, {NREP-1}\ns_lshl_b32 s8, s8, 10\ns_add_u32 s8, s8, {WS_FKV}\nv_lshlrev_b32 v2, 4, v0')
        self.poll('v2', 's8', 4, 0xffffffff, 0xffffffff, sleep)
        a.label(l)
        a('s_barrier')
    def wait_y(self, WS_PY=WS_PY, sleep=0):
        a = self.a
        a(f's_lshl_b32 s8, s73, 5\ns_add_u32 s8, s8, {sM}\ns_lshl_b32 s8, s8, 2\ns_add_u32 s8, s8, {sWAVE}\ns_lshl_b32 s8, s8, 7\ns_add_u32 s8, s8, {WS_PY}')
        self.spoll('s8', 8, sleep)
        a('s_barrier')
    def e_update(self):
        a = self.a; l = self.L('eu')
        a(f's_cmp_lg_u32 s2, 253\ns_cbranch_scc1 {l}')
        a(f'v_lshlrev_b32 v2, 8, v0\ns_lshl_b32 s8, {sWAVE}, 14\ns_add_u32 s8, s8, {WS_FA}')
        self.poll('v2', 's8', 1, 0xffffffff, 0xffffffff, 16)
        a(f'v_lshrrev_b32 v2, 3, v0\nv_lshlrev_b32 v2, 7, v2\nv_and_b32 v3, 7, v0\nv_lshl_add_u32 v2, v3, 2, v2\ns_lshl_b32 s8, {sWAVE}, 10\ns_add_u32 s8, s8, {WS_FKV}')
        self.poll('v2', 's8', 1, 0xffffffff, 0xffffffff, 16)
        a(f's_barrier\ns_cmp_lg_u32 {sWAVE}, 0\ns_cbranch_scc1 {l}')
        a(f'v_mov_b32 v2, {WS_E}\nv_mov_b32 v3, {sNONCE}\ns_mov_b64 exec, 1\nbuffer_store_dword v3, v2, {srd(R_WS)}, 0 offen sc1')
        a.label(l)
    def wo_prefetch(self):
        a = self.a
        if OPT('x5idle'): a(f's_mul_i32 s8, {sJ}, 12544')
        else: a(f's_lshl_b32 s8, {sXG}, 2\ns_and_b32 s12, {sJ}, 3\ns_add_u32 s8, s8, s12\ns_mul_i32 s8, s8, 12544')
        a(f's_lshl_b32 s12, {sWAVE}, 10\ns_add_u32 s8, s8, s12')
        for i in range(4):
            a(f'buffer_load_dwordx4 v[240:243], v15, {srd(R_B)}, s8 offen')
            if i < 3: a('s_add_u32 s8, s8, 4096')
    def build_fused(self):
        a = self.a
        kn = NAME + '_kernel'
        self.kernel_head(kn)
        if OPT('empty'): a('s_endpgm')
        self.prologue(512)
        la = self.L('roleA'); lidle = self.L('idle'); lnopf = self.L('nopf'); lnz = self.L('nonce')
        def emit_S():
            if OPT('qonly'): a('s_endpgm')
            a('s_setprio 3')
            self.s_ids(); self.s_kv_addr()
            self.after_kernarg('S')
            lq = self.L('pr'); lq2 = self.L('pr'); lq3 = self.L('pr')
            a(f's_cmp_eq_u32 {sXG}, 5\ns_cbranch_scc1 {lidle}' if OPT('x5idle') else f's_cmp_ge_u32 {sJ}, 28\ns_cbranch_scc1 {lidle}')
            KF = OPT('noov')
            if not KF and not OPT('plate'): self.s_params_load()
            self.kv_srds()
            a(f's_cmp_ge_u32 {sXG}, 4\ns_cbranch_scc1 {lq}')
            self.s_kv_load(1 if OPT('kvsplit') else 3)
            a.label(lq)
            if KF: self.s_params_load()
            if (not OPT('cplate')): self.code_prefetch(kn)
            if not OPT('nolow'): a('s_setprio 0')
            a('@CUT S')
            self.s_kv_addr2()
            self.mk_srd(R_B, P_U, X_BYTES); self.mk_srd(R_OUT, P_OUT, OUT_BYTES)
            def early_kv(n, part):
                l = self.L('ekv')
                a(f's_cmp_ge_u32 {sXG}, 4\ns_cbranch_scc1 {l}')
                self.s_kv_phase(n, part)
                a.label(l)
            OV = not OPT('noov')
            if OV:
                a('s_lshl_b32 s8, s9, 12\nv_add_u32 v1, s8, v15')
                if OPT('plate'): a('v_mov_b32 v53, v2\ns_mov_b32 s47, s14')
                self.s_addr_all()
                if OPT('kvsplit'):
                    l = self.L('k2')
                    a(f's_cmp_ge_u32 {sXG}, 4\ns_cbranch_scc1 {l}')
                    self.s_kv_load(2)
                    a.label(l)
                a('s_setprio 3')
                early_kv(1 if (not OPT('cplate')) else 0, 1)
                self.nonce(5 if (not OPT('cplate')) else 4)
            else:
                self.nonce(4)
                early_kv(4, 3)
                a('s_setprio 2')
                self.code_prefetch(kn)
                a('s_lshl_b32 s8, s9, 12\nv_add_u32 v1, s8, v15')
                self.s_table_load(104)
                self.s_addr_all()
            def mid_r0():
                if OV:
                    early_kv(0, 2)
                    a('s_setprio 2')
                    if not (not OPT('cplate')): self.code_prefetch(kn)
                    self.s_table_load(104)
            def late_kv(hold):
                a(f's_cmp_lt_u32 {sXG}, 4\ns_cbranch_scc1 {lq3}')
                if hold and not OPT('kvnohold'):
                    a(f's_lshl_b32 s8, s2, 8\ns_add_u32 s8, s8, {WS_FA}')
                    self.spoll('s8', 1, 1)
                self.s_kv_load()
                self.s_kv_phase()
                a.label(lq3)
            self.late_kv = late_kv
            self.s_kgen(mid_r0)
            if OPT('kvlate'): late_kv(False)
            if OPT('xs1'): self.stamp_flush(8); a('s_endpgm')
            self.s_u_phase()
            if OPT('xs2'): self.stamp_flush(8); a('s_endpgm')
            a('s_setprio 0')
            if not OPT('notrig') and not OPT('noA'):
                lt = self.L('trig')
                a(f's_cmp_lg_u32 {sWAVE}, 0\ns_cbranch_scc1 {lt}\ns_lshl_b32 s8, s2, 8\ns_add_u32 s8, s8, {WS_FA + 4}')
                self.spoll('s8', 1, 2)
                a.label(lt)
            a('s_barrier')
            if OPT('conv1'): a('s_setprio 1')
            self.s_conv()
            self.publish_y()
            self.s_assemble()
            self.stamp_flush(8)
            a('s_endpgm')
            a.label(lidle)
            self.s_kv_addr2()
            self.code_prefetch(kn)
            self.mk_srd(R_B, P_WO, WQ_BYTES)
            self.kv_srds()
            li = self.L('ih')
            a(f's_cmp_lt_u32 {sXG}, 4\ns_cbranch_scc1 {li}')
            self.nonce(1)
            if not OPT('noA'):
                a(f's_lshl_b32 s8, s2, 8\ns_add_u32 s8, s8, {WS_FA}')
                self.spoll('s8', 1, 1)
            a.label(li)
            self.s_kv_load()
            self.s_kv_phase(0, 1)
            self.nonce(1)
            self.s_kv_phase(0, 2)
            if not OPT('noA'):
                a(f's_lshl_b32 s8, s2, 8\ns_add_u32 s8, s8, {WS_FA}')
                self.spoll('s8', 1, 1)
            self.wo_prefetch()
            if not OPT('noA'):
                self.e_update()
            else:
                a(f'v_mov_b32 v2, {WS_E}\nv_mov_b32 v3, {sNONCE}\ns_cmp_lg_u32 s2, 253\ns_cbranch_scc1 {self.lend}\n' + 's_sleep 127\n' * 6 + f'buffer_store_dword v3, v2, {srd(R_WS)}, 0 offen sc1')
            a('s_endpgm')
        def emit_A():
            a.label(la)
            if OPT('noA'): a('s_endpgm')
            a('s_setprio 3')
            self.a_qproj()
            if OPT('qonly'):
                self.stamp_flush(10); a('s_endpgm')
            a('s_setprio 1' if not OPT('ahigh') else 's_setprio 3')
            self.a_attn(); self.a_outproj(); self.stamp_flush(10)
            a('s_endpgm')
            self.a_fallback()
            a('s_endpgm')
        head = list(a.lines); a.lines.clear()
        emit_S(); LS = list(a.lines); a.lines.clear()
        emit_A(); LA = list(a.lines); a.lines.clear()
        cs = LS.index('@CUT S'); ca = LA.index('@CUT A')
        brA = ['s_cmp_ge_u32 s2, 256', f's_cbranch_scc1 {la}']
        if OPT('flat'):
            a.lines += head + brA + LS[:cs] + LS[cs+1:] + LA[:ca] + LA[ca+1:]
        else:
            a.lines += head + brA + LS[:cs] + ['s_branch L_bodyS'] + LA[:ca+0] + LA[ca+1:] + ['L_bodyS:'] + LS[cs+1:]
        self.kernel_tail()
        return [kn], [512]
    def code_prefetch(self, kn):
        a = self.a
        lp = self.L('pc')
        a('s_getpc_b64 s[12:13]'); a.label(lp)
        a(f's_add_u32 s12, s12, {kn}-{lp}\ns_addc_u32 s13, s13, -1')
        a(f's_lshl_b32 s8, {sJ}, 2\ns_add_u32 s8, s8, {sWAVE}\ns_mul_i32 s8, s8, 320\nv_mul_u32_u24 v9, 5, v0\nv_add_u32 v9, s8, v9\nv_and_b32 v9, -4, v9\nv_min_u32 v9, L_table-4-{kn}, v9')
        a('global_load_dword v55, v9, s[12:13]' if not OPT('nocpf') else f'global_load_dword v55, v15, {sp(P_LAR)}')
    def nonce_a(self):
        self.a(f's_add_u32 {sNONCE}, {sNONCE}, 0x9e3779b9')

def table():
    import numpy as np
    def rne_bf16(j):
        u = struct.unpack('<I', struct.pack('<f', float(j)))[0]
        u = (u + 0x7fff + ((u >> 16) & 1)) & 0xffff0000
        return int(struct.unpack('<f', struct.pack('<I', u))[0])
    hi = [0,1,2,3,4,5,6,7, 256,258,260,262, 512,516,768,772, 1024,1280,1536,1792, 2048]
    out = []
    for j in range(2048):
        p = rne_bf16(j)
        b = (p >> 3) & 31
        out.append(hi.index(p - 8 * b) * 144 + 4 * b)
    lin = []
    for mh in range(2):
        for i in range(4):
            for lane in range(64):
                lin += out[16*(64*mh+lane)+4*i:16*(64*mh+lane)+4*i+4]
    return lin

def main():
    mode = sys.argv[1]; outp = sys.argv[2]; stamps = len(sys.argv) > 3 and sys.argv[3] == 'stamps'
    g = Gen(mode, stamps)
    names, grids = g.build_multi() if mode == 'multi' else g.build_fused()
    body = g.a.finalize(verbose='-v' in sys.argv)
    head = open('cdna_kernels/' + NAME + '.s.ref').read().split('; Override launch geometry')[0]
    txt = head
    if mode == 'multi':
        for n, gr in zip(names, grids): txt += f'; @launch kernel={n} grid=({gr},1,1) block=(256,1,1) lds=81920\n'
    else:
        txt += f'; @launch grid=({grids[0]},1,1) block=(256,1,1) lds=81920\n'
    txt += '.amdgcn_target "amdgcn-amd-amdhsa--gfx950"\n.text\n' + body
    txt += '.p2align 6\n.type L_table,@object\nL_table:\n'
    t = table()
    for i in range(0, 2048, 16): txt += '.long ' + ','.join(str(x) for x in t[i:i+16]) + '\n'
    txt += '.section .rodata,"a"\n'
    for n in names:
        txt += f'''.p2align 6
.amdhsa_kernel {n}
  .amdhsa_next_free_vgpr 256
  .amdhsa_next_free_sgpr 102
  .amdhsa_accum_offset 256
  .amdhsa_group_segment_fixed_size 0
  .amdhsa_kernarg_size 120
  .amdhsa_user_sgpr_count 2
  .amdhsa_user_sgpr_kernarg_segment_ptr 1
  .amdhsa_system_sgpr_workgroup_id_x 1
.end_amdhsa_kernel
'''
    open(outp, 'w').write(txt)
    print('written', outp, 'nops inserted', g.a.n_nops, 'lines', len(g.a.lines))

if __name__ == '__main__':
    main()
```

```python
import sys, struct, math
from asmdsl import Asm

NAME = 'concat_heads__ssm_conv_s4d__grouped_kv_mqa__prompt'
X_BYTES = 2048 * 896; WQ_BYTES = 448 * 896; WK_BYTES = 448 * 56; OUT_BYTES = 2048 * 1792
WS_E = 0; WS_FKV = 0x80000; WS_FU = 0x9000; WS_FY = 0xA000; WS_FO = 0xB000
WS_FA = 0x50000; WS_PO = 0xC0000; WS_PY = 0xE0000; WS_PU = 0x6C0000; WS_KV = 0x10000; WS_O = 0x100000; WS_UT = 0x300000; WS_YT = 0x500000; WS_ST = 0x700000; WS_BYTES = 0x800000
NREP = 32
def f32(x): return '0x%08x' % struct.unpack('<I', struct.pack('<f', x))[0]
LOG2E = math.log2(math.e)
CSCALE = LOG2E / math.sqrt(28.0)

sWAVE = 's3'; sXG = 's4'; sJ = 's5'; sM = 's96'
P_U, P_LAR, P_AIM, P_CRE, P_CIM, P_LDT, P_DSK, P_X = [16 + 2 * i for i in range(8)]
P_WQ, P_WK, P_WV, P_WO = 32, 34, 36, 38
P_OUT, P_DBG, P_WS = 40, 42, 44
sNONCE = 's46'
R_X = 48; R_W = 52; R_WS = 56; R_OUT = 60; R_B = 64
def srd(r): return f's[{r}:{r+3}]'
def sp(r): return f's[{r}:{r+1}]'
def vr(a, n): return f'v[{a}:{a+n-1}]' if n > 1 else f'v{a}'

def OPT(x): return x in sys.argv
OSP = ' nt' if OPT('ont') else ' sc1' if OPT('osc1') else ' sc0 sc1' if OPT('osc01') else ''
class Gen:
    def __init__(self, mode, stamps=False):
        self.a = Asm(); self.mode = mode; self.stamps = stamps; self.uid = 0
    def L(self, base):
        self.uid += 1
        return f'L_{base}_{self.uid}'
    def mk_srd(self, r, p, nbytes):
        if r == R_OUT and OPT('nostore'): nbytes = 16
        if r == R_WS and OPT('wsbig'): nbytes = 0x10000000
        self.a(f's_mov_b32 s{r}, s{p}\ns_mov_b32 s{r+1}, s{p+1}\ns_mov_b32 s{r+2}, {hex(nbytes)}\ns_mov_b32 s{r+3}, 0x20000')
    def stamp(self, i):
        if self.stamps and not ((OPT('early') or OPT('sfine') or OPT('tail') or OPT('qst') or OPT('ast') or OPT('ust')) and i > 0):
            self.a(f's_memrealtime s[{76+2*i}:{77+2*i}]')
    def fstamp(self, i):
        if self.stamps and OPT('sfine'):
            self.a(f's_memrealtime s[{76+2*i}:{77+2*i}]')
    def tstamp(self, i):
        if self.stamps and OPT('tail'):
            self.a(f's_memrealtime s[{76+2*i}:{77+2*i}]')
    def qstamp(self, i):
        if self.stamps and OPT('qst'):
            self.a(f's_memrealtime s[{76+2*i}:{77+2*i}]')
    def astamp(self, i):
        if self.stamps and OPT('ast'):
            self.a(f'{"s_memtime" if OPT("cyc") else "s_memrealtime"} s[{76+2*i}:{77+2*i}]')
    def ustamp(self, i):
        if self.stamps and OPT('ust'):
            self.a(f's_memrealtime s[{76+2*i}:{77+2*i}]')
    def estamp(self, i):
        if self.stamps and OPT('early'):
            self.a(f's_memrealtime s[{76+2*i}:{77+2*i}]')
    def cstamp(self, i):
        if self.stamps:
            self.a(f's_memtime s[{76+2*i}:{77+2*i}]')
    def stamp_flush(self, n):
        if not self.stamps: return
        a = self.a
        a('s_waitcnt lgkmcnt(0)')
        if OPT('dbgst'):
            l = self.L('dbg')
            a(f's_cmp_lg_u32 {sWAVE}, 0\ns_cbranch_scc1 {l}')
            self.mk_srd(R_X, P_DBG, 256)
            a('v_mov_b32 v2, 0')
            isA = n == 10
            for i in range(8):
                if i == 0 and isA: a('s_not_b32 s6, s76\nv_writelane_b32 v2, s6, 0')
                else: a(f'v_writelane_b32 v2, s{76+2*i}, {i}')
            a(f'v_lshlrev_b32 v1, 2, v0\nv_add_u32 v1, {0 if isA else 32}, v1\ns_mov_b64 exec, 0xff')
            a(f'buffer_atomic_umax v2, v1, {srd(R_X)}, 0 offen\ns_mov_b64 exec, -1')
            a.label(l)
            return
        a(f's_lshl_b32 s6, s2, 2\ns_add_u32 s6, s6, {sWAVE}\ns_lshl_b32 s6, s6, 6\ns_add_u32 s6, s6, {WS_ST}')
        a('v_mov_b32 v1, s6')
        for i in range(n):
            a(f'v_mov_b32 v2, s{76+2*i}\nbuffer_store_dword v2, v1, {srd(R_WS)}, 0 offen offset:{4*i}')
        a('s_getreg_b32 s7, hwreg(HW_REG_XCC_ID)\nv_mov_b32 v2, s7')
        a(f'buffer_store_dword v2, v1, {srd(R_WS)}, 0 offen offset:60')

    def prologue(self, nwg):
        a = self.a
        if self.stamps:
            for i in range(1, 10): a(f's_mov_b64 s[{76+2*i}:{77+2*i}], 0')
        self.stamp(0)
        a(f's_cmp_ge_u32 s2, {nwg}\ns_cbranch_scc1 {self.lend}')
        a('s_load_dwordx16 s[16:31], s[0:1], 0\ns_load_dwordx8 s[32:39], s[0:1], 64')
        a('s_load_dwordx4 s[40:43], s[0:1], 96\ns_load_dwordx2 s[44:45], s[0:1], 112')
        a('v_lshrrev_b32 v1, 6, v0\nv_and_b32 v0, 63, v0')
        a(f's_and_b32 {sXG}, s2, 7\ns_bfe_u32 {sJ}, s2, 0x50003')
        a(f'v_readfirstlane_b32 {sWAVE}, v1')

    def after_kernarg(self, role):
        a = self.a
        self.estamp(1)
        a('s_waitcnt lgkmcnt(0)')
        self.estamp(2)
        if OPT('stlb') and role == 'S' or OPT('atlb') and role == 'A':
            for p in (P_X, P_WQ, P_WK, P_WV, P_WS, P_LAR, P_AIM, P_CRE, P_CIM, P_U, P_WO, P_OUT):
                a(f's_load_dword s47, {sp(p)}, 0')
        self.mk_srd(R_WS, P_WS, WS_BYTES)
        a(f'buffer_load_dword v54, off, {srd(R_WS)}, 0 offset:{WS_E} sc1')

    def row7_addr(self, v0, v1, tmp, rowstride):
        a = self.a
        for v, add in ((v0, 0), (v1, 64)):
            if add: a(f'v_add_u32 {tmp}, {add}, v0')
            else: a(f'v_mov_b32 {tmp}, v0')
            a(f'v_mul_u32_u24 {v}, 147, {tmp}\nv_lshrrev_b32 {v}, 10, {v}')
            a(f'v_mul_u32_u24 {v}, {rowstride - 112}, {v}')
            a(f'v_lshl_add_u32 {v}, {tmp}, 4, {v}')

    def w128_src(self):
        a = self.a
        a(f's_lshl_b32 s8, {sWAVE}, 4\ns_mul_i32 s9, s8, 896\ns_mul_i32 s11, s7, 112\ns_add_u32 s9, s9, s11')
        a('v_lshrrev_b32 v2, 3, v0\nv_mul_u32_u24 v2, 896, v2\nv_bfe_u32 v3, v0, 4, 1\nv_lshlrev_b32 v3, 2, v3\nv_and_b32 v4, 7, v0\nv_xor_b32 v3, v3, v4')
        a('v_lshl_add_u32 v114, v3, 4, v2\nv_add_u32 v114, s9, v114\nv_add_u32 v115, 7168, v114')
    def w128_frag(self, dst, rowmul_h, sbyte):
        a = self.a
        a(f'v_bfe_u32 v2, v0, 4, 1\nv_lshlrev_b32 v2, 5, v2\nv_and_b32 v3, 3, v0\nv_lshl_add_u32 v2, v3, 3, v2\nv_add_u32 v2, {sbyte}, v2')
        a(f'v_bfe_u32 v3, v0, 3, 1\nv_lshlrev_b32 v3, 6, v3\nv_xor_b32 v2, v2, v3')
        a(f'v_lshrrev_b32 v3, 5, v0\nv_mul_u32_u24 v3, {rowmul_h}, v3\nv_bfe_u32 v4, v0, 2, 2\nv_add_u32 v3, v3, v4\nv_lshl_add_u32 {dst}, v3, 7, v2')
    def a_qproj_addr(self):
        a = self.a
        QX = 32768
        self.mk_srd(R_B, P_WO, WQ_BYTES); self.mk_srd(R_OUT, P_OUT, OUT_BYTES)
        a(f's_and_b32 s8, {sWAVE}, 1\ns_lshl_b32 s8, s8, 5')
        a('v_and_b32 v2, 31, v0\nv_add_u32 v2, s8, v2\nv_bfe_u32 v3, v2, 1, 3\nv_lshrrev_b32 v4, 5, v0\nv_xor_b32 v3, v3, v4\nv_lshlrev_b32 v2, 7, v2')
        for ks in range(4):
            a(f'v_xor_b32 v9, {2*ks}, v3\nv_lshl_add_u32 v{116+ks}, v9, 4, v2\nv_add_u32 v{121+ks}, 0x10000, v{116+ks}')
        a(f's_lshr_b32 s8, {sWAVE}, 1\ns_mul_i32 s8, s8, 56')
        self.w128_frag('v120', 8, 's8')
        a('v_add_u32 v125, 0x10000, v120\nv_lshlrev_b32 v15, 4, v0')
        a(f's_lshl_b32 s8, {sWAVE}, 11\ns_add_u32 s8, s8, {QX}\nv_add_u32 v126, s8, v15')
        for js in range(4):
            a(f's_add_u32 s8, {sWAVE}, {1+js}\ns_and_b32 s8, s8, 3\ns_lshl_b32 s9, s8, 11\ns_add_u32 s9, s9, {QX}\nv_add_u32 v{192+js}, s9, v15')
            if js < 3:
                a(f's_mul_i32 s9, s8, 12288\nv_add_u32 v{196+js}, s9, v15')
        for r in range(64, 112): a(f'v_mov_b32 v{r}, 0')
    def a_qproj(self):
        a = self.a
        QX = 32768
        REG = [0, 16384, 32768, 49152, 65536, 0, 16384]
        sQB = 's6'; sHP = 's7'
        a(f's_lshr_b32 s8, {sJ}, 3\ns_lshl_b32 {sQB}, {sXG}, 2\ns_add_u32 {sQB}, {sQB}, s8\ns_and_b32 {sHP}, {sJ}, 7')
        a(f's_lshl_b32 s8, {sWAVE}, 4\ns_lshl_b32 s9, {sQB}, 6\ns_add_u32 s9, s9, s8\ns_mul_i32 s9, s9, 896')
        a('v_lshrrev_b32 v2, 3, v0\nv_lshrrev_b32 v3, 4, v0\nv_and_b32 v4, 7, v0')
        a('v_xor_b32 v4, v4, v3\nv_mul_u32_u24 v2, 896, v2')
        a('v_lshl_add_u32 v112, v4, 4, v2\nv_add_u32 v112, s9, v112')
        a('v_xor_b32 v4, 4, v4\nv_lshl_add_u32 v113, v4, 4, v2\nv_add_u32 v113, s9, v113\nv_add_u32 v113, 7168, v113')
        a(f's_lshl_b32 s10, {sWAVE}, 11')
        self.w128_src()
        a(f's_lshr_b32 s8, {sJ}, 3\ns_lshl_b32 s8, s8, 1\ns_add_u32 s8, s8, {sHP}\ns_cmp_ge_u32 s8, 7\ns_cselect_b32 s9, 7, 0\ns_sub_u32 s8, s8, s9')
        a('s_cmp_ge_u32 s8, 7\ns_cselect_b32 s9, 7, 0\ns_sub_u32 s8, s8, s9')
        if OPT('rot2'): a(f's_lshr_b32 s8, {sJ}, 3\ns_add_u32 s8, s8, {sHP}\ns_and_b32 s8, s8, 1\ns_lshl_b32 s8, s8, 2')
        if OPT('rot2b'): a(f's_lshr_b32 s8, {sJ}, 3\ns_add_u32 s8, s8, {sHP}\ns_and_b32 s8, s8, 1\ns_mul_i32 s8, s8, 3')
        if OPT('rot1'): a('s_mov_b32 s8, 0')
        if OPT('rot4'): a(f's_lshr_b32 s8, {sJ}, 3\ns_add_u32 s8, s8, {sHP}\ns_and_b32 s8, s8, 3\ns_lshl_b32 s8, s8, 1')
        a('s_lshl_b32 s14, s8, 7\ns_mul_i32 s15, s8, 57344')
        self.after_kernarg('A')
        self.mk_srd(R_X, P_X, X_BYTES); self.mk_srd(R_W, P_WQ, WQ_BYTES)
        def loadx(i):
            a(f's_add_u32 m0, s10, {REG[i]}\ns_nop 0\nbuffer_load_dwordx4 v112, {srd(R_X)}, s14 offen lds')
            a(f's_add_u32 m0, s10, {REG[i] + 1024}\ns_nop 0\nbuffer_load_dwordx4 v113, {srd(R_X)}, s14 offen lds')
            if i < 6: a('s_add_u32 s14, s14, 128\ns_cmp_eq_u32 s14, 896\ns_cselect_b32 s14, 0, s14')
        def loadw(i):
            a(f's_add_u32 m0, s10, {REG[i] + 8192}\ns_nop 0\nbuffer_load_dwordx4 v114, {srd(R_W)}, s15 offen lds')
            a(f's_add_u32 m0, s10, {REG[i] + 8192 + 1024}\ns_nop 0\nbuffer_load_dwordx4 v115, {srd(R_W)}, s15 offen lds')
            if i < 6: a(f's_add_u32 s15, s15, 57344\ns_cmp_eq_u32 s15, {7*57344}\ns_cselect_b32 s15, 0, s15')
        def load(i): loadw(i); loadx(i)
        NF = 3 if OPT('q3') else 5 if OPT('q5') else 4
        a('s_setprio 1')
        if OPT('wfirst'): loadw(0); loadw(1); loadx(0); loadx(1)
        else: loadx(0); loadw(0); loadx(1); loadw(1)
        a('@CUT A')
        self.a_qproj_addr(); self.a_attn_setup(); self.a_tail_addr()
        for i in range(2, NF): load(i)
        if not OPT('shi'): a('s_setprio 3')
        self.estamp(3)
        FX = (144, 176); FW = (160, 232); ACC = 48
        issued = NF
        def rd(i):
            hi = REG[i] >= 65536
            off = REG[i] - (65536 if hi else 0)
            for ks in range(4):
                a(f'ds_read_b128 {vr(FX[i&1]+4*ks,4)}, v{(121 if hi else 116)+ks} offset:{off}')
                for t in range(2):
                    a(f'ds_read_b64_tr_b16 {vr(FW[i&1]+4*ks+2*t,2)}, v{125 if hi else 120} offset:{off + 8192 + (16*ks+4*t)*128}')
        def mm(i, waits):
            for ks in range(4):
                c = '0' if (i == 0 and ks == 0) else vr(ACC, 16)
                if waits[ks] is not None: a(f's_waitcnt lgkmcnt({waits[ks]})')
                a(f'v_mfma_f32_32x32x16_bf16 {vr(ACC,16)}, {vr(FW[i&1]+4*ks,4)}, {vr(FX[i&1]+4*ks,4)}, {c}')
        extra = 0; FLS = 4 if OPT('fl4') else 5
        for i in range(7):
            a(f's_waitcnt vmcnt({4*(issued - 1 - i) - (2 if i == 0 and OPT("wfirst") else 0) + extra}) lgkmcnt(0)\ns_barrier')
            if i == 0: self.stamp(1); self.estamp(4)
            if i == 3: self.estamp(5)
            if i == 6: self.estamp(6)
            self.qstamp(i + 1)
            if (i == 6 and OPT('flvec')) or (i == 5 and OPT('flvec5')) or (i == 6 and OPT('flvec6')):
                a(f's_mov_b64 exec, 0xffff\nbuffer_load_dword v250, v251, {srd(R_WS)}, s36 offen sc1\ns_mov_b64 exec, -1'); extra += 1
            rd(i)
            if i and i < 6: mm(i - 1, [None] * 4)
            while issued < 7 and issued <= i + NF and (issued < 5 or issued - 5 < i): load(issued); issued += 1
            if i == 0:
                a(f'v_readfirstlane_b32 {sNONCE}, v54\ns_add_u32 {sNONCE}, {sNONCE}, 0x9e3779b9\ns_mov_b32 s40, {sNONCE}\ns_mov_b32 s41, {sNONCE}\nv_mov_b32 v199, {sNONCE}')
            if i == (5 if OPT('fa5') else 3):
                assert issued == 7
                a(f'buffer_store_dword v199, v248, {srd(R_WS)}, s69 offen sc1'); extra += 1
            if i == 5:
                mm(5, [9, 6, 3, 0])
                if OPT('flpre'):
                    a('s_mov_b32 s14, 0')
                    for x in self.fl_load(): a(x)
        mm(6, [9, 6, 3, 0])
        V2 = OPT('flvec5') or OPT('flvec6')
        if V2:
            lno = self.L('nokv')
            a(f's_waitcnt vmcnt(0)\ns_mov_b64 exec, 0xffff\nv_cmp_ne_u32 vcc, v250, v199\ns_mov_b64 exec, -1\ns_cbranch_vccnz {lno}')
            self.kv_first([0])
            a('s_mov_b32 s75, 1')
            a.label(lno)
        if OPT('flpre'):
            lno = self.L('nokv')
            for x in self.fl_test()[1:]: a(x)
            a(f's_cbranch_scc1 {lno}')
            self.kv_first([0])
            a('s_mov_b32 s75, 1')
            a.label(lno)
        for r in range(8): a(f'v_mov_b32 v{184+r}, 0')
        for r in range(8): a(f'v_cvt_pk_bf16_f32 v{224+r}, v{ACC+2*r}, v{ACC+2*r+1}')
        a('s_mov_b32 exec_lo, 0\nv_mov_b32 v230, 0\nv_mov_b32 v231, 0\ns_mov_b32 exec_lo, -1')
        a('ds_write_b128 v126, v[224:227]\nds_write_b128 v126, v[228:231] offset:1024')
        for r in range(48, 64): a(f'v_mov_b32 v{r}, 0')
        a('s_waitcnt lgkmcnt(0)')
        if not OPT('flpre') and not OPT('flvec') and not V2:
            a('s_mov_b32 s14, 0')
            for x in self.fl_load(): a(x)
        a('s_barrier')
        for js in range(4):
            a(f'ds_read_b128 {vr(16+8*js,4)}, v{192+js}\nds_read_b128 {vr(20+8*js,4)}, v{192+js} offset:1024')
        lno2 = self.L('nokv')
        if OPT('flvec'):
            a(f's_waitcnt vmcnt(0)\ns_mov_b64 exec, 0xffff\nv_cmp_ne_u32 vcc, v250, v199\ns_mov_b64 exec, -1\ns_cbranch_vccnz {lno2}\ns_mov_b32 s75, 1')
            self.kv_first([0])
        elif not OPT('flpre') and not V2:
            for x in self.fl_test(): a(x)
            a(f's_cbranch_scc1 {lno2}\ns_mov_b32 s75, 1')
            self.kv_first([0])
        else: a(f's_cmp_eq_u32 s75, 0\ns_cbranch_scc1 {lno2}')
        self.kv_first([1, 2, 3])
        a.label(lno2)
        self.stamp(2); self.estamp(7)

    KB_ = (112, 128, 200, 216); CK = ['s32', 's33', 's34', 's35']
    def ldK(self, buf): return ['s_nop 0', 's_nop 0'] if OPT('nold') and getattr(self, 'inloop', 0) else [f'buffer_load_dwordx4 {vr(self.KB_[buf] + 4*f, 4)}, v15, {srd(R_WS)}, s68 offen offset:{1024*f} sc1' for f in range(2)]
    def ldV(self, buf): return ['s_nop 0', 's_nop 0'] if OPT('nold') and getattr(self, 'inloop', 0) else [f'buffer_load_dwordx4 {vr(self.KB_[buf] + 8 + 4*f, 4)}, v15, {srd(R_WS)}, s68 offen offset:{2048+1024*f} sc1' for f in range(2)]
    def fl_load(self, g='s14'):
        return [f's_lshr_b32 s8, {g}, 6', 's_add_u32 s8, s8, s36', f's_load_dwordx8 s[16:23], {sp(P_WS)}, s8 glc', 's_add_u32 s9, s8, 512', f's_load_dwordx8 s[24:31], {sp(P_WS)}, s9 glc']
    def fl_test(self):
        out = ['s_waitcnt lgkmcnt(0)', 's_xor_b64 s[16:17], s[16:17], s[40:41]']
        for i in range(1, 8): out += [f's_xor_b64 s[{16+2*i}:{17+2*i}], s[{16+2*i}:{17+2*i}], s[40:41]', f's_or_b64 s[16:17], s[16:17], s[{16+2*i}:{17+2*i}]']
        return out
    def fl_check(self):
        lr = self.L('kvspin'); lb = self.L('kvback')
        self.spins.append((lr, lb))
        return self.fl_test() + [f's_cbranch_scc1 {lr}', lb + ':']
    def kv_first(self, bs=range(4)):
        for b in bs:
            self.a(f's_mov_b32 s68, {self.CK[b]}')
            for x in self.ldK(b) + (self.ldV(b) if b < 3 else []): self.a(x)
    def a_attn_setup(self):
        a = self.a
        self.spins = []
        a(f's_lshl_b32 s8, {sWAVE}, 13\ns_add_u32 s8, s8, {WS_KV}\ns_mov_b32 s37, s8')
        for k in range(4):
            a(f's_add_u32 s9, {sJ}, {k}\ns_and_b32 s12, s9, 1\ns_lshl_b32 s12, s12, 12\ns_and_b32 s9, s9, 2\ns_lshl_b32 s9, s9, 14\ns_add_u32 s9, s9, s12\ns_add_u32 s{32+k}, s8, s9')
        a(f's_and_b32 s36, s2, {NREP-1}\ns_lshl_b32 s36, s36, 12\ns_lshl_b32 s8, {sWAVE}, 7\ns_add_u32 s36, s36, s8\ns_add_u32 s36, s36, {WS_FKV}')
        a('s_mov_b32 s38, 0x07060302')
        a(f's_and_b32 s69, s2, 255\ns_lshl_b32 s69, s69, 8\ns_add_u32 s69, s69, {WS_FA}\nv_mov_b32 v248, 0')
        if OPT('flvec') or OPT('flvec5') or OPT('flvec6'): a('v_and_b32 v251, 7, v0\nv_lshlrev_b32 v251, 2, v251\nv_bfe_u32 v250, v0, 3, 1\nv_lshl_add_u32 v251, v250, 9, v251')
        a(f's_lshl_b32 s71, {sWAVE}, 10\ns_mul_i32 s8, {sWAVE}, 7168\ns_lshl_b32 s9, s7, 4\ns_sub_u32 s8, s9, s8\nv_add_u32 v249, s8, v114')
        a(f's_cmp_eq_u32 s7, 7\ns_cselect_b32 s{R_B+2}, 0, s{R_B+2}')
        a('s_mov_b32 s72, 0\ns_mov_b32 s73, 0\ns_mov_b32 s75, 0')
    def a_attn(self):
        a = self.a
        Q = 16; O = 48; SS = (144, 160); PP = (176, 184)
        KB_ = (112, 128, 200, 216)
        K = lambda buf, f: vr(KB_[buf] + 4*f, 4)
        Vv = lambda buf, f: vr(KB_[buf] + 8 + 4*f, 4)
        sG = 's14'; sF = 's36'; sOFF = 's68'; sCNT = 's70'; sSEQ = 's74'; CK = self.CK
        fl_load = self.fl_load; fl_check = self.fl_check; ldK = self.ldK; ldV = self.ldV
        for r in range(8): a(f'v_mov_b32 v{KB_[3]+8+r}, 0')
        lgo = self.L('go')
        a(f's_cmp_lg_u32 s75, 0\ns_cbranch_scc1 {lgo}')
        self.lagain = self.L('again')
        a.label(self.lagain)
        a(f's_mov_b32 {sG}, 0')
        for x in fl_load() + fl_check(): a(x)
        self.kv_first()
        a.label(lgo)
        a(f's_mov_b32 {sSEQ}, 0x462')
        self.stamp(3); self.cstamp(8); self.astamp(1)
        def nxtG(): return [f's_and_b32 s39, {sSEQ}, 15', 's_lshl_b32 s39, s39, 15', f's_lshr_b32 {sSEQ}, {sSEQ}, 4']
        def mA(u, buf, f):
            s = SS[u & 1]; c = '0' if f == 0 else vr(s, 16)
            return f'v_mfma_f32_32x32x16_bf16 {vr(s,16)}, {K(buf,f)}, {vr(Q + 8*(u&3) + 4*f, 4)}, {c}'
        def mC(u, buf, f):
            o = vr(O + 16*(u & 3), 16)
            return f'v_mfma_f32_32x32x16_bf16 {o}, {Vv(buf,f)}, {vr(PP[u&1] + 4*f, 4)}, {o}'
        a('s_waitcnt lgkmcnt(0)')
        if OPT('tlb'):
            a(f's_mov_b64 exec, 1\nbuffer_load_dword v252, v248, {srd(R_WS)}, s42 offen\nbuffer_load_dword v253, v248, {srd(R_OUT)}, s98 offen\ns_mov_b64 exec, -1')
        for x in nxtG() + fl_load('s39'): a(x)
        a(f's_waitcnt vmcnt({14 if OPT("tlb") else 12})')
        self.astamp(2)
        a(mA(0, 0, 0)); a(mA(0, 0, 1))
        a(f's_mov_b32 {sCNT}, 3')
        def unit(u, mf, extra):
            s = SS[u & 1]; p = PP[u & 1]
            e = lambda i: f'v_exp_f32 v{s+i}, v{s+i}'
            c = (lambda i: f'v_cvt_pk_bf16_f32 v{p+i}, v{s+2*i}, v{s+2*i+1}') if OPT('cvt') else (lambda i: f'v_perm_b32 v{p+i}, v{s+2*i+1}, v{s+2*i}, s38')
            Lq = [e(0), e(1), e(2), e(3), c(0), e(4), e(5), c(1), e(6), e(7), c(2), e(8), e(9), c(3), e(10), e(11), c(4), e(12), e(13), c(5), e(14), e(15), c(6), c(7)]
            sp_ = (4, 4, 4, 12) if OPT('hole') else (6, 6, 6, 6)
            seq = [Lq[sum(sp_[:i]):sum(sp_[:i+1])] for i in range(4)]
            for i in range(4):
                for x in extra.get(('pre', i), []): a(x)
                if mf[i]: a(mf[i])
                for x in extra.get(i, []): a(x)
                for x in seq[i]: a(x)
        lloop = self.L('attn'); self.inloop = 1
        TRIG = [int(x[4:]) for x in sys.argv if x.startswith('trig') and x[4:].isdigit()]
        TRL = [int(x[5:]) for x in sys.argv if x.startswith('trigL')]
        if not TRIG and not TRL: TRIG = [2]
        TRI = 2 if OPT('trigIt2') else 1
        TRIG = TRIG[0] if TRIG else 99
        WOR = list(range(8, 15))
        WOU = list(range(2, 10))
        W = lambda n, u, slot: n + (1 if (u, slot) > (TRIG, 0) else 0) + sum(1 for x in WOU if (u, slot) > (x, 1)) + sum(1 for x in WOR if (u, slot) > (x, 3))
        def body(tail):
            for u in range(16):
                t = u >> 2; b = u & 3
                nu = u + 1; nbuf = (nu >> 2) & 3
                pu = u - 1; pbuf = ((pu >> 2) & 3)
                mf = [mA(nu, nbuf, 0), mA(nu, nbuf, 1), mC(pu, pbuf, 0), mC(pu, pbuf, 1)]
                ex = {}
                if tail and u == 15: mf = [mC(pu, pbuf, 0), mC(pu, pbuf, 1), None, None]
                if b == 3:
                    if not tail:
                        ex[('pre', 0)] = ['s_waitcnt vmcnt(10)']
                        ex[0] = [f's_add_u32 {sOFF}, {sG}, {CK[t]}']
                        ex[2] = [ldK(t)[0]]; ex[3] = [ldK(t)[1]]
                    elif t < 3:
                        ex[('pre', 0)] = [f's_waitcnt vmcnt({W(10 - 4*t, u, 0)})']
                if b == 1:
                    if not tail or t == 0:
                        assert TRIG >= 2
                        ex[('pre', 2)] = ['s_waitcnt vmcnt(10)']
                        ex[2] = [ldV((t - 1) & 3)[0]]; ex[3] = [ldV((t - 1) & 3)[1]]
                    else:
                        ex[('pre', 2)] = [f's_waitcnt vmcnt({W(12 - 4*t, u, 2)})']
                if tail and u == TRIG:
                    ex.setdefault(0, []).append(f'buffer_store_dword v199, v248, {srd(R_WS)}, s69 offen offset:4 sc1')
                if not tail and not OPT('nospread'):
                    if u == 0: self.c_ = fl_check()
                    g_ = nxtG() + fl_load('s39')
                    plan = {(12, 0): g_[0:1], (12, 1): g_[1:2], (12, 2): g_[2:3], (12, 3): g_[3:4], (13, 0): g_[4:5], (13, 1): g_[5:6], (14, 1): g_[6:7], (14, 2): g_[7:8]}
                    c_ = self.c_
                    slots = [(0, 1), (0, 2), (0, 3), (1, 0), (1, 1), (2, 0), (2, 1), (2, 2), (2, 3)]
                    per = [2, 2, 2, 2, 2, 2, 2, 2, 3]; k = 0
                    for sl, n in zip(slots, per): plan[sl] = c_[k:k+n]; k += n
                    plan[(0, 0)] = [f's_mov_b32 {sG}, s39']
                    for (uu, sl), xs in plan.items():
                        if uu == u: ex.setdefault(sl, []).extend(xs)
                if not tail and OPT('nospread'):
                    if u == 0:
                        ex[0] = [f's_mov_b32 {sG}, s39']
                    if u == 14:
                        g_ = nxtG() + fl_load('s39')
                        ex.setdefault(1, []).extend(g_[:2]); ex.setdefault(2, []).extend(g_[2:4]); ex.setdefault(3, []).extend(g_[4:6])
                        self.g_rest = g_[6:]
                    if u == 15:
                        ex.setdefault(1, []).extend(self.g_rest)
                    if u == 1:
                        c0 = ['s_waitcnt lgkmcnt(0)', 's_xor_b64 s[16:17], s[16:17], s[40:41]']
                        for i in range(1, 4): c0 += [f's_xor_b64 s[{16+2*i}:{17+2*i}], s[{16+2*i}:{17+2*i}], s[40:41]', f's_or_b64 s[16:17], s[16:17], s[{16+2*i}:{17+2*i}]']
                        ex.setdefault(0, []).extend(c0[:2]); ex.setdefault(1, []).extend(c0[2:4]); ex.setdefault(2, []).extend(c0[4:6]); ex.setdefault(3, []).extend(c0[6:])
                    if u == 2:
                        c_ = fl_check(); self.c_ = c_
                        ex[0] = c_[8:10]; ex[1] = c_[10:12]; ex[2] = c_[12:14]; ex[3] = c_[14:]
                if not tail and TRL and u == TRL[0]:
                    lsk = self.L('tsk')
                    assert u not in (1, 2, 14, 15)
                    ex.setdefault(1, []).extend([f's_cmp_lg_u32 {sCNT}, {TRI}', f's_cbranch_scc1 {lsk}', f'buffer_store_dword v199, v248, {srd(R_WS)}, s69 offen offset:4 sc1', lsk + ':'])
                if tail and u in WOU:
                    i = WOU.index(u)
                    ex.setdefault(0, []).append(f's_add_u32 m0, s71, {self.WOB + 1024*(25+4*i)}')
                    ex.setdefault(('pre', 1), []).append(f's_mov_b32 s13, {(25+4*i)*7168}')
                    ex.setdefault(1, []).append(f'buffer_load_dwordx4 v249, {srd(R_B)}, s13 offen lds')
                if tail and u in WOR:
                    i = WOR.index(u)
                    ex.setdefault(2, []).append(f's_mov_b32 s11, {4*i*7168}')
                    ex.setdefault(3, []).append(f'buffer_load_dwordx4 {vr(112+4*i,4)}, v249, {srd(R_B)}, s11 offen')
                if tail and u == 14:
                    for g in range(4): ex.setdefault((1,2,2,3)[g], []).append(f'ds_write_b128 v196, {vr(O+4*g,4)} offset:{g*1024}')
                if tail and u == 15:
                    for g in range(4): ex.setdefault((1,2,2,3)[g], []).append(f'ds_write_b128 v197, {vr(O+16+4*g,4)} offset:{4096+g*1024}')
                if not tail and u == 14:
                    ex.setdefault(0, []).append(f's_sub_u32 {sCNT}, {sCNT}, 1')
                unit(u, mf, ex)
        a('s_nop 10\n.p2align 4')
        a.label(lloop)
        body(False)
        if self.stamps and OPT('ast'):
            for k in range(3):
                l = self.L('ast')
                a(f's_cmp_lg_u32 {sCNT}, {2-k}\ns_cbranch_scc1 {l}'); self.astamp(3 + k); a.label(l)
        a(f's_cmp_lg_u32 {sCNT}, 0\ns_cbranch_scc1 {lloop}')
        body(True)
        self.astamp(6)
        a('s_setprio 3')
        a(mC(15, 3, 0)); a(mC(15, 3, 1))
        for g in range(4): a(f'ds_write_b128 v198, {vr(O+32+4*g,4)} offset:{8192+g*1024}')
        a('s_waitcnt lgkmcnt(0)\ns_barrier')
        self.stamp(4); self.cstamp(9); self.tstamp(1); self.astamp(7)
        RD = 144
        for i in range(12): a(f'ds_read_b128 {vr(RD+4*i,4)}, v2 offset:{i*1024}')
        F = O + 48
        for s in range(3):
            a(f's_waitcnt lgkmcnt({8-4*s})')
            PK = OPT('pkred')
            order = list(range(0, 16, 2 if PK else 1))
            if s == 2: order = [12] + [r for r in order if r != 12]
            for n, r in enumerate(order):
                a(f'v_pk_add_f32 {vr(F+r,2)}, {vr(F+r,2)}, {vr(RD+16*s+r,2)}' if PK else f'v_add_f32 v{F+r}, v{F+r}, v{RD+16*s+r}')
                if s == 2 and n == 1: a(f'v_mov_b32 v208, v{F+12}\nv_mov_b32 v209, v{F+12}')
                if s == 2 and n == 4: a('v_permlane32_swap_b32 v208, v209')
                if s == 2 and n == (6 if PK else 7): a('v_rcp_f32 v208, v209')
        if not OPT('olate'): a(f's_load_dwordx8 s[16:23], {sp(P_WS)}, s100 glc')
        if OPT('pkred'):
            for r in range(0, 16, 2): a(f'v_pk_mul_f32 {vr(F+r,2)}, {vr(F+r,2)}, v[208:209] op_sel_hi:[1,0]')
        else:
            for r in range(16): a(f'v_mul_f32 v{F+r}, v{F+r}, v208')
        for r in range(8): a(f'v_cvt_pk_bf16_f32 v{200+r}, v{F+2*r}, v{F+2*r+1}')
        a('s_mov_b32 exec_lo, 0\nv_mov_b32 v206, 0\nv_mov_b32 v207, 0\ns_mov_b32 exec_lo, -1')
        self.lnopub = self.L('nopub'); self.lskip = self.L('skip')
        a(f's_mov_b32 s12, 0\ns_cmp_lg_u32 s73, 0\ns_cbranch_scc1 {self.lskip}')
        a(f'buffer_store_dwordx4 v[200:203], v15, {srd(R_WS)}, s42 offen sc1')
        a(f'buffer_store_dwordx4 v[204:207], v15, {srd(R_WS)}, s42 offen offset:1024 sc1')
        a('s_mov_b32 s9, 0x3f803f80\nv_mov_b32 v210, 0')
        for r in range(8): a(f'v_dot2_f32_bf16 v210, v{200+r}, s9, v210')
        a(f's_mov_b32 s12, {f32(2.0**64)}\nv_mov_b32 v211, 0x207\nv_cmp_nle_f32 vcc, {f32(2.0**-64)}, v209\nv_cmp_nge_f32 s[10:11], s12, v209')
        a('s_or_b64 s[10:11], s[10:11], vcc\nv_cmp_class_f32 vcc, v210, v211\ns_or_b64 s[10:11], s[10:11], vcc')
        a('s_cmp_lg_u64 s[10:11], 0\ns_cselect_b32 s12, 1, 0\ns_andn2_b32 s12, s12, s72')
        a(f's_cbranch_scc1 {self.lskip}')
        self.tstamp(2)
        a('s_waitcnt vmcnt(0)')
        self.tstamp(3)
        a(f's_mov_b64 exec, 0x7f\nbuffer_store_dword v199, v7, {srd(R_WS)}, s43 offen sc1\ns_mov_b64 exec, -1\ns_mov_b32 s73, 1')
        a.label(self.lnopub)
        self.stamp(5)
        self.lfb = self.L('fallback')
        a('v_mov_b32 v210, s12\nds_write_b32 v4, v210 offset:3588')
        a('s_waitcnt lgkmcnt(0)\ns_barrier')
        if OPT('olate'): a(f's_load_dwordx8 s[16:23], {sp(P_WS)}, s100 glc')
        for k in range(4): a(f'ds_read_b32 v{212+k}, v248 offset:{3588+16*k}')
        a(f's_waitcnt lgkmcnt(0)\nv_or3_b32 v212, v212, v213, v214\nv_or_b32 v212, v212, v215\nv_cmp_ne_u32 vcc, 0, v212\ns_cbranch_vccnz {self.lfb}')

    def a_tail_addr(self):
        a = self.a
        XCH = 0
        a(f's_lshr_b32 s12, {sWAVE}, 1\ns_and_b32 s13, {sWAVE}, 1')
        a(f's_lshl_b32 s8, s6, 1\ns_add_u32 s8, s8, s13\ns_lshl_b32 s39, s8, 15\ns_add_u32 s39, s39, {WS_O}')
        a('s_lshl_b32 s9, s7, 1\ns_add_u32 s9, s9, s12\ns_lshl_b32 s9, s9, 11\ns_add_u32 s42, s39, s9')
        a(f's_lshl_b32 s8, s6, 12\ns_add_u32 s8, s8, {WS_PO}\ns_lshr_b32 s9, s7, 2\ns_and_b32 s11, s7, 3\ns_cmp_eq_u32 s9, s12\ns_cselect_b32 s101, s11, 9')
        a('s_lshl_b32 s9, s9, 1\ns_add_u32 s9, s9, s13\ns_lshl_b32 s9, s9, 7\ns_add_u32 s9, s9, s8\nv_lshl_add_u32 v7, v0, 9, s9')
        a(f's_lshl_b32 s9, s7, 2\ns_add_u32 s9, s9, {sWAVE}\ns_lshl_b32 s9, s9, 7\ns_add_u32 s100, s8, s9')
        a('s_lshl_b32 s9, s11, 1\ns_add_u32 s9, s9, s12\ns_lshl_b32 s43, s9, 2')
        a('s_lshl_b32 s8, s12, 6')
        self.w128_frag('v14', 4, 's8')
        a(f's_and_b32 s9, s7, 1\ns_lshl_b32 s11, s12, 1\ns_add_u32 s11, s11, s9\ns_xor_b32 s9, s11, 1\ns_lshl_b32 s96, s11, 13\ns_lshl_b32 s97, s9, 13\ns_add_u32 s96, s96, s39\ns_add_u32 s97, s97, s39')
        a(f's_mul_i32 s8, s11, {112*128}\ns_mul_i32 s9, s9, {112*128}\ns_add_u32 s8, s8, {self.WOB}\ns_add_u32 s9, s9, {self.WOB}')
        a('v_add_u32 v12, s9, v14\nv_add_u32 v14, s8, v14\nv_xor_b32 v13, 64, v14\nv_xor_b32 v11, 64, v12')
        a(f's_xor_b32 s9, {sWAVE}, 2\ns_lshl_b32 s9, s9, 12\nv_add_u32 v5, s9, v15\ns_lshl_b32 s9, {sWAVE}, 12\nv_add_u32 v6, s9, v15')
        a(f's_mul_i32 s9, s13, {32*144}\ns_lshl_b32 s11, s12, 6\ns_add_u32 s9, s9, s11\ns_add_u32 s9, s9, 16384')
        a('v_lshrrev_b32 v4, 5, v0\nv_and_b32 v9, 31, v0\nv_mul_u32_u24 v9, 144, v9\nv_lshl_add_u32 v9, v4, 4, v9\nv_add_u32 v9, s9, v9')
        a(f'v_lshrrev_b32 v2, 3, v0\nv_and_b32 v3, 7, v0\nv_lshlrev_b32 v3, 4, v3\nv_mul_u32_u24 v10, 144, v2\ns_mul_i32 s9, {sWAVE}, {16*144}\ns_add_u32 s9, s9, 16384\nv_add3_u32 v10, v10, v3, s9')
        a(f'v_mul_u32_u24 v8, 1792, v2\nv_add_u32 v8, v8, v3\ns_lshl_b32 s8, s6, 2\ns_add_u32 s8, s8, {sWAVE}\ns_mul_i32 s8, s8, {16*1792}\ns_lshl_b32 s9, s7, 7\ns_add_u32 s8, s8, s9\ns_add_u32 s98, s8, 896\ns_add_u32 s99, s98, {8*1792}')
        a(f'v_add_u32 v1, s71, v15\ns_mul_i32 s8, {sWAVE}, 12288\nv_add_u32 v2, s8, v15\ns_lshl_b32 s8, {sWAVE}, 4\nv_mov_b32 v4, s8')

    def a_fallback(self):
        a = self.a
        lp = self.L('fbl')
        for lr, lb in self.spins:
            l2 = self.L('kvs'); l3 = self.L('kvs')
            a.label(lr)
            a(f's_mov_b32 s47, {self.SPIN}')
            a.label(l2)
            a(f's_sleep 2\ns_sub_u32 s47, s47, 1\ns_cmp_gt_i32 s47, 0\ns_cbranch_scc0 {lb}')
            a(f's_load_dwordx8 s[16:23], {sp(P_WS)}, s8 glc\ns_load_dwordx8 s[24:31], {sp(P_WS)}, s9 glc\ns_waitcnt lgkmcnt(0)')
            for i in range(8): a(f's_cmp_eq_u64 s[{16+2*i}:{17+2*i}], s[40:41]\ns_cbranch_scc0 {l2}')
            a(f's_branch {lb}')
        a.label(self.lskip)
        a(f's_waitcnt vmcnt(0)\ns_branch {self.lnopub}')
        a.label(self.lfb)
        a(f's_barrier\ns_mov_b32 s72, 1\ns_mov_b32 s70, 16\ns_mov_b32 s68, s37')
        for js in range(4): a(f'v_mov_b32 v{240+js}, 0xff800000')
        a.label(lp)
        a(f'buffer_load_dwordx4 v[112:115], v15, {srd(R_WS)}, s68 offen sc1\nbuffer_load_dwordx4 v[116:119], v15, {srd(R_WS)}, s68 offen offset:1024 sc1')
        a('s_bitcmp1_b32 s70, 0\ns_cselect_b32 s8, 7, 1\ns_lshl_b32 s8, s8, 12\ns_add_u32 s68, s68, s8\ns_waitcnt vmcnt(0)')
        for js in range(4):
            a(f'v_mfma_f32_32x32x16_bf16 v[144:159], v[112:115], {vr(16+8*js,4)}, 0\nv_mfma_f32_32x32x16_bf16 v[144:159], v[116:119], {vr(20+8*js,4)}, v[144:159]')
            for r in range(0, 16, 2): a(f'v_max3_f32 v{240+js}, v{240+js}, v{144+r}, v{145+r}')
        a(f's_sub_u32 s70, s70, 1\ns_cmp_lg_u32 s70, 0\ns_cbranch_scc1 {lp}')
        a(f's_lshl_b32 s8, {sWAVE}, 8\nv_lshl_add_u32 v244, v0, 2, s8\nv_lshlrev_b32 v245, 2, v0')
        for js in range(4):
            a(f'v_mov_b32 v246, v{240+js}\nv_mov_b32 v247, v{240+js}\nv_permlane32_swap_b32 v246, v247\nv_max_f32 v{240+js}, v246, v247')
            a(f's_add_u32 s8, {sWAVE}, {1+js}\ns_and_b32 s8, s8, 3\ns_lshl_b32 s8, s8, 10\nv_add_u32 v246, s8, v244\nv_add_u32 v{236+js}, s8, v245')
            a(f'ds_write_b32 v246, v{240+js} offset:1024')
        a('s_waitcnt lgkmcnt(0)\ns_barrier')
        for js in range(4):
            a(f'ds_read2st64_b32 v[246:247], v{236+js} offset0:4 offset1:5\nds_read2st64_b32 v[250:251], v{236+js} offset0:6 offset1:7\ns_waitcnt lgkmcnt(0)')
            a('v_max3_f32 v246, v246, v247, v250\nv_max_f32 v246, v246, v251')
            a('v_xor_b32 v246, 0x80000000, v246\nv_and_b32 v247, 0xffff0000, v246\nv_sub_f32 v246, v246, v247\nv_and_b32 v250, 0xffff0000, v246\nv_sub_f32 v246, v246, v250')
            a(f's_mov_b32 exec_lo, 0\nv_lshrrev_b32 v247, 16, v247\nv_or_b32 v{22+8*js}, v247, v250\nv_lshrrev_b32 v{23+8*js}, 16, v246\ns_mov_b32 exec_lo, -1')
        for r in list(range(48, 112)) + list(range(184, 192)) + list(range(224, 232)): a(f'v_mov_b32 v{r}, 0')
        a(f's_barrier\ns_branch {self.lagain}')

    WOB = 23552
    def a_outproj(self):
        a = self.a
        a(f's_cmp_eq_u32 s7, 7\ns_cbranch_scc1 {self.lend}')
        self.tstamp(4)
        OF = 16; WF = 144; ACC = (80, 96)
        lp = self.L('wo'); lall = self.L('wall'); lone = self.L('wone'); ljoin = self.L('wjoin'); lp2 = self.L('wo'); lok2 = self.L('wok')
        def test():
            for i in range(4):
                a(f's_cmp_eq_u32 s101, {i}\ns_cselect_b64 s[{16+2*i}:{17+2*i}], s[40:41], s[{16+2*i}:{17+2*i}]\ns_xor_b64 s[{16+2*i}:{17+2*i}], s[{16+2*i}:{17+2*i}], s[40:41]')
            a('s_or_b64 s[16:17], s[16:17], s[18:19]\ns_or_b64 s[20:21], s[20:21], s[22:23]')
        def rd(i, lo, hi):
            hd, f = (i >> 1) & 3, i & 1
            b = WF + 8 * (i & 3)
            for ct in range(2):
                for t in range(2):
                    a(f'ds_read_b64_tr_b16 {vr(b+4*ct+2*t,2)}, v{(lo if i < 8 else hi)-ct} offset:{(28*hd+16*f+8*t)*128}')
        def stage(n, first, srcs, lo, hi, wo):
            for i in range(n):
                if i == 4: a(f's_add_u32 {srcs[0]}, {srcs[0]}, 4096')
                if i == 12: a(f's_add_u32 {srcs[1]}, {srcs[1]}, 4096')
                a(f'buffer_load_dwordx4 {vr(OF+4*i,4)}, v15, {srd(R_WS)}, {srcs[0] if i < 8 else srcs[1]} offen offset:{(i%4)*1024} sc1')
                if wo and i < 7: a(f'ds_write_b128 v1, {vr(112+4*i,4)} offset:{self.WOB + 4096*i}')
            if wo: a('s_waitcnt lgkmcnt(0)\ns_barrier')
            for i in range(3): rd(i, lo, hi)
            for i in range(n):
                if i + 3 < n: rd(i + 3, lo, hi)
                left = min(3, n - 1 - i)
                a(f's_waitcnt vmcnt({n-1-i}) lgkmcnt({4*left})')
                b = WF + 8 * (i & 3)
                for ct in (1, 0):
                    c = '0' if (i == 0 and first) else vr(ACC[ct], 16)
                    a(f'v_mfma_f32_32x32x16_bf16 {vr(ACC[ct],16)}, {vr(b+4*ct,4)}, {vr(OF+4*i,4)}, {c}')
        a(f's_mov_b32 s47, {self.SPIN}')
        a.label(lp)
        test()
        a(f's_or_b64 s[18:19], s[16:17], s[20:21]\ns_cbranch_scc0 {lall}')
        a(f's_load_dwordx8 s[16:23], {sp(P_WS)}, s100 glc\ns_sub_u32 s47, s47, 1\ns_cmp_gt_i32 s47, 0\ns_waitcnt lgkmcnt(0)\ns_cbranch_scc1 {lp}')
        a.label(lall)
        self.stamp(6); self.tstamp(5)
        stage(16, True, ('s96', 's97'), 14, 12, True)
        self.tstamp(6)
        for g in range(4): a(f'ds_write_b128 v5, {vr(ACC[1]+4*g,4)} offset:{g*1024}')
        a('s_waitcnt lgkmcnt(0)\ns_barrier')
        for g in range(4): a(f'ds_read_b128 {vr(16+4*g,4)}, v6 offset:{g*1024}')
        a('s_waitcnt lgkmcnt(0)')
        for r in range(16): a(f'v_add_f32 v{ACC[0]+r}, v{ACC[0]+r}, v{16+r}')
        for r in range(8): a(f'v_cvt_pk_bf16_f32 v{32+r}, v{ACC[0]+2*r}, v{ACC[0]+2*r+1}')
        a('v_permlane32_swap_b32 v32, v34\nv_permlane32_swap_b32 v33, v35\nv_permlane32_swap_b32 v36, v38\nv_permlane32_swap_b32 v37, v39')
        a('ds_write_b128 v9, v[32:35]\nds_write_b128 v9, v[36:39] offset:32\ns_waitcnt lgkmcnt(0)\ns_barrier')
        a(f'ds_read_b128 v[16:19], v10\nds_read_b128 v[20:23], v10 offset:{8*144}')
        a(f's_waitcnt lgkmcnt(1)\nbuffer_store_dwordx4 v[16:19], v8, {srd(R_OUT)}, s98 offen sc1\ns_waitcnt lgkmcnt(0)\nbuffer_store_dwordx4 v[20:23], v8, {srd(R_OUT)}, s99 offen sc1')
        self.stamp(7); self.tstamp(7)

    UTILE = 0; TSCR = 8192; UB = 61440; KB = 70656; SCR = 15360
    PU, PZ, PT, PB, PW, PE, PK, PKZ, PD, PUT, PA = 232, 233, 234, 235, 236, 240, 243, 244, 245, 246, 251
    def s_ids(self):
        a = self.a
        if OPT('x5idle'):
            a(f's_cmp_gt_u32 {sXG}, 5\ns_cselect_b32 s8, 1, 0\ns_sub_u32 s73, {sXG}, s8\ns_mov_b32 {sM}, {sJ}')
        else:
            a(f's_mul_i32 s8, {sXG}, 28\ns_add_u32 s8, s8, {sJ}\ns_lshr_b32 s73, s8, 5\ns_and_b32 {sM}, s8, 31')
        a(f's_lshl_b32 s8, s73, 6\ns_lshl_b32 s9, {sM}, 1\ns_add_u32 s74, s8, s9')
        a('v_lshlrev_b32 v15, 4, v0')
        a(f's_lshl_b32 s14, s74, 1\ns_lshr_b32 s10, {sWAVE}, 1\ns_add_u32 s74, s74, s10\ns_and_b32 s9, {sWAVE}, 1')
        a('s_lshl_b32 s8, s74, 9\ns_lshl_b32 s12, s9, 8\ns_add_u32 s8, s8, s12\nv_lshl_add_u32 v2, v0, 2, s8')
    def s_params_load(self, va='v2', scal=True, vec=True):
        a = self.a
        for i, p in enumerate((P_LAR, P_AIM, P_CRE, P_CIM)):
            if vec: a(f'global_load_dword v{16+i}, {va}, {sp(p)}')
        if scal: a(f's_load_dword s71, {sp(P_LDT)}, s14\ns_load_dword s72, {sp(P_DSK)}, s14')
    def s_table_load(self, dst):
        a = self.a
        lp = self.L('pc')
        a('s_getpc_b64 s[12:13]')
        a.label(lp)
        a(f's_add_u32 s12, s12, L_table-{lp}\ns_addc_u32 s13, s13, 0')
        for i in range(4):
            a(f'global_load_dwordx4 {vr(dst+4*i,4)}, v1, s[12:13] offset:{1024*i}')
    def s_kv_addr(self):
        a = self.a
        a(f's_lshr_b32 s7, {sJ}, 1\ns_lshl_b32 s8, {sXG}, 4\ns_add_u32 s7, s7, s8\ns_lshl_b32 s6, {sXG}, 5\ns_add_u32 s6, s6, {sJ}')
        a(f's_lshl_b32 s12, s7, 1\ns_add_u32 s12, s12, s9\ns_mul_i32 s12, s12, {8*896}')
        a(f'v_lshrrev_b32 v7, 3, v0\nv_lshrrev_b32 v8, 4, v0\ns_lshl_b32 s8, s9, 2\nv_add_u32 v8, s8, v8')
        a('v_and_b32 v4, 7, v0\nv_xor_b32 v8, v4, v8\nv_mul_u32_u24 v7, 896, v7\nv_lshl_add_u32 v5, v8, 4, v7\nv_add_u32 v5, s12, v5')
        a(f's_lshl_b32 s11, {sWAVE}, 10\nv_add_u32 v6, s11, v15\ns_add_u32 s15, s11, 28672')
        a(f's_lshr_b32 s8, {sJ}, 1\ns_cmp_ge_u32 s8, 7\ns_cselect_b32 s12, 7, 0\ns_sub_u32 s8, s8, s12\ns_cmp_ge_u32 s8, 7\ns_cselect_b32 s12, 7, 0\ns_sub_u32 s8, s8, s12\ns_lshl_b32 s70, s8, 12')
    def kv_srds(self):
        a = self.a
        self.mk_srd(R_X, P_X, X_BYTES)
        a(f's_bitcmp1_b32 s6, 0\ns_cselect_b32 s{R_W}, s{P_WV}, s{P_WK}\ns_cselect_b32 s{R_W+1}, s{P_WV+1}, s{P_WK+1}')
        a(f's_mov_b32 s{R_W+2}, {WK_BYTES}\ns_mov_b32 s{R_W+3}, 0x20000')
    def s_kv_load(self, part=3):
        a = self.a
        if part & 1:
            a(f's_mul_i32 s12, s10, {3*128}\ns_mul_i32 s13, s10, {3*2048}\ns_lshl_b32 s8, s9, 10\ns_add_u32 s13, s13, s8')
            for i in range(4):
                a(f's_add_u32 m0, s13, {2048*i}\ns_nop 0\nbuffer_load_dwordx4 v5, {srd(R_X)}, s12 offen lds')
                if i < 3: a('s_add_u32 s12, s12, 128')
        for i in range(7):
            if not part & (1 if i == 0 else 2): continue
            if i: a('s_add_u32 s70, s70, 4096\ns_cmp_eq_u32 s70, 28672\ns_cselect_b32 s70, 0, s70')
            a(f's_add_u32 m0, s15, s70\ns_nop 0\nbuffer_load_dwordx4 v6, {srd(R_W)}, s70 offen lds')
    def s_kv_addr2(self):
        a = self.a
        a('s_and_b32 s68, s7, 1')
        a('v_and_b32 v2, 15, v0\nv_bfe_u32 v4, v2, 1, 3\nv_lshrrev_b32 v9, 4, v0\nv_xor_b32 v4, v4, v9\nv_lshlrev_b32 v3, 7, v2')
        a('v_lshl_add_u32 v10, v4, 4, v3\nv_xor_b32 v4, 4, v4\nv_lshl_add_u32 v11, v4, 4, v3')
        a('v_bfe_u32 v3, v0, 2, 2\nv_lshl_add_u32 v3, v9, 3, v3\nv_mul_u32_u24 v3, 56, v3\nv_and_b32 v4, 3, v0\nv_lshl_add_u32 v3, v4, 3, v3')
        a(f's_lshl_b32 s8, {sWAVE}, 5\ns_add_u32 s8, s8, 28672\nv_add_u32 v12, s8, v3')
        a('v_lshlrev_b32 v13, 4, v2\nv_bfe_u32 v3, v0, 4, 1\nv_lshl_add_u32 v13, v3, 9, v13')
        a(f's_bitcmp1_b32 s6, 0\ns_cselect_b32 s12, s68, {sWAVE}\ns_cselect_b32 s13, {sWAVE}, s68\ns_cselect_b32 s8, 2048, 0')
        a(f's_lshl_b32 s12, s12, 10\ns_lshl_b32 s13, s13, 8\ns_add_u32 s12, s12, s13\ns_add_u32 s12, s12, s8\ns_lshr_b32 s13, s7, 1\ns_lshl_b32 s13, s13, 12\ns_add_u32 s12, s12, s13\ns_add_u32 s69, s12, {WS_KV}')
        a(f's_lshr_b32 s8, s6, 3\ns_lshl_b32 s8, s8, 7\ns_and_b32 s12, s6, 7\ns_lshl_b32 s12, s12, 2\ns_add_u32 s8, s8, s12\ns_add_u32 s68, s8, {WS_FKV}\nv_lshlrev_b32 v14, 12, v0')
    def s_kv(self):
        a = self.a
        lv = self.L('kvV'); lst = self.L('kvst')
        ACC = 100
        XF = lambda ks: vr(56 + 8*(ks % 5), 4); WF = lambda ks, t=None: vr(60 + 8*(ks % 5), 4) if t is None else vr(60 + 8*(ks % 5) + 2*t, 2)
        def rdk(ks):
            a(f'ds_read_b128 {XF(ks)}, v{10+(ks&1)} offset:{(ks>>1)*2048}')
            for t in range(2):
                a(f'ds_read_b64_tr_b16 {WF(ks,t)}, v12 offset:{(32*ks+4*t)*56}')
        for ks in range(4): rdk(ks)
        a('s_bitcmp1_b32 s6, 0')
        def chain(swap):
            for ks in range(14):
                if ks + 4 < 14: rdk(ks + 4)
                a(f's_waitcnt lgkmcnt({3*min(4, 13-ks)})')
                A, B = (XF(ks), WF(ks)) if swap else (WF(ks), XF(ks))
                c = '0' if ks == 0 else vr(ACC, 4)
                a(f'v_mfma_f32_16x16x32_bf16 {vr(ACC,4)}, {A}, {B}, {c}')
        a(f's_cbranch_scc1 {lv}')
        chain(False)
        a(f's_cmp_eq_u32 {sWAVE}, 1\ns_cselect_b32 s12, 0xffff0000, 0')
        for r in range(4): a(f'v_mul_f32 v{ACC+r}, {f32(CSCALE)}, v{ACC+r}')
        a(f'v_cvt_pk_bf16_f32 v96, v{ACC}, v{ACC+1}\nv_cvt_pk_bf16_f32 v97, v{ACC+2}, v{ACC+3}')
        a('s_mov_b32 exec_lo, 0\ns_mov_b32 exec_hi, s12\nv_mov_b32 v96, 0x3f803f80\nv_mov_b32 v97, 0x00003f80\ns_mov_b64 exec, -1')
        a(f's_branch {lst}')
        a.label(lv)
        chain(True)
        a(f's_cmp_eq_u32 {sWAVE}, 1\ns_cselect_b32 s12, 0xe000e000, 0\ns_cselect_b32 s13, 0x10001000, 0')
        a(f'v_cvt_pk_bf16_f32 v96, v{ACC}, v{ACC+1}\nv_cvt_pk_bf16_f32 v97, v{ACC+2}, v{ACC+3}')
        a('s_mov_b32 exec_lo, s12\ns_mov_b32 exec_hi, s12\nv_mov_b32 v96, 0\nv_mov_b32 v97, 0')
        a('s_mov_b32 exec_lo, s13\ns_mov_b32 exec_hi, s13\nv_mov_b32 v96, 0x3f803f80\nv_mov_b32 v97, 0x3f803f80\ns_mov_b64 exec, -1')
        a.label(lst)
        a('s_nop 1\nv_permlane32_swap_b32 v96, v98\nv_permlane32_swap_b32 v97, v99\ns_mov_b32 exec_hi, 0')
        a(f'buffer_store_dwordx4 v[96:99], v13, {srd(R_WS)}, s69 offen sc1\ns_mov_b32 exec_hi, -1')
    def s_kv_phase(self, n=0, part=3):
        a = self.a
        l3 = self.L('kvb'); l4 = self.L('kvf')
        if part & 1:
            a(f's_waitcnt vmcnt({n})\ns_barrier')
            self.stamp(1); self.estamp(4)
            a(f's_cmp_ge_u32 {sWAVE}, 2\ns_cbranch_scc1 {l3}')
            self.s_kv()
            a.label(l3)
        if part & 2:
            a(f'v_mov_b32 v33, {sNONCE}\ns_waitcnt vmcnt(0)\ns_barrier\ns_cmp_lg_u32 {sWAVE}, 0\ns_cbranch_scc1 {l4}')
            a(f's_mov_b64 exec, {hex((1 << NREP) - 1) if NREP < 64 else -1}\nbuffer_store_dword v33, v14, {srd(R_WS)}, s68 offen sc1\ns_mov_b64 exec, -1')
            a.label(l4)
            self.stamp(2); self.estamp(5)

    def s_addr_all(self):
        a = self.a
        PU, PZ, PT, PB, PW, PE, PK, PKZ, PD, PUT, PA = [f'v{x}' if not isinstance(x, str) else x for x in (self.PU, self.PZ, self.PT, self.PB, 'x', 'x', self.PK, self.PKZ, self.PD, 'x', 'x')]
        a(f's_lshl_b32 s8, {sM}, 6\ns_lshl_b32 s12, {sWAVE}, 4\ns_add_u32 s8, s8, s12\ns_mul_i32 s8, s8, 896\ns_lshl_b32 s12, s73, 7\ns_add_u32 s8, s8, s12')
        a('v_and_b32 v20, 7, v0\nv_lshl_add_u32 v7, v20, 4, v7\nv_add_u32 v7, s8, v7')
        a(f's_lshl_b32 s8, s74, 12\ns_lshl_b32 s12, s9, 11\ns_add_u32 s8, s8, s12\ns_add_u32 s14, s8, {WS_UT}\ns_add_u32 s92, s8, {WS_YT}')
        a(f's_mul_i32 s11, s10, 4608\ns_add_u32 s11, s11, {self.UB}\ns_mul_i32 s8, s10, 4160\ns_add_u32 s75, s8, {self.KB}')
        a(f's_add_u32 s12, s12, s75\nv_lshl_add_u32 {PK}, v0, 5, s12\nv_lshl_add_u32 {PKZ}, v0, 2, s75')
        a('v_bfe_u32 v2, v0, 1, 2\nv_mul_u32_u24 v2, 1152, v2\nv_lshrrev_b32 v21, 3, v0\nv_lshl_add_u32 v2, v21, 5, v2\nv_and_b32 v4, 1, v0\nv_lshl_add_u32 v2, v4, 4, v2')
        a(f's_lshl_b32 s12, s9, 9\ns_add_u32 s12, s12, s11\nv_add_u32 {PU}, s12, v2')
        a(f'v_mul_u32_u24 v3, 1152, v21\nv_lshl_add_u32 v3, v20, 4, v3\nv_add_u32 {PZ}, s11, v3')
        a('v_lshlrev_b32 v4, 4, v4\nv_bfe_u32 v8, v0, 1, 1\nv_lshl_add_u32 v4, v8, 2, v4\nv_bfe_u32 v8, v0, 4, 1\nv_lshl_add_u32 v4, v8, 3, v4')
        a('v_lshrrev_b32 v22, 5, v0\nv_lshlrev_b32 v8, 5, v22\nv_sub_u32 v4, v4, v8\nv_bfe_u32 v23, v0, 2, 2\nv_lshlrev_b32 v8, 2, v23\nv_sub_u32 v4, v4, v8')
        a(f's_add_u32 s12, s75, 96\nv_lshl_add_u32 {PT}, v4, 1, s12')
        a(f'v_bfe_u32 v4, v0, 3, 2\nv_mul_u32_u24 v3, 1152, v4\nv_add_u32 v8, v20, v22\nv_lshl_add_u32 v3, v8, 4, v3\ns_add_u32 s12, s11, 16\nv_add_u32 {PB}, s12, v3')
        a('v_lshrrev_b32 v8, 1, v20\nv_and_b32 v3, 1, v20\nv_lshl_or_b32 v8, v3, 2, v8\nv_lshlrev_b32 v3, 2, v22\nv_xor_b32 v8, v8, v3')
        a('v_lshlrev_b32 v4, 13, v4\nv_lshl_add_u32 v4, v20, 7, v4\ns_lshl_b32 s13, s10, 15\nv_add_u32 v4, s13, v4')
        for g in range(4): a(f'v_xor_b32 v3, {g}, v8\nv_lshl_add_u32 v{self.PW+g}, v3, 4, v4')
        a('s_lshl_b32 s12, s9, 7\nv_add_u32 v2, s12, v0\nv_lshrrev_b32 v3, 2, v2\nv_and_b32 v4, 3, v2\nv_lshlrev_b32 v4, 1, v4')
        def fa(dst, av): a(f'v_bfe_u32 {dst}, {av}, 1, 2\nv_and_b32 v8, 1, {av}\nv_lshl_or_b32 {dst}, v8, 2, {dst}')
        fa('v9', 'v3')
        a('v_xor_b32 v9, v9, v4\nv_lshlrev_b32 v2, 7, v3\nv_add_u32 v2, s13, v2')
        a(f'v_lshl_add_u32 v{self.PE}, v9, 4, v2\nv_xor_b32 v9, 1, v9\nv_lshl_add_u32 v{self.PE+1}, v9, 4, v2')
        a('v_lshl_add_u32 v4, v3, 3, v4\nv_add_u32 v4, -1, v4\nv_ashrrev_i32 v3, 3, v4\nv_and_b32 v4, 7, v4')
        fa('v9', 'v3')
        a(f'v_xor_b32 v9, v9, v4\nv_lshlrev_b32 v2, 7, v3\nv_add_u32 v2, s13, v2\nv_lshl_add_u32 v2, v9, 4, v2\nv_add_u32 v{self.PE+2}, 8192, v2')
        a('s_cmp_eq_u32 s9, 0\ns_cselect_b32 s93, 1, 0')
        U = self.PUT
        a(f'v_lshrrev_b32 v3, 4, v0\nv_lshl_add_u32 v2, v23, 2, v3\nv_lshlrev_b32 v2, 7, v2\nv_and_b32 v9, 3, v0\nv_lshl_add_u32 v2, v9, 3, v2')
        a(f's_lshl_b32 s8, {sWAVE}, 5\ns_add_u32 s8, s8, {self.UTILE}\nv_add_u32 v{U}, s8, v2')
        a(f's_mul_i32 s12, {sWAVE}, 2304\ns_add_u32 s12, s12, {self.TSCR}')
        a(f'v_and_b32 v4, 15, v0\nv_mul_u32_u24 v4, 144, v4\nv_lshl_add_u32 v4, v3, 5, v4\nv_add_u32 v{U+1}, s12, v4')
        a(f'v_lshlrev_b32 v4, 4, v20\nv_mul_u32_u24 v2, 144, v21\nv_add3_u32 v{U+2}, v2, v4, s12')
        a(f's_lshl_b32 s8, s73, 2\ns_add_u32 s8, s8, {sWAVE}\ns_lshl_b32 s8, s8, 16\ns_lshl_b32 s12, {sM}, 7\ns_add_u32 s8, s8, s12\ns_add_u32 s8, s8, {WS_UT}')
        a(f'v_lshl_add_u32 v{self.PA}, v21, 12, v4\nv_add_u32 v{U+3}, s8, v{self.PA}\nv_add_u32 v{U+4}, {8*4096}, v{U+3}')
        a(f's_lshl_b32 s36, s73, 9\ns_add_u32 s36, s36, {WS_FU}\ns_lshl_b32 s8, {sM}, 2\ns_add_u32 s35, s36, s8')
        A = self.PA
        a(f's_lshl_b32 s8, s73, 6\ns_lshl_b32 s13, {sWAVE}, 3\ns_add_u32 s8, s8, s13\ns_lshl_b32 s8, s8, 12\ns_add_u32 s8, s8, s12\ns_add_u32 s37, s8, {WS_YT}\ns_add_u32 s38, s37, {32*4096}')
        a(f'v_add_u32 v2, s13, v21\nv_mul_u32_u24 v2, 160, v2\nv_add_u32 v{A+1}, v2, v4')
        a(f'v_lshl_add_u32 v2, v3, 3, v23\nv_mul_u32_u24 v2, 160, v2\nv_lshl_add_u32 v2, v9, 3, v2\ns_lshl_b32 s8, {sWAVE}, 5\nv_add_u32 v{A+2}, s8, v2')
        a(f's_lshl_b32 s8, {sM}, 2\ns_add_u32 s8, s8, {sWAVE}\ns_mul_i32 s39, s8, {16*1792}\ns_lshl_b32 s8, s73, 7\ns_add_u32 s39, s39, s8\ns_add_u32 s94, s39, {8*1792}')
        a(f'v_mul_u32_u24 v2, 1792, v21\nv_add_u32 v{A+3}, v2, v4')
        a(f'v_and_b32 v2, 15, v0\nv_mul_u32_u24 v2, 144, v2\nv_lshl_add_u32 v2, v3, 4, v2\ns_mul_i32 s8, {sWAVE}, 2304\ns_add_u32 s8, s8, {self.TSCR + 4096}\nv_add_u32 v{A+4}, s8, v2')
        a(f's_mul_i32 s11, {sWAVE}, {self.SCR}\nv_mul_u32_u24 v2, 240, v0\nv_add_u32 v2, s11, v2')
        a(f'v_lshl_add_u32 v3, v23, 1, v22\nv_mul_u32_u24 v3, 480, v3\nv_bfe_u32 v8, v0, 4, 1\nv_lshl_add_u32 v3, v8, 5, v3\nv_lshl_add_u32 v3, v9, 3, v3\nv_add_u32 v3, s11, v3')
        a(f'v_and_b32 v4, 31, v0\nv_mul_u32_u24 v4, 144, v4\nv_lshl_add_u32 v4, v22, 4, v4\nv_add_u32 v4, s11, v4')

    def s_kgen(self, mid_r0):
        a = self.a
        RS = 240
        AW, AR, AP = 'v2', 'v3', 'v4'
        if OPT('nokvfirst'): raise SystemExit('option removed')
        a(f's_cmp_eq_u32 s10, 1\ns_cselect_b32 s8, 0, 16')
        a('s_lshl_b32 s12, s71, s8\ns_and_b32 s12, s12, 0xffff0000\ns_lshl_b32 s13, s72, s8\ns_and_b32 s72, s13, 0xffff0000')
        a(f'v_mov_b32 v31, s12\nv_mul_f32 v31, {f32(LOG2E)}, v31\nv_exp_f32 v31, v31\nv_mov_b32 v{self.PD}, 0\nv_cvt_pk_bf16_f32 v31, v31, v31\nv_and_b32 v31, 0xffff0000, v31')
        a(f'v_mul_f32 v32, {f32(-LOG2E)}, v31\nv_mul_f32 v30, 0.15915494309189532, v31\nv_add_f32 v31, v31, v31')
        a(f's_mov_b32 exec_lo, s93\ns_mov_b32 exec_hi, 0\nv_mov_b32 v{self.PD}, s72\ns_mov_b64 exec, -1')
        ACC = 40; FR = 56; TB = 120
        W1, W256, W8 = 24, 26, 28
        RR = (120, 176)
        def cmul(z, x, y, conj, t):
            return [f'v_pk_mul_f32 {vr(t,2)}, {vr(x,2)}, {vr(y,2)} op_sel_hi:[1,0]',
                    f'v_pk_fma_f32 {vr(z,2)}, {vr(x,2)}, {vr(y,2)}, {vr(t,2)} op_sel:[1,1,0] op_sel_hi:[0,1,1] {"neg_hi" if conj else "neg_lo"}:[1,0,0]']
        def pack(buf, i, x, y): return [f'v_cvt_pk_bf16_f32 v{buf+i}, v{x}, v{y}', f'v_cvt_pk_bf16_f32 v{buf+4+i}, v{x+1}, v{y+1}']
        def flush(rnd):
            out = []
            for g in range(4): out += [f'ds_write_b128 {AW}, {vr(RR[rnd]+8*g,4)} offset:{16*g}', f'ds_write_b128 {AW}, {vr(RR[rnd]+8*g+4,4)} offset:{64+16*g}']
            for g in range(3): out += [f'ds_write_b128 {AW}, {vr(RR[rnd]+32+8*g,4)} offset:{128+16*g}', f'ds_write_b128 {AW}, {vr(RR[rnd]+32+8*g+4,4)} offset:{176+16*g}']
            return out
        def reads(q):
            qq, part = q >> 1, q & 1
            for t in range(2): a(f'ds_read_b64_tr_b16 {vr(FR+8*q+2*t,2)}, {AR} offset:{(16*qq+t)*RS + 64*part}')
            for t in range(2): a(f'ds_read_b64_tr_b16 {vr(FR+8*q+4+2*t,2)}, {AR} offset:{(16*qq+t)*RS + 128 + 48*part}')
        l1 = self.L('wp'); l2 = self.L('wp')
        a(f's_cmp_ge_u32 {sXG}, 4\ns_cbranch_scc1 {l1}\ns_cmp_ge_u32 {sWAVE}, 2\ns_cbranch_scc1 {l1}\ns_waitcnt vmcnt(2)\ns_branch {l2}')
        a.label(l1); a('s_waitcnt vmcnt(1)'); a.label(l2)
        self.fstamp(1); self.estamp(3)
        mfma = lambda q, first: f'v_mfma_f32_32x32x16_bf16 {vr(ACC,16)}, {vr(FR+8*q,4)}, {vr(FR+8*q+4,4)}, {"0" if first else vr(ACC,16)}'
        H0, H2, H4, H6, HT, HU, LA, LB, TL, TG = 34, 36, 38, 40, 42, 44, 46, 48, 50, 52
        for rnd in range(2):
            ex = (lambda d, s: f'v_lshlrev_b32 v{d}, 16, v{s}') if rnd == 0 else (lambda d, s: f'v_and_b32 v{d}, 0xffff0000, v{s}')
            setup = [ex(20, 16), ex(21, 17), ex(H0, 18), ex(H0+1, 19),
                     f'v_mul_f32 v20, {f32(LOG2E)}, v20', 'v_exp_f32 v20, v20', 'v_mul_f32 v21, v21, v30', 'v_cvt_pk_bf16_f32 v20, v20, v20', 'v_and_b32 v20, 0xffff0000, v20', 'v_mul_f32 v20, v20, v32',
                     f'v_mul_f32 v{H0}, v{H0}, v31', f'v_mul_f32 v{H0+1}, -v{H0+1}, v31']
            for W, m in ((W1, 1.0), (W256, 256.0), (W8, 8.0)):
                if m == 1.0: setup += ['v_exp_f32 v22, v20', 'v_fract_f32 v23, v21']
                else: setup += [f'v_mul_f32 v22, {f32(m)}, v20', f'v_mul_f32 v23, {f32(m)}, v21', 'v_exp_f32 v22, v22', 'v_fract_f32 v23, v23']
                setup += [f'v_cos_f32 v{W}, v23', f'v_sin_f32 v{W+1}, v23', f'v_mul_f32 v{W}, v{W}, v22', f'v_mul_f32 v{W+1}, v{W+1}, v22']
            for x in setup: a(x)
            PL = [RR[rnd] + 8*g for g in range(4)]; PG = [RR[rnd] + 32 + 8*g for g in range(3)]
            jl = [f'v_cvt_pk_bf16_f32 v{PL[0]}, 1.0, v{W8}', f'v_cvt_pk_bf16_f32 v{PL[0]+4}, 0, v{W8+1}']
            cur = W8
            for b in range(2, 32, 2):
                jl += cmul(LA, cur, W8, False, TL) + cmul(LB, LA, W8, False, TL) + pack(PL[b >> 3], (b & 7) >> 1, LA, LB); cur = LB
            jg = cmul(HT, H0, W1, True, TG) + pack(PG[0], 0, H0, HT)
            jg += cmul(H2, HT, W1, True, TG) + cmul(HT, H2, W1, True, TG) + pack(PG[0], 1, H2, HT)
            jg += cmul(H4, HT, W1, True, TG) + cmul(HT, H4, W1, True, TG) + pack(PG[0], 2, H4, HT)
            jg += cmul(H6, HT, W1, True, TG) + cmul(HT, H6, W1, True, TG) + pack(PG[0], 3, H6, HT)
            jg += cmul(H0, H0, W256, True, TG) + cmul(H2, H2, W256, True, TG) + pack(PG[1], 0, H0, H2)
            jg += cmul(H4, H4, W256, True, TG) + cmul(H6, H6, W256, True, TG) + pack(PG[1], 1, H4, H6)
            jg += cmul(H0, H0, W256, True, TG) + cmul(H4, H4, W256, True, TG) + pack(PG[1], 2, H0, H4)
            jg += cmul(H0, H0, W256, True, TG) + cmul(H4, H4, W256, True, TG) + pack(PG[1], 3, H0, H4)
            jg += cmul(HT, H0, W256, True, TG) + cmul(HU, HT, W256, True, TG) + pack(PG[2], 0, HT, HU)
            jg += cmul(HT, HU, W256, True, TG) + cmul(HU, HT, W256, True, TG) + pack(PG[2], 1, HT, HU)
            jg += cmul(HT, HU, W256, True, TG) + pack(PG[2], 2, HT, HT) + [f'v_mov_b32 v{PG[2]+3}, 0', f'v_mov_b32 v{PG[2]+7}, 0']
            for x in jg: a(x)
            if rnd == 0:
                mid_r0()
                for x in jl: a(x)
            elif not OPT('kvlate'):
                for x in jl: a(x)
                self.late_kv(True)
                if OPT('xs0'): self.stamp_flush(8); a('s_endpgm')
                for x in flush(0): a(x)
            else:
                fl = flush(0); step = len(jl) // 14
                for i, x in enumerate(jl):
                    a(x)
                    if i % step == step - 1 and fl: a(fl.pop(0))
                for x in fl: a(x)
            self.fstamp(2 + rnd)
        a(f's_mul_i32 s8, s10, {2*self.SCR}\ns_waitcnt vmcnt(0) lgkmcnt(0)')
        for q in range(6): reads(q)
        for k in range(16): a(f'v_add_u32 v{TB+k}, s8, v{104+k}')
        for q in range(6, 8): reads(q)
        if not OPT('nokgp0'): a('s_setprio 0')
        a('s_waitcnt lgkmcnt(0)')
        fl = flush(1)
        for q in range(8):
            a(mfma(q, q == 0))
            for x in fl[2*q:2*q+2]: a(x)
        a('s_waitcnt lgkmcnt(0)')
        self.estamp(7)
        for q in range(8):
            reads(q)
            if q >= 3:
                a('s_waitcnt lgkmcnt(12)'); a(mfma(q - 3, False))
        for q in range(5, 8):
            a(f's_waitcnt lgkmcnt({4*(7-q)})'); a(mfma(q, False))
        if not OPT('nokgp0'): a('s_setprio 2')
        for g in range(4): a(f'ds_write_b128 {AP}, {vr(ACC+4*g,4)} offset:{32*g}')
        for r in range(4): a(f'v_mov_b32 v{112+r}, 0')
        a('s_waitcnt lgkmcnt(0)\ns_barrier')
        self.fstamp(4)
        G = 56
        for k in range(16): a(f'ds_read2st64_b32 {vr(G+2*k,2)}, v{TB+k} offset1:{self.SCR//256}')
        a(f's_mov_b64 exec, 0xffff\nds_write_b32 v{self.PKZ}, v112\ns_mov_b32 exec_lo, -1\nds_write_b128 v{self.PZ}, v[112:115]\ns_mov_b64 exec, -1')
        for k in range(16):
            if k % 4 == 0: a(f's_waitcnt lgkmcnt({14-k})')
            a(f'v_add_f32 v{G+2*k}, v{G+2*k}, v{G+2*k+1}')
            if k == 0: a(f'v_add_f32 v{G}, v{G}, v{self.PD}')
        for k in range(8): a(f'v_cvt_pk_bf16_f32 v{88+k}, v{G+4*k}, v{G+4*k+2}')
        a(f'ds_write_b128 v{self.PK}, v[88:91] offset:64\nds_write_b128 v{self.PK}, v[92:95] offset:80')
        a(f'v_mov_b32 v113, {sNONCE}\ns_waitcnt lgkmcnt(0)\ns_barrier')
        self.stamp(3)

    def s_u_phase(self):
        a = self.a
        U = self.PUT
        self.ustamp(5)
        a(f's_lshl_b32 s12, {sWAVE}, 11')
        a(f's_add_u32 m0, s12, {self.UTILE}\ns_mov_b32 s13, {8*896}\nbuffer_load_dwordx4 v7, {srd(R_B)}, 0 offen lds')
        a(f's_add_u32 m0, s12, {self.UTILE + 1024}\ns_nop 0\nbuffer_load_dwordx4 v7, {srd(R_B)}, s13 offen lds')
        a('s_waitcnt vmcnt(0)\ns_barrier')
        self.ustamp(1)
        for half in range(2):
            for t in range(2):
                a(f'ds_read_b64_tr_b16 {vr(96+4*half+2*t,2)}, v{U} offset:{(32*half+16*t)*128}')
        a(f's_waitcnt lgkmcnt(2)\nds_write_b128 v{U+1}, v[96:99]\ns_waitcnt lgkmcnt(1)\nds_write_b128 v{U+1}, v[100:103] offset:16\ns_waitcnt lgkmcnt(0)')
        a(f'ds_read_b128 v[96:99], v{U+2}\nds_read_b128 v[100:103], v{U+2} offset:{8*144}')
        a(f's_waitcnt lgkmcnt(1)\nbuffer_store_dwordx4 v[96:99], v{U+3}, {srd(R_WS)}, 0 offen sc1')
        a(f's_waitcnt lgkmcnt(0)\nbuffer_store_dwordx4 v[100:103], v{U+4}, {srd(R_WS)}, 0 offen sc1')
        self.publish_y(WS_PU)
        self.wait_y(WS_PU, 4)
        self.ustamp(3)
        for i in range(2): a(f'buffer_load_dwordx4 {vr(104+4*i,4)}, v15, {srd(R_WS)}, s14 offen offset:{1024*i} sc1')
        a(f's_waitcnt vmcnt(1)\nds_write_b128 v{self.PU}, v[104:107] offset:128\ns_waitcnt vmcnt(0)\nds_write_b128 v{self.PU}, v[108:111] offset:384')
        if OPT('tlb'):
            a(f's_mov_b64 exec, 1\nbuffer_load_dword v116, v112, {srd(R_WS)}, s92 offen\nbuffer_load_dword v117, v112, {srd(R_WS)}, s37 offen\nbuffer_load_dword v118, v112, {srd(R_OUT)}, s39 offen\ns_mov_b64 exec, -1')
        a('s_waitcnt lgkmcnt(0)')
        self.stamp(4); self.ustamp(4)

    def s_conv(self):
        a = self.a
        self.stamp(5); self.fstamp(5); self.tstamp(1)
        D = 16; BF = (80, 112); TF = (144, 176)
        l1 = self.L('cv1'); lj = self.L('cvj')
        a(f's_cmp_eq_u32 s9, 0\ns_cbranch_scc0 {l1}')
        def variant(tset):
            mmax = max(tset)
            mf = []; reads = []
            seen = set(); started = set()
            for r in range(4):
                pb = r & 1
                for jj in range(mmax + 1):
                    for ti, t in enumerate(tset):
                        if t < jj: continue
                        m = t - jj
                        nb = ('B', r, m); nt = ('T', r, jj)
                        for k in (nt, nb):
                            if k not in seen:
                                seen.add(k)
                                if k[0] == 'B':
                                    reads.append((k, [f'ds_read_b128 {vr(BF[pb]+4*m,4)}, v{self.PB} offset:{32*(4*m - r + 3)}']))
                                else:
                                    mu = 4*jj + r
                                    reads.append((k, [f'ds_read_b64_tr_b16 {vr(TF[pb]+4*jj+2*tt,2)}, v{self.PT} offset:{128*mu + 32*(1-tt)}' for tt in range(2)]))
                        c = vr(D+16*ti, 16) if t in started else '0'
                        started.add(t)
                        mf.append((f'v_mfma_f32_32x32x16_bf16 {vr(D+16*ti,16)}, {vr(TF[pb]+4*jj,4)}, {vr(BF[pb]+4*m,4)}, {c}', (nb, nt), r))
            flat = []; endpos = {}
            for k, xs in reads:
                for x in xs: flat.append((x, k))
                endpos[k] = len(flat)
            issued = 0; done = 0
            lastmf = {}
            for i, (txt, needs, r) in enumerate(mf): lastmf[txt.split(',')[0]] = i
            pend = []; released = False
            for i, (txt, needs, r) in enumerate(mf):
                need = max(endpos[k] for k in needs)
                tgt = min(len(flat), need + (12 if r < 2 else 24))
                step = 0
                while issued < tgt and (issued < need + 12 or step < 2):
                    kk = flat[issued][1]
                    if kk[1] >= r + 2: break
                    a(flat[issued][0]); issued += 1; step += 1
                if issued == len(flat) and not released and r == 3:
                    a('s_waitcnt lgkmcnt(0)\ns_barrier'); done = issued; released = True
                    self.fstamp(6)
                if need > done:
                    n = min(14, issued - need)
                    a(f's_waitcnt lgkmcnt({n})'); done = issued - n
                a(txt)
                if released and pend and pend[0][0] <= i:
                    a(pend.pop(0)[1])
                for ti, t in enumerate(tset):
                    if lastmf[f'v_mfma_f32_32x32x16_bf16 {vr(D+16*ti,16)}'] == i:
                        pend += [(i + 5, f'ds_write_b128 v{self.PW+g}, {vr(D+16*ti+4*g,4)} offset:{t*1024}') for g in range(4)]
            assert released
            for _, x in pend: a(x)
        variant([7, 4, 3, 0]); a(f's_branch {lj}')
        a.label(l1); variant([6, 5, 2, 1])
        a.label(lj)
        a(f's_setprio {2 if OPT("epi2") else 3}\ns_waitcnt lgkmcnt(0)\ns_barrier')
        self.tstamp(2)
        E = self.PE
        for i in range(2):
            Y = [16 + 44*i, 24 + 44*i, 36 + 44*i, 48 + 44*i]
            for ph in range(4):
                o = 4 if ph else 0
                if ph: a(f'ds_read_b128 {vr(Y[ph],4)}, v{E+2} offset:{(ph-1)*8192 + i*2048}')
                a(f'ds_read_b128 {vr(Y[ph]+o,4)}, v{E} offset:{ph*8192 + i*2048}\nds_read_b128 {vr(Y[ph]+o+4,4)}, v{E+1} offset:{ph*8192 + i*2048}')
        for i in range(2):
            Y = [16 + 44*i, 24 + 44*i, 36 + 44*i, 48 + 44*i]
            for ph in range(1, 4):
                a(f's_waitcnt lgkmcnt({min(14, 11*(1-i) + 3*(3-ph))})')
                if i == 0:
                    a('s_mov_b32 exec_lo, s93\ns_mov_b32 exec_hi, 0')
                    for k in range(4 - ph, 4): a(f'v_mov_b32 v{Y[ph]+k}, 0')
                    a('s_mov_b64 exec, -1')
                for k in range(8): a(f'v_add_f32 v{Y[0]+k}, v{Y[0]+k}, v{Y[ph]+4+k-ph}')
            for k in range(4): a(f'v_cvt_pk_bf16_f32 v{104+4*i+k}, v{Y[0]+2*k}, v{Y[0]+2*k+1}')
            a(f'buffer_store_dwordx4 {vr(104+4*i,4)}, v15, {srd(R_WS)}, s92 offen offset:{1024*i} sc1')
        self.stamp(6); self.fstamp(7); self.tstamp(3)

    def s_assemble(self):
        a = self.a
        A = self.PA
        self.wait_y()
        self.tstamp(5)
        a(f'buffer_load_dwordx4 v[16:19], v{A}, {srd(R_WS)}, s37 offen sc1')
        a(f'buffer_load_dwordx4 v[20:23], v{A}, {srd(R_WS)}, s38 offen sc1')
        a(f's_waitcnt vmcnt(1)\nds_write_b128 v{A+1}, v[16:19]\ns_waitcnt vmcnt(0)\nds_write_b128 v{A+1}, v[20:23] offset:{32*160}')
        a('s_waitcnt lgkmcnt(0)\ns_barrier')
        self.tstamp(6)
        for o in range(2):
            for t in range(2): a(f'ds_read_b64_tr_b16 {vr(24+4*o+2*t,2)}, v{A+2} offset:{(32*o+4*t)*160}')
        a(f's_waitcnt lgkmcnt(2)\nds_write_b128 v{A+4}, v[24:27]\ns_waitcnt lgkmcnt(1)\nds_write_b128 v{A+4}, v[28:31] offset:64\ns_waitcnt lgkmcnt(0)')
        a(f'ds_read_b128 v[24:27], v{self.PUT+2} offset:4096\nds_read_b128 v[28:31], v{self.PUT+2} offset:{4096 + 8*144}')
        a(f's_waitcnt lgkmcnt(1)\nbuffer_store_dwordx4 v[24:27], v{A+3}, {srd(R_OUT)}, s39 offen sc1')
        a(f's_waitcnt lgkmcnt(0)\nbuffer_store_dwordx4 v[28:31], v{A+3}, {srd(R_OUT)}, s94 offen sc1')
        self.stamp(7); self.tstamp(7)

    def kernel_head(self, name):
        self.lend = f'L_end_{name}'
        self.a(f'.globl {name}\n.p2align 8\n.type {name},@function')
        self.a.label(name)
    def kernel_tail(self):
        self.a.label(self.lend)
        self.a('s_endpgm')

    SPIN = 1 << 20
    def nonce(self, n):
        self.a(f's_waitcnt vmcnt({n}) lgkmcnt(0)\nv_readfirstlane_b32 {sNONCE}, v54\ns_add_u32 {sNONCE}, {sNONCE}, 0x9e3779b9')
    def publish_y(self, WS_PY=WS_PY):
        a = self.a; l = self.L('pg')
        a(f's_lshl_b32 s8, s73, 14\ns_lshr_b32 s12, {sM}, 3\ns_lshl_b32 s13, s12, 7\ns_add_u32 s8, s8, s13\ns_add_u32 s8, s8, {WS_PY}\nv_lshl_add_u32 v2, v0, 9, s8')
        a(f's_and_b32 s12, {sM}, 7\ns_lshl_b32 s12, s12, 2\nv_mov_b32 v3, {sNONCE}')
        a('s_waitcnt vmcnt(0)\ns_barrier')
        if WS_PY != WS_PU: self.tstamp(4)
        else: self.ustamp(2)
        a(f's_cmp_lg_u32 {sWAVE}, 0\ns_cbranch_scc1 {l}')
        a(f's_mov_b32 exec_hi, 0\nbuffer_store_dword v3, v2, {srd(R_WS)}, s12 offen sc1\ns_mov_b64 exec, -1')
        a.label(l)
    def poll(self, vaddr, soff, width, mask_lo, mask_hi, sleep, vt=250):
        a = self.a; lp = self.L('poll'); ld = self.L('polled')
        ld_ = {1: 'dword', 2: 'dwordx2', 4: 'dwordx4'}[width]
        a(f's_mov_b32 exec_lo, {hex(mask_lo)}\ns_mov_b32 exec_hi, {hex(mask_hi)}\ns_mov_b32 s47, {self.SPIN}')
        a.label(lp)
        a(f'buffer_load_{ld_} {vr(vt,width)}, {vaddr}, {srd(R_WS)}, {soff} offen sc1\ns_waitcnt vmcnt(0)')
        a(f'v_xor_b32 v{vt}, {sNONCE}, v{vt}')
        for i in range(1, width): a(f'v_xor_b32 v{vt+i}, {sNONCE}, v{vt+i}\nv_or_b32 v{vt}, v{vt}, v{vt+i}')
        a(f'v_cmp_ne_u32 vcc, 0, v{vt}\ns_cbranch_vccz {ld}')
        if sleep: a(f's_sleep {sleep}')
        a(f's_sub_u32 s47, s47, 1\ns_cmp_lg_u32 s47, 0\ns_cbranch_scc1 {lp}')
        a.label(ld)
        a('s_mov_b64 exec, -1')
    def spoll(self, soff, n, sleep, first_sleep=0):
        a = self.a
        a(f's_mov_b32 s40, {sNONCE}\ns_mov_b32 s41, {sNONCE}\ns_mov_b32 s47, {self.SPIN}')
        for c in range(max(1, n // 16)):
            lp = self.L('sp'); lr = self.L('spr'); ld = self.L('spd')
            if c: a(f's_add_u32 {soff}, {soff}, 64')
            elif first_sleep: a(f's_branch {lr}')
            a.label(lp)
            if n == 8:
                a(f's_load_dwordx8 s[16:23], {sp(P_WS)}, {soff} glc\ns_waitcnt lgkmcnt(0)')
                for i in range(3): a(f's_cmp_eq_u64 s[{16+2*i}:{17+2*i}], s[40:41]\ns_cbranch_scc0 {lr}')
                a(f's_cmp_eq_u64 s[22:23], s[40:41]\ns_cbranch_scc1 {ld}')
            elif n == 1:
                a(f's_load_dword s16, {sp(P_WS)}, {soff} glc\ns_waitcnt lgkmcnt(0)\ns_cmp_eq_u32 s16, {sNONCE}\ns_cbranch_scc1 {ld}')
            else:
                a(f's_load_dwordx16 s[16:31], {sp(P_WS)}, {soff} glc\ns_waitcnt lgkmcnt(0)')
                for i in range(7): a(f's_cmp_eq_u64 s[{16+2*i}:{17+2*i}], s[40:41]\ns_cbranch_scc0 {lr}')
                a(f's_cmp_eq_u64 s[30:31], s[40:41]\ns_cbranch_scc1 {ld}')
            a.label(lr)
            if sleep: a(f's_sleep {sleep}')
            a(f's_sub_u32 s47, s47, 1\ns_cmp_gt_i32 s47, 0\ns_cbranch_scc1 {lp}')
            a.label(ld)
    def wait_kv(self, sleep=1):
        a = self.a; l = self.L('wkv')
        a(f's_cmp_lg_u32 {sWAVE}, 0\ns_cbranch_scc1 {l}')
        a(f's_and_b32 s8, s2, {NREP-1}\ns_lshl_b32 s8, s8, 10\ns_add_u32 s8, s8, {WS_FKV}\nv_lshlrev_b32 v2, 4, v0')
        self.poll('v2', 's8', 4, 0xffffffff, 0xffffffff, sleep)
        a.label(l)
        a('s_barrier')
    def wait_y(self, WS_PY=WS_PY, sleep=0):
        a = self.a
        a(f's_lshl_b32 s8, s73, 5\ns_add_u32 s8, s8, {sM}\ns_lshl_b32 s8, s8, 2\ns_add_u32 s8, s8, {sWAVE}\ns_lshl_b32 s8, s8, 7\ns_add_u32 s8, s8, {WS_PY}')
        self.spoll('s8', 8, sleep)
        a('s_barrier')
    def e_update(self):
        a = self.a; l = self.L('eu')
        a(f's_cmp_lg_u32 s2, 253\ns_cbranch_scc1 {l}')
        a(f'v_lshlrev_b32 v2, 8, v0\ns_lshl_b32 s8, {sWAVE}, 14\ns_add_u32 s8, s8, {WS_FA}')
        self.poll('v2', 's8', 1, 0xffffffff, 0xffffffff, 16)
        a(f'v_lshrrev_b32 v2, 3, v0\nv_lshlrev_b32 v2, 7, v2\nv_and_b32 v3, 7, v0\nv_lshl_add_u32 v2, v3, 2, v2\ns_lshl_b32 s8, {sWAVE}, 10\ns_add_u32 s8, s8, {WS_FKV}')
        self.poll('v2', 's8', 1, 0xffffffff, 0xffffffff, 16)
        a(f's_barrier\ns_cmp_lg_u32 {sWAVE}, 0\ns_cbranch_scc1 {l}')
        a(f'v_mov_b32 v2, {WS_E}\nv_mov_b32 v3, {sNONCE}\ns_mov_b64 exec, 1\nbuffer_store_dword v3, v2, {srd(R_WS)}, 0 offen sc1')
        a.label(l)
    def wo_prefetch(self):
        a = self.a
        if OPT('x5idle'): a(f's_mul_i32 s8, {sJ}, 12544')
        else: a(f's_lshl_b32 s8, {sXG}, 2\ns_and_b32 s12, {sJ}, 3\ns_add_u32 s8, s8, s12\ns_mul_i32 s8, s8, 12544')
        a(f's_lshl_b32 s12, {sWAVE}, 10\ns_add_u32 s8, s8, s12')
        for i in range(4):
            a(f'buffer_load_dwordx4 v[240:243], v15, {srd(R_B)}, s8 offen')
            if i < 3: a('s_add_u32 s8, s8, 4096')
    def build_fused(self):
        a = self.a
        kn = NAME + '_kernel'
        self.kernel_head(kn)
        if OPT('empty'): a('s_endpgm')
        self.prologue(512)
        la = self.L('roleA'); lidle = self.L('idle'); lnopf = self.L('nopf'); lnz = self.L('nonce')
        def emit_S():
            if OPT('qonly'): a('s_endpgm')
            a('s_setprio 3')
            self.s_ids(); self.s_kv_addr()
            self.after_kernarg('S')
            lq = self.L('pr'); lq2 = self.L('pr'); lq3 = self.L('pr')
            KF = False
            self.kv_srds()
            a(f's_cmp_ge_u32 {sXG}, 4\ns_cbranch_scc1 {lq}')
            self.s_kv_load()
            a.label(lq)
            lni = self.L('ni')
            a(f's_cmp_ge_u32 {sJ}, 28\ns_cbranch_scc1 {lni}')
            self.s_params_load()
            a.label(lni)
            self.code_prefetch(kn)
            self.s_kv_addr2()
            a(f's_cmp_ge_u32 {sJ}, 28\ns_cbranch_scc1 {lidle}')
            if not OPT('nolow'): a('s_setprio 0')
            a('@CUT S')
            self.mk_srd(R_B, P_U, X_BYTES); self.mk_srd(R_OUT, P_OUT, OUT_BYTES)
            def early_kv(n, part):
                l = self.L('ekv')
                a(f's_cmp_ge_u32 {sXG}, 4\ns_cbranch_scc1 {l}')
                self.s_kv_phase(n, part)
                a.label(l)
            OV = not OPT('noov')
            if OV:
                a('s_lshl_b32 s8, s9, 12\nv_add_u32 v1, s8, v15')
                self.s_addr_all()
                if OPT('kvsplit'):
                    l = self.L('k2')
                    a(f's_cmp_ge_u32 {sXG}, 4\ns_cbranch_scc1 {l}')
                    self.s_kv_load(2)
                    a.label(l)
                a('s_setprio 3')
                if OPT('kvnow'):
                    self.nonce(5)
                    early_kv(5, 3)
                else:
                    early_kv(5, 1)
                    self.nonce(5)
            else:
                self.nonce(4)
                early_kv(4, 3)
                a('s_setprio 2')
                self.code_prefetch(kn)
                a('s_lshl_b32 s8, s9, 12\nv_add_u32 v1, s8, v15')
                self.s_table_load(104)
                self.s_addr_all()
            def mid_r0():
                if OV:
                    if not OPT('kvnow'): early_kv(0, 2)
                    a('s_setprio 2')
                    if not (not OPT('cplate')): self.code_prefetch(kn)
                    self.s_table_load(104)
            def late_kv(hold):
                a(f's_cmp_lt_u32 {sXG}, 4\ns_cbranch_scc1 {lq3}')
                if hold and not OPT('kvnohold'):
                    a(f's_lshl_b32 s8, s2, 8\ns_add_u32 s8, s8, {WS_FA}')
                    self.spoll('s8', 1, 1)
                self.s_kv_load()
                self.s_kv_phase()
                a.label(lq3)
            self.late_kv = late_kv
            self.s_kgen(mid_r0)
            if OPT('kvlate'): late_kv(False)
            if OPT('xs1'): self.stamp_flush(8); a('s_endpgm')
            self.s_u_phase()
            if OPT('xs2'): self.stamp_flush(8); a('s_endpgm')
            a('s_setprio 0')
            if not OPT('notrig') and not OPT('noA'):
                lt = self.L('trig')
                a(f's_cmp_lg_u32 {sWAVE}, 0\ns_cbranch_scc1 {lt}\ns_lshl_b32 s8, s2, 8\ns_add_u32 s8, s8, {WS_FA + 4}')
                self.spoll('s8', 1, 2)
                a.label(lt)
            a('s_barrier')
            if OPT('conv1'): a('s_setprio 1')
            self.s_conv()
            self.publish_y()
            self.s_assemble()
            self.stamp_flush(8)
            a('s_endpgm')
            a.label(lidle)
            self.mk_srd(R_B, P_WO, WQ_BYTES)
            li = self.L('ih')
            self.nonce(1)
            a(f's_cmp_lt_u32 {sXG}, 4\ns_cbranch_scc1 {li}')
            if not OPT('noA'):
                a(f's_lshl_b32 s8, s2, 8\ns_add_u32 s8, s8, {WS_FA}')
                self.spoll('s8', 1, 1)
            self.s_kv_load()
            a.label(li)
            self.s_kv_phase(0, 3)
            if not OPT('noA'):
                a(f's_lshl_b32 s8, s2, 8\ns_add_u32 s8, s8, {WS_FA}')
                self.spoll('s8', 1, 1)
            self.wo_prefetch()
            if not OPT('noA'):
                self.e_update()
            else:
                a(f'v_mov_b32 v2, {WS_E}\nv_mov_b32 v3, {sNONCE}\ns_cmp_lg_u32 s2, 253\ns_cbranch_scc1 {self.lend}\n' + 's_sleep 127\n' * 6 + f'buffer_store_dword v3, v2, {srd(R_WS)}, 0 offen sc1')
            a('s_endpgm')
        def emit_A():
            a.label(la)
            if OPT('noA'): a('s_endpgm')
            a('s_setprio 3')
            self.a_qproj()
            if OPT('qonly'):
                self.stamp_flush(10); a('s_endpgm')
            a('s_setprio 1' if not OPT('ahigh') else 's_setprio 3')
            self.a_attn(); self.a_outproj(); self.stamp_flush(10)
            a('s_endpgm')
            self.a_fallback()
            a('s_endpgm')
        head = list(a.lines); a.lines.clear()
        emit_S(); LS = list(a.lines); a.lines.clear()
        emit_A(); LA = list(a.lines); a.lines.clear()
        cs = LS.index('@CUT S'); ca = LA.index('@CUT A')
        brA = ['s_cmp_ge_u32 s2, 256', f's_cbranch_scc1 {la}']
        if OPT('flat'):
            a.lines += head + brA + LS[:cs] + LS[cs+1:] + LA[:ca] + LA[ca+1:]
        else:
            a.lines += head + brA + LS[:cs] + ['s_branch L_bodyS'] + LA[:ca+0] + LA[ca+1:] + ['L_bodyS:'] + LS[cs+1:]
        self.kernel_tail()
        return [kn], [512]
    def code_prefetch(self, kn):
        a = self.a
        lp = self.L('pc')
        a('s_getpc_b64 s[12:13]'); a.label(lp)
        a(f's_add_u32 s12, s12, {kn}-{lp}\ns_addc_u32 s13, s13, -1')
        a(f's_lshl_b32 s8, {sJ}, 2\ns_add_u32 s8, s8, {sWAVE}\ns_mul_i32 s8, s8, 320\nv_mul_u32_u24 v9, 5, v0\nv_add_u32 v9, s8, v9\nv_and_b32 v9, -4, v9\nv_min_u32 v9, L_table-4-{kn}, v9')
        a('global_load_dword v55, v9, s[12:13]' if not OPT('nocpf') else f'global_load_dword v55, v15, {sp(P_LAR)}')
    def nonce_a(self):
        self.a(f's_add_u32 {sNONCE}, {sNONCE}, 0x9e3779b9')

def table():
    import numpy as np
    def rne_bf16(j):
        u = struct.unpack('<I', struct.pack('<f', float(j)))[0]
        u = (u + 0x7fff + ((u >> 16) & 1)) & 0xffff0000
        return int(struct.unpack('<f', struct.pack('<I', u))[0])
    hi = [0,1,2,3,4,5,6,7, 256,258,260,262, 512,516,768,772, 1024,1280,1536,1792, 2048]
    out = []
    for j in range(2048):
        p = rne_bf16(j)
        b = (p >> 3) & 31
        out.append(hi.index(p - 8 * b) * 144 + 4 * b)
    lin = []
    for mh in range(2):
        for i in range(4):
            for lane in range(64):
                lin += out[16*(64*mh+lane)+4*i:16*(64*mh+lane)+4*i+4]
    return lin

def main():
    mode = sys.argv[1]; outp = sys.argv[2]; stamps = len(sys.argv) > 3 and sys.argv[3] == 'stamps'
    g = Gen(mode, stamps)
    names, grids = g.build_multi() if mode == 'multi' else g.build_fused()
    body = g.a.finalize(verbose='-v' in sys.argv)
    head = open('cdna_kernels/' + NAME + '.s.ref').read().split('; Override launch geometry')[0]
    txt = head
    if mode == 'multi':
        for n, gr in zip(names, grids): txt += f'; @launch kernel={n} grid=({gr},1,1) block=(256,1,1) lds=81920\n'
    else:
        txt += f'; @launch grid=({grids[0]},1,1) block=(256,1,1) lds=81920\n'
    txt += '.amdgcn_target "amdgcn-amd-amdhsa--gfx950"\n.text\n' + body
    txt += '.p2align 6\n.type L_table,@object\nL_table:\n'
    t = table()
    for i in range(0, 2048, 16): txt += '.long ' + ','.join(str(x) for x in t[i:i+16]) + '\n'
    txt += '.section .rodata,"a"\n'
    for n in names:
        txt += f'''.p2align 6
.amdhsa_kernel {n}
  .amdhsa_next_free_vgpr 256
  .amdhsa_next_free_sgpr 102
  .amdhsa_accum_offset 256
  .amdhsa_group_segment_fixed_size 0
  .amdhsa_kernarg_size 120
  .amdhsa_user_sgpr_count 2
  .amdhsa_user_sgpr_kernarg_segment_ptr 1
  .amdhsa_system_sgpr_workgroup_id_x 1
.end_amdhsa_kernel
'''
    open(outp, 'w').write(txt)
    print('written', outp, 'nops inserted', g.a.n_nops, 'lines', len(g.a.lines))

if __name__ == '__main__':
    main()
```

```python
import sys, struct, math
from asmdsl import Asm

NAME = 'concat_heads__ssm_conv_s4d__grouped_kv_mqa__prompt'
X_BYTES = 2048 * 896; WQ_BYTES = 448 * 896; WK_BYTES = 448 * 56; OUT_BYTES = 2048 * 1792
WS_E = 0; WS_FKV = 0x80000; WS_FU = 0x9000; WS_FY = 0xA000; WS_FO = 0xB000
WS_FA = 0x50000; WS_PO = 0xC0000; WS_PY = 0xE0000; WS_PU = 0x6C0000; WS_KV = 0x10000; WS_O = 0x100000; WS_UT = 0x300000; WS_YT = 0x500000; WS_ST = 0x700000; WS_BYTES = 0x800000
NREP = 32
def f32(x): return '0x%08x' % struct.unpack('<I', struct.pack('<f', x))[0]
LOG2E = math.log2(math.e)
CSCALE = LOG2E / math.sqrt(28.0)

sWAVE = 's3'; sXG = 's4'; sJ = 's5'; sM = 's96'
P_U, P_LAR, P_AIM, P_CRE, P_CIM, P_LDT, P_DSK, P_X = [16 + 2 * i for i in range(8)]
P_WQ, P_WK, P_WV, P_WO = 32, 34, 36, 38
P_OUT, P_DBG, P_WS = 40, 42, 44
sNONCE = 's46'
R_X = 48; R_W = 52; R_WS = 56; R_OUT = 60; R_B = 64
def srd(r): return f's[{r}:{r+3}]'
def sp(r): return f's[{r}:{r+1}]'
def vr(a, n): return f'v[{a}:{a+n-1}]' if n > 1 else f'v{a}'

def OPT(x): return x in sys.argv
OSP = ' nt' if OPT('ont') else ' sc1' if OPT('osc1') else ' sc0 sc1' if OPT('osc01') else ''
class Gen:
    def __init__(self, mode, stamps=False):
        self.a = Asm(); self.mode = mode; self.stamps = stamps; self.uid = 0
    def L(self, base):
        self.uid += 1
        return f'L_{base}_{self.uid}'
    def mk_srd(self, r, p, nbytes):
        if r == R_OUT and OPT('nostore'): nbytes = 16
        if r == R_WS and OPT('wsbig'): nbytes = 0x10000000
        self.a(f's_mov_b32 s{r}, s{p}\ns_mov_b32 s{r+1}, s{p+1}\ns_mov_b32 s{r+2}, {hex(nbytes)}\ns_mov_b32 s{r+3}, 0x20000')
    def stamp(self, i):
        if self.stamps and not ((OPT('early') or OPT('sfine') or OPT('tail') or OPT('qst') or OPT('ast') or OPT('ust')) and i > 0):
            self.a(f's_memrealtime s[{76+2*i}:{77+2*i}]')
    def fstamp(self, i):
        if self.stamps and OPT('sfine'):
            self.a(f's_memrealtime s[{76+2*i}:{77+2*i}]')
    def tstamp(self, i):
        if self.stamps and OPT('tail'):
            self.a(f's_memrealtime s[{76+2*i}:{77+2*i}]')
    def qstamp(self, i):
        if self.stamps and OPT('qst'):
            self.a(f's_memrealtime s[{76+2*i}:{77+2*i}]')
    def astamp(self, i):
        if self.stamps and OPT('ast'):
            self.a(f'{"s_memtime" if OPT("cyc") else "s_memrealtime"} s[{76+2*i}:{77+2*i}]')
    def ustamp(self, i):
        if self.stamps and OPT('ust'):
            self.a(f's_memrealtime s[{76+2*i}:{77+2*i}]')
    def estamp(self, i):
        if self.stamps and OPT('early'):
            self.a(f's_memrealtime s[{76+2*i}:{77+2*i}]')
    def cstamp(self, i):
        if self.stamps:
            self.a(f's_memtime s[{76+2*i}:{77+2*i}]')
    def stamp_flush(self, n):
        if not self.stamps: return
        a = self.a
        a('s_waitcnt lgkmcnt(0)')
        if OPT('dbgst'):
            l = self.L('dbg')
            a(f's_cmp_lg_u32 {sWAVE}, 0\ns_cbranch_scc1 {l}')
            self.mk_srd(R_X, P_DBG, 256)
            a('v_mov_b32 v2, 0')
            isA = n == 10
            for i in range(8):
                if i == 0 and isA: a('s_not_b32 s6, s76\nv_writelane_b32 v2, s6, 0')
                else: a(f'v_writelane_b32 v2, s{76+2*i}, {i}')
            a(f'v_lshlrev_b32 v1, 2, v0\nv_add_u32 v1, {0 if isA else 32}, v1\ns_mov_b64 exec, 0xff')
            a(f'buffer_atomic_umax v2, v1, {srd(R_X)}, 0 offen\ns_mov_b64 exec, -1')
            a.label(l)
            return
        a(f's_lshl_b32 s6, s2, 2\ns_add_u32 s6, s6, {sWAVE}\ns_lshl_b32 s6, s6, 6\ns_add_u32 s6, s6, {WS_ST}')
        a('v_mov_b32 v1, s6')
        for i in range(n):
            a(f'v_mov_b32 v2, s{76+2*i}\nbuffer_store_dword v2, v1, {srd(R_WS)}, 0 offen offset:{4*i}')
        a('s_getreg_b32 s7, hwreg(HW_REG_XCC_ID)\nv_mov_b32 v2, s7')
        a(f'buffer_store_dword v2, v1, {srd(R_WS)}, 0 offen offset:60')

    def prologue(self, nwg):
        a = self.a
        if self.stamps:
            for i in range(1, 10): a(f's_mov_b64 s[{76+2*i}:{77+2*i}], 0')
        self.stamp(0)
        a(f's_cmp_ge_u32 s2, {nwg}\ns_cbranch_scc1 {self.lend}')
        a('s_load_dwordx16 s[16:31], s[0:1], 0\ns_load_dwordx8 s[32:39], s[0:1], 64')
        a('s_load_dwordx4 s[40:43], s[0:1], 96\ns_load_dwordx2 s[44:45], s[0:1], 112')
        a('v_lshrrev_b32 v1, 6, v0\nv_and_b32 v0, 63, v0')
        a(f's_and_b32 {sXG}, s2, 7\ns_bfe_u32 {sJ}, s2, 0x50003')
        a(f'v_readfirstlane_b32 {sWAVE}, v1')

    def after_kernarg(self, role):
        a = self.a
        self.estamp(1)
        a('s_waitcnt lgkmcnt(0)')
        self.estamp(2)
        if OPT('stlb') and role == 'S' or OPT('atlb') and role == 'A':
            for p in (P_X, P_WQ, P_WK, P_WV, P_WS, P_LAR, P_AIM, P_CRE, P_CIM, P_U, P_WO, P_OUT):
                a(f's_load_dword s47, {sp(p)}, 0')
        self.mk_srd(R_WS, P_WS, WS_BYTES)
        a(f'buffer_load_dword v54, off, {srd(R_WS)}, 0 offset:{WS_E} sc1')

    def row7_addr(self, v0, v1, tmp, rowstride):
        a = self.a
        for v, add in ((v0, 0), (v1, 64)):
            if add: a(f'v_add_u32 {tmp}, {add}, v0')
            else: a(f'v_mov_b32 {tmp}, v0')
            a(f'v_mul_u32_u24 {v}, 147, {tmp}\nv_lshrrev_b32 {v}, 10, {v}')
            a(f'v_mul_u32_u24 {v}, {rowstride - 112}, {v}')
            a(f'v_lshl_add_u32 {v}, {tmp}, 4, {v}')

    def w128_src(self):
        a = self.a
        a(f's_lshl_b32 s8, {sWAVE}, 4\ns_mul_i32 s9, s8, 896\ns_mul_i32 s11, s7, 112\ns_add_u32 s9, s9, s11')
        a('v_lshrrev_b32 v2, 3, v0\nv_mul_u32_u24 v2, 896, v2\nv_bfe_u32 v3, v0, 4, 1\nv_lshlrev_b32 v3, 2, v3\nv_and_b32 v4, 7, v0\nv_xor_b32 v3, v3, v4')
        a('v_lshl_add_u32 v114, v3, 4, v2\nv_add_u32 v114, s9, v114\nv_add_u32 v115, 7168, v114')
    def w128_frag(self, dst, rowmul_h, sbyte):
        a = self.a
        a(f'v_bfe_u32 v2, v0, 4, 1\nv_lshlrev_b32 v2, 5, v2\nv_and_b32 v3, 3, v0\nv_lshl_add_u32 v2, v3, 3, v2\nv_add_u32 v2, {sbyte}, v2')
        a(f'v_bfe_u32 v3, v0, 3, 1\nv_lshlrev_b32 v3, 6, v3\nv_xor_b32 v2, v2, v3')
        a(f'v_lshrrev_b32 v3, 5, v0\nv_mul_u32_u24 v3, {rowmul_h}, v3\nv_bfe_u32 v4, v0, 2, 2\nv_add_u32 v3, v3, v4\nv_lshl_add_u32 {dst}, v3, 7, v2')
    def a_qproj_addr(self):
        a = self.a
        QX = 32768
        self.mk_srd(R_B, P_WO, WQ_BYTES); self.mk_srd(R_OUT, P_OUT, OUT_BYTES)
        a(f's_and_b32 s8, {sWAVE}, 1\ns_lshl_b32 s8, s8, 5')
        a('v_and_b32 v2, 31, v0\nv_add_u32 v2, s8, v2\nv_bfe_u32 v3, v2, 1, 3\nv_lshrrev_b32 v4, 5, v0\nv_xor_b32 v3, v3, v4\nv_lshlrev_b32 v2, 7, v2')
        for ks in range(4):
            a(f'v_xor_b32 v9, {2*ks}, v3\nv_lshl_add_u32 v{116+ks}, v9, 4, v2\nv_add_u32 v{121+ks}, 0x10000, v{116+ks}')
        a(f's_lshr_b32 s8, {sWAVE}, 1\ns_mul_i32 s8, s8, 56')
        self.w128_frag('v120', 8, 's8')
        a('v_add_u32 v125, 0x10000, v120\nv_lshlrev_b32 v15, 4, v0')
        a(f's_lshl_b32 s8, {sWAVE}, 11\ns_add_u32 s8, s8, {QX}\nv_add_u32 v126, s8, v15')
        for js in range(4):
            a(f's_add_u32 s8, {sWAVE}, {1+js}\ns_and_b32 s8, s8, 3\ns_lshl_b32 s9, s8, 11\ns_add_u32 s9, s9, {QX}\nv_add_u32 v{192+js}, s9, v15')
            if js < 3:
                a(f's_mul_i32 s9, s8, 12288\nv_add_u32 v{196+js}, s9, v15')
        for r in range(64, 112): a(f'v_mov_b32 v{r}, 0')
    def a_qproj(self):
        a = self.a
        QX = 32768
        REG = [0, 16384, 32768, 49152, 65536, 0, 16384]
        sQB = 's6'; sHP = 's7'
        a(f's_lshr_b32 s8, {sJ}, 3\ns_lshl_b32 {sQB}, {sXG}, 2\ns_add_u32 {sQB}, {sQB}, s8\ns_and_b32 {sHP}, {sJ}, 7')
        a(f's_lshl_b32 s8, {sWAVE}, 4\ns_lshl_b32 s9, {sQB}, 6\ns_add_u32 s9, s9, s8\ns_mul_i32 s9, s9, 896')
        a('v_lshrrev_b32 v2, 3, v0\nv_lshrrev_b32 v3, 4, v0\nv_and_b32 v4, 7, v0')
        a('v_xor_b32 v4, v4, v3\nv_mul_u32_u24 v2, 896, v2')
        a('v_lshl_add_u32 v112, v4, 4, v2\nv_add_u32 v112, s9, v112')
        a('v_xor_b32 v4, 4, v4\nv_lshl_add_u32 v113, v4, 4, v2\nv_add_u32 v113, s9, v113\nv_add_u32 v113, 7168, v113')
        a(f's_lshl_b32 s10, {sWAVE}, 11')
        self.w128_src()
        a(f's_lshr_b32 s8, {sJ}, 3\ns_lshl_b32 s8, s8, 1\ns_add_u32 s8, s8, {sHP}\ns_cmp_ge_u32 s8, 7\ns_cselect_b32 s9, 7, 0\ns_sub_u32 s8, s8, s9')
        a('s_cmp_ge_u32 s8, 7\ns_cselect_b32 s9, 7, 0\ns_sub_u32 s8, s8, s9')
        if OPT('rot2'): a(f's_lshr_b32 s8, {sJ}, 3\ns_add_u32 s8, s8, {sHP}\ns_and_b32 s8, s8, 1\ns_lshl_b32 s8, s8, 2')
        if OPT('rot2b'): a(f's_lshr_b32 s8, {sJ}, 3\ns_add_u32 s8, s8, {sHP}\ns_and_b32 s8, s8, 1\ns_mul_i32 s8, s8, 3')
        if OPT('rot1'): a('s_mov_b32 s8, 0')
        if OPT('rot4'): a(f's_lshr_b32 s8, {sJ}, 3\ns_add_u32 s8, s8, {sHP}\ns_and_b32 s8, s8, 3\ns_lshl_b32 s8, s8, 1')
        a('s_lshl_b32 s14, s8, 7\ns_mul_i32 s15, s8, 57344')
        self.after_kernarg('A')
        self.mk_srd(R_X, P_X, X_BYTES); self.mk_srd(R_W, P_WQ, WQ_BYTES)
        def loadx(i):
            a(f's_add_u32 m0, s10, {REG[i]}\ns_nop 0\nbuffer_load_dwordx4 v112, {srd(R_X)}, s14 offen lds')
            a(f's_add_u32 m0, s10, {REG[i] + 1024}\ns_nop 0\nbuffer_load_dwordx4 v113, {srd(R_X)}, s14 offen lds')
            if i < 6: a('s_add_u32 s14, s14, 128\ns_cmp_eq_u32 s14, 896\ns_cselect_b32 s14, 0, s14')
        def loadw(i):
            a(f's_add_u32 m0, s10, {REG[i] + 8192}\ns_nop 0\nbuffer_load_dwordx4 v114, {srd(R_W)}, s15 offen lds')
            a(f's_add_u32 m0, s10, {REG[i] + 8192 + 1024}\ns_nop 0\nbuffer_load_dwordx4 v115, {srd(R_W)}, s15 offen lds')
            if i < 6: a(f's_add_u32 s15, s15, 57344\ns_cmp_eq_u32 s15, {7*57344}\ns_cselect_b32 s15, 0, s15')
        def load(i): loadw(i); loadx(i)
        NF = 3 if OPT('q3') else 5 if OPT('q5') else 4
        a('s_setprio 1')
        if OPT('wfirst'): loadw(0); loadw(1); loadx(0); loadx(1)
        else: loadx(0); loadw(0); loadx(1); loadw(1)
        a('@CUT A')
        self.a_qproj_addr(); self.a_attn_setup(); self.a_tail_addr()
        for i in range(2, NF): load(i)
        if not OPT('shi'): a('s_setprio 3')
        self.estamp(3)
        FX = (144, 176); FW = (160, 232); ACC = 48
        issued = NF
        def rd(i):
            hi = REG[i] >= 65536
            off = REG[i] - (65536 if hi else 0)
            for ks in range(4):
                a(f'ds_read_b128 {vr(FX[i&1]+4*ks,4)}, v{(121 if hi else 116)+ks} offset:{off}')
                for t in range(2):
                    a(f'ds_read_b64_tr_b16 {vr(FW[i&1]+4*ks+2*t,2)}, v{125 if hi else 120} offset:{off + 8192 + (16*ks+4*t)*128}')
        def mm(i, waits):
            for ks in range(4):
                c = '0' if (i == 0 and ks == 0) else vr(ACC, 16)
                if waits[ks] is not None: a(f's_waitcnt lgkmcnt({waits[ks]})')
                a(f'v_mfma_f32_32x32x16_bf16 {vr(ACC,16)}, {vr(FW[i&1]+4*ks,4)}, {vr(FX[i&1]+4*ks,4)}, {c}')
        extra = 0; FLS = 4 if OPT('fl4') else 5
        for i in range(7):
            a(f's_waitcnt vmcnt({4*(issued - 1 - i) - (2 if i == 0 and OPT("wfirst") else 0) + extra}) lgkmcnt(0)\ns_barrier')
            if i == 0: self.stamp(1); self.estamp(4)
            if i == 3: self.estamp(5)
            if i == 6: self.estamp(6)
            self.qstamp(i + 1)
            if (i == 6 and OPT('flvec')) or (i == 5 and OPT('flvec5')) or (i == 6 and OPT('flvec6')):
                a(f's_mov_b64 exec, 0xffff\nbuffer_load_dword v250, v251, {srd(R_WS)}, s36 offen sc1\ns_mov_b64 exec, -1'); extra += 1
            rd(i)
            if i and i < 6: mm(i - 1, [None] * 4)
            while issued < 7 and issued <= i + NF and (issued < 5 or issued - 5 < i): load(issued); issued += 1
            if i == 0:
                a(f'v_readfirstlane_b32 {sNONCE}, v54\ns_add_u32 {sNONCE}, {sNONCE}, 0x9e3779b9\ns_mov_b32 s40, {sNONCE}\ns_mov_b32 s41, {sNONCE}\nv_mov_b32 v199, {sNONCE}')
            if i == (5 if OPT('fa5') else 3):
                assert issued == 7
                a(f'buffer_store_dword v199, v248, {srd(R_WS)}, s69 offen sc1'); extra += 1
            if i == 5:
                mm(5, [9, 6, 3, 0])
                if OPT('flpre'):
                    a('s_mov_b32 s14, 0')
                    for x in self.fl_load(): a(x)
        mm(6, [9, 6, 3, 0])
        V2 = OPT('flvec5') or OPT('flvec6')
        if V2:
            lno = self.L('nokv')
            a(f's_waitcnt vmcnt(0)\ns_mov_b64 exec, 0xffff\nv_cmp_ne_u32 vcc, v250, v199\ns_mov_b64 exec, -1\ns_cbranch_vccnz {lno}')
            self.kv_first([0])
            a('s_mov_b32 s75, 1')
            a.label(lno)
        if OPT('flpre'):
            lno = self.L('nokv')
            for x in self.fl_test()[1:]: a(x)
            a(f's_cbranch_scc1 {lno}')
            self.kv_first([0])
            a('s_mov_b32 s75, 1')
            a.label(lno)
        for r in range(8): a(f'v_mov_b32 v{184+r}, 0')
        for r in range(8): a(f'v_cvt_pk_bf16_f32 v{224+r}, v{ACC+2*r}, v{ACC+2*r+1}')
        a('s_mov_b32 exec_lo, 0\nv_mov_b32 v230, 0\nv_mov_b32 v231, 0\ns_mov_b32 exec_lo, -1')
        a('ds_write_b128 v126, v[224:227]\nds_write_b128 v126, v[228:231] offset:1024')
        for r in range(48, 64): a(f'v_mov_b32 v{r}, 0')
        a('s_waitcnt lgkmcnt(0)')
        if not OPT('flpre') and not OPT('flvec') and not V2:
            a('s_mov_b32 s14, 0')
            for x in self.fl_load(): a(x)
        a('s_barrier')
        for js in range(4):
            a(f'ds_read_b128 {vr(16+8*js,4)}, v{192+js}\nds_read_b128 {vr(20+8*js,4)}, v{192+js} offset:1024')
        lno2 = self.L('nokv')
        if OPT('flvec'):
            a(f's_waitcnt vmcnt(0)\ns_mov_b64 exec, 0xffff\nv_cmp_ne_u32 vcc, v250, v199\ns_mov_b64 exec, -1\ns_cbranch_vccnz {lno2}\ns_mov_b32 s75, 1')
            self.kv_first([0])
        elif not OPT('flpre') and not V2:
            for x in self.fl_test(): a(x)
            a(f's_cbranch_scc1 {lno2}\ns_mov_b32 s75, 1')
            self.kv_first([0])
        else: a(f's_cmp_eq_u32 s75, 0\ns_cbranch_scc1 {lno2}')
        self.kv_first([1, 2, 3])
        a.label(lno2)
        self.stamp(2); self.estamp(7)

    KB_ = (112, 128, 200, 216); CK = ['s32', 's33', 's34', 's35']
    def ldK(self, buf): return ['s_nop 0', 's_nop 0'] if OPT('nold') and getattr(self, 'inloop', 0) else [f'buffer_load_dwordx4 {vr(self.KB_[buf] + 4*f, 4)}, v15, {srd(R_WS)}, s68 offen offset:{1024*f} sc1' for f in range(2)]
    def ldV(self, buf): return ['s_nop 0', 's_nop 0'] if OPT('nold') and getattr(self, 'inloop', 0) else [f'buffer_load_dwordx4 {vr(self.KB_[buf] + 8 + 4*f, 4)}, v15, {srd(R_WS)}, s68 offen offset:{2048+1024*f} sc1' for f in range(2)]
    def fl_load(self, g='s14'):
        return [f's_lshr_b32 s8, {g}, 6', 's_add_u32 s8, s8, s36', f's_load_dwordx8 s[16:23], {sp(P_WS)}, s8 glc', 's_add_u32 s9, s8, 512', f's_load_dwordx8 s[24:31], {sp(P_WS)}, s9 glc']
    def fl_test(self):
        out = ['s_waitcnt lgkmcnt(0)', 's_xor_b64 s[16:17], s[16:17], s[40:41]']
        for i in range(1, 8): out += [f's_xor_b64 s[{16+2*i}:{17+2*i}], s[{16+2*i}:{17+2*i}], s[40:41]', f's_or_b64 s[16:17], s[16:17], s[{16+2*i}:{17+2*i}]']
        return out
    def fl_check(self):
        lr = self.L('kvspin'); lb = self.L('kvback')
        self.spins.append((lr, lb))
        return self.fl_test() + [f's_cbranch_scc1 {lr}', lb + ':']
    def kv_first(self, bs=range(4)):
        for b in bs:
            self.a(f's_mov_b32 s68, {self.CK[b]}')
            for x in self.ldK(b) + (self.ldV(b) if b < 3 else []): self.a(x)
    def a_attn_setup(self):
        a = self.a
        self.spins = []
        a(f's_lshl_b32 s8, {sWAVE}, 13\ns_add_u32 s8, s8, {WS_KV}\ns_mov_b32 s37, s8')
        for k in range(4):
            a(f's_add_u32 s9, {sJ}, {k}\ns_and_b32 s12, s9, 1\ns_lshl_b32 s12, s12, 12\ns_and_b32 s9, s9, 2\ns_lshl_b32 s9, s9, 14\ns_add_u32 s9, s9, s12\ns_add_u32 s{32+k}, s8, s9')
        a(f's_and_b32 s36, s2, {NREP-1}\ns_lshl_b32 s36, s36, 12\ns_lshl_b32 s8, {sWAVE}, 7\ns_add_u32 s36, s36, s8\ns_add_u32 s36, s36, {WS_FKV}')
        a('s_mov_b32 s38, 0x07060302')
        a(f's_and_b32 s69, s2, 255\ns_lshl_b32 s69, s69, 8\ns_add_u32 s69, s69, {WS_FA}\nv_mov_b32 v248, 0')
        if OPT('flvec') or OPT('flvec5') or OPT('flvec6'): a('v_and_b32 v251, 7, v0\nv_lshlrev_b32 v251, 2, v251\nv_bfe_u32 v250, v0, 3, 1\nv_lshl_add_u32 v251, v250, 9, v251')
        a(f's_lshl_b32 s71, {sWAVE}, 10\ns_mul_i32 s8, {sWAVE}, 7168\ns_lshl_b32 s9, s7, 4\ns_sub_u32 s8, s9, s8\nv_add_u32 v249, s8, v114')
        a(f's_cmp_eq_u32 s7, 7\ns_cselect_b32 s{R_B+2}, 0, s{R_B+2}')
        a('s_mov_b32 s72, 0\ns_mov_b32 s73, 0\ns_mov_b32 s75, 0')
    def a_attn(self):
        a = self.a
        Q = 16; O = 48; SS = (144, 160); PP = (176, 184)
        KB_ = (112, 128, 200, 216)
        K = lambda buf, f: vr(KB_[buf] + 4*f, 4)
        Vv = lambda buf, f: vr(KB_[buf] + 8 + 4*f, 4)
        sG = 's14'; sF = 's36'; sOFF = 's68'; sCNT = 's70'; sSEQ = 's74'; CK = self.CK
        fl_load = self.fl_load; fl_check = self.fl_check; ldK = self.ldK; ldV = self.ldV
        for r in range(8): a(f'v_mov_b32 v{KB_[3]+8+r}, 0')
        lgo = self.L('go')
        a(f's_cmp_lg_u32 s75, 0\ns_cbranch_scc1 {lgo}')
        self.lagain = self.L('again')
        a.label(self.lagain)
        a(f's_mov_b32 {sG}, 0')
        for x in fl_load() + fl_check(): a(x)
        self.kv_first()
        a.label(lgo)
        a(f's_mov_b32 {sSEQ}, 0x462')
        self.stamp(3); self.cstamp(8); self.astamp(1)
        def nxtG(): return [f's_and_b32 s39, {sSEQ}, 15', 's_lshl_b32 s39, s39, 15', f's_lshr_b32 {sSEQ}, {sSEQ}, 4']
        def mA(u, buf, f):
            s = SS[u & 1]; c = '0' if f == 0 else vr(s, 16)
            return f'v_mfma_f32_32x32x16_bf16 {vr(s,16)}, {K(buf,f)}, {vr(Q + 8*(u&3) + 4*f, 4)}, {c}'
        def mC(u, buf, f):
            o = vr(O + 16*(u & 3), 16)
            return f'v_mfma_f32_32x32x16_bf16 {o}, {Vv(buf,f)}, {vr(PP[u&1] + 4*f, 4)}, {o}'
        a('s_waitcnt lgkmcnt(0)')
        if OPT('tlb'):
            a(f's_mov_b64 exec, 1\nbuffer_load_dword v252, v248, {srd(R_WS)}, s42 offen\nbuffer_load_dword v253, v248, {srd(R_OUT)}, s98 offen\ns_mov_b64 exec, -1')
        for x in nxtG() + fl_load('s39'): a(x)
        a(f's_waitcnt vmcnt({14 if OPT("tlb") else 12})')
        self.astamp(2)
        a(mA(0, 0, 0)); a(mA(0, 0, 1))
        a(f's_mov_b32 {sCNT}, 3')
        def unit(u, mf, extra):
            s = SS[u & 1]; p = PP[u & 1]
            e = lambda i: f'v_exp_f32 v{s+i}, v{s+i}'
            c = (lambda i: f'v_cvt_pk_bf16_f32 v{p+i}, v{s+2*i}, v{s+2*i+1}') if OPT('cvt') else (lambda i: f'v_perm_b32 v{p+i}, v{s+2*i+1}, v{s+2*i}, s38')
            Lq = [e(0), e(1), e(2), e(3), c(0), e(4), e(5), c(1), e(6), e(7), c(2), e(8), e(9), c(3), e(10), e(11), c(4), e(12), e(13), c(5), e(14), e(15), c(6), c(7)]
            sp_ = (4, 4, 4, 12) if OPT('hole') else (6, 6, 6, 6)
            seq = [Lq[sum(sp_[:i]):sum(sp_[:i+1])] for i in range(4)]
            for i in range(4):
                for x in extra.get(('pre', i), []): a(x)
                if mf[i]: a(mf[i])
                for x in extra.get(i, []): a(x)
                for x in seq[i]: a(x)
        lloop = self.L('attn'); self.inloop = 1
        TRIG = [int(x[4:]) for x in sys.argv if x.startswith('trig') and x[4:].isdigit()]
        TRL = [int(x[5:]) for x in sys.argv if x.startswith('trigL')]
        if not TRIG and not TRL: TRIG = [2]
        TRI = 2 if OPT('trigIt2') else 1
        TRIG = TRIG[0] if TRIG else 99
        WOR = list(range(8, 15))
        WOU = list(range(2, 10))
        W = lambda n, u, slot: n + (1 if (u, slot) > (TRIG, 0) else 0) + sum(1 for x in WOU if (u, slot) > (x, 1)) + sum(1 for x in WOR if (u, slot) > (x, 3))
        def body(tail):
            for u in range(16):
                t = u >> 2; b = u & 3
                nu = u + 1; nbuf = (nu >> 2) & 3
                pu = u - 1; pbuf = ((pu >> 2) & 3)
                mf = [mA(nu, nbuf, 0), mA(nu, nbuf, 1), mC(pu, pbuf, 0), mC(pu, pbuf, 1)]
                ex = {}
                if tail and u == 15: mf = [mC(pu, pbuf, 0), mC(pu, pbuf, 1), None, None]
                if b == 3:
                    if not tail:
                        ex[('pre', 0)] = ['s_waitcnt vmcnt(10)']
                        ex[0] = [f's_add_u32 {sOFF}, {sG}, {CK[t]}']
                        ex[2] = [ldK(t)[0]]; ex[3] = [ldK(t)[1]]
                    elif t < 3:
                        ex[('pre', 0)] = [f's_waitcnt vmcnt({W(10 - 4*t, u, 0)})']
                if b == 1:
                    if not tail or t == 0:
                        assert TRIG >= 2
                        ex[('pre', 2)] = ['s_waitcnt vmcnt(10)']
                        ex[2] = [ldV((t - 1) & 3)[0]]; ex[3] = [ldV((t - 1) & 3)[1]]
                    else:
                        ex[('pre', 2)] = [f's_waitcnt vmcnt({W(12 - 4*t, u, 2)})']
                if tail and u == TRIG:
                    ex.setdefault(0, []).append(f'buffer_store_dword v199, v248, {srd(R_WS)}, s69 offen offset:4 sc1')
                if not tail and not OPT('nospread'):
                    if u == 0: self.c_ = fl_check()
                    g_ = nxtG() + fl_load('s39')
                    plan = {(12, 0): g_[0:1], (12, 1): g_[1:2], (12, 2): g_[2:3], (12, 3): g_[3:4], (13, 0): g_[4:5], (13, 1): g_[5:6], (14, 1): g_[6:7], (14, 2): g_[7:8]}
                    c_ = self.c_
                    slots = [(0, 1), (0, 2), (0, 3), (1, 0), (1, 1), (2, 0), (2, 1), (2, 2), (2, 3)]
                    per = [2, 2, 2, 2, 2, 2, 2, 2, 3]; k = 0
                    for sl, n in zip(slots, per): plan[sl] = c_[k:k+n]; k += n
                    plan[(0, 0)] = [f's_mov_b32 {sG}, s39']
                    for (uu, sl), xs in plan.items():
                        if uu == u: ex.setdefault(sl, []).extend(xs)
                if not tail and OPT('nospread'):
                    if u == 0:
                        ex[0] = [f's_mov_b32 {sG}, s39']
                    if u == 14:
                        g_ = nxtG() + fl_load('s39')
                        ex.setdefault(1, []).extend(g_[:2]); ex.setdefault(2, []).extend(g_[2:4]); ex.setdefault(3, []).extend(g_[4:6])
                        self.g_rest = g_[6:]
                    if u == 15:
                        ex.setdefault(1, []).extend(self.g_rest)
                    if u == 1:
                        c0 = ['s_waitcnt lgkmcnt(0)', 's_xor_b64 s[16:17], s[16:17], s[40:41]']
                        for i in range(1, 4): c0 += [f's_xor_b64 s[{16+2*i}:{17+2*i}], s[{16+2*i}:{17+2*i}], s[40:41]', f's_or_b64 s[16:17], s[16:17], s[{16+2*i}:{17+2*i}]']
                        ex.setdefault(0, []).extend(c0[:2]); ex.setdefault(1, []).extend(c0[2:4]); ex.setdefault(2, []).extend(c0[4:6]); ex.setdefault(3, []).extend(c0[6:])
                    if u == 2:
                        c_ = fl_check(); self.c_ = c_
                        ex[0] = c_[8:10]; ex[1] = c_[10:12]; ex[2] = c_[12:14]; ex[3] = c_[14:]
                if not tail and TRL and u == TRL[0]:
                    lsk = self.L('tsk')
                    assert u not in (1, 2, 14, 15)
                    ex.setdefault(1, []).extend([f's_cmp_lg_u32 {sCNT}, {TRI}', f's_cbranch_scc1 {lsk}', f'buffer_store_dword v199, v248, {srd(R_WS)}, s69 offen offset:4 sc1', lsk + ':'])
                if tail and u in WOU:
                    i = WOU.index(u)
                    ex.setdefault(0, []).append(f's_add_u32 m0, s71, {self.WOB + 1024*(25+4*i)}')
                    ex.setdefault(('pre', 1), []).append(f's_mov_b32 s13, {(25+4*i)*7168}')
                    ex.setdefault(1, []).append(f'buffer_load_dwordx4 v249, {srd(R_B)}, s13 offen lds')
                if tail and u in WOR:
                    i = WOR.index(u)
                    ex.setdefault(2, []).append(f's_mov_b32 s11, {4*i*7168}')
                    ex.setdefault(3, []).append(f'buffer_load_dwordx4 {vr(112+4*i,4)}, v249, {srd(R_B)}, s11 offen')
                if tail and u == 14:
                    for g in range(4): ex.setdefault((1,2,2,3)[g], []).append(f'ds_write_b128 v196, {vr(O+4*g,4)} offset:{g*1024}')
                if tail and u == 15:
                    for g in range(4): ex.setdefault((1,2,2,3)[g], []).append(f'ds_write_b128 v197, {vr(O+16+4*g,4)} offset:{4096+g*1024}')
                if not tail and u == 14:
                    ex.setdefault(0, []).append(f's_sub_u32 {sCNT}, {sCNT}, 1')
                unit(u, mf, ex)
        a('s_nop 10\n.p2align 4')
        a.label(lloop)
        body(False)
        if self.stamps and OPT('ast'):
            for k in range(3):
                l = self.L('ast')
                a(f's_cmp_lg_u32 {sCNT}, {2-k}\ns_cbranch_scc1 {l}'); self.astamp(3 + k); a.label(l)
        a(f's_cmp_lg_u32 {sCNT}, 0\ns_cbranch_scc1 {lloop}')
        body(True)
        self.astamp(6)
        a('s_setprio 3')
        a(mC(15, 3, 0)); a(mC(15, 3, 1))
        for g in range(4): a(f'ds_write_b128 v198, {vr(O+32+4*g,4)} offset:{8192+g*1024}')
        a('s_waitcnt lgkmcnt(0)\ns_barrier')
        self.stamp(4); self.cstamp(9); self.tstamp(1); self.astamp(7)
        RD = 144
        for i in range(12): a(f'ds_read_b128 {vr(RD+4*i,4)}, v2 offset:{i*1024}')
        F = O + 48
        for s in range(3):
            a(f's_waitcnt lgkmcnt({8-4*s})')
            PK = OPT('pkred')
            order = list(range(0, 16, 2 if PK else 1))
            if s == 2: order = [12] + [r for r in order if r != 12]
            for n, r in enumerate(order):
                a(f'v_pk_add_f32 {vr(F+r,2)}, {vr(F+r,2)}, {vr(RD+16*s+r,2)}' if PK else f'v_add_f32 v{F+r}, v{F+r}, v{RD+16*s+r}')
                if s == 2 and n == 1: a(f'v_mov_b32 v208, v{F+12}\nv_mov_b32 v209, v{F+12}')
                if s == 2 and n == 4: a('v_permlane32_swap_b32 v208, v209')
                if s == 2 and n == (6 if PK else 7): a('v_rcp_f32 v208, v209')
        if not OPT('olate'): a(f's_load_dwordx8 s[16:23], {sp(P_WS)}, s100 glc')
        if OPT('pkred'):
            for r in range(0, 16, 2): a(f'v_pk_mul_f32 {vr(F+r,2)}, {vr(F+r,2)}, v[208:209] op_sel_hi:[1,0]')
        else:
            for r in range(16): a(f'v_mul_f32 v{F+r}, v{F+r}, v208')
        for r in range(8): a(f'v_cvt_pk_bf16_f32 v{200+r}, v{F+2*r}, v{F+2*r+1}')
        a('s_mov_b32 exec_lo, 0\nv_mov_b32 v206, 0\nv_mov_b32 v207, 0\ns_mov_b32 exec_lo, -1')
        self.lnopub = self.L('nopub'); self.lskip = self.L('skip')
        a(f's_mov_b32 s12, 0\ns_cmp_lg_u32 s73, 0\ns_cbranch_scc1 {self.lskip}')
        a(f'buffer_store_dwordx4 v[200:203], v15, {srd(R_WS)}, s42 offen sc1')
        a(f'buffer_store_dwordx4 v[204:207], v15, {srd(R_WS)}, s42 offen offset:1024 sc1')
        a('s_mov_b32 s9, 0x3f803f80\nv_mov_b32 v210, 0')
        for r in range(8): a(f'v_dot2_f32_bf16 v210, v{200+r}, s9, v210')
        a(f's_mov_b32 s12, {f32(2.0**64)}\nv_mov_b32 v211, 0x207\nv_cmp_nle_f32 vcc, {f32(2.0**-64)}, v209\nv_cmp_nge_f32 s[10:11], s12, v209')
        a('s_or_b64 s[10:11], s[10:11], vcc\nv_cmp_class_f32 vcc, v210, v211\ns_or_b64 s[10:11], s[10:11], vcc')
        a('s_cmp_lg_u64 s[10:11], 0\ns_cselect_b32 s12, 1, 0\ns_andn2_b32 s12, s12, s72')
        a(f's_cbranch_scc1 {self.lskip}')
        self.tstamp(2)
        a('s_waitcnt vmcnt(0)')
        self.tstamp(3)
        a(f's_mov_b64 exec, 0x7f\nbuffer_store_dword v199, v7, {srd(R_WS)}, s43 offen sc1\ns_mov_b64 exec, -1\ns_mov_b32 s73, 1')
        a.label(self.lnopub)
        self.stamp(5)
        self.lfb = self.L('fallback')
        a('v_mov_b32 v210, s12\nds_write_b32 v4, v210 offset:3588')
        a('s_waitcnt lgkmcnt(0)\ns_barrier')
        if OPT('olate'): a(f's_load_dwordx8 s[16:23], {sp(P_WS)}, s100 glc')
        for k in range(4): a(f'ds_read_b32 v{212+k}, v248 offset:{3588+16*k}')
        a(f's_waitcnt lgkmcnt(0)\nv_or3_b32 v212, v212, v213, v214\nv_or_b32 v212, v212, v215\nv_cmp_ne_u32 vcc, 0, v212\ns_cbranch_vccnz {self.lfb}')

    def a_tail_addr(self):
        a = self.a
        XCH = 0
        a(f's_lshr_b32 s12, {sWAVE}, 1\ns_and_b32 s13, {sWAVE}, 1')
        a(f's_lshl_b32 s8, s6, 1\ns_add_u32 s8, s8, s13\ns_lshl_b32 s39, s8, 15\ns_add_u32 s39, s39, {WS_O}')
        a('s_lshl_b32 s9, s7, 1\ns_add_u32 s9, s9, s12\ns_lshl_b32 s9, s9, 11\ns_add_u32 s42, s39, s9')
        a(f's_lshl_b32 s8, s6, 12\ns_add_u32 s8, s8, {WS_PO}\ns_lshr_b32 s9, s7, 2\ns_and_b32 s11, s7, 3\ns_cmp_eq_u32 s9, s12\ns_cselect_b32 s101, s11, 9')
        a('s_lshl_b32 s9, s9, 1\ns_add_u32 s9, s9, s13\ns_lshl_b32 s9, s9, 7\ns_add_u32 s9, s9, s8\nv_lshl_add_u32 v7, v0, 9, s9')
        a(f's_lshl_b32 s9, s7, 2\ns_add_u32 s9, s9, {sWAVE}\ns_lshl_b32 s9, s9, 7\ns_add_u32 s100, s8, s9')
        a('s_lshl_b32 s9, s11, 1\ns_add_u32 s9, s9, s12\ns_lshl_b32 s43, s9, 2')
        a('s_lshl_b32 s8, s12, 6')
        self.w128_frag('v14', 4, 's8')
        a(f's_and_b32 s9, s7, 1\ns_lshl_b32 s11, s12, 1\ns_add_u32 s11, s11, s9\ns_xor_b32 s9, s11, 1\ns_lshl_b32 s96, s11, 13\ns_lshl_b32 s97, s9, 13\ns_add_u32 s96, s96, s39\ns_add_u32 s97, s97, s39')
        a(f's_mul_i32 s8, s11, {112*128}\ns_mul_i32 s9, s9, {112*128}\ns_add_u32 s8, s8, {self.WOB}\ns_add_u32 s9, s9, {self.WOB}')
        a('v_add_u32 v12, s9, v14\nv_add_u32 v14, s8, v14\nv_xor_b32 v13, 64, v14\nv_xor_b32 v11, 64, v12')
        a(f's_xor_b32 s9, {sWAVE}, 2\ns_lshl_b32 s9, s9, 12\nv_add_u32 v5, s9, v15\ns_lshl_b32 s9, {sWAVE}, 12\nv_add_u32 v6, s9, v15')
        a(f's_mul_i32 s9, s13, {32*144}\ns_lshl_b32 s11, s12, 6\ns_add_u32 s9, s9, s11\ns_add_u32 s9, s9, 16384')
        a('v_lshrrev_b32 v4, 5, v0\nv_and_b32 v9, 31, v0\nv_mul_u32_u24 v9, 144, v9\nv_lshl_add_u32 v9, v4, 4, v9\nv_add_u32 v9, s9, v9')
        a(f'v_lshrrev_b32 v2, 3, v0\nv_and_b32 v3, 7, v0\nv_lshlrev_b32 v3, 4, v3\nv_mul_u32_u24 v10, 144, v2\ns_mul_i32 s9, {sWAVE}, {16*144}\ns_add_u32 s9, s9, 16384\nv_add3_u32 v10, v10, v3, s9')
        a(f'v_mul_u32_u24 v8, 1792, v2\nv_add_u32 v8, v8, v3\ns_lshl_b32 s8, s6, 2\ns_add_u32 s8, s8, {sWAVE}\ns_mul_i32 s8, s8, {16*1792}\ns_lshl_b32 s9, s7, 7\ns_add_u32 s8, s8, s9\ns_add_u32 s98, s8, 896\ns_add_u32 s99, s98, {8*1792}')
        a(f'v_add_u32 v1, s71, v15\ns_mul_i32 s8, {sWAVE}, 12288\nv_add_u32 v2, s8, v15\ns_lshl_b32 s8, {sWAVE}, 4\nv_mov_b32 v4, s8')

    def a_fallback(self):
        a = self.a
        lp = self.L('fbl')
        for lr, lb in self.spins:
            l2 = self.L('kvs'); l3 = self.L('kvs')
            a.label(lr)
            a(f's_mov_b32 s47, {self.SPIN}')
            a.label(l2)
            a(f's_sleep 2\ns_sub_u32 s47, s47, 1\ns_cmp_gt_i32 s47, 0\ns_cbranch_scc0 {lb}')
            a(f's_load_dwordx8 s[16:23], {sp(P_WS)}, s8 glc\ns_load_dwordx8 s[24:31], {sp(P_WS)}, s9 glc\ns_waitcnt lgkmcnt(0)')
            for i in range(8): a(f's_cmp_eq_u64 s[{16+2*i}:{17+2*i}], s[40:41]\ns_cbranch_scc0 {l2}')
            a(f's_branch {lb}')
        a.label(self.lskip)
        a(f's_waitcnt vmcnt(0)\ns_branch {self.lnopub}')
        a.label(self.lfb)
        a(f's_barrier\ns_mov_b32 s72, 1\ns_mov_b32 s70, 16\ns_mov_b32 s68, s37')
        for js in range(4): a(f'v_mov_b32 v{240+js}, 0xff800000')
        a.label(lp)
        a(f'buffer_load_dwordx4 v[112:115], v15, {srd(R_WS)}, s68 offen sc1\nbuffer_load_dwordx4 v[116:119], v15, {srd(R_WS)}, s68 offen offset:1024 sc1')
        a('s_bitcmp1_b32 s70, 0\ns_cselect_b32 s8, 7, 1\ns_lshl_b32 s8, s8, 12\ns_add_u32 s68, s68, s8\ns_waitcnt vmcnt(0)')
        for js in range(4):
            a(f'v_mfma_f32_32x32x16_bf16 v[144:159], v[112:115], {vr(16+8*js,4)}, 0\nv_mfma_f32_32x32x16_bf16 v[144:159], v[116:119], {vr(20+8*js,4)}, v[144:159]')
            for r in range(0, 16, 2): a(f'v_max3_f32 v{240+js}, v{240+js}, v{144+r}, v{145+r}')
        a(f's_sub_u32 s70, s70, 1\ns_cmp_lg_u32 s70, 0\ns_cbranch_scc1 {lp}')
        a(f's_lshl_b32 s8, {sWAVE}, 8\nv_lshl_add_u32 v244, v0, 2, s8\nv_lshlrev_b32 v245, 2, v0')
        for js in range(4):
            a(f'v_mov_b32 v246, v{240+js}\nv_mov_b32 v247, v{240+js}\nv_permlane32_swap_b32 v246, v247\nv_max_f32 v{240+js}, v246, v247')
            a(f's_add_u32 s8, {sWAVE}, {1+js}\ns_and_b32 s8, s8, 3\ns_lshl_b32 s8, s8, 10\nv_add_u32 v246, s8, v244\nv_add_u32 v{236+js}, s8, v245')
            a(f'ds_write_b32 v246, v{240+js} offset:1024')
        a('s_waitcnt lgkmcnt(0)\ns_barrier')
        for js in range(4):
            a(f'ds_read2st64_b32 v[246:247], v{236+js} offset0:4 offset1:5\nds_read2st64_b32 v[250:251], v{236+js} offset0:6 offset1:7\ns_waitcnt lgkmcnt(0)')
            a('v_max3_f32 v246, v246, v247, v250\nv_max_f32 v246, v246, v251')
            a('v_xor_b32 v246, 0x80000000, v246\nv_and_b32 v247, 0xffff0000, v246\nv_sub_f32 v246, v246, v247\nv_and_b32 v250, 0xffff0000, v246\nv_sub_f32 v246, v246, v250')
            a(f's_mov_b32 exec_lo, 0\nv_lshrrev_b32 v247, 16, v247\nv_or_b32 v{22+8*js}, v247, v250\nv_lshrrev_b32 v{23+8*js}, 16, v246\ns_mov_b32 exec_lo, -1')
        for r in list(range(48, 112)) + list(range(184, 192)) + list(range(224, 232)): a(f'v_mov_b32 v{r}, 0')
        a(f's_barrier\ns_branch {self.lagain}')

    WOB = 23552
    def a_outproj(self):
        a = self.a
        a(f's_cmp_eq_u32 s7, 7\ns_cbranch_scc1 {self.lend}')
        self.tstamp(4)
        OF = 16; WF = 144; ACC = (80, 96)
        lp = self.L('wo'); lall = self.L('wall'); lone = self.L('wone'); ljoin = self.L('wjoin'); lp2 = self.L('wo'); lok2 = self.L('wok')
        def test():
            for i in range(4):
                a(f's_cmp_eq_u32 s101, {i}\ns_cselect_b64 s[{16+2*i}:{17+2*i}], s[40:41], s[{16+2*i}:{17+2*i}]\ns_xor_b64 s[{16+2*i}:{17+2*i}], s[{16+2*i}:{17+2*i}], s[40:41]')
            a('s_or_b64 s[16:17], s[16:17], s[18:19]\ns_or_b64 s[20:21], s[20:21], s[22:23]')
        def rd(i, lo, hi):
            hd, f = (i >> 1) & 3, i & 1
            b = WF + 8 * (i & 3)
            for ct in range(2):
                for t in range(2):
                    a(f'ds_read_b64_tr_b16 {vr(b+4*ct+2*t,2)}, v{(lo if i < 8 else hi)-ct} offset:{(28*hd+16*f+8*t)*128}')
        def stage(n, first, srcs, lo, hi, wo):
            for i in range(n):
                if i == 4: a(f's_add_u32 {srcs[0]}, {srcs[0]}, 4096')
                if i == 12: a(f's_add_u32 {srcs[1]}, {srcs[1]}, 4096')
                a(f'buffer_load_dwordx4 {vr(OF+4*i,4)}, v15, {srd(R_WS)}, {srcs[0] if i < 8 else srcs[1]} offen offset:{(i%4)*1024} sc1')
                if wo and i < 7: a(f'ds_write_b128 v1, {vr(112+4*i,4)} offset:{self.WOB + 4096*i}')
            if wo: a('s_waitcnt lgkmcnt(0)\ns_barrier')
            for i in range(3): rd(i, lo, hi)
            for i in range(n):
                if i + 3 < n: rd(i + 3, lo, hi)
                left = min(3, n - 1 - i)
                a(f's_waitcnt vmcnt({n-1-i}) lgkmcnt({4*left})')
                b = WF + 8 * (i & 3)
                for ct in (1, 0):
                    c = '0' if (i == 0 and first) else vr(ACC[ct], 16)
                    a(f'v_mfma_f32_32x32x16_bf16 {vr(ACC[ct],16)}, {vr(b+4*ct,4)}, {vr(OF+4*i,4)}, {c}')
        a(f's_mov_b32 s47, {self.SPIN}')
        a.label(lp)
        test()
        a(f's_or_b64 s[18:19], s[16:17], s[20:21]\ns_cbranch_scc0 {lall}')
        a(f's_load_dwordx8 s[16:23], {sp(P_WS)}, s100 glc\ns_sub_u32 s47, s47, 1\ns_cmp_gt_i32 s47, 0\ns_waitcnt lgkmcnt(0)\ns_cbranch_scc1 {lp}')
        a.label(lall)
        self.stamp(6); self.tstamp(5)
        stage(16, True, ('s96', 's97'), 14, 12, True)
        self.tstamp(6)
        for g in range(4): a(f'ds_write_b128 v5, {vr(ACC[1]+4*g,4)} offset:{g*1024}')
        a('s_waitcnt lgkmcnt(0)\ns_barrier')
        for g in range(4): a(f'ds_read_b128 {vr(16+4*g,4)}, v6 offset:{g*1024}')
        a('s_waitcnt lgkmcnt(0)')
        for r in range(16): a(f'v_add_f32 v{ACC[0]+r}, v{ACC[0]+r}, v{16+r}')
        for r in range(8): a(f'v_cvt_pk_bf16_f32 v{32+r}, v{ACC[0]+2*r}, v{ACC[0]+2*r+1}')
        a('v_permlane32_swap_b32 v32, v34\nv_permlane32_swap_b32 v33, v35\nv_permlane32_swap_b32 v36, v38\nv_permlane32_swap_b32 v37, v39')
        a('ds_write_b128 v9, v[32:35]\nds_write_b128 v9, v[36:39] offset:32\ns_waitcnt lgkmcnt(0)\ns_barrier')
        a(f'ds_read_b128 v[16:19], v10\nds_read_b128 v[20:23], v10 offset:{8*144}')
        a(f's_waitcnt lgkmcnt(1)\nbuffer_store_dwordx4 v[16:19], v8, {srd(R_OUT)}, s98 offen sc1\ns_waitcnt lgkmcnt(0)\nbuffer_store_dwordx4 v[20:23], v8, {srd(R_OUT)}, s99 offen sc1')
        self.stamp(7); self.tstamp(7)

    UTILE = 0; TSCR = 8192; UB = 61440; KB = 70656; SCR = 15360
    PU, PZ, PT, PB, PW, PE, PK, PKZ, PD, PUT, PA = 232, 233, 234, 235, 236, 240, 243, 244, 245, 246, 251
    def s_ids(self):
        a = self.a
        if OPT('x5idle'):
            a(f's_cmp_gt_u32 {sXG}, 5\ns_cselect_b32 s8, 1, 0\ns_sub_u32 s73, {sXG}, s8\ns_mov_b32 {sM}, {sJ}')
        else:
            a(f's_mul_i32 s8, {sXG}, 28\ns_add_u32 s8, s8, {sJ}\ns_lshr_b32 s73, s8, 5\ns_and_b32 {sM}, s8, 31')
        a(f's_lshl_b32 s8, s73, 6\ns_lshl_b32 s9, {sM}, 1\ns_add_u32 s74, s8, s9')
        a('v_lshlrev_b32 v15, 4, v0')
        a(f's_lshl_b32 s14, s74, 1\ns_lshr_b32 s10, {sWAVE}, 1\ns_add_u32 s74, s74, s10\ns_and_b32 s9, {sWAVE}, 1')
        a('s_lshl_b32 s8, s74, 9\ns_lshl_b32 s12, s9, 8\ns_add_u32 s8, s8, s12\nv_lshl_add_u32 v2, v0, 2, s8')
    def s_params_load(self, va='v2', scal=True, vec=True):
        a = self.a
        for i, p in enumerate((P_LAR, P_AIM, P_CRE, P_CIM)):
            if vec: a(f'global_load_dword v{16+i}, {va}, {sp(p)}')
        if scal: a(f's_load_dword s71, {sp(P_LDT)}, s14\ns_load_dword s72, {sp(P_DSK)}, s14')
    def s_table_load(self, dst):
        a = self.a
        lp = self.L('pc')
        a('s_getpc_b64 s[12:13]')
        a.label(lp)
        a(f's_add_u32 s12, s12, L_table-{lp}\ns_addc_u32 s13, s13, 0')
        for i in range(4):
            a(f'global_load_dwordx4 {vr(dst+4*i,4)}, v1, s[12:13] offset:{1024*i}')
    def s_kv_addr(self):
        a = self.a
        a(f's_lshr_b32 s7, {sJ}, 1\ns_lshl_b32 s8, {sXG}, 4\ns_add_u32 s7, s7, s8\ns_lshl_b32 s6, {sXG}, 5\ns_add_u32 s6, s6, {sJ}')
        a(f's_lshl_b32 s12, s7, 1\ns_add_u32 s12, s12, s9\ns_mul_i32 s12, s12, {8*896}')
        a(f'v_lshrrev_b32 v7, 3, v0\nv_lshrrev_b32 v8, 4, v0\ns_lshl_b32 s8, s9, 2\nv_add_u32 v8, s8, v8')
        a('v_and_b32 v4, 7, v0\nv_xor_b32 v8, v4, v8\nv_mul_u32_u24 v7, 896, v7\nv_lshl_add_u32 v5, v8, 4, v7\nv_add_u32 v5, s12, v5')
        a(f's_lshl_b32 s11, {sWAVE}, 10\nv_add_u32 v6, s11, v15\ns_add_u32 s15, s11, 28672')
        a(f's_lshr_b32 s8, {sJ}, 1\ns_cmp_ge_u32 s8, 7\ns_cselect_b32 s12, 7, 0\ns_sub_u32 s8, s8, s12\ns_cmp_ge_u32 s8, 7\ns_cselect_b32 s12, 7, 0\ns_sub_u32 s8, s8, s12\ns_lshl_b32 s70, s8, 12')
    def kv_srds(self):
        a = self.a
        self.mk_srd(R_X, P_X, X_BYTES)
        a(f's_bitcmp1_b32 s6, 0\ns_cselect_b32 s{R_W}, s{P_WV}, s{P_WK}\ns_cselect_b32 s{R_W+1}, s{P_WV+1}, s{P_WK+1}')
        a(f's_mov_b32 s{R_W+2}, {WK_BYTES}\ns_mov_b32 s{R_W+3}, 0x20000')
    def s_kv_load(self, part=3):
        a = self.a
        if part & 1:
            a(f's_mul_i32 s12, s10, {3*128}\ns_mul_i32 s13, s10, {3*2048}\ns_lshl_b32 s8, s9, 10\ns_add_u32 s13, s13, s8')
            for i in range(4):
                a(f's_add_u32 m0, s13, {2048*i}\ns_nop 0\nbuffer_load_dwordx4 v5, {srd(R_X)}, s12 offen lds')
                if i < 3: a('s_add_u32 s12, s12, 128')
        for i in range(7):
            if not part & (1 if i == 0 else 2): continue
            if i: a('s_add_u32 s70, s70, 4096\ns_cmp_eq_u32 s70, 28672\ns_cselect_b32 s70, 0, s70')
            a(f's_add_u32 m0, s15, s70\ns_nop 0\nbuffer_load_dwordx4 v6, {srd(R_W)}, s70 offen lds')
    def s_kv_addr2(self):
        a = self.a
        a('s_and_b32 s68, s7, 1')
        a('v_and_b32 v2, 15, v0\nv_bfe_u32 v4, v2, 1, 3\nv_lshrrev_b32 v9, 4, v0\nv_xor_b32 v4, v4, v9\nv_lshlrev_b32 v3, 7, v2')
        a('v_lshl_add_u32 v10, v4, 4, v3\nv_xor_b32 v4, 4, v4\nv_lshl_add_u32 v11, v4, 4, v3')
        a('v_bfe_u32 v3, v0, 2, 2\nv_lshl_add_u32 v3, v9, 3, v3\nv_mul_u32_u24 v3, 56, v3\nv_and_b32 v4, 3, v0\nv_lshl_add_u32 v3, v4, 3, v3')
        a(f's_lshl_b32 s8, {sWAVE}, 5\ns_add_u32 s8, s8, 28672\nv_add_u32 v12, s8, v3')
        a('v_lshlrev_b32 v13, 4, v2\nv_bfe_u32 v3, v0, 4, 1\nv_lshl_add_u32 v13, v3, 9, v13')
        a(f's_bitcmp1_b32 s6, 0\ns_cselect_b32 s12, s68, {sWAVE}\ns_cselect_b32 s13, {sWAVE}, s68\ns_cselect_b32 s8, 2048, 0')
        a(f's_lshl_b32 s12, s12, 10\ns_lshl_b32 s13, s13, 8\ns_add_u32 s12, s12, s13\ns_add_u32 s12, s12, s8\ns_lshr_b32 s13, s7, 1\ns_lshl_b32 s13, s13, 12\ns_add_u32 s12, s12, s13\ns_add_u32 s69, s12, {WS_KV}')
        a(f's_lshr_b32 s8, s6, 3\ns_lshl_b32 s8, s8, 7\ns_and_b32 s12, s6, 7\ns_lshl_b32 s12, s12, 2\ns_add_u32 s8, s8, s12\ns_add_u32 s68, s8, {WS_FKV}\nv_lshlrev_b32 v14, 12, v0')
    def s_kv(self):
        a = self.a
        lv = self.L('kvV'); lst = self.L('kvst')
        ACC = 100
        XF = lambda ks: vr(56 + 8*(ks % 5), 4); WF = lambda ks, t=None: vr(60 + 8*(ks % 5), 4) if t is None else vr(60 + 8*(ks % 5) + 2*t, 2)
        def rdk(ks):
            a(f'ds_read_b128 {XF(ks)}, v{10+(ks&1)} offset:{(ks>>1)*2048}')
            for t in range(2):
                a(f'ds_read_b64_tr_b16 {WF(ks,t)}, v12 offset:{(32*ks+4*t)*56}')
        for ks in range(4): rdk(ks)
        a('s_bitcmp1_b32 s6, 0')
        def chain(swap):
            for ks in range(14):
                if ks + 4 < 14: rdk(ks + 4)
                a(f's_waitcnt lgkmcnt({3*min(4, 13-ks)})')
                A, B = (XF(ks), WF(ks)) if swap else (WF(ks), XF(ks))
                c = '0' if ks == 0 else vr(ACC, 4)
                a(f'v_mfma_f32_16x16x32_bf16 {vr(ACC,4)}, {A}, {B}, {c}')
        a(f's_cbranch_scc1 {lv}')
        chain(False)
        a(f's_cmp_eq_u32 {sWAVE}, 1\ns_cselect_b32 s12, 0xffff0000, 0')
        for r in range(4): a(f'v_mul_f32 v{ACC+r}, {f32(CSCALE)}, v{ACC+r}')
        a(f'v_cvt_pk_bf16_f32 v96, v{ACC}, v{ACC+1}\nv_cvt_pk_bf16_f32 v97, v{ACC+2}, v{ACC+3}')
        a('s_mov_b32 exec_lo, 0\ns_mov_b32 exec_hi, s12\nv_mov_b32 v96, 0x3f803f80\nv_mov_b32 v97, 0x00003f80\ns_mov_b64 exec, -1')
        a(f's_branch {lst}')
        a.label(lv)
        chain(True)
        a(f's_cmp_eq_u32 {sWAVE}, 1\ns_cselect_b32 s12, 0xe000e000, 0\ns_cselect_b32 s13, 0x10001000, 0')
        a(f'v_cvt_pk_bf16_f32 v96, v{ACC}, v{ACC+1}\nv_cvt_pk_bf16_f32 v97, v{ACC+2}, v{ACC+3}')
        a('s_mov_b32 exec_lo, s12\ns_mov_b32 exec_hi, s12\nv_mov_b32 v96, 0\nv_mov_b32 v97, 0')
        a('s_mov_b32 exec_lo, s13\ns_mov_b32 exec_hi, s13\nv_mov_b32 v96, 0x3f803f80\nv_mov_b32 v97, 0x3f803f80\ns_mov_b64 exec, -1')
        a.label(lst)
        a('s_nop 1\nv_permlane32_swap_b32 v96, v98\nv_permlane32_swap_b32 v97, v99\ns_mov_b32 exec_hi, 0')
        a(f'buffer_store_dwordx4 v[96:99], v13, {srd(R_WS)}, s69 offen sc1\ns_mov_b32 exec_hi, -1')
    def s_kv_phase(self, n=0, part=3):
        a = self.a
        l3 = self.L('kvb'); l4 = self.L('kvf')
        if part & 1:
            a(f's_waitcnt vmcnt({n})\ns_barrier')
            self.stamp(1); self.estamp(4)
            a(f's_cmp_ge_u32 {sWAVE}, 2\ns_cbranch_scc1 {l3}')
            self.s_kv()
            a.label(l3)
        if part & 2:
            a(f'v_mov_b32 v33, {sNONCE}\ns_waitcnt vmcnt(0)\ns_barrier\ns_cmp_lg_u32 {sWAVE}, 0\ns_cbranch_scc1 {l4}')
            a(f's_mov_b64 exec, {hex((1 << NREP) - 1) if NREP < 64 else -1}\nbuffer_store_dword v33, v14, {srd(R_WS)}, s68 offen sc1\ns_mov_b64 exec, -1')
            a.label(l4)
            self.stamp(2); self.estamp(5)

    def s_addr_all(self):
        a = self.a
        PU, PZ, PT, PB, PW, PE, PK, PKZ, PD, PUT, PA = [f'v{x}' if not isinstance(x, str) else x for x in (self.PU, self.PZ, self.PT, self.PB, 'x', 'x', self.PK, self.PKZ, self.PD, 'x', 'x')]
        a(f's_lshl_b32 s8, {sM}, 6\ns_lshl_b32 s12, {sWAVE}, 4\ns_add_u32 s8, s8, s12\ns_mul_i32 s8, s8, 896\ns_lshl_b32 s12, s73, 7\ns_add_u32 s8, s8, s12')
        a('v_and_b32 v20, 7, v0\nv_lshl_add_u32 v7, v20, 4, v7\nv_add_u32 v7, s8, v7')
        a(f's_lshl_b32 s8, s74, 12\ns_lshl_b32 s12, s9, 11\ns_add_u32 s8, s8, s12\ns_add_u32 s14, s8, {WS_UT}\ns_add_u32 s92, s8, {WS_YT}')
        a(f's_mul_i32 s11, s10, 4608\ns_add_u32 s11, s11, {self.UB}\ns_mul_i32 s8, s10, 4160\ns_add_u32 s75, s8, {self.KB}')
        a(f's_add_u32 s12, s12, s75\nv_lshl_add_u32 {PK}, v0, 5, s12\nv_lshl_add_u32 {PKZ}, v0, 2, s75')
        a('v_bfe_u32 v2, v0, 1, 2\nv_mul_u32_u24 v2, 1152, v2\nv_lshrrev_b32 v21, 3, v0\nv_lshl_add_u32 v2, v21, 5, v2\nv_and_b32 v4, 1, v0\nv_lshl_add_u32 v2, v4, 4, v2')
        a(f's_lshl_b32 s12, s9, 9\ns_add_u32 s12, s12, s11\nv_add_u32 {PU}, s12, v2')
        a(f'v_mul_u32_u24 v3, 1152, v21\nv_lshl_add_u32 v3, v20, 4, v3\nv_add_u32 {PZ}, s11, v3')
        a('v_lshlrev_b32 v4, 4, v4\nv_bfe_u32 v8, v0, 1, 1\nv_lshl_add_u32 v4, v8, 2, v4\nv_bfe_u32 v8, v0, 4, 1\nv_lshl_add_u32 v4, v8, 3, v4')
        a('v_lshrrev_b32 v22, 5, v0\nv_lshlrev_b32 v8, 5, v22\nv_sub_u32 v4, v4, v8\nv_bfe_u32 v23, v0, 2, 2\nv_lshlrev_b32 v8, 2, v23\nv_sub_u32 v4, v4, v8')
        a(f's_add_u32 s12, s75, 96\nv_lshl_add_u32 {PT}, v4, 1, s12')
        a(f'v_bfe_u32 v4, v0, 3, 2\nv_mul_u32_u24 v3, 1152, v4\nv_add_u32 v8, v20, v22\nv_lshl_add_u32 v3, v8, 4, v3\ns_add_u32 s12, s11, 16\nv_add_u32 {PB}, s12, v3')
        a('v_lshrrev_b32 v8, 1, v20\nv_and_b32 v3, 1, v20\nv_lshl_or_b32 v8, v3, 2, v8\nv_lshlrev_b32 v3, 2, v22\nv_xor_b32 v8, v8, v3')
        a('v_lshlrev_b32 v4, 13, v4\nv_lshl_add_u32 v4, v20, 7, v4\ns_lshl_b32 s13, s10, 15\nv_add_u32 v4, s13, v4')
        for g in range(4): a(f'v_xor_b32 v3, {g}, v8\nv_lshl_add_u32 v{self.PW+g}, v3, 4, v4')
        a('s_lshl_b32 s12, s9, 7\nv_add_u32 v2, s12, v0\nv_lshrrev_b32 v3, 2, v2\nv_and_b32 v4, 3, v2\nv_lshlrev_b32 v4, 1, v4')
        def fa(dst, av): a(f'v_bfe_u32 {dst}, {av}, 1, 2\nv_and_b32 v8, 1, {av}\nv_lshl_or_b32 {dst}, v8, 2, {dst}')
        fa('v9', 'v3')
        a('v_xor_b32 v9, v9, v4\nv_lshlrev_b32 v2, 7, v3\nv_add_u32 v2, s13, v2')
        a(f'v_lshl_add_u32 v{self.PE}, v9, 4, v2\nv_xor_b32 v9, 1, v9\nv_lshl_add_u32 v{self.PE+1}, v9, 4, v2')
        a('v_lshl_add_u32 v4, v3, 3, v4\nv_add_u32 v4, -1, v4\nv_ashrrev_i32 v3, 3, v4\nv_and_b32 v4, 7, v4')
        fa('v9', 'v3')
        a(f'v_xor_b32 v9, v9, v4\nv_lshlrev_b32 v2, 7, v3\nv_add_u32 v2, s13, v2\nv_lshl_add_u32 v2, v9, 4, v2\nv_add_u32 v{self.PE+2}, 8192, v2')
        a('s_cmp_eq_u32 s9, 0\ns_cselect_b32 s93, 1, 0')
        U = self.PUT
        a(f'v_lshrrev_b32 v3, 4, v0\nv_lshl_add_u32 v2, v23, 2, v3\nv_lshlrev_b32 v2, 7, v2\nv_and_b32 v9, 3, v0\nv_lshl_add_u32 v2, v9, 3, v2')
        a(f's_lshl_b32 s8, {sWAVE}, 5\ns_add_u32 s8, s8, {self.UTILE}\nv_add_u32 v{U}, s8, v2')
        a(f's_mul_i32 s12, {sWAVE}, 2304\ns_add_u32 s12, s12, {self.TSCR}')
        a(f'v_and_b32 v4, 15, v0\nv_mul_u32_u24 v4, 144, v4\nv_lshl_add_u32 v4, v3, 5, v4\nv_add_u32 v{U+1}, s12, v4')
        a(f'v_lshlrev_b32 v4, 4, v20\nv_mul_u32_u24 v2, 144, v21\nv_add3_u32 v{U+2}, v2, v4, s12')
        a(f's_lshl_b32 s8, s73, 2\ns_add_u32 s8, s8, {sWAVE}\ns_lshl_b32 s8, s8, 16\ns_lshl_b32 s12, {sM}, 7\ns_add_u32 s8, s8, s12\ns_add_u32 s8, s8, {WS_UT}')
        a(f'v_lshl_add_u32 v{self.PA}, v21, 12, v4\nv_add_u32 v{U+3}, s8, v{self.PA}\nv_add_u32 v{U+4}, {8*4096}, v{U+3}')
        a(f's_lshl_b32 s36, s73, 9\ns_add_u32 s36, s36, {WS_FU}\ns_lshl_b32 s8, {sM}, 2\ns_add_u32 s35, s36, s8')
        A = self.PA
        a(f's_lshl_b32 s8, s73, 6\ns_lshl_b32 s13, {sWAVE}, 3\ns_add_u32 s8, s8, s13\ns_lshl_b32 s8, s8, 12\ns_add_u32 s8, s8, s12\ns_add_u32 s37, s8, {WS_YT}\ns_add_u32 s38, s37, {32*4096}')
        a(f'v_add_u32 v2, s13, v21\nv_mul_u32_u24 v2, 160, v2\nv_add_u32 v{A+1}, v2, v4')
        a(f'v_lshl_add_u32 v2, v3, 3, v23\nv_mul_u32_u24 v2, 160, v2\nv_lshl_add_u32 v2, v9, 3, v2\ns_lshl_b32 s8, {sWAVE}, 5\nv_add_u32 v{A+2}, s8, v2')
        a(f's_lshl_b32 s8, {sM}, 2\ns_add_u32 s8, s8, {sWAVE}\ns_mul_i32 s39, s8, {16*1792}\ns_lshl_b32 s8, s73, 7\ns_add_u32 s39, s39, s8\ns_add_u32 s94, s39, {8*1792}')
        a(f'v_mul_u32_u24 v2, 1792, v21\nv_add_u32 v{A+3}, v2, v4')
        a(f'v_and_b32 v2, 15, v0\nv_mul_u32_u24 v2, 144, v2\nv_lshl_add_u32 v2, v3, 4, v2\ns_mul_i32 s8, {sWAVE}, 2304\ns_add_u32 s8, s8, {self.TSCR + 4096}\nv_add_u32 v{A+4}, s8, v2')
        a(f's_mul_i32 s11, {sWAVE}, {self.SCR}\nv_mul_u32_u24 v2, 240, v0\nv_add_u32 v2, s11, v2')
        a(f'v_lshl_add_u32 v3, v23, 1, v22\nv_mul_u32_u24 v3, 480, v3\nv_bfe_u32 v8, v0, 4, 1\nv_lshl_add_u32 v3, v8, 5, v3\nv_lshl_add_u32 v3, v9, 3, v3\nv_add_u32 v3, s11, v3')
        a(f'v_and_b32 v4, 31, v0\nv_mul_u32_u24 v4, 144, v4\nv_lshl_add_u32 v4, v22, 4, v4\nv_add_u32 v4, s11, v4')

    def s_kgen(self, mid_r0):
        a = self.a
        RS = 240
        AW, AR, AP = 'v2', 'v3', 'v4'
        if OPT('nokvfirst'): raise SystemExit('option removed')
        a(f's_cmp_eq_u32 s10, 1\ns_cselect_b32 s8, 0, 16')
        a('s_lshl_b32 s12, s71, s8\ns_and_b32 s12, s12, 0xffff0000\ns_lshl_b32 s13, s72, s8\ns_and_b32 s72, s13, 0xffff0000')
        a(f'v_mov_b32 v31, s12\nv_mul_f32 v31, {f32(LOG2E)}, v31\nv_exp_f32 v31, v31\nv_mov_b32 v{self.PD}, 0\nv_cvt_pk_bf16_f32 v31, v31, v31\nv_and_b32 v31, 0xffff0000, v31')
        a(f'v_mul_f32 v32, {f32(-LOG2E)}, v31\nv_mul_f32 v30, 0.15915494309189532, v31\nv_add_f32 v31, v31, v31')
        a(f's_mov_b32 exec_lo, s93\ns_mov_b32 exec_hi, 0\nv_mov_b32 v{self.PD}, s72\ns_mov_b64 exec, -1')
        ACC = 40; FR = 56; TB = 120
        W1, W256, W8 = 24, 26, 28
        RR = (120, 176)
        def cmul(z, x, y, conj, t):
            return [f'v_pk_mul_f32 {vr(t,2)}, {vr(x,2)}, {vr(y,2)} op_sel_hi:[1,0]',
                    f'v_pk_fma_f32 {vr(z,2)}, {vr(x,2)}, {vr(y,2)}, {vr(t,2)} op_sel:[1,1,0] op_sel_hi:[0,1,1] {"neg_hi" if conj else "neg_lo"}:[1,0,0]']
        def pack(buf, i, x, y): return [f'v_cvt_pk_bf16_f32 v{buf+i}, v{x}, v{y}', f'v_cvt_pk_bf16_f32 v{buf+4+i}, v{x+1}, v{y+1}']
        def flush(rnd):
            out = []
            for g in range(4): out += [f'ds_write_b128 {AW}, {vr(RR[rnd]+8*g,4)} offset:{16*g}', f'ds_write_b128 {AW}, {vr(RR[rnd]+8*g+4,4)} offset:{64+16*g}']
            for g in range(3): out += [f'ds_write_b128 {AW}, {vr(RR[rnd]+32+8*g,4)} offset:{128+16*g}', f'ds_write_b128 {AW}, {vr(RR[rnd]+32+8*g+4,4)} offset:{176+16*g}']
            return out
        def reads(q):
            qq, part = q >> 1, q & 1
            for t in range(2): a(f'ds_read_b64_tr_b16 {vr(FR+8*q+2*t,2)}, {AR} offset:{(16*qq+t)*RS + 64*part}')
            for t in range(2): a(f'ds_read_b64_tr_b16 {vr(FR+8*q+4+2*t,2)}, {AR} offset:{(16*qq+t)*RS + 128 + 48*part}')
        l1 = self.L('wp'); l2 = self.L('wp')
        a(f's_cmp_ge_u32 {sXG}, 4\ns_cbranch_scc1 {l1}\ns_cmp_ge_u32 {sWAVE}, 2\ns_cbranch_scc1 {l1}\ns_waitcnt vmcnt(2)\ns_branch {l2}')
        a.label(l1); a('s_waitcnt vmcnt(1)'); a.label(l2)
        self.fstamp(1); self.estamp(3)
        mfma = lambda q, first: f'v_mfma_f32_32x32x16_bf16 {vr(ACC,16)}, {vr(FR+8*q,4)}, {vr(FR+8*q+4,4)}, {"0" if first else vr(ACC,16)}'
        H0, H2, H4, H6, HT, HU, LA, LB, TL, TG = 34, 36, 38, 40, 42, 44, 46, 48, 50, 52
        for rnd in range(2):
            ex = (lambda d, s: f'v_lshlrev_b32 v{d}, 16, v{s}') if rnd == 0 else (lambda d, s: f'v_and_b32 v{d}, 0xffff0000, v{s}')
            setup = [ex(20, 16), ex(21, 17), ex(H0, 18), ex(H0+1, 19),
                     f'v_mul_f32 v20, {f32(LOG2E)}, v20', 'v_exp_f32 v20, v20', 'v_mul_f32 v21, v21, v30', 'v_cvt_pk_bf16_f32 v20, v20, v20', 'v_and_b32 v20, 0xffff0000, v20', 'v_mul_f32 v20, v20, v32',
                     f'v_mul_f32 v{H0}, v{H0}, v31', f'v_mul_f32 v{H0+1}, -v{H0+1}, v31']
            for W, m in ((W1, 1.0), (W256, 256.0), (W8, 8.0)):
                if m == 1.0: setup += ['v_exp_f32 v22, v20', 'v_fract_f32 v23, v21']
                else: setup += [f'v_mul_f32 v22, {f32(m)}, v20', f'v_mul_f32 v23, {f32(m)}, v21', 'v_exp_f32 v22, v22', 'v_fract_f32 v23, v23']
                setup += [f'v_cos_f32 v{W}, v23', f'v_sin_f32 v{W+1}, v23', f'v_mul_f32 v{W}, v{W}, v22', f'v_mul_f32 v{W+1}, v{W+1}, v22']
            for x in setup: a(x)
            PL = [RR[rnd] + 8*g for g in range(4)]; PG = [RR[rnd] + 32 + 8*g for g in range(3)]
            jl = [f'v_cvt_pk_bf16_f32 v{PL[0]}, 1.0, v{W8}', f'v_cvt_pk_bf16_f32 v{PL[0]+4}, 0, v{W8+1}']
            cur = W8
            for b in range(2, 32, 2):
                jl += cmul(LA, cur, W8, False, TL) + cmul(LB, LA, W8, False, TL) + pack(PL[b >> 3], (b & 7) >> 1, LA, LB); cur = LB
            jg = cmul(HT, H0, W1, True, TG) + pack(PG[0], 0, H0, HT)
            jg += cmul(H2, HT, W1, True, TG) + cmul(HT, H2, W1, True, TG) + pack(PG[0], 1, H2, HT)
            jg += cmul(H4, HT, W1, True, TG) + cmul(HT, H4, W1, True, TG) + pack(PG[0], 2, H4, HT)
            jg += cmul(H6, HT, W1, True, TG) + cmul(HT, H6, W1, True, TG) + pack(PG[0], 3, H6, HT)
            jg += cmul(H0, H0, W256, True, TG) + cmul(H2, H2, W256, True, TG) + pack(PG[1], 0, H0, H2)
            jg += cmul(H4, H4, W256, True, TG) + cmul(H6, H6, W256, True, TG) + pack(PG[1], 1, H4, H6)
            jg += cmul(H0, H0, W256, True, TG) + cmul(H4, H4, W256, True, TG) + pack(PG[1], 2, H0, H4)
            jg += cmul(H0, H0, W256, True, TG) + cmul(H4, H4, W256, True, TG) + pack(PG[1], 3, H0, H4)
            jg += cmul(HT, H0, W256, True, TG) + cmul(HU, HT, W256, True, TG) + pack(PG[2], 0, HT, HU)
            jg += cmul(HT, HU, W256, True, TG) + cmul(HU, HT, W256, True, TG) + pack(PG[2], 1, HT, HU)
            jg += cmul(HT, HU, W256, True, TG) + pack(PG[2], 2, HT, HT) + [f'v_mov_b32 v{PG[2]+3}, 0', f'v_mov_b32 v{PG[2]+7}, 0']
            for x in jg: a(x)
            if rnd == 0:
                mid_r0()
                for x in jl: a(x)
            elif not OPT('kvlate'):
                for x in jl: a(x)
                self.late_kv(True)
                if OPT('xs0'): self.stamp_flush(8); a('s_endpgm')
                for x in flush(0): a(x)
            else:
                fl = flush(0); step = len(jl) // 14
                for i, x in enumerate(jl):
                    a(x)
                    if i % step == step - 1 and fl: a(fl.pop(0))
                for x in fl: a(x)
            self.fstamp(2 + rnd)
        a(f's_mul_i32 s8, s10, {2*self.SCR}\ns_waitcnt vmcnt(0) lgkmcnt(0)')
        for q in range(6): reads(q)
        for k in range(16): a(f'v_add_u32 v{TB+k}, s8, v{104+k}')
        for q in range(6, 8): reads(q)
        if not OPT('nokgp0'): a('s_setprio 0')
        a('s_waitcnt lgkmcnt(0)')
        fl = flush(1)
        for q in range(8):
            a(mfma(q, q == 0))
            for x in fl[2*q:2*q+2]: a(x)
        a('s_waitcnt lgkmcnt(0)')
        self.estamp(7)
        for q in range(8):
            reads(q)
            if q >= 3:
                a('s_waitcnt lgkmcnt(12)'); a(mfma(q - 3, False))
        for q in range(5, 8):
            a(f's_waitcnt lgkmcnt({4*(7-q)})'); a(mfma(q, False))
        if not OPT('nokgp0'): a('s_setprio 2')
        for g in range(4): a(f'ds_write_b128 {AP}, {vr(ACC+4*g,4)} offset:{32*g}')
        for r in range(4): a(f'v_mov_b32 v{112+r}, 0')
        a('s_waitcnt lgkmcnt(0)\ns_barrier')
        self.fstamp(4)
        G = 56
        for k in range(16): a(f'ds_read2st64_b32 {vr(G+2*k,2)}, v{TB+k} offset1:{self.SCR//256}')
        a(f's_mov_b64 exec, 0xffff\nds_write_b32 v{self.PKZ}, v112\ns_mov_b32 exec_lo, -1\nds_write_b128 v{self.PZ}, v[112:115]\ns_mov_b64 exec, -1')
        for k in range(16):
            if k % 4 == 0: a(f's_waitcnt lgkmcnt({14-k})')
            a(f'v_add_f32 v{G+2*k}, v{G+2*k}, v{G+2*k+1}')
            if k == 0: a(f'v_add_f32 v{G}, v{G}, v{self.PD}')
        for k in range(8): a(f'v_cvt_pk_bf16_f32 v{88+k}, v{G+4*k}, v{G+4*k+2}')
        a(f'ds_write_b128 v{self.PK}, v[88:91] offset:64\nds_write_b128 v{self.PK}, v[92:95] offset:80')
        a(f'v_mov_b32 v113, {sNONCE}\ns_waitcnt lgkmcnt(0)\ns_barrier')
        self.stamp(3)

    def s_u_phase(self):
        a = self.a
        U = self.PUT
        self.ustamp(5)
        a(f's_lshl_b32 s12, {sWAVE}, 11')
        a(f's_add_u32 m0, s12, {self.UTILE}\ns_mov_b32 s13, {8*896}\nbuffer_load_dwordx4 v7, {srd(R_B)}, 0 offen lds')
        a(f's_add_u32 m0, s12, {self.UTILE + 1024}\ns_nop 0\nbuffer_load_dwordx4 v7, {srd(R_B)}, s13 offen lds')
        a('s_waitcnt vmcnt(0)\ns_barrier')
        self.ustamp(1)
        for half in range(2):
            for t in range(2):
                a(f'ds_read_b64_tr_b16 {vr(96+4*half+2*t,2)}, v{U} offset:{(32*half+16*t)*128}')
        a(f's_waitcnt lgkmcnt(2)\nds_write_b128 v{U+1}, v[96:99]\ns_waitcnt lgkmcnt(1)\nds_write_b128 v{U+1}, v[100:103] offset:16\ns_waitcnt lgkmcnt(0)')
        a(f'ds_read_b128 v[96:99], v{U+2}\nds_read_b128 v[100:103], v{U+2} offset:{8*144}')
        a(f's_waitcnt lgkmcnt(1)\nbuffer_store_dwordx4 v[96:99], v{U+3}, {srd(R_WS)}, 0 offen sc1')
        a(f's_waitcnt lgkmcnt(0)\nbuffer_store_dwordx4 v[100:103], v{U+4}, {srd(R_WS)}, 0 offen sc1')
        self.publish_y(WS_PU)
        self.wait_y(WS_PU, 4)
        self.ustamp(3)
        for i in range(2): a(f'buffer_load_dwordx4 {vr(104+4*i,4)}, v15, {srd(R_WS)}, s14 offen offset:{1024*i} sc1')
        a(f's_waitcnt vmcnt(1)\nds_write_b128 v{self.PU}, v[104:107] offset:128\ns_waitcnt vmcnt(0)\nds_write_b128 v{self.PU}, v[108:111] offset:384')
        if OPT('tlb'):
            a(f's_mov_b64 exec, 1\nbuffer_load_dword v116, v112, {srd(R_WS)}, s92 offen\nbuffer_load_dword v117, v112, {srd(R_WS)}, s37 offen\nbuffer_load_dword v118, v112, {srd(R_OUT)}, s39 offen\ns_mov_b64 exec, -1')
        a('s_waitcnt lgkmcnt(0)')
        self.stamp(4); self.ustamp(4)

    def s_conv(self):
        a = self.a
        self.stamp(5); self.fstamp(5); self.tstamp(1)
        D = 16; BF = (80, 112); TF = (144, 176)
        l1 = self.L('cv1'); lj = self.L('cvj')
        a(f's_cmp_eq_u32 s9, 0\ns_cbranch_scc0 {l1}')
        def variant(tset):
            mmax = max(tset)
            mf = []; reads = []
            seen = set(); started = set()
            for r in range(4):
                pb = r & 1
                for jj in range(mmax + 1):
                    for ti, t in enumerate(tset):
                        if t < jj: continue
                        m = t - jj
                        nb = ('B', r, m); nt = ('T', r, jj)
                        for k in (nt, nb):
                            if k not in seen:
                                seen.add(k)
                                if k[0] == 'B':
                                    reads.append((k, [f'ds_read_b128 {vr(BF[pb]+4*m,4)}, v{self.PB} offset:{32*(4*m - r + 3)}']))
                                else:
                                    mu = 4*jj + r
                                    reads.append((k, [f'ds_read_b64_tr_b16 {vr(TF[pb]+4*jj+2*tt,2)}, v{self.PT} offset:{128*mu + 32*(1-tt)}' for tt in range(2)]))
                        c = vr(D+16*ti, 16) if t in started else '0'
                        started.add(t)
                        mf.append((f'v_mfma_f32_32x32x16_bf16 {vr(D+16*ti,16)}, {vr(TF[pb]+4*jj,4)}, {vr(BF[pb]+4*m,4)}, {c}', (nb, nt), r))
            flat = []; endpos = {}
            for k, xs in reads:
                for x in xs: flat.append((x, k))
                endpos[k] = len(flat)
            issued = 0; done = 0
            lastmf = {}
            for i, (txt, needs, r) in enumerate(mf): lastmf[txt.split(',')[0]] = i
            pend = []; released = False
            for i, (txt, needs, r) in enumerate(mf):
                need = max(endpos[k] for k in needs)
                tgt = min(len(flat), need + (12 if r < 2 else 24))
                step = 0
                while issued < tgt and (issued < need + 12 or step < 2):
                    kk = flat[issued][1]
                    if kk[1] >= r + 2: break
                    a(flat[issued][0]); issued += 1; step += 1
                if issued == len(flat) and not released and r == 3:
                    a('s_waitcnt lgkmcnt(0)\ns_barrier'); done = issued; released = True
                    self.fstamp(6)
                if need > done:
                    n = min(14, issued - need)
                    a(f's_waitcnt lgkmcnt({n})'); done = issued - n
                a(txt)
                if released and pend and pend[0][0] <= i:
                    a(pend.pop(0)[1])
                for ti, t in enumerate(tset):
                    if lastmf[f'v_mfma_f32_32x32x16_bf16 {vr(D+16*ti,16)}'] == i:
                        pend += [(i + 5, f'ds_write_b128 v{self.PW+g}, {vr(D+16*ti+4*g,4)} offset:{t*1024}') for g in range(4)]
            assert released
            for _, x in pend: a(x)
        variant([7, 4, 3, 0]); a(f's_branch {lj}')
        a.label(l1); variant([6, 5, 2, 1])
        a.label(lj)
        a(f's_setprio {2 if OPT("epi2") else 3}\ns_waitcnt lgkmcnt(0)\ns_barrier')
        self.tstamp(2)
        E = self.PE
        for i in range(2):
            Y = [16 + 44*i, 24 + 44*i, 36 + 44*i, 48 + 44*i]
            for ph in range(4):
                o = 4 if ph else 0
                if ph: a(f'ds_read_b128 {vr(Y[ph],4)}, v{E+2} offset:{(ph-1)*8192 + i*2048}')
                a(f'ds_read_b128 {vr(Y[ph]+o,4)}, v{E} offset:{ph*8192 + i*2048}\nds_read_b128 {vr(Y[ph]+o+4,4)}, v{E+1} offset:{ph*8192 + i*2048}')
        for i in range(2):
            Y = [16 + 44*i, 24 + 44*i, 36 + 44*i, 48 + 44*i]
            for ph in range(1, 4):
                a(f's_waitcnt lgkmcnt({min(14, 11*(1-i) + 3*(3-ph))})')
                if i == 0:
                    a('s_mov_b32 exec_lo, s93\ns_mov_b32 exec_hi, 0')
                    for k in range(4 - ph, 4): a(f'v_mov_b32 v{Y[ph]+k}, 0')
                    a('s_mov_b64 exec, -1')
                for k in range(8): a(f'v_add_f32 v{Y[0]+k}, v{Y[0]+k}, v{Y[ph]+4+k-ph}')
            for k in range(4): a(f'v_cvt_pk_bf16_f32 v{104+4*i+k}, v{Y[0]+2*k}, v{Y[0]+2*k+1}')
            a(f'buffer_store_dwordx4 {vr(104+4*i,4)}, v15, {srd(R_WS)}, s92 offen offset:{1024*i} sc1')
        self.stamp(6); self.fstamp(7); self.tstamp(3)

    def s_assemble(self):
        a = self.a
        A = self.PA
        self.wait_y()
        self.tstamp(5)
        a(f'buffer_load_dwordx4 v[16:19], v{A}, {srd(R_WS)}, s37 offen sc1')
        a(f'buffer_load_dwordx4 v[20:23], v{A}, {srd(R_WS)}, s38 offen sc1')
        a(f's_waitcnt vmcnt(1)\nds_write_b128 v{A+1}, v[16:19]\ns_waitcnt vmcnt(0)\nds_write_b128 v{A+1}, v[20:23] offset:{32*160}')
        a('s_waitcnt lgkmcnt(0)\ns_barrier')
        self.tstamp(6)
        for o in range(2):
            for t in range(2): a(f'ds_read_b64_tr_b16 {vr(24+4*o+2*t,2)}, v{A+2} offset:{(32*o+4*t)*160}')
        a(f's_waitcnt lgkmcnt(2)\nds_write_b128 v{A+4}, v[24:27]\ns_waitcnt lgkmcnt(1)\nds_write_b128 v{A+4}, v[28:31] offset:64\ns_waitcnt lgkmcnt(0)')
        a(f'ds_read_b128 v[24:27], v{self.PUT+2} offset:4096\nds_read_b128 v[28:31], v{self.PUT+2} offset:{4096 + 8*144}')
        a(f's_waitcnt lgkmcnt(1)\nbuffer_store_dwordx4 v[24:27], v{A+3}, {srd(R_OUT)}, s39 offen sc1')
        a(f's_waitcnt lgkmcnt(0)\nbuffer_store_dwordx4 v[28:31], v{A+3}, {srd(R_OUT)}, s94 offen sc1')
        self.stamp(7); self.tstamp(7)

    def kernel_head(self, name):
        self.lend = f'L_end_{name}'
        self.a(f'.globl {name}\n.p2align 8\n.type {name},@function')
        self.a.label(name)
    def kernel_tail(self):
        self.a.label(self.lend)
        self.a('s_endpgm')

    SPIN = 1 << 20
    def nonce(self, n):
        self.a(f's_waitcnt vmcnt({n}) lgkmcnt(0)\nv_readfirstlane_b32 {sNONCE}, v54\ns_add_u32 {sNONCE}, {sNONCE}, 0x9e3779b9')
    def publish_y(self, WS_PY=WS_PY):
        a = self.a; l = self.L('pg')
        a(f's_lshl_b32 s8, s73, 14\ns_lshr_b32 s12, {sM}, 3\ns_lshl_b32 s13, s12, 7\ns_add_u32 s8, s8, s13\ns_add_u32 s8, s8, {WS_PY}\nv_lshl_add_u32 v2, v0, 9, s8')
        a(f's_and_b32 s12, {sM}, 7\ns_lshl_b32 s12, s12, 2\nv_mov_b32 v3, {sNONCE}')
        a('s_waitcnt vmcnt(0)\ns_barrier')
        if WS_PY != WS_PU: self.tstamp(4)
        else: self.ustamp(2)
        a(f's_cmp_lg_u32 {sWAVE}, 0\ns_cbranch_scc1 {l}')
        a(f's_mov_b32 exec_hi, 0\nbuffer_store_dword v3, v2, {srd(R_WS)}, s12 offen sc1\ns_mov_b64 exec, -1')
        a.label(l)
    def poll(self, vaddr, soff, width, mask_lo, mask_hi, sleep, vt=250):
        a = self.a; lp = self.L('poll'); ld = self.L('polled')
        ld_ = {1: 'dword', 2: 'dwordx2', 4: 'dwordx4'}[width]
        a(f's_mov_b32 exec_lo, {hex(mask_lo)}\ns_mov_b32 exec_hi, {hex(mask_hi)}\ns_mov_b32 s47, {self.SPIN}')
        a.label(lp)
        a(f'buffer_load_{ld_} {vr(vt,width)}, {vaddr}, {srd(R_WS)}, {soff} offen sc1\ns_waitcnt vmcnt(0)')
        a(f'v_xor_b32 v{vt}, {sNONCE}, v{vt}')
        for i in range(1, width): a(f'v_xor_b32 v{vt+i}, {sNONCE}, v{vt+i}\nv_or_b32 v{vt}, v{vt}, v{vt+i}')
        a(f'v_cmp_ne_u32 vcc, 0, v{vt}\ns_cbranch_vccz {ld}')
        if sleep: a(f's_sleep {sleep}')
        a(f's_sub_u32 s47, s47, 1\ns_cmp_lg_u32 s47, 0\ns_cbranch_scc1 {lp}')
        a.label(ld)
        a('s_mov_b64 exec, -1')
    def spoll(self, soff, n, sleep, first_sleep=0):
        a = self.a
        a(f's_mov_b32 s40, {sNONCE}\ns_mov_b32 s41, {sNONCE}\ns_mov_b32 s47, {self.SPIN}')
        for c in range(max(1, n // 16)):
            lp = self.L('sp'); lr = self.L('spr'); ld = self.L('spd')
            if c: a(f's_add_u32 {soff}, {soff}, 64')
            elif first_sleep: a(f's_branch {lr}')
            a.label(lp)
            if n == 8:
                a(f's_load_dwordx8 s[16:23], {sp(P_WS)}, {soff} glc\ns_waitcnt lgkmcnt(0)')
                for i in range(3): a(f's_cmp_eq_u64 s[{16+2*i}:{17+2*i}], s[40:41]\ns_cbranch_scc0 {lr}')
                a(f's_cmp_eq_u64 s[22:23], s[40:41]\ns_cbranch_scc1 {ld}')
            elif n == 1:
                a(f's_load_dword s16, {sp(P_WS)}, {soff} glc\ns_waitcnt lgkmcnt(0)\ns_cmp_eq_u32 s16, {sNONCE}\ns_cbranch_scc1 {ld}')
            else:
                a(f's_load_dwordx16 s[16:31], {sp(P_WS)}, {soff} glc\ns_waitcnt lgkmcnt(0)')
                for i in range(7): a(f's_cmp_eq_u64 s[{16+2*i}:{17+2*i}], s[40:41]\ns_cbranch_scc0 {lr}')
                a(f's_cmp_eq_u64 s[30:31], s[40:41]\ns_cbranch_scc1 {ld}')
            a.label(lr)
            if sleep: a(f's_sleep {sleep}')
            a(f's_sub_u32 s47, s47, 1\ns_cmp_gt_i32 s47, 0\ns_cbranch_scc1 {lp}')
            a.label(ld)
    def wait_kv(self, sleep=1):
        a = self.a; l = self.L('wkv')
        a(f's_cmp_lg_u32 {sWAVE}, 0\ns_cbranch_scc1 {l}')
        a(f's_and_b32 s8, s2, {NREP-1}\ns_lshl_b32 s8, s8, 10\ns_add_u32 s8, s8, {WS_FKV}\nv_lshlrev_b32 v2, 4, v0')
        self.poll('v2', 's8', 4, 0xffffffff, 0xffffffff, sleep)
        a.label(l)
        a('s_barrier')
    def wait_y(self, WS_PY=WS_PY, sleep=0):
        a = self.a
        a(f's_lshl_b32 s8, s73, 5\ns_add_u32 s8, s8, {sM}\ns_lshl_b32 s8, s8, 2\ns_add_u32 s8, s8, {sWAVE}\ns_lshl_b32 s8, s8, 7\ns_add_u32 s8, s8, {WS_PY}')
        self.spoll('s8', 8, sleep)
        a('s_barrier')
    def e_update(self):
        a = self.a; l = self.L('eu')
        a(f's_cmp_lg_u32 s2, 253\ns_cbranch_scc1 {l}')
        a(f'v_lshlrev_b32 v2, 8, v0\ns_lshl_b32 s8, {sWAVE}, 14\ns_add_u32 s8, s8, {WS_FA}')
        self.poll('v2', 's8', 1, 0xffffffff, 0xffffffff, 16)
        a(f'v_lshrrev_b32 v2, 3, v0\nv_lshlrev_b32 v2, 7, v2\nv_and_b32 v3, 7, v0\nv_lshl_add_u32 v2, v3, 2, v2\ns_lshl_b32 s8, {sWAVE}, 10\ns_add_u32 s8, s8, {WS_FKV}')
        self.poll('v2', 's8', 1, 0xffffffff, 0xffffffff, 16)
        a(f's_barrier\ns_cmp_lg_u32 {sWAVE}, 0\ns_cbranch_scc1 {l}')
        a(f'v_mov_b32 v2, {WS_E}\nv_mov_b32 v3, {sNONCE}\ns_mov_b64 exec, 1\nbuffer_store_dword v3, v2, {srd(R_WS)}, 0 offen sc1')
        a.label(l)
    def wo_prefetch(self):
        a = self.a
        if OPT('x5idle'): a(f's_mul_i32 s8, {sJ}, 12544')
        else: a(f's_lshl_b32 s8, {sXG}, 2\ns_and_b32 s12, {sJ}, 3\ns_add_u32 s8, s8, s12\ns_mul_i32 s8, s8, 12544')
        a(f's_lshl_b32 s12, {sWAVE}, 10\ns_add_u32 s8, s8, s12')
        for i in range(4):
            a(f'buffer_load_dwordx4 v[240:243], v15, {srd(R_B)}, s8 offen')
            if i < 3: a('s_add_u32 s8, s8, 4096')
    def build_fused(self):
        a = self.a
        kn = NAME + '_kernel'
        self.kernel_head(kn)
        if OPT('empty'): a('s_endpgm')
        self.prologue(512)
        la = self.L('roleA'); lidle = self.L('idle'); lnopf = self.L('nopf'); lnz = self.L('nonce')
        def emit_S():
            if OPT('qonly'): a('s_endpgm')
            a('s_setprio 3')
            self.s_ids(); self.s_kv_addr()
            self.after_kernarg('S')
            lq = self.L('pr'); lq2 = self.L('pr'); lq3 = self.L('pr')
            KF = False
            self.kv_srds()
            a(f's_cmp_ge_u32 {sXG}, 4\ns_cbranch_scc1 {lq}')
            self.s_kv_load()
            a.label(lq)
            lni = self.L('ni')
            a(f's_cmp_ge_u32 {sJ}, 28\ns_cbranch_scc1 {lni}')
            self.s_params_load()
            a.label(lni)
            self.code_prefetch(kn)
            self.s_kv_addr2()
            a(f's_cmp_ge_u32 {sJ}, 28\ns_cbranch_scc1 {lidle}')
            if not OPT('nolow'): a('s_setprio 0')
            a('@CUT S')
            self.mk_srd(R_B, P_U, X_BYTES); self.mk_srd(R_OUT, P_OUT, OUT_BYTES)
            def early_kv(n, part):
                l = self.L('ekv')
                a(f's_cmp_ge_u32 {sXG}, 4\ns_cbranch_scc1 {l}')
                self.s_kv_phase(n, part)
                a.label(l)
            OV = not OPT('noov')
            if OV:
                if OPT('kvpre'):
                    a('s_setprio 3'); self.nonce(5); early_kv(5, 3); a('s_setprio 2')
                a('s_lshl_b32 s8, s9, 12\nv_add_u32 v1, s8, v15')
                self.s_addr_all()
                if OPT('kvsplit'):
                    l = self.L('k2')
                    a(f's_cmp_ge_u32 {sXG}, 4\ns_cbranch_scc1 {l}')
                    self.s_kv_load(2)
                    a.label(l)
                if not OPT('kvpre'): a('s_setprio 3')
                if OPT('kvpre'): pass
                elif not OPT('kvov'):
                    self.nonce(5)
                    early_kv(5, 3)
                else:
                    early_kv(5, 1)
                    self.nonce(5)
            else:
                self.nonce(4)
                early_kv(4, 3)
                a('s_setprio 2')
                self.code_prefetch(kn)
                a('s_lshl_b32 s8, s9, 12\nv_add_u32 v1, s8, v15')
                self.s_table_load(104)
                self.s_addr_all()
            def mid_r0():
                if OV:
                    if OPT('kvov'): early_kv(0, 2)
                    a('s_setprio 2')
                    if not (not OPT('cplate')): self.code_prefetch(kn)
                    self.s_table_load(104)
            def late_kv(hold):
                a(f's_cmp_lt_u32 {sXG}, 4\ns_cbranch_scc1 {lq3}')
                if hold and not OPT('kvnohold'):
                    a(f's_lshl_b32 s8, s2, 8\ns_add_u32 s8, s8, {WS_FA}')
                    self.spoll('s8', 1, 1)
                self.s_kv_load()
                self.s_kv_phase()
                a.label(lq3)
            self.late_kv = late_kv
            self.s_kgen(mid_r0)
            if OPT('kvlate'): late_kv(False)
            if OPT('xs1'): self.stamp_flush(8); a('s_endpgm')
            self.s_u_phase()
            if OPT('xs2'): self.stamp_flush(8); a('s_endpgm')
            a('s_setprio 0')
            if not OPT('notrig') and not OPT('noA'):
                lt = self.L('trig')
                a(f's_cmp_lg_u32 {sWAVE}, 0\ns_cbranch_scc1 {lt}\ns_lshl_b32 s8, s2, 8\ns_add_u32 s8, s8, {WS_FA + 4}')
                self.spoll('s8', 1, 2)
                a.label(lt)
            a('s_barrier')
            if OPT('conv1'): a('s_setprio 1')
            self.s_conv()
            self.publish_y()
            self.s_assemble()
            self.stamp_flush(8)
            a('s_endpgm')
            a.label(lidle)
            self.mk_srd(R_B, P_WO, WQ_BYTES)
            li = self.L('ih')
            self.nonce(1)
            a(f's_cmp_lt_u32 {sXG}, 4\ns_cbranch_scc1 {li}')
            if not OPT('noA'):
                a(f's_lshl_b32 s8, s2, 8\ns_add_u32 s8, s8, {WS_FA}')
                self.spoll('s8', 1, 1)
            self.s_kv_load()
            a.label(li)
            self.s_kv_phase(0, 3)
            if not OPT('noA'):
                a(f's_lshl_b32 s8, s2, 8\ns_add_u32 s8, s8, {WS_FA}')
                self.spoll('s8', 1, 1)
            self.wo_prefetch()
            if not OPT('noA'):
                self.e_update()
            else:
                a(f'v_mov_b32 v2, {WS_E}\nv_mov_b32 v3, {sNONCE}\ns_cmp_lg_u32 s2, 253\ns_cbranch_scc1 {self.lend}\n' + 's_sleep 127\n' * 6 + f'buffer_store_dword v3, v2, {srd(R_WS)}, 0 offen sc1')
            a('s_endpgm')
        def emit_A():
            a.label(la)
            if OPT('noA'): a('s_endpgm')
            a('s_setprio 3')
            self.a_qproj()
            if OPT('qonly'):
                self.stamp_flush(10); a('s_endpgm')
            a('s_setprio 1' if not OPT('ahigh') else 's_setprio 3')
            self.a_attn(); self.a_outproj(); self.stamp_flush(10)
            a('s_endpgm')
            self.a_fallback()
            a('s_endpgm')
        head = list(a.lines); a.lines.clear()
        emit_S(); LS = list(a.lines); a.lines.clear()
        emit_A(); LA = list(a.lines); a.lines.clear()
        cs = LS.index('@CUT S'); ca = LA.index('@CUT A')
        brA = ['s_cmp_ge_u32 s2, 256', f's_cbranch_scc1 {la}']
        if OPT('flat'):
            a.lines += head + brA + LS[:cs] + LS[cs+1:] + LA[:ca] + LA[ca+1:]
        else:
            a.lines += head + brA + LS[:cs] + ['s_branch L_bodyS'] + LA[:ca+0] + LA[ca+1:] + ['L_bodyS:'] + LS[cs+1:]
        self.kernel_tail()
        return [kn], [512]
    def code_prefetch(self, kn):
        a = self.a
        lp = self.L('pc')
        a('s_getpc_b64 s[12:13]'); a.label(lp)
        a(f's_add_u32 s12, s12, {kn}-{lp}\ns_addc_u32 s13, s13, -1')
        a(f's_lshl_b32 s8, {sJ}, 2\ns_add_u32 s8, s8, {sWAVE}\ns_mul_i32 s8, s8, 320\nv_mul_u32_u24 v9, 5, v0\nv_add_u32 v9, s8, v9\nv_and_b32 v9, -4, v9\nv_min_u32 v9, L_table-4-{kn}, v9')
        a('global_load_dword v55, v9, s[12:13]' if not OPT('nocpf') else f'global_load_dword v55, v15, {sp(P_LAR)}')
    def nonce_a(self):
        self.a(f's_add_u32 {sNONCE}, {sNONCE}, 0x9e3779b9')

def table():
    import numpy as np
    def rne_bf16(j):
        u = struct.unpack('<I', struct.pack('<f', float(j)))[0]
        u = (u + 0x7fff + ((u >> 16) & 1)) & 0xffff0000
        return int(struct.unpack('<f', struct.pack('<I', u))[0])
    hi = [0,1,2,3,4,5,6,7, 256,258,260,262, 512,516,768,772, 1024,1280,1536,1792, 2048]
    out = []
    for j in range(2048):
        p = rne_bf16(j)
        b = (p >> 3) & 31
        out.append(hi.index(p - 8 * b) * 144 + 4 * b)
    lin = []
    for mh in range(2):
        for i in range(4):
            for lane in range(64):
                lin += out[16*(64*mh+lane)+4*i:16*(64*mh+lane)+4*i+4]
    return lin

def main():
    mode = sys.argv[1]; outp = sys.argv[2]; stamps = len(sys.argv) > 3 and sys.argv[3] == 'stamps'
    g = Gen(mode, stamps)
    names, grids = g.build_multi() if mode == 'multi' else g.build_fused()
    body = g.a.finalize(verbose='-v' in sys.argv)
    head = open('cdna_kernels/' + NAME + '.s.ref').read().split('; Override launch geometry')[0]
    txt = head
    if mode == 'multi':
        for n, gr in zip(names, grids): txt += f'; @launch kernel={n} grid=({gr},1,1) block=(256,1,1) lds=81920\n'
    else:
        txt += f'; @launch grid=({grids[0]},1,1) block=(256,1,1) lds=81920\n'
    txt += '.amdgcn_target "amdgcn-amd-amdhsa--gfx950"\n.text\n' + body
    txt += '.p2align 6\n.type L_table,@object\nL_table:\n'
    t = table()
    for i in range(0, 2048, 16): txt += '.long ' + ','.join(str(x) for x in t[i:i+16]) + '\n'
    txt += '.section .rodata,"a"\n'
    for n in names:
        txt += f'''.p2align 6
.amdhsa_kernel {n}
  .amdhsa_next_free_vgpr 256
  .amdhsa_next_free_sgpr 102
  .amdhsa_accum_offset 256
  .amdhsa_group_segment_fixed_size 0
  .amdhsa_kernarg_size 120
  .amdhsa_user_sgpr_count 2
  .amdhsa_user_sgpr_kernarg_segment_ptr 1
  .amdhsa_system_sgpr_workgroup_id_x 1
.end_amdhsa_kernel
'''
    open(outp, 'w').write(txt)
    print('written', outp, 'nops inserted', g.a.n_nops, 'lines', len(g.a.lines))

if __name__ == '__main__':
    main()
```

```python
import sys, struct, math
from asmdsl import Asm

NAME = 'concat_heads__ssm_conv_s4d__grouped_kv_mqa__prompt'
X_BYTES = 2048 * 896; WQ_BYTES = 448 * 896; WK_BYTES = 448 * 56; OUT_BYTES = 2048 * 1792
WS_E = 0; WS_FKV = 0x80000; WS_FU = 0x9000; WS_FY = 0xA000; WS_FO = 0xB000
WS_FA = 0x50000; WS_PO = 0xC0000; WS_PY = 0xE0000; WS_PU = 0x6C0000; WS_KV = 0x10000; WS_O = 0x100000; WS_UT = 0x300000; WS_YT = 0x500000; WS_ST = 0x700000; WS_BYTES = 0x800000
NREP = 32
def f32(x): return '0x%08x' % struct.unpack('<I', struct.pack('<f', x))[0]
LOG2E = math.log2(math.e)
CSCALE = LOG2E / math.sqrt(28.0)

sWAVE = 's3'; sXG = 's4'; sJ = 's5'; sM = 's96'
P_U, P_LAR, P_AIM, P_CRE, P_CIM, P_LDT, P_DSK, P_X = [16 + 2 * i for i in range(8)]
P_WQ, P_WK, P_WV, P_WO = 32, 34, 36, 38
P_OUT, P_DBG, P_WS = 40, 42, 44
sNONCE = 's46'
R_X = 48; R_W = 52; R_WS = 56; R_OUT = 60; R_B = 64
def srd(r): return f's[{r}:{r+3}]'
def sp(r): return f's[{r}:{r+1}]'
def vr(a, n): return f'v[{a}:{a+n-1}]' if n > 1 else f'v{a}'

def OPT(x): return x in sys.argv
OSP = ' nt' if OPT('ont') else ' sc1' if OPT('osc1') else ' sc0 sc1' if OPT('osc01') else ''
class Gen:
    def __init__(self, mode, stamps=False):
        self.a = Asm(); self.mode = mode; self.stamps = stamps; self.uid = 0
    def L(self, base):
        self.uid += 1
        return f'L_{base}_{self.uid}'
    def mk_srd(self, r, p, nbytes):
        if r == R_OUT and OPT('nostore'): nbytes = 16
        if r == R_WS and OPT('wsbig'): nbytes = 0x10000000
        self.a(f's_mov_b32 s{r}, s{p}\ns_mov_b32 s{r+1}, s{p+1}\ns_mov_b32 s{r+2}, {hex(nbytes)}\ns_mov_b32 s{r+3}, 0x20000')
    def stamp(self, i):
        if self.stamps and not ((OPT('early') or OPT('sfine') or OPT('tail') or OPT('qst') or OPT('ast') or OPT('ust')) and i > 0):
            self.a(f's_memrealtime s[{76+2*i}:{77+2*i}]')
    def fstamp(self, i):
        if self.stamps and OPT('sfine'):
            self.a(f's_memrealtime s[{76+2*i}:{77+2*i}]')
    def tstamp(self, i):
        if self.stamps and OPT('tail'):
            self.a(f's_memrealtime s[{76+2*i}:{77+2*i}]')
    def qstamp(self, i):
        if self.stamps and OPT('qst'):
            self.a(f's_memrealtime s[{76+2*i}:{77+2*i}]')
    def astamp(self, i):
        if self.stamps and OPT('ast'):
            self.a(f'{"s_memtime" if OPT("cyc") else "s_memrealtime"} s[{76+2*i}:{77+2*i}]')
    def ustamp(self, i):
        if self.stamps and OPT('ust'):
            self.a(f's_memrealtime s[{76+2*i}:{77+2*i}]')
    def estamp(self, i):
        if self.stamps and OPT('early'):
            self.a(f's_memrealtime s[{76+2*i}:{77+2*i}]')
    def cstamp(self, i):
        if self.stamps:
            self.a(f's_memtime s[{76+2*i}:{77+2*i}]')
    def stamp_flush(self, n):
        if not self.stamps: return
        a = self.a
        a('s_waitcnt lgkmcnt(0)')
        if OPT('dbgst'):
            l = self.L('dbg')
            a(f's_cmp_lg_u32 {sWAVE}, 0\ns_cbranch_scc1 {l}')
            self.mk_srd(R_X, P_DBG, 256)
            a('v_mov_b32 v2, 0')
            isA = n == 10
            for i in range(8):
                if i == 0 and isA: a('s_not_b32 s6, s76\nv_writelane_b32 v2, s6, 0')
                else: a(f'v_writelane_b32 v2, s{76+2*i}, {i}')
            a(f'v_lshlrev_b32 v1, 2, v0\nv_add_u32 v1, {0 if isA else 32}, v1\ns_mov_b64 exec, 0xff')
            a(f'buffer_atomic_umax v2, v1, {srd(R_X)}, 0 offen\ns_mov_b64 exec, -1')
            a.label(l)
            return
        a(f's_lshl_b32 s6, s2, 2\ns_add_u32 s6, s6, {sWAVE}\ns_lshl_b32 s6, s6, 6\ns_add_u32 s6, s6, {WS_ST}')
        a('v_mov_b32 v1, s6')
        for i in range(n):
            a(f'v_mov_b32 v2, s{76+2*i}\nbuffer_store_dword v2, v1, {srd(R_WS)}, 0 offen offset:{4*i}')
        a('s_getreg_b32 s7, hwreg(HW_REG_XCC_ID)\nv_mov_b32 v2, s7')
        a(f'buffer_store_dword v2, v1, {srd(R_WS)}, 0 offen offset:60')

    def prologue(self, nwg):
        a = self.a
        if self.stamps:
            for i in range(1, 10): a(f's_mov_b64 s[{76+2*i}:{77+2*i}], 0')
        self.stamp(0)
        a(f's_cmp_ge_u32 s2, {nwg}\ns_cbranch_scc1 {self.lend}')
        a('s_load_dwordx16 s[16:31], s[0:1], 0\ns_load_dwordx8 s[32:39], s[0:1], 64')
        a('s_load_dwordx4 s[40:43], s[0:1], 96\ns_load_dwordx2 s[44:45], s[0:1], 112')
        a('v_lshrrev_b32 v1, 6, v0\nv_and_b32 v0, 63, v0')
        a(f's_and_b32 {sXG}, s2, 7\ns_bfe_u32 {sJ}, s2, 0x50003')
        a(f'v_readfirstlane_b32 {sWAVE}, v1')

    def after_kernarg(self, role):
        a = self.a
        self.estamp(1)
        a('s_waitcnt lgkmcnt(0)')
        self.estamp(2)
        if OPT('stlb') and role == 'S' or OPT('atlb') and role == 'A':
            for p in (P_X, P_WQ, P_WK, P_WV, P_WS, P_LAR, P_AIM, P_CRE, P_CIM, P_U, P_WO, P_OUT):
                a(f's_load_dword s47, {sp(p)}, 0')
        self.mk_srd(R_WS, P_WS, WS_BYTES)
        a(f'buffer_load_dword v54, off, {srd(R_WS)}, 0 offset:{WS_E} sc1')

    def row7_addr(self, v0, v1, tmp, rowstride):
        a = self.a
        for v, add in ((v0, 0), (v1, 64)):
            if add: a(f'v_add_u32 {tmp}, {add}, v0')
            else: a(f'v_mov_b32 {tmp}, v0')
            a(f'v_mul_u32_u24 {v}, 147, {tmp}\nv_lshrrev_b32 {v}, 10, {v}')
            a(f'v_mul_u32_u24 {v}, {rowstride - 112}, {v}')
            a(f'v_lshl_add_u32 {v}, {tmp}, 4, {v}')

    def w128_src(self):
        a = self.a
        a(f's_lshl_b32 s8, {sWAVE}, 4\ns_mul_i32 s9, s8, 896\ns_mul_i32 s11, s7, 112\ns_add_u32 s9, s9, s11')
        a('v_lshrrev_b32 v2, 3, v0\nv_mul_u32_u24 v2, 896, v2\nv_bfe_u32 v3, v0, 4, 1\nv_lshlrev_b32 v3, 2, v3\nv_and_b32 v4, 7, v0\nv_xor_b32 v3, v3, v4')
        a('v_lshl_add_u32 v114, v3, 4, v2\nv_add_u32 v114, s9, v114\nv_add_u32 v115, 7168, v114')
    def w128_frag(self, dst, rowmul_h, sbyte):
        a = self.a
        a(f'v_bfe_u32 v2, v0, 4, 1\nv_lshlrev_b32 v2, 5, v2\nv_and_b32 v3, 3, v0\nv_lshl_add_u32 v2, v3, 3, v2\nv_add_u32 v2, {sbyte}, v2')
        a(f'v_bfe_u32 v3, v0, 3, 1\nv_lshlrev_b32 v3, 6, v3\nv_xor_b32 v2, v2, v3')
        a(f'v_lshrrev_b32 v3, 5, v0\nv_mul_u32_u24 v3, {rowmul_h}, v3\nv_bfe_u32 v4, v0, 2, 2\nv_add_u32 v3, v3, v4\nv_lshl_add_u32 {dst}, v3, 7, v2')
    def a_qproj_addr(self):
        a = self.a
        QX = 32768
        self.mk_srd(R_B, P_WO, WQ_BYTES); self.mk_srd(R_OUT, P_OUT, OUT_BYTES)
        a(f's_and_b32 s8, {sWAVE}, 1\ns_lshl_b32 s8, s8, 5')
        a('v_and_b32 v2, 31, v0\nv_add_u32 v2, s8, v2\nv_bfe_u32 v3, v2, 1, 3\nv_lshrrev_b32 v4, 5, v0\nv_xor_b32 v3, v3, v4\nv_lshlrev_b32 v2, 7, v2')
        for ks in range(4):
            a(f'v_xor_b32 v9, {2*ks}, v3\nv_lshl_add_u32 v{116+ks}, v9, 4, v2\nv_add_u32 v{121+ks}, 0x10000, v{116+ks}')
        a(f's_lshr_b32 s8, {sWAVE}, 1\ns_mul_i32 s8, s8, 56')
        self.w128_frag('v120', 8, 's8')
        a('v_add_u32 v125, 0x10000, v120\nv_lshlrev_b32 v15, 4, v0')
        a(f's_lshl_b32 s8, {sWAVE}, 11\ns_add_u32 s8, s8, {QX}\nv_add_u32 v126, s8, v15')
        for js in range(4):
            a(f's_add_u32 s8, {sWAVE}, {1+js}\ns_and_b32 s8, s8, 3\ns_lshl_b32 s9, s8, 11\ns_add_u32 s9, s9, {QX}\nv_add_u32 v{192+js}, s9, v15')
            if js < 3:
                a(f's_mul_i32 s9, s8, 12288\nv_add_u32 v{196+js}, s9, v15')
        for r in range(64, 112): a(f'v_mov_b32 v{r}, 0')
    def a_qproj(self):
        a = self.a
        QX = 32768
        REG = [0, 16384, 32768, 49152, 65536, 0, 16384]
        sQB = 's6'; sHP = 's7'
        a(f's_lshr_b32 s8, {sJ}, 3\ns_lshl_b32 {sQB}, {sXG}, 2\ns_add_u32 {sQB}, {sQB}, s8\ns_and_b32 {sHP}, {sJ}, 7')
        a(f's_lshl_b32 s8, {sWAVE}, 4\ns_lshl_b32 s9, {sQB}, 6\ns_add_u32 s9, s9, s8\ns_mul_i32 s9, s9, 896')
        a('v_lshrrev_b32 v2, 3, v0\nv_lshrrev_b32 v3, 4, v0\nv_and_b32 v4, 7, v0')
        a('v_xor_b32 v4, v4, v3\nv_mul_u32_u24 v2, 896, v2')
        a('v_lshl_add_u32 v112, v4, 4, v2\nv_add_u32 v112, s9, v112')
        a('v_xor_b32 v4, 4, v4\nv_lshl_add_u32 v113, v4, 4, v2\nv_add_u32 v113, s9, v113\nv_add_u32 v113, 7168, v113')
        a(f's_lshl_b32 s10, {sWAVE}, 11')
        self.w128_src()
        a(f's_lshr_b32 s8, {sJ}, 3\ns_lshl_b32 s8, s8, 1\ns_add_u32 s8, s8, {sHP}\ns_cmp_ge_u32 s8, 7\ns_cselect_b32 s9, 7, 0\ns_sub_u32 s8, s8, s9')
        a('s_cmp_ge_u32 s8, 7\ns_cselect_b32 s9, 7, 0\ns_sub_u32 s8, s8, s9')
        if OPT('rot2'): a(f's_lshr_b32 s8, {sJ}, 3\ns_add_u32 s8, s8, {sHP}\ns_and_b32 s8, s8, 1\ns_lshl_b32 s8, s8, 2')
        if OPT('rot2b'): a(f's_lshr_b32 s8, {sJ}, 3\ns_add_u32 s8, s8, {sHP}\ns_and_b32 s8, s8, 1\ns_mul_i32 s8, s8, 3')
        if OPT('rot1'): a('s_mov_b32 s8, 0')
        if OPT('rot4'): a(f's_lshr_b32 s8, {sJ}, 3\ns_add_u32 s8, s8, {sHP}\ns_and_b32 s8, s8, 3\ns_lshl_b32 s8, s8, 1')
        a('s_lshl_b32 s14, s8, 7\ns_mul_i32 s15, s8, 57344')
        self.after_kernarg('A')
        self.mk_srd(R_X, P_X, X_BYTES); self.mk_srd(R_W, P_WQ, WQ_BYTES)
        def loadx(i):
            a(f's_add_u32 m0, s10, {REG[i]}\ns_nop 0\nbuffer_load_dwordx4 v112, {srd(R_X)}, s14 offen lds')
            a(f's_add_u32 m0, s10, {REG[i] + 1024}\ns_nop 0\nbuffer_load_dwordx4 v113, {srd(R_X)}, s14 offen lds')
            if i < 6: a('s_add_u32 s14, s14, 128\ns_cmp_eq_u32 s14, 896\ns_cselect_b32 s14, 0, s14')
        def loadw(i):
            a(f's_add_u32 m0, s10, {REG[i] + 8192}\ns_nop 0\nbuffer_load_dwordx4 v114, {srd(R_W)}, s15 offen lds')
            a(f's_add_u32 m0, s10, {REG[i] + 8192 + 1024}\ns_nop 0\nbuffer_load_dwordx4 v115, {srd(R_W)}, s15 offen lds')
            if i < 6: a(f's_add_u32 s15, s15, 57344\ns_cmp_eq_u32 s15, {7*57344}\ns_cselect_b32 s15, 0, s15')
        def load(i): loadw(i); loadx(i)
        NF = 3 if OPT('q3') else 5 if OPT('q5') else 4
        a('s_setprio 1')
        if OPT('wfirst'): loadw(0); loadw(1); loadx(0); loadx(1)
        else: loadx(0); loadw(0); loadx(1); loadw(1)
        a('@CUT A')
        self.a_qproj_addr(); self.a_attn_setup(); self.a_tail_addr()
        for i in range(2, NF): load(i)
        if not OPT('shi'): a('s_setprio 3')
        self.estamp(3)
        FX = (144, 176); FW = (160, 232); ACC = 48
        issued = NF
        def rd(i):
            hi = REG[i] >= 65536
            off = REG[i] - (65536 if hi else 0)
            for ks in range(4):
                a(f'ds_read_b128 {vr(FX[i&1]+4*ks,4)}, v{(121 if hi else 116)+ks} offset:{off}')
                for t in range(2):
                    a(f'ds_read_b64_tr_b16 {vr(FW[i&1]+4*ks+2*t,2)}, v{125 if hi else 120} offset:{off + 8192 + (16*ks+4*t)*128}')
        def mm(i, waits):
            for ks in range(4):
                c = '0' if (i == 0 and ks == 0) else vr(ACC, 16)
                if waits[ks] is not None: a(f's_waitcnt lgkmcnt({waits[ks]})')
                a(f'v_mfma_f32_32x32x16_bf16 {vr(ACC,16)}, {vr(FW[i&1]+4*ks,4)}, {vr(FX[i&1]+4*ks,4)}, {c}')
        extra = 0; FLS = 4 if OPT('fl4') else 5
        for i in range(7):
            a(f's_waitcnt vmcnt({4*(issued - 1 - i) - (2 if i == 0 and OPT("wfirst") else 0) + extra}) lgkmcnt(0)\ns_barrier')
            if i == 0: self.stamp(1); self.estamp(4)
            if i == 3: self.estamp(5)
            if i == 6: self.estamp(6)
            self.qstamp(i + 1)
            if (i == 6 and OPT('flvec')) or (i == 5 and OPT('flvec5')) or (i == 6 and OPT('flvec6')):
                a(f's_mov_b64 exec, 0xffff\nbuffer_load_dword v250, v251, {srd(R_WS)}, s36 offen sc1\ns_mov_b64 exec, -1'); extra += 1
            rd(i)
            if i and i < 6: mm(i - 1, [None] * 4)
            while issued < 7 and issued <= i + NF and (issued < 5 or issued - 5 < i): load(issued); issued += 1
            if i == 0:
                a(f'v_readfirstlane_b32 {sNONCE}, v54\ns_add_u32 {sNONCE}, {sNONCE}, 0x9e3779b9\ns_mov_b32 s40, {sNONCE}\ns_mov_b32 s41, {sNONCE}\nv_mov_b32 v199, {sNONCE}')
            if i == (5 if OPT('fa5') else 3):
                assert issued == 7
                a(f'buffer_store_dword v199, v248, {srd(R_WS)}, s69 offen sc1'); extra += 1
            if i == 5:
                mm(5, [9, 6, 3, 0])
                if OPT('flpre'):
                    a('s_mov_b32 s14, 0')
                    for x in self.fl_load(): a(x)
        mm(6, [9, 6, 3, 0])
        V2 = OPT('flvec5') or OPT('flvec6')
        if V2:
            lno = self.L('nokv')
            a(f's_waitcnt vmcnt(0)\ns_mov_b64 exec, 0xffff\nv_cmp_ne_u32 vcc, v250, v199\ns_mov_b64 exec, -1\ns_cbranch_vccnz {lno}')
            self.kv_first([0])
            a('s_mov_b32 s75, 1')
            a.label(lno)
        if OPT('flpre'):
            lno = self.L('nokv')
            for x in self.fl_test()[1:]: a(x)
            a(f's_cbranch_scc1 {lno}')
            self.kv_first([0])
            a('s_mov_b32 s75, 1')
            a.label(lno)
        for r in range(8): a(f'v_mov_b32 v{184+r}, 0')
        for r in range(8): a(f'v_cvt_pk_bf16_f32 v{224+r}, v{ACC+2*r}, v{ACC+2*r+1}')
        a('s_mov_b32 exec_lo, 0\nv_mov_b32 v230, 0\nv_mov_b32 v231, 0\ns_mov_b32 exec_lo, -1')
        a('ds_write_b128 v126, v[224:227]\nds_write_b128 v126, v[228:231] offset:1024')
        for r in range(48, 64): a(f'v_mov_b32 v{r}, 0')
        a('s_waitcnt lgkmcnt(0)')
        if not OPT('flpre') and not OPT('flvec') and not V2:
            a('s_mov_b32 s14, 0')
            for x in self.fl_load(): a(x)
        a('s_barrier')
        for js in range(4):
            a(f'ds_read_b128 {vr(16+8*js,4)}, v{192+js}\nds_read_b128 {vr(20+8*js,4)}, v{192+js} offset:1024')
        lno2 = self.L('nokv')
        if OPT('flvec'):
            a(f's_waitcnt vmcnt(0)\ns_mov_b64 exec, 0xffff\nv_cmp_ne_u32 vcc, v250, v199\ns_mov_b64 exec, -1\ns_cbranch_vccnz {lno2}\ns_mov_b32 s75, 1')
            self.kv_first([0])
        elif not OPT('flpre') and not V2:
            for x in self.fl_test(): a(x)
            a(f's_cbranch_scc1 {lno2}\ns_mov_b32 s75, 1')
            self.kv_first([0])
        else: a(f's_cmp_eq_u32 s75, 0\ns_cbranch_scc1 {lno2}')
        self.kv_first([1, 2, 3])
        a.label(lno2)
        self.stamp(2); self.estamp(7)

    KB_ = (112, 128, 200, 216); CK = ['s32', 's33', 's34', 's35']
    def ldK(self, buf): return ['s_nop 0', 's_nop 0'] if OPT('nold') and getattr(self, 'inloop', 0) else [f'buffer_load_dwordx4 {vr(self.KB_[buf] + 4*f, 4)}, v15, {srd(R_WS)}, s68 offen offset:{1024*f} sc1' for f in range(2)]
    def ldV(self, buf): return ['s_nop 0', 's_nop 0'] if OPT('nold') and getattr(self, 'inloop', 0) else [f'buffer_load_dwordx4 {vr(self.KB_[buf] + 8 + 4*f, 4)}, v15, {srd(R_WS)}, s68 offen offset:{2048+1024*f} sc1' for f in range(2)]
    def fl_load(self, g='s14'):
        return [f's_lshr_b32 s8, {g}, 6', 's_add_u32 s8, s8, s36', f's_load_dwordx8 s[16:23], {sp(P_WS)}, s8 glc', 's_add_u32 s9, s8, 512', f's_load_dwordx8 s[24:31], {sp(P_WS)}, s9 glc']
    def fl_test(self):
        out = ['s_waitcnt lgkmcnt(0)', 's_xor_b64 s[16:17], s[16:17], s[40:41]']
        for i in range(1, 8): out += [f's_xor_b64 s[{16+2*i}:{17+2*i}], s[{16+2*i}:{17+2*i}], s[40:41]', f's_or_b64 s[16:17], s[16:17], s[{16+2*i}:{17+2*i}]']
        return out
    def fl_check(self):
        lr = self.L('kvspin'); lb = self.L('kvback')
        self.spins.append((lr, lb))
        return self.fl_test() + [f's_cbranch_scc1 {lr}', lb + ':']
    def kv_first(self, bs=range(4)):
        for b in bs:
            self.a(f's_mov_b32 s68, {self.CK[b]}')
            for x in self.ldK(b) + (self.ldV(b) if b < 3 else []): self.a(x)
    def a_attn_setup(self):
        a = self.a
        self.spins = []
        a(f's_lshl_b32 s8, {sWAVE}, 13\ns_add_u32 s8, s8, {WS_KV}\ns_mov_b32 s37, s8')
        for k in range(4):
            a(f's_add_u32 s9, {sJ}, {k}\ns_and_b32 s12, s9, 1\ns_lshl_b32 s12, s12, 12\ns_and_b32 s9, s9, 2\ns_lshl_b32 s9, s9, 14\ns_add_u32 s9, s9, s12\ns_add_u32 s{32+k}, s8, s9')
        a(f's_and_b32 s36, s2, {NREP-1}\ns_lshl_b32 s36, s36, 12\ns_lshl_b32 s8, {sWAVE}, 7\ns_add_u32 s36, s36, s8\ns_add_u32 s36, s36, {WS_FKV}')
        a('s_mov_b32 s38, 0x07060302')
        a(f's_and_b32 s69, s2, 255\ns_lshl_b32 s69, s69, 8\ns_add_u32 s69, s69, {WS_FA}\nv_mov_b32 v248, 0')
        if OPT('flvec') or OPT('flvec5') or OPT('flvec6'): a('v_and_b32 v251, 7, v0\nv_lshlrev_b32 v251, 2, v251\nv_bfe_u32 v250, v0, 3, 1\nv_lshl_add_u32 v251, v250, 9, v251')
        a(f's_lshl_b32 s71, {sWAVE}, 10\ns_mul_i32 s8, {sWAVE}, 7168\ns_lshl_b32 s9, s7, 4\ns_sub_u32 s8, s9, s8\nv_add_u32 v249, s8, v114')
        a(f's_cmp_eq_u32 s7, 7\ns_cselect_b32 s{R_B+2}, 0, s{R_B+2}')
        a('s_mov_b32 s72, 0\ns_mov_b32 s73, 0\ns_mov_b32 s75, 0')
    def a_attn(self):
        a = self.a
        Q = 16; O = 48; SS = (144, 160); PP = (176, 184)
        KB_ = (112, 128, 200, 216)
        K = lambda buf, f: vr(KB_[buf] + 4*f, 4)
        Vv = lambda buf, f: vr(KB_[buf] + 8 + 4*f, 4)
        sG = 's14'; sF = 's36'; sOFF = 's68'; sCNT = 's70'; sSEQ = 's74'; CK = self.CK
        fl_load = self.fl_load; fl_check = self.fl_check; ldK = self.ldK; ldV = self.ldV
        for r in range(8): a(f'v_mov_b32 v{KB_[3]+8+r}, 0')
        lgo = self.L('go')
        a(f's_cmp_lg_u32 s75, 0\ns_cbranch_scc1 {lgo}')
        self.lagain = self.L('again')
        a.label(self.lagain)
        a(f's_mov_b32 {sG}, 0')
        for x in fl_load() + fl_check(): a(x)
        self.kv_first()
        a.label(lgo)
        a(f's_mov_b32 {sSEQ}, 0x462')
        self.stamp(3); self.cstamp(8); self.astamp(1)
        def nxtG(): return [f's_and_b32 s39, {sSEQ}, 15', 's_lshl_b32 s39, s39, 15', f's_lshr_b32 {sSEQ}, {sSEQ}, 4']
        def mA(u, buf, f):
            s = SS[u & 1]; c = '0' if f == 0 else vr(s, 16)
            return f'v_mfma_f32_32x32x16_bf16 {vr(s,16)}, {K(buf,f)}, {vr(Q + 8*(u&3) + 4*f, 4)}, {c}'
        def mC(u, buf, f):
            o = vr(O + 16*(u & 3), 16)
            return f'v_mfma_f32_32x32x16_bf16 {o}, {Vv(buf,f)}, {vr(PP[u&1] + 4*f, 4)}, {o}'
        a('s_waitcnt lgkmcnt(0)')
        if OPT('tlb'):
            a(f's_mov_b64 exec, 1\nbuffer_load_dword v252, v248, {srd(R_WS)}, s42 offen\nbuffer_load_dword v253, v248, {srd(R_OUT)}, s98 offen\ns_mov_b64 exec, -1')
        for x in nxtG() + fl_load('s39'): a(x)
        a(f's_waitcnt vmcnt({14 if OPT("tlb") else 12})')
        self.astamp(2)
        a(mA(0, 0, 0)); a(mA(0, 0, 1))
        a(f's_mov_b32 {sCNT}, 3')
        def unit(u, mf, extra):
            s = SS[u & 1]; p = PP[u & 1]
            e = lambda i: f'v_exp_f32 v{s+i}, v{s+i}'
            c = (lambda i: f'v_cvt_pk_bf16_f32 v{p+i}, v{s+2*i}, v{s+2*i+1}') if OPT('cvt') else (lambda i: f'v_perm_b32 v{p+i}, v{s+2*i+1}, v{s+2*i}, s38')
            Lq = [e(0), e(1), e(2), e(3), c(0), e(4), e(5), c(1), e(6), e(7), c(2), e(8), e(9), c(3), e(10), e(11), c(4), e(12), e(13), c(5), e(14), e(15), c(6), c(7)]
            sp_ = (4, 4, 4, 12) if OPT('hole') else (6, 6, 6, 6)
            seq = [Lq[sum(sp_[:i]):sum(sp_[:i+1])] for i in range(4)]
            for i in range(4):
                for x in extra.get(('pre', i), []): a(x)
                if mf[i]: a(mf[i])
                for x in extra.get(i, []): a(x)
                for x in seq[i]: a(x)
        lloop = self.L('attn'); self.inloop = 1
        TRIG = [int(x[4:]) for x in sys.argv if x.startswith('trig') and x[4:].isdigit()]
        TRL = [int(x[5:]) for x in sys.argv if x.startswith('trigL')]
        if not TRIG and not TRL: TRIG = [2]
        TRI = 2 if OPT('trigIt2') else 1
        TRIG = TRIG[0] if TRIG else 99
        WOR = list(range(8, 15))
        WOU = list(range(2, 10))
        W = lambda n, u, slot: n + (1 if (u, slot) > (TRIG, 0) else 0) + sum(1 for x in WOU if (u, slot) > (x, 1)) + sum(1 for x in WOR if (u, slot) > (x, 3))
        def body(tail):
            for u in range(16):
                t = u >> 2; b = u & 3
                nu = u + 1; nbuf = (nu >> 2) & 3
                pu = u - 1; pbuf = ((pu >> 2) & 3)
                mf = [mA(nu, nbuf, 0), mA(nu, nbuf, 1), mC(pu, pbuf, 0), mC(pu, pbuf, 1)]
                ex = {}
                if tail and u == 15: mf = [mC(pu, pbuf, 0), mC(pu, pbuf, 1), None, None]
                if b == 3:
                    if not tail:
                        ex[('pre', 0)] = ['s_waitcnt vmcnt(10)']
                        ex[0] = [f's_add_u32 {sOFF}, {sG}, {CK[t]}']
                        ex[2] = [ldK(t)[0]]; ex[3] = [ldK(t)[1]]
                    elif t < 3:
                        ex[('pre', 0)] = [f's_waitcnt vmcnt({W(10 - 4*t, u, 0)})']
                if b == 1:
                    if not tail or t == 0:
                        assert TRIG >= 2
                        ex[('pre', 2)] = ['s_waitcnt vmcnt(10)']
                        ex[2] = [ldV((t - 1) & 3)[0]]; ex[3] = [ldV((t - 1) & 3)[1]]
                    else:
                        ex[('pre', 2)] = [f's_waitcnt vmcnt({W(12 - 4*t, u, 2)})']
                if tail and u == TRIG:
                    ex.setdefault(0, []).append(f'buffer_store_dword v199, v248, {srd(R_WS)}, s69 offen offset:4 sc1')
                if not tail and not OPT('nospread'):
                    if u == 0: self.c_ = fl_check()
                    g_ = nxtG() + fl_load('s39')
                    plan = {(12, 0): g_[0:1], (12, 1): g_[1:2], (12, 2): g_[2:3], (12, 3): g_[3:4], (13, 0): g_[4:5], (13, 1): g_[5:6], (14, 1): g_[6:7], (14, 2): g_[7:8]}
                    c_ = self.c_
                    slots = [(0, 1), (0, 2), (0, 3), (1, 0), (1, 1), (2, 0), (2, 1), (2, 2), (2, 3)]
                    per = [2, 2, 2, 2, 2, 2, 2, 2, 3]; k = 0
                    for sl, n in zip(slots, per): plan[sl] = c_[k:k+n]; k += n
                    plan[(0, 0)] = [f's_mov_b32 {sG}, s39']
                    for (uu, sl), xs in plan.items():
                        if uu == u: ex.setdefault(sl, []).extend(xs)
                if not tail and OPT('nospread'):
                    if u == 0:
                        ex[0] = [f's_mov_b32 {sG}, s39']
                    if u == 14:
                        g_ = nxtG() + fl_load('s39')
                        ex.setdefault(1, []).extend(g_[:2]); ex.setdefault(2, []).extend(g_[2:4]); ex.setdefault(3, []).extend(g_[4:6])
                        self.g_rest = g_[6:]
                    if u == 15:
                        ex.setdefault(1, []).extend(self.g_rest)
                    if u == 1:
                        c0 = ['s_waitcnt lgkmcnt(0)', 's_xor_b64 s[16:17], s[16:17], s[40:41]']
                        for i in range(1, 4): c0 += [f's_xor_b64 s[{16+2*i}:{17+2*i}], s[{16+2*i}:{17+2*i}], s[40:41]', f's_or_b64 s[16:17], s[16:17], s[{16+2*i}:{17+2*i}]']
                        ex.setdefault(0, []).extend(c0[:2]); ex.setdefault(1, []).extend(c0[2:4]); ex.setdefault(2, []).extend(c0[4:6]); ex.setdefault(3, []).extend(c0[6:])
                    if u == 2:
                        c_ = fl_check(); self.c_ = c_
                        ex[0] = c_[8:10]; ex[1] = c_[10:12]; ex[2] = c_[12:14]; ex[3] = c_[14:]
                if not tail and TRL and u == TRL[0]:
                    lsk = self.L('tsk')
                    assert u not in (1, 2, 14, 15)
                    ex.setdefault(1, []).extend([f's_cmp_lg_u32 {sCNT}, {TRI}', f's_cbranch_scc1 {lsk}', f'buffer_store_dword v199, v248, {srd(R_WS)}, s69 offen offset:4 sc1', lsk + ':'])
                if tail and u in WOU:
                    i = WOU.index(u)
                    ex.setdefault(0, []).append(f's_add_u32 m0, s71, {self.WOB + 1024*(25+4*i)}')
                    ex.setdefault(('pre', 1), []).append(f's_mov_b32 s13, {(25+4*i)*7168}')
                    ex.setdefault(1, []).append(f'buffer_load_dwordx4 v249, {srd(R_B)}, s13 offen lds')
                if tail and u in WOR:
                    i = WOR.index(u)
                    ex.setdefault(2, []).append(f's_mov_b32 s11, {4*i*7168}')
                    ex.setdefault(3, []).append(f'buffer_load_dwordx4 {vr(112+4*i,4)}, v249, {srd(R_B)}, s11 offen')
                if tail and u == 14:
                    for g in range(4): ex.setdefault((1,2,2,3)[g], []).append(f'ds_write_b128 v196, {vr(O+4*g,4)} offset:{g*1024}')
                if tail and u == 15:
                    for g in range(4): ex.setdefault((1,2,2,3)[g], []).append(f'ds_write_b128 v197, {vr(O+16+4*g,4)} offset:{4096+g*1024}')
                if not tail and u == 14:
                    ex.setdefault(0, []).append(f's_sub_u32 {sCNT}, {sCNT}, 1')
                unit(u, mf, ex)
        a('s_nop 10\n.p2align 4')
        a.label(lloop)
        body(False)
        if self.stamps and OPT('ast'):
            for k in range(3):
                l = self.L('ast')
                a(f's_cmp_lg_u32 {sCNT}, {2-k}\ns_cbranch_scc1 {l}'); self.astamp(3 + k); a.label(l)
        a(f's_cmp_lg_u32 {sCNT}, 0\ns_cbranch_scc1 {lloop}')
        body(True)
        self.astamp(6)
        a('s_setprio 3')
        a(mC(15, 3, 0)); a(mC(15, 3, 1))
        for g in range(4): a(f'ds_write_b128 v198, {vr(O+32+4*g,4)} offset:{8192+g*1024}')
        a('s_waitcnt lgkmcnt(0)\ns_barrier')
        self.stamp(4); self.cstamp(9); self.tstamp(1); self.astamp(7)
        RD = 144
        for i in range(12): a(f'ds_read_b128 {vr(RD+4*i,4)}, v2 offset:{i*1024}')
        F = O + 48
        for s in range(3):
            a(f's_waitcnt lgkmcnt({8-4*s})')
            PK = OPT('pkred')
            order = list(range(0, 16, 2 if PK else 1))
            if s == 2: order = [12] + [r for r in order if r != 12]
            for n, r in enumerate(order):
                a(f'v_pk_add_f32 {vr(F+r,2)}, {vr(F+r,2)}, {vr(RD+16*s+r,2)}' if PK else f'v_add_f32 v{F+r}, v{F+r}, v{RD+16*s+r}')
                if s == 2 and n == 1: a(f'v_mov_b32 v208, v{F+12}\nv_mov_b32 v209, v{F+12}')
                if s == 2 and n == 4: a('v_permlane32_swap_b32 v208, v209')
                if s == 2 and n == (6 if PK else 7): a('v_rcp_f32 v208, v209')
        if not OPT('olate'): a(f's_load_dwordx8 s[16:23], {sp(P_WS)}, s100 glc')
        if OPT('pkred'):
            for r in range(0, 16, 2): a(f'v_pk_mul_f32 {vr(F+r,2)}, {vr(F+r,2)}, v[208:209] op_sel_hi:[1,0]')
        else:
            for r in range(16): a(f'v_mul_f32 v{F+r}, v{F+r}, v208')
        for r in range(8): a(f'v_cvt_pk_bf16_f32 v{200+r}, v{F+2*r}, v{F+2*r+1}')
        a('s_mov_b32 exec_lo, 0\nv_mov_b32 v206, 0\nv_mov_b32 v207, 0\ns_mov_b32 exec_lo, -1')
        self.lnopub = self.L('nopub'); self.lskip = self.L('skip')
        a(f's_mov_b32 s12, 0\ns_cmp_lg_u32 s73, 0\ns_cbranch_scc1 {self.lskip}')
        a(f'buffer_store_dwordx4 v[200:203], v15, {srd(R_WS)}, s42 offen sc1')
        a(f'buffer_store_dwordx4 v[204:207], v15, {srd(R_WS)}, s42 offen offset:1024 sc1')
        a('s_mov_b32 s9, 0x3f803f80\nv_mov_b32 v210, 0')
        for r in range(8): a(f'v_dot2_f32_bf16 v210, v{200+r}, s9, v210')
        a(f's_mov_b32 s12, {f32(2.0**64)}\nv_mov_b32 v211, 0x207\nv_cmp_nle_f32 vcc, {f32(2.0**-64)}, v209\nv_cmp_nge_f32 s[10:11], s12, v209')
        a('s_or_b64 s[10:11], s[10:11], vcc\nv_cmp_class_f32 vcc, v210, v211\ns_or_b64 s[10:11], s[10:11], vcc')
        a('s_cmp_lg_u64 s[10:11], 0\ns_cselect_b32 s12, 1, 0\ns_andn2_b32 s12, s12, s72')
        a(f's_cbranch_scc1 {self.lskip}')
        self.tstamp(2)
        a('s_waitcnt vmcnt(0)')
        self.tstamp(3)
        a(f's_mov_b64 exec, 0x7f\nbuffer_store_dword v199, v7, {srd(R_WS)}, s43 offen sc1\ns_mov_b64 exec, -1\ns_mov_b32 s73, 1')
        a.label(self.lnopub)
        self.stamp(5)
        self.lfb = self.L('fallback')
        a('v_mov_b32 v210, s12\nds_write_b32 v4, v210 offset:3588')
        a('s_waitcnt lgkmcnt(0)\ns_barrier')
        if OPT('olate'): a(f's_load_dwordx8 s[16:23], {sp(P_WS)}, s100 glc')
        for k in range(4): a(f'ds_read_b32 v{212+k}, v248 offset:{3588+16*k}')
        a(f's_waitcnt lgkmcnt(0)\nv_or3_b32 v212, v212, v213, v214\nv_or_b32 v212, v212, v215\nv_cmp_ne_u32 vcc, 0, v212\ns_cbranch_vccnz {self.lfb}')

    def a_tail_addr(self):
        a = self.a
        XCH = 0
        a(f's_lshr_b32 s12, {sWAVE}, 1\ns_and_b32 s13, {sWAVE}, 1')
        a(f's_lshl_b32 s8, s6, 1\ns_add_u32 s8, s8, s13\ns_lshl_b32 s39, s8, 15\ns_add_u32 s39, s39, {WS_O}')
        a('s_lshl_b32 s9, s7, 1\ns_add_u32 s9, s9, s12\ns_lshl_b32 s9, s9, 11\ns_add_u32 s42, s39, s9')
        a(f's_lshl_b32 s8, s6, 12\ns_add_u32 s8, s8, {WS_PO}\ns_lshr_b32 s9, s7, 2\ns_and_b32 s11, s7, 3\ns_cmp_eq_u32 s9, s12\ns_cselect_b32 s101, s11, 9')
        a('s_lshl_b32 s9, s9, 1\ns_add_u32 s9, s9, s13\ns_lshl_b32 s9, s9, 7\ns_add_u32 s9, s9, s8\nv_lshl_add_u32 v7, v0, 9, s9')
        a(f's_lshl_b32 s9, s7, 2\ns_add_u32 s9, s9, {sWAVE}\ns_lshl_b32 s9, s9, 7\ns_add_u32 s100, s8, s9')
        a('s_lshl_b32 s9, s11, 1\ns_add_u32 s9, s9, s12\ns_lshl_b32 s43, s9, 2')
        a('s_lshl_b32 s8, s12, 6')
        self.w128_frag('v14', 4, 's8')
        a(f's_and_b32 s9, s7, 1\ns_lshl_b32 s11, s12, 1\ns_add_u32 s11, s11, s9\ns_xor_b32 s9, s11, 1\ns_lshl_b32 s96, s11, 13\ns_lshl_b32 s97, s9, 13\ns_add_u32 s96, s96, s39\ns_add_u32 s97, s97, s39')
        a(f's_mul_i32 s8, s11, {112*128}\ns_mul_i32 s9, s9, {112*128}\ns_add_u32 s8, s8, {self.WOB}\ns_add_u32 s9, s9, {self.WOB}')
        a('v_add_u32 v12, s9, v14\nv_add_u32 v14, s8, v14\nv_xor_b32 v13, 64, v14\nv_xor_b32 v11, 64, v12')
        a(f's_xor_b32 s9, {sWAVE}, 2\ns_lshl_b32 s9, s9, 12\nv_add_u32 v5, s9, v15\ns_lshl_b32 s9, {sWAVE}, 12\nv_add_u32 v6, s9, v15')
        a(f's_mul_i32 s9, s13, {32*144}\ns_lshl_b32 s11, s12, 6\ns_add_u32 s9, s9, s11\ns_add_u32 s9, s9, 16384')
        a('v_lshrrev_b32 v4, 5, v0\nv_and_b32 v9, 31, v0\nv_mul_u32_u24 v9, 144, v9\nv_lshl_add_u32 v9, v4, 4, v9\nv_add_u32 v9, s9, v9')
        a(f'v_lshrrev_b32 v2, 3, v0\nv_and_b32 v3, 7, v0\nv_lshlrev_b32 v3, 4, v3\nv_mul_u32_u24 v10, 144, v2\ns_mul_i32 s9, {sWAVE}, {16*144}\ns_add_u32 s9, s9, 16384\nv_add3_u32 v10, v10, v3, s9')
        a(f'v_mul_u32_u24 v8, 1792, v2\nv_add_u32 v8, v8, v3\ns_lshl_b32 s8, s6, 2\ns_add_u32 s8, s8, {sWAVE}\ns_mul_i32 s8, s8, {16*1792}\ns_lshl_b32 s9, s7, 7\ns_add_u32 s8, s8, s9\ns_add_u32 s98, s8, 896\ns_add_u32 s99, s98, {8*1792}')
        a(f'v_add_u32 v1, s71, v15\ns_mul_i32 s8, {sWAVE}, 12288\nv_add_u32 v2, s8, v15\ns_lshl_b32 s8, {sWAVE}, 4\nv_mov_b32 v4, s8')

    def a_fallback(self):
        a = self.a
        lp = self.L('fbl')
        for lr, lb in self.spins:
            l2 = self.L('kvs'); l3 = self.L('kvs')
            a.label(lr)
            a(f's_mov_b32 s47, {self.SPIN}')
            a.label(l2)
            a(f's_sleep 2\ns_sub_u32 s47, s47, 1\ns_cmp_gt_i32 s47, 0\ns_cbranch_scc0 {lb}')
            a(f's_load_dwordx8 s[16:23], {sp(P_WS)}, s8 glc\ns_load_dwordx8 s[24:31], {sp(P_WS)}, s9 glc\ns_waitcnt lgkmcnt(0)')
            for i in range(8): a(f's_cmp_eq_u64 s[{16+2*i}:{17+2*i}], s[40:41]\ns_cbranch_scc0 {l2}')
            a(f's_branch {lb}')
        a.label(self.lskip)
        a(f's_waitcnt vmcnt(0)\ns_branch {self.lnopub}')
        a.label(self.lfb)
        a(f's_barrier\ns_mov_b32 s72, 1\ns_mov_b32 s70, 16\ns_mov_b32 s68, s37')
        for js in range(4): a(f'v_mov_b32 v{240+js}, 0xff800000')
        a.label(lp)
        a(f'buffer_load_dwordx4 v[112:115], v15, {srd(R_WS)}, s68 offen sc1\nbuffer_load_dwordx4 v[116:119], v15, {srd(R_WS)}, s68 offen offset:1024 sc1')
        a('s_bitcmp1_b32 s70, 0\ns_cselect_b32 s8, 7, 1\ns_lshl_b32 s8, s8, 12\ns_add_u32 s68, s68, s8\ns_waitcnt vmcnt(0)')
        for js in range(4):
            a(f'v_mfma_f32_32x32x16_bf16 v[144:159], v[112:115], {vr(16+8*js,4)}, 0\nv_mfma_f32_32x32x16_bf16 v[144:159], v[116:119], {vr(20+8*js,4)}, v[144:159]')
            for r in range(0, 16, 2): a(f'v_max3_f32 v{240+js}, v{240+js}, v{144+r}, v{145+r}')
        a(f's_sub_u32 s70, s70, 1\ns_cmp_lg_u32 s70, 0\ns_cbranch_scc1 {lp}')
        a(f's_lshl_b32 s8, {sWAVE}, 8\nv_lshl_add_u32 v244, v0, 2, s8\nv_lshlrev_b32 v245, 2, v0')
        for js in range(4):
            a(f'v_mov_b32 v246, v{240+js}\nv_mov_b32 v247, v{240+js}\nv_permlane32_swap_b32 v246, v247\nv_max_f32 v{240+js}, v246, v247')
            a(f's_add_u32 s8, {sWAVE}, {1+js}\ns_and_b32 s8, s8, 3\ns_lshl_b32 s8, s8, 10\nv_add_u32 v246, s8, v244\nv_add_u32 v{236+js}, s8, v245')
            a(f'ds_write_b32 v246, v{240+js} offset:1024')
        a('s_waitcnt lgkmcnt(0)\ns_barrier')
        for js in range(4):
            a(f'ds_read2st64_b32 v[246:247], v{236+js} offset0:4 offset1:5\nds_read2st64_b32 v[250:251], v{236+js} offset0:6 offset1:7\ns_waitcnt lgkmcnt(0)')
            a('v_max3_f32 v246, v246, v247, v250\nv_max_f32 v246, v246, v251')
            a('v_xor_b32 v246, 0x80000000, v246\nv_and_b32 v247, 0xffff0000, v246\nv_sub_f32 v246, v246, v247\nv_and_b32 v250, 0xffff0000, v246\nv_sub_f32 v246, v246, v250')
            a(f's_mov_b32 exec_lo, 0\nv_lshrrev_b32 v247, 16, v247\nv_or_b32 v{22+8*js}, v247, v250\nv_lshrrev_b32 v{23+8*js}, 16, v246\ns_mov_b32 exec_lo, -1')
        for r in list(range(48, 112)) + list(range(184, 192)) + list(range(224, 232)): a(f'v_mov_b32 v{r}, 0')
        a(f's_barrier\ns_branch {self.lagain}')

    WOB = 23552
    def a_outproj(self):
        a = self.a
        a(f's_cmp_eq_u32 s7, 7\ns_cbranch_scc1 {self.lend}')
        self.tstamp(4)
        OF = 16; WF = 144; ACC = (80, 96)
        lp = self.L('wo'); lall = self.L('wall'); lone = self.L('wone'); ljoin = self.L('wjoin'); lp2 = self.L('wo'); lok2 = self.L('wok')
        def test():
            for i in range(4):
                a(f's_cmp_eq_u32 s101, {i}\ns_cselect_b64 s[{16+2*i}:{17+2*i}], s[40:41], s[{16+2*i}:{17+2*i}]\ns_xor_b64 s[{16+2*i}:{17+2*i}], s[{16+2*i}:{17+2*i}], s[40:41]')
            a('s_or_b64 s[16:17], s[16:17], s[18:19]\ns_or_b64 s[20:21], s[20:21], s[22:23]')
        def rd(i, lo, hi):
            hd, f = (i >> 1) & 3, i & 1
            b = WF + 8 * (i & 3)
            for ct in range(2):
                for t in range(2):
                    a(f'ds_read_b64_tr_b16 {vr(b+4*ct+2*t,2)}, v{(lo if i < 8 else hi)-ct} offset:{(28*hd+16*f+8*t)*128}')
        def stage(n, first, srcs, lo, hi, wo):
            for i in range(n):
                if i == 4: a(f's_add_u32 {srcs[0]}, {srcs[0]}, 4096')
                if i == 12: a(f's_add_u32 {srcs[1]}, {srcs[1]}, 4096')
                a(f'buffer_load_dwordx4 {vr(OF+4*i,4)}, v15, {srd(R_WS)}, {srcs[0] if i < 8 else srcs[1]} offen offset:{(i%4)*1024} sc1')
                if wo and i < 7: a(f'ds_write_b128 v1, {vr(112+4*i,4)} offset:{self.WOB + 4096*i}')
            if wo: a('s_waitcnt lgkmcnt(0)\ns_barrier')
            for i in range(3): rd(i, lo, hi)
            for i in range(n):
                if i + 3 < n: rd(i + 3, lo, hi)
                left = min(3, n - 1 - i)
                a(f's_waitcnt vmcnt({n-1-i}) lgkmcnt({4*left})')
                b = WF + 8 * (i & 3)
                for ct in (1, 0):
                    c = '0' if (i == 0 and first) else vr(ACC[ct], 16)
                    a(f'v_mfma_f32_32x32x16_bf16 {vr(ACC[ct],16)}, {vr(b+4*ct,4)}, {vr(OF+4*i,4)}, {c}')
        a(f's_mov_b32 s47, {self.SPIN}')
        a.label(lp)
        test()
        a(f's_or_b64 s[18:19], s[16:17], s[20:21]\ns_cbranch_scc0 {lall}')
        a(f's_load_dwordx8 s[16:23], {sp(P_WS)}, s100 glc\ns_sub_u32 s47, s47, 1\ns_cmp_gt_i32 s47, 0\ns_waitcnt lgkmcnt(0)\ns_cbranch_scc1 {lp}')
        a.label(lall)
        self.stamp(6); self.tstamp(5)
        stage(16, True, ('s96', 's97'), 14, 12, True)
        self.tstamp(6)
        for g in range(4): a(f'ds_write_b128 v5, {vr(ACC[1]+4*g,4)} offset:{g*1024}')
        a('s_waitcnt lgkmcnt(0)\ns_barrier')
        for g in range(4): a(f'ds_read_b128 {vr(16+4*g,4)}, v6 offset:{g*1024}')
        a('s_waitcnt lgkmcnt(0)')
        for r in range(16): a(f'v_add_f32 v{ACC[0]+r}, v{ACC[0]+r}, v{16+r}')
        for r in range(8): a(f'v_cvt_pk_bf16_f32 v{32+r}, v{ACC[0]+2*r}, v{ACC[0]+2*r+1}')
        a('v_permlane32_swap_b32 v32, v34\nv_permlane32_swap_b32 v33, v35\nv_permlane32_swap_b32 v36, v38\nv_permlane32_swap_b32 v37, v39')
        a('ds_write_b128 v9, v[32:35]\nds_write_b128 v9, v[36:39] offset:32\ns_waitcnt lgkmcnt(0)\ns_barrier')
        a(f'ds_read_b128 v[16:19], v10\nds_read_b128 v[20:23], v10 offset:{8*144}')
        a(f's_waitcnt lgkmcnt(1)\nbuffer_store_dwordx4 v[16:19], v8, {srd(R_OUT)}, s98 offen sc1\ns_waitcnt lgkmcnt(0)\nbuffer_store_dwordx4 v[20:23], v8, {srd(R_OUT)}, s99 offen sc1')
        self.stamp(7); self.tstamp(7)

    UTILE = 0; TSCR = 8192; UB = 61440; KB = 70656; SCR = 15360
    PU, PZ, PT, PB, PW, PE, PK, PKZ, PD, PUT, PA = 232, 233, 234, 235, 236, 240, 243, 244, 245, 246, 251
    def s_ids(self):
        a = self.a
        if OPT('x5idle'):
            a(f's_cmp_gt_u32 {sXG}, 5\ns_cselect_b32 s8, 1, 0\ns_sub_u32 s73, {sXG}, s8\ns_mov_b32 {sM}, {sJ}')
        else:
            a(f's_mul_i32 s8, {sXG}, 28\ns_add_u32 s8, s8, {sJ}\ns_lshr_b32 s73, s8, 5\ns_and_b32 {sM}, s8, 31')
        a(f's_lshl_b32 s8, s73, 6\ns_lshl_b32 s9, {sM}, 1\ns_add_u32 s74, s8, s9')
        a('v_lshlrev_b32 v15, 4, v0')
        a(f's_lshl_b32 s14, s74, 1\ns_lshr_b32 s10, {sWAVE}, 1\ns_add_u32 s74, s74, s10\ns_and_b32 s9, {sWAVE}, 1')
        a('s_lshl_b32 s8, s74, 9\ns_lshl_b32 s12, s9, 8\ns_add_u32 s8, s8, s12\nv_lshl_add_u32 v2, v0, 2, s8')
    def s_params_load(self, va='v2', scal=True, vec=True):
        a = self.a
        for i, p in enumerate((P_LAR, P_AIM, P_CRE, P_CIM)):
            if vec: a(f'global_load_dword v{16+i}, {va}, {sp(p)}')
        if scal: a(f's_load_dword s71, {sp(P_LDT)}, s14\ns_load_dword s72, {sp(P_DSK)}, s14')
    def s_table_load(self, dst):
        a = self.a
        lp = self.L('pc')
        a('s_getpc_b64 s[12:13]')
        a.label(lp)
        a(f's_add_u32 s12, s12, L_table-{lp}\ns_addc_u32 s13, s13, 0')
        for i in range(4):
            a(f'global_load_dwordx4 {vr(dst+4*i,4)}, v1, s[12:13] offset:{1024*i}')
    def s_kv_addr(self):
        a = self.a
        a(f's_lshr_b32 s7, {sJ}, 1\ns_lshl_b32 s8, {sXG}, 4\ns_add_u32 s7, s7, s8\ns_lshl_b32 s6, {sXG}, 5\ns_add_u32 s6, s6, {sJ}')
        a(f's_lshl_b32 s12, s7, 1\ns_add_u32 s12, s12, s9\ns_mul_i32 s12, s12, {8*896}')
        a(f'v_lshrrev_b32 v7, 3, v0\nv_lshrrev_b32 v8, 4, v0\ns_lshl_b32 s8, s9, 2\nv_add_u32 v8, s8, v8')
        a('v_and_b32 v4, 7, v0\nv_xor_b32 v8, v4, v8\nv_mul_u32_u24 v7, 896, v7\nv_lshl_add_u32 v5, v8, 4, v7\nv_add_u32 v5, s12, v5')
        a(f's_lshl_b32 s11, {sWAVE}, 10\nv_add_u32 v6, s11, v15\ns_add_u32 s15, s11, 28672')
        a(f's_lshr_b32 s8, {sJ}, 1\ns_cmp_ge_u32 s8, 7\ns_cselect_b32 s12, 7, 0\ns_sub_u32 s8, s8, s12\ns_cmp_ge_u32 s8, 7\ns_cselect_b32 s12, 7, 0\ns_sub_u32 s8, s8, s12\ns_lshl_b32 s70, s8, 12')
    def kv_srds(self):
        a = self.a
        self.mk_srd(R_X, P_X, X_BYTES)
        a(f's_bitcmp1_b32 s6, 0\ns_cselect_b32 s{R_W}, s{P_WV}, s{P_WK}\ns_cselect_b32 s{R_W+1}, s{P_WV+1}, s{P_WK+1}')
        a(f's_mov_b32 s{R_W+2}, {WK_BYTES}\ns_mov_b32 s{R_W+3}, 0x20000')
    def s_kv_load(self, part=3):
        a = self.a
        if part & 1:
            a(f's_mul_i32 s12, s10, {3*128}\ns_mul_i32 s13, s10, {3*2048}\ns_lshl_b32 s8, s9, 10\ns_add_u32 s13, s13, s8')
            for i in range(4):
                a(f's_add_u32 m0, s13, {2048*i}\ns_nop 0\nbuffer_load_dwordx4 v5, {srd(R_X)}, s12 offen lds')
                if i < 3: a('s_add_u32 s12, s12, 128')
        for i in range(7):
            if not part & (1 if i == 0 else 2): continue
            if i: a('s_add_u32 s70, s70, 4096\ns_cmp_eq_u32 s70, 28672\ns_cselect_b32 s70, 0, s70')
            a(f's_add_u32 m0, s15, s70\ns_nop 0\nbuffer_load_dwordx4 v6, {srd(R_W)}, s70 offen lds')
    def s_kv_addr2(self):
        a = self.a
        a('s_and_b32 s68, s7, 1')
        a('v_and_b32 v2, 15, v0\nv_bfe_u32 v4, v2, 1, 3\nv_lshrrev_b32 v9, 4, v0\nv_xor_b32 v4, v4, v9\nv_lshlrev_b32 v3, 7, v2')
        a('v_lshl_add_u32 v10, v4, 4, v3\nv_xor_b32 v4, 4, v4\nv_lshl_add_u32 v11, v4, 4, v3')
        a('v_bfe_u32 v3, v0, 2, 2\nv_lshl_add_u32 v3, v9, 3, v3\nv_mul_u32_u24 v3, 56, v3\nv_and_b32 v4, 3, v0\nv_lshl_add_u32 v3, v4, 3, v3')
        a(f's_lshl_b32 s8, {sWAVE}, 5\ns_add_u32 s8, s8, 28672\nv_add_u32 v12, s8, v3')
        a('v_lshlrev_b32 v13, 4, v2\nv_bfe_u32 v3, v0, 4, 1\nv_lshl_add_u32 v13, v3, 9, v13')
        a(f's_bitcmp1_b32 s6, 0\ns_cselect_b32 s12, s68, {sWAVE}\ns_cselect_b32 s13, {sWAVE}, s68\ns_cselect_b32 s8, 2048, 0')
        a(f's_lshl_b32 s12, s12, 10\ns_lshl_b32 s13, s13, 8\ns_add_u32 s12, s12, s13\ns_add_u32 s12, s12, s8\ns_lshr_b32 s13, s7, 1\ns_lshl_b32 s13, s13, 12\ns_add_u32 s12, s12, s13\ns_add_u32 s69, s12, {WS_KV}')
        a(f's_lshr_b32 s8, s6, 3\ns_lshl_b32 s8, s8, 7\ns_and_b32 s12, s6, 7\ns_lshl_b32 s12, s12, 2\ns_add_u32 s8, s8, s12\ns_add_u32 s68, s8, {WS_FKV}\nv_lshlrev_b32 v14, 12, v0')
    def s_kv(self):
        a = self.a
        lv = self.L('kvV'); lst = self.L('kvst')
        ACC = 100
        XF = lambda ks: vr(56 + 8*(ks % 5), 4); WF = lambda ks, t=None: vr(60 + 8*(ks % 5), 4) if t is None else vr(60 + 8*(ks % 5) + 2*t, 2)
        def rdk(ks):
            a(f'ds_read_b128 {XF(ks)}, v{10+(ks&1)} offset:{(ks>>1)*2048}')
            for t in range(2):
                a(f'ds_read_b64_tr_b16 {WF(ks,t)}, v12 offset:{(32*ks+4*t)*56}')
        for ks in range(4): rdk(ks)
        a('s_bitcmp1_b32 s6, 0')
        def chain(swap):
            for ks in range(14):
                if ks + 4 < 14: rdk(ks + 4)
                a(f's_waitcnt lgkmcnt({3*min(4, 13-ks)})')
                A, B = (XF(ks), WF(ks)) if swap else (WF(ks), XF(ks))
                c = '0' if ks == 0 else vr(ACC, 4)
                a(f'v_mfma_f32_16x16x32_bf16 {vr(ACC,4)}, {A}, {B}, {c}')
        a(f's_cbranch_scc1 {lv}')
        chain(False)
        a(f's_cmp_eq_u32 {sWAVE}, 1\ns_cselect_b32 s12, 0xffff0000, 0')
        for r in range(4): a(f'v_mul_f32 v{ACC+r}, {f32(CSCALE)}, v{ACC+r}')
        a(f'v_cvt_pk_bf16_f32 v96, v{ACC}, v{ACC+1}\nv_cvt_pk_bf16_f32 v97, v{ACC+2}, v{ACC+3}')
        a('s_mov_b32 exec_lo, 0\ns_mov_b32 exec_hi, s12\nv_mov_b32 v96, 0x3f803f80\nv_mov_b32 v97, 0x00003f80\ns_mov_b64 exec, -1')
        a(f's_branch {lst}')
        a.label(lv)
        chain(True)
        a(f's_cmp_eq_u32 {sWAVE}, 1\ns_cselect_b32 s12, 0xe000e000, 0\ns_cselect_b32 s13, 0x10001000, 0')
        a(f'v_cvt_pk_bf16_f32 v96, v{ACC}, v{ACC+1}\nv_cvt_pk_bf16_f32 v97, v{ACC+2}, v{ACC+3}')
        a('s_mov_b32 exec_lo, s12\ns_mov_b32 exec_hi, s12\nv_mov_b32 v96, 0\nv_mov_b32 v97, 0')
        a('s_mov_b32 exec_lo, s13\ns_mov_b32 exec_hi, s13\nv_mov_b32 v96, 0x3f803f80\nv_mov_b32 v97, 0x3f803f80\ns_mov_b64 exec, -1')
        a.label(lst)
        a('s_nop 1\nv_permlane32_swap_b32 v96, v98\nv_permlane32_swap_b32 v97, v99\ns_mov_b32 exec_hi, 0')
        a(f'buffer_store_dwordx4 v[96:99], v13, {srd(R_WS)}, s69 offen sc1\ns_mov_b32 exec_hi, -1')
    def s_kv_phase(self, n=0, part=3):
        a = self.a
        l3 = self.L('kvb'); l4 = self.L('kvf')
        if part & 1:
            a(f's_waitcnt vmcnt({n})\ns_barrier')
            self.stamp(1); self.estamp(4)
            a(f's_cmp_ge_u32 {sWAVE}, 2\ns_cbranch_scc1 {l3}')
            self.s_kv()
            a.label(l3)
        if part & 2:
            a(f'v_mov_b32 v33, {sNONCE}\ns_waitcnt vmcnt(0)\ns_barrier\ns_cmp_lg_u32 {sWAVE}, 0\ns_cbranch_scc1 {l4}')
            a(f's_mov_b64 exec, {hex((1 << NREP) - 1) if NREP < 64 else -1}\nbuffer_store_dword v33, v14, {srd(R_WS)}, s68 offen sc1\ns_mov_b64 exec, -1')
            a.label(l4)
            self.stamp(2); self.estamp(5)

    def s_addr_all(self):
        a = self.a
        PU, PZ, PT, PB, PW, PE, PK, PKZ, PD, PUT, PA = [f'v{x}' if not isinstance(x, str) else x for x in (self.PU, self.PZ, self.PT, self.PB, 'x', 'x', self.PK, self.PKZ, self.PD, 'x', 'x')]
        a(f's_lshl_b32 s8, {sM}, 6\ns_lshl_b32 s12, {sWAVE}, 4\ns_add_u32 s8, s8, s12\ns_mul_i32 s8, s8, 896\ns_lshl_b32 s12, s73, 7\ns_add_u32 s8, s8, s12')
        a('v_and_b32 v20, 7, v0\nv_lshl_add_u32 v7, v20, 4, v7\nv_add_u32 v7, s8, v7')
        a(f's_lshl_b32 s8, s74, 12\ns_lshl_b32 s12, s9, 11\ns_add_u32 s8, s8, s12\ns_add_u32 s14, s8, {WS_UT}\ns_add_u32 s92, s8, {WS_YT}')
        a(f's_mul_i32 s11, s10, 4608\ns_add_u32 s11, s11, {self.UB}\ns_mul_i32 s8, s10, 4160\ns_add_u32 s75, s8, {self.KB}')
        a(f's_add_u32 s12, s12, s75\nv_lshl_add_u32 {PK}, v0, 5, s12\nv_lshl_add_u32 {PKZ}, v0, 2, s75')
        a('v_bfe_u32 v2, v0, 1, 2\nv_mul_u32_u24 v2, 1152, v2\nv_lshrrev_b32 v21, 3, v0\nv_lshl_add_u32 v2, v21, 5, v2\nv_and_b32 v4, 1, v0\nv_lshl_add_u32 v2, v4, 4, v2')
        a(f's_lshl_b32 s12, s9, 9\ns_add_u32 s12, s12, s11\nv_add_u32 {PU}, s12, v2')
        a(f'v_mul_u32_u24 v3, 1152, v21\nv_lshl_add_u32 v3, v20, 4, v3\nv_add_u32 {PZ}, s11, v3')
        a('v_lshlrev_b32 v4, 4, v4\nv_bfe_u32 v8, v0, 1, 1\nv_lshl_add_u32 v4, v8, 2, v4\nv_bfe_u32 v8, v0, 4, 1\nv_lshl_add_u32 v4, v8, 3, v4')
        a('v_lshrrev_b32 v22, 5, v0\nv_lshlrev_b32 v8, 5, v22\nv_sub_u32 v4, v4, v8\nv_bfe_u32 v23, v0, 2, 2\nv_lshlrev_b32 v8, 2, v23\nv_sub_u32 v4, v4, v8')
        a(f's_add_u32 s12, s75, 96\nv_lshl_add_u32 {PT}, v4, 1, s12')
        a(f'v_bfe_u32 v4, v0, 3, 2\nv_mul_u32_u24 v3, 1152, v4\nv_add_u32 v8, v20, v22\nv_lshl_add_u32 v3, v8, 4, v3\ns_add_u32 s12, s11, 16\nv_add_u32 {PB}, s12, v3')
        a('v_lshrrev_b32 v8, 1, v20\nv_and_b32 v3, 1, v20\nv_lshl_or_b32 v8, v3, 2, v8\nv_lshlrev_b32 v3, 2, v22\nv_xor_b32 v8, v8, v3')
        a('v_lshlrev_b32 v4, 13, v4\nv_lshl_add_u32 v4, v20, 7, v4\ns_lshl_b32 s13, s10, 15\nv_add_u32 v4, s13, v4')
        for g in range(4): a(f'v_xor_b32 v3, {g}, v8\nv_lshl_add_u32 v{self.PW+g}, v3, 4, v4')
        a('s_lshl_b32 s12, s9, 7\nv_add_u32 v2, s12, v0\nv_lshrrev_b32 v3, 2, v2\nv_and_b32 v4, 3, v2\nv_lshlrev_b32 v4, 1, v4')
        def fa(dst, av): a(f'v_bfe_u32 {dst}, {av}, 1, 2\nv_and_b32 v8, 1, {av}\nv_lshl_or_b32 {dst}, v8, 2, {dst}')
        fa('v9', 'v3')
        a('v_xor_b32 v9, v9, v4\nv_lshlrev_b32 v2, 7, v3\nv_add_u32 v2, s13, v2')
        a(f'v_lshl_add_u32 v{self.PE}, v9, 4, v2\nv_xor_b32 v9, 1, v9\nv_lshl_add_u32 v{self.PE+1}, v9, 4, v2')
        a('v_lshl_add_u32 v4, v3, 3, v4\nv_add_u32 v4, -1, v4\nv_ashrrev_i32 v3, 3, v4\nv_and_b32 v4, 7, v4')
        fa('v9', 'v3')
        a(f'v_xor_b32 v9, v9, v4\nv_lshlrev_b32 v2, 7, v3\nv_add_u32 v2, s13, v2\nv_lshl_add_u32 v2, v9, 4, v2\nv_add_u32 v{self.PE+2}, 8192, v2')
        a('s_cmp_eq_u32 s9, 0\ns_cselect_b32 s93, 1, 0')
        U = self.PUT
        a(f'v_lshrrev_b32 v3, 4, v0\nv_lshl_add_u32 v2, v23, 2, v3\nv_lshlrev_b32 v2, 7, v2\nv_and_b32 v9, 3, v0\nv_lshl_add_u32 v2, v9, 3, v2')
        a(f's_lshl_b32 s8, {sWAVE}, 5\ns_add_u32 s8, s8, {self.UTILE}\nv_add_u32 v{U}, s8, v2')
        a(f's_mul_i32 s12, {sWAVE}, 2304\ns_add_u32 s12, s12, {self.TSCR}')
        a(f'v_and_b32 v4, 15, v0\nv_mul_u32_u24 v4, 144, v4\nv_lshl_add_u32 v4, v3, 5, v4\nv_add_u32 v{U+1}, s12, v4')
        a(f'v_lshlrev_b32 v4, 4, v20\nv_mul_u32_u24 v2, 144, v21\nv_add3_u32 v{U+2}, v2, v4, s12')
        a(f's_lshl_b32 s8, s73, 2\ns_add_u32 s8, s8, {sWAVE}\ns_lshl_b32 s8, s8, 16\ns_lshl_b32 s12, {sM}, 7\ns_add_u32 s8, s8, s12\ns_add_u32 s8, s8, {WS_UT}')
        a(f'v_lshl_add_u32 v{self.PA}, v21, 12, v4\nv_add_u32 v{U+3}, s8, v{self.PA}\nv_add_u32 v{U+4}, {8*4096}, v{U+3}')
        a(f's_lshl_b32 s36, s73, 9\ns_add_u32 s36, s36, {WS_FU}\ns_lshl_b32 s8, {sM}, 2\ns_add_u32 s35, s36, s8')
        A = self.PA
        a(f's_lshl_b32 s8, s73, 6\ns_lshl_b32 s13, {sWAVE}, 3\ns_add_u32 s8, s8, s13\ns_lshl_b32 s8, s8, 12\ns_add_u32 s8, s8, s12\ns_add_u32 s37, s8, {WS_YT}\ns_add_u32 s38, s37, {32*4096}')
        a(f'v_add_u32 v2, s13, v21\nv_mul_u32_u24 v2, 160, v2\nv_add_u32 v{A+1}, v2, v4')
        a(f'v_lshl_add_u32 v2, v3, 3, v23\nv_mul_u32_u24 v2, 160, v2\nv_lshl_add_u32 v2, v9, 3, v2\ns_lshl_b32 s8, {sWAVE}, 5\nv_add_u32 v{A+2}, s8, v2')
        a(f's_lshl_b32 s8, {sM}, 2\ns_add_u32 s8, s8, {sWAVE}\ns_mul_i32 s39, s8, {16*1792}\ns_lshl_b32 s8, s73, 7\ns_add_u32 s39, s39, s8\ns_add_u32 s94, s39, {8*1792}')
        a(f'v_mul_u32_u24 v2, 1792, v21\nv_add_u32 v{A+3}, v2, v4')
        a(f'v_and_b32 v2, 15, v0\nv_mul_u32_u24 v2, 144, v2\nv_lshl_add_u32 v2, v3, 4, v2\ns_mul_i32 s8, {sWAVE}, 2304\ns_add_u32 s8, s8, {self.TSCR + 4096}\nv_add_u32 v{A+4}, s8, v2')
        a(f's_mul_i32 s11, {sWAVE}, {self.SCR}\nv_mul_u32_u24 v2, 240, v0\nv_add_u32 v2, s11, v2')
        a(f'v_lshl_add_u32 v3, v23, 1, v22\nv_mul_u32_u24 v3, 480, v3\nv_bfe_u32 v8, v0, 4, 1\nv_lshl_add_u32 v3, v8, 5, v3\nv_lshl_add_u32 v3, v9, 3, v3\nv_add_u32 v3, s11, v3')
        a(f'v_and_b32 v4, 31, v0\nv_mul_u32_u24 v4, 144, v4\nv_lshl_add_u32 v4, v22, 4, v4\nv_add_u32 v4, s11, v4')

    def s_kgen(self, mid_r0):
        a = self.a
        RS = 240
        AW, AR, AP = 'v2', 'v3', 'v4'
        if OPT('nokvfirst'): raise SystemExit('option removed')
        a(f's_cmp_eq_u32 s10, 1\ns_cselect_b32 s8, 0, 16')
        a('s_lshl_b32 s12, s71, s8\ns_and_b32 s12, s12, 0xffff0000\ns_lshl_b32 s13, s72, s8\ns_and_b32 s72, s13, 0xffff0000')
        a(f'v_mov_b32 v31, s12\nv_mul_f32 v31, {f32(LOG2E)}, v31\nv_exp_f32 v31, v31\nv_mov_b32 v{self.PD}, 0\nv_cvt_pk_bf16_f32 v31, v31, v31\nv_and_b32 v31, 0xffff0000, v31')
        a(f'v_mul_f32 v32, {f32(-LOG2E)}, v31\nv_mul_f32 v30, 0.15915494309189532, v31\nv_add_f32 v31, v31, v31')
        a(f's_mov_b32 exec_lo, s93\ns_mov_b32 exec_hi, 0\nv_mov_b32 v{self.PD}, s72\ns_mov_b64 exec, -1')
        ACC = 40; FR = 56; TB = 120
        W1, W256, W8 = 24, 26, 28
        RR = (120, 176)
        def cmul(z, x, y, conj, t):
            return [f'v_pk_mul_f32 {vr(t,2)}, {vr(x,2)}, {vr(y,2)} op_sel_hi:[1,0]',
                    f'v_pk_fma_f32 {vr(z,2)}, {vr(x,2)}, {vr(y,2)}, {vr(t,2)} op_sel:[1,1,0] op_sel_hi:[0,1,1] {"neg_hi" if conj else "neg_lo"}:[1,0,0]']
        def pack(buf, i, x, y): return [f'v_cvt_pk_bf16_f32 v{buf+i}, v{x}, v{y}', f'v_cvt_pk_bf16_f32 v{buf+4+i}, v{x+1}, v{y+1}']
        def flush(rnd):
            out = []
            for g in range(4): out += [f'ds_write_b128 {AW}, {vr(RR[rnd]+8*g,4)} offset:{16*g}', f'ds_write_b128 {AW}, {vr(RR[rnd]+8*g+4,4)} offset:{64+16*g}']
            for g in range(3): out += [f'ds_write_b128 {AW}, {vr(RR[rnd]+32+8*g,4)} offset:{128+16*g}', f'ds_write_b128 {AW}, {vr(RR[rnd]+32+8*g+4,4)} offset:{176+16*g}']
            return out
        def reads(q):
            qq, part = q >> 1, q & 1
            for t in range(2): a(f'ds_read_b64_tr_b16 {vr(FR+8*q+2*t,2)}, {AR} offset:{(16*qq+t)*RS + 64*part}')
            for t in range(2): a(f'ds_read_b64_tr_b16 {vr(FR+8*q+4+2*t,2)}, {AR} offset:{(16*qq+t)*RS + 128 + 48*part}')
        l1 = self.L('wp'); l2 = self.L('wp')
        a(f's_cmp_ge_u32 {sXG}, 4\ns_cbranch_scc1 {l1}\ns_cmp_ge_u32 {sWAVE}, 2\ns_cbranch_scc1 {l1}\ns_waitcnt vmcnt(2)\ns_branch {l2}')
        a.label(l1); a('s_waitcnt vmcnt(1)'); a.label(l2)
        self.fstamp(1); self.estamp(3)
        mfma = lambda q, first: f'v_mfma_f32_32x32x16_bf16 {vr(ACC,16)}, {vr(FR+8*q,4)}, {vr(FR+8*q+4,4)}, {"0" if first else vr(ACC,16)}'
        H0, H2, H4, H6, HT, HU, LA, LB, TL, TG = 34, 36, 38, 40, 42, 44, 46, 48, 50, 52
        for rnd in range(2):
            ex = (lambda d, s: f'v_lshlrev_b32 v{d}, 16, v{s}') if rnd == 0 else (lambda d, s: f'v_and_b32 v{d}, 0xffff0000, v{s}')
            setup = [ex(20, 16), ex(21, 17), ex(H0, 18), ex(H0+1, 19),
                     f'v_mul_f32 v20, {f32(LOG2E)}, v20', 'v_exp_f32 v20, v20', 'v_mul_f32 v21, v21, v30', 'v_cvt_pk_bf16_f32 v20, v20, v20', 'v_and_b32 v20, 0xffff0000, v20', 'v_mul_f32 v20, v20, v32',
                     f'v_mul_f32 v{H0}, v{H0}, v31', f'v_mul_f32 v{H0+1}, -v{H0+1}, v31']
            for W, m in ((W1, 1.0), (W256, 256.0), (W8, 8.0)):
                if m == 1.0: setup += ['v_exp_f32 v22, v20', 'v_fract_f32 v23, v21']
                else: setup += [f'v_mul_f32 v22, {f32(m)}, v20', f'v_mul_f32 v23, {f32(m)}, v21', 'v_exp_f32 v22, v22', 'v_fract_f32 v23, v23']
                setup += [f'v_cos_f32 v{W}, v23', f'v_sin_f32 v{W+1}, v23', f'v_mul_f32 v{W}, v{W}, v22', f'v_mul_f32 v{W+1}, v{W+1}, v22']
            for x in setup: a(x)
            PL = [RR[rnd] + 8*g for g in range(4)]; PG = [RR[rnd] + 32 + 8*g for g in range(3)]
            jl = [f'v_cvt_pk_bf16_f32 v{PL[0]}, 1.0, v{W8}', f'v_cvt_pk_bf16_f32 v{PL[0]+4}, 0, v{W8+1}']
            cur = W8
            for b in range(2, 32, 2):
                jl += cmul(LA, cur, W8, False, TL) + cmul(LB, LA, W8, False, TL) + pack(PL[b >> 3], (b & 7) >> 1, LA, LB); cur = LB
            jg = cmul(HT, H0, W1, True, TG) + pack(PG[0], 0, H0, HT)
            jg += cmul(H2, HT, W1, True, TG) + cmul(HT, H2, W1, True, TG) + pack(PG[0], 1, H2, HT)
            jg += cmul(H4, HT, W1, True, TG) + cmul(HT, H4, W1, True, TG) + pack(PG[0], 2, H4, HT)
            jg += cmul(H6, HT, W1, True, TG) + cmul(HT, H6, W1, True, TG) + pack(PG[0], 3, H6, HT)
            jg += cmul(H0, H0, W256, True, TG) + cmul(H2, H2, W256, True, TG) + pack(PG[1], 0, H0, H2)
            jg += cmul(H4, H4, W256, True, TG) + cmul(H6, H6, W256, True, TG) + pack(PG[1], 1, H4, H6)
            jg += cmul(H0, H0, W256, True, TG) + cmul(H4, H4, W256, True, TG) + pack(PG[1], 2, H0, H4)
            jg += cmul(H0, H0, W256, True, TG) + cmul(H4, H4, W256, True, TG) + pack(PG[1], 3, H0, H4)
            jg += cmul(HT, H0, W256, True, TG) + cmul(HU, HT, W256, True, TG) + pack(PG[2], 0, HT, HU)
            jg += cmul(HT, HU, W256, True, TG) + cmul(HU, HT, W256, True, TG) + pack(PG[2], 1, HT, HU)
            jg += cmul(HT, HU, W256, True, TG) + pack(PG[2], 2, HT, HT) + [f'v_mov_b32 v{PG[2]+3}, 0', f'v_mov_b32 v{PG[2]+7}, 0']
            for x in jg: a(x)
            if rnd == 0:
                mid_r0()
                for x in jl: a(x)
            elif not OPT('kvlate'):
                for x in jl: a(x)
                self.late_kv(True)
                if OPT('xs0'): self.stamp_flush(8); a('s_endpgm')
                for x in flush(0): a(x)
            else:
                fl = flush(0); step = len(jl) // 14
                for i, x in enumerate(jl):
                    a(x)
                    if i % step == step - 1 and fl: a(fl.pop(0))
                for x in fl: a(x)
            self.fstamp(2 + rnd)
        a(f's_mul_i32 s8, s10, {2*self.SCR}\ns_waitcnt vmcnt(0) lgkmcnt(0)')
        for q in range(6): reads(q)
        for k in range(16): a(f'v_add_u32 v{TB+k}, s8, v{104+k}')
        for q in range(6, 8): reads(q)
        if not OPT('nokgp0'): a('s_setprio 0')
        a('s_waitcnt lgkmcnt(0)')
        fl = flush(1)
        for q in range(8):
            a(mfma(q, q == 0))
            for x in fl[2*q:2*q+2]: a(x)
        a('s_waitcnt lgkmcnt(0)')
        self.estamp(7)
        for q in range(8):
            reads(q)
            if q >= 3:
                a('s_waitcnt lgkmcnt(12)'); a(mfma(q - 3, False))
        for q in range(5, 8):
            a(f's_waitcnt lgkmcnt({4*(7-q)})'); a(mfma(q, False))
        if not OPT('nokgp0'): a('s_setprio 2')
        for g in range(4): a(f'ds_write_b128 {AP}, {vr(ACC+4*g,4)} offset:{32*g}')
        for r in range(4): a(f'v_mov_b32 v{112+r}, 0')
        a('s_waitcnt lgkmcnt(0)\ns_barrier')
        self.fstamp(4)
        G = 56
        for k in range(16): a(f'ds_read2st64_b32 {vr(G+2*k,2)}, v{TB+k} offset1:{self.SCR//256}')
        a(f's_mov_b64 exec, 0xffff\nds_write_b32 v{self.PKZ}, v112\ns_mov_b32 exec_lo, -1\nds_write_b128 v{self.PZ}, v[112:115]\ns_mov_b64 exec, -1')
        for k in range(16):
            if k % 4 == 0: a(f's_waitcnt lgkmcnt({14-k})')
            a(f'v_add_f32 v{G+2*k}, v{G+2*k}, v{G+2*k+1}')
            if k == 0: a(f'v_add_f32 v{G}, v{G}, v{self.PD}')
        for k in range(8): a(f'v_cvt_pk_bf16_f32 v{88+k}, v{G+4*k}, v{G+4*k+2}')
        a(f'ds_write_b128 v{self.PK}, v[88:91] offset:64\nds_write_b128 v{self.PK}, v[92:95] offset:80')
        a(f'v_mov_b32 v113, {sNONCE}\ns_waitcnt lgkmcnt(0)\ns_barrier')
        self.stamp(3)

    def s_u_phase(self):
        a = self.a
        U = self.PUT
        self.ustamp(5)
        a(f's_lshl_b32 s12, {sWAVE}, 11')
        a(f's_add_u32 m0, s12, {self.UTILE}\ns_mov_b32 s13, {8*896}\nbuffer_load_dwordx4 v7, {srd(R_B)}, 0 offen lds')
        a(f's_add_u32 m0, s12, {self.UTILE + 1024}\ns_nop 0\nbuffer_load_dwordx4 v7, {srd(R_B)}, s13 offen lds')
        a('s_waitcnt vmcnt(0)\ns_barrier')
        self.ustamp(1)
        for half in range(2):
            for t in range(2):
                a(f'ds_read_b64_tr_b16 {vr(96+4*half+2*t,2)}, v{U} offset:{(32*half+16*t)*128}')
        a(f's_waitcnt lgkmcnt(2)\nds_write_b128 v{U+1}, v[96:99]\ns_waitcnt lgkmcnt(1)\nds_write_b128 v{U+1}, v[100:103] offset:16\ns_waitcnt lgkmcnt(0)')
        a(f'ds_read_b128 v[96:99], v{U+2}\nds_read_b128 v[100:103], v{U+2} offset:{8*144}')
        a(f's_waitcnt lgkmcnt(1)\nbuffer_store_dwordx4 v[96:99], v{U+3}, {srd(R_WS)}, 0 offen sc1')
        a(f's_waitcnt lgkmcnt(0)\nbuffer_store_dwordx4 v[100:103], v{U+4}, {srd(R_WS)}, 0 offen sc1')
        self.publish_y(WS_PU)
        self.wait_y(WS_PU, 4)
        self.ustamp(3)
        for i in range(2): a(f'buffer_load_dwordx4 {vr(104+4*i,4)}, v15, {srd(R_WS)}, s14 offen offset:{1024*i} sc1')
        a(f's_waitcnt vmcnt(1)\nds_write_b128 v{self.PU}, v[104:107] offset:128\ns_waitcnt vmcnt(0)\nds_write_b128 v{self.PU}, v[108:111] offset:384')
        if OPT('tlb'):
            a(f's_mov_b64 exec, 1\nbuffer_load_dword v116, v112, {srd(R_WS)}, s92 offen\nbuffer_load_dword v117, v112, {srd(R_WS)}, s37 offen\nbuffer_load_dword v118, v112, {srd(R_OUT)}, s39 offen\ns_mov_b64 exec, -1')
        a('s_waitcnt lgkmcnt(0)')
        self.stamp(4); self.ustamp(4)

    def s_conv(self):
        a = self.a
        self.stamp(5); self.fstamp(5); self.tstamp(1)
        D = 16; BF = (80, 112); TF = (144, 176)
        l1 = self.L('cv1'); lj = self.L('cvj')
        a(f's_cmp_eq_u32 s9, 0\ns_cbranch_scc0 {l1}')
        def variant(tset):
            mmax = max(tset)
            mf = []; reads = []
            seen = set(); started = set()
            for r in range(4):
                pb = r & 1
                for jj in range(mmax + 1):
                    for ti, t in enumerate(tset):
                        if t < jj: continue
                        m = t - jj
                        nb = ('B', r, m); nt = ('T', r, jj)
                        for k in (nt, nb):
                            if k not in seen:
                                seen.add(k)
                                if k[0] == 'B':
                                    reads.append((k, [f'ds_read_b128 {vr(BF[pb]+4*m,4)}, v{self.PB} offset:{32*(4*m - r + 3)}']))
                                else:
                                    mu = 4*jj + r
                                    reads.append((k, [f'ds_read_b64_tr_b16 {vr(TF[pb]+4*jj+2*tt,2)}, v{self.PT} offset:{128*mu + 32*(1-tt)}' for tt in range(2)]))
                        c = vr(D+16*ti, 16) if t in started else '0'
                        started.add(t)
                        mf.append((f'v_mfma_f32_32x32x16_bf16 {vr(D+16*ti,16)}, {vr(TF[pb]+4*jj,4)}, {vr(BF[pb]+4*m,4)}, {c}', (nb, nt), r))
            flat = []; endpos = {}
            for k, xs in reads:
                for x in xs: flat.append((x, k))
                endpos[k] = len(flat)
            issued = 0; done = 0
            lastmf = {}
            for i, (txt, needs, r) in enumerate(mf): lastmf[txt.split(',')[0]] = i
            pend = []; released = False
            for i, (txt, needs, r) in enumerate(mf):
                need = max(endpos[k] for k in needs)
                tgt = min(len(flat), need + (12 if r < 2 else 24))
                step = 0
                while issued < tgt and (issued < need + 12 or step < 2):
                    kk = flat[issued][1]
                    if kk[1] >= r + 2: break
                    a(flat[issued][0]); issued += 1; step += 1
                if issued == len(flat) and not released and r == 3:
                    a('s_waitcnt lgkmcnt(0)\ns_barrier'); done = issued; released = True
                    self.fstamp(6)
                if need > done:
                    n = min(14, issued - need)
                    a(f's_waitcnt lgkmcnt({n})'); done = issued - n
                a(txt)
                if released and pend and pend[0][0] <= i:
                    a(pend.pop(0)[1])
                for ti, t in enumerate(tset):
                    if lastmf[f'v_mfma_f32_32x32x16_bf16 {vr(D+16*ti,16)}'] == i:
                        pend += [(i + 5, f'ds_write_b128 v{self.PW+g}, {vr(D+16*ti+4*g,4)} offset:{t*1024}') for g in range(4)]
            assert released
            for _, x in pend: a(x)
        variant([7, 4, 3, 0]); a(f's_branch {lj}')
        a.label(l1); variant([6, 5, 2, 1])
        a.label(lj)
        a(f's_setprio {2 if OPT("epi2") else 3}\ns_waitcnt lgkmcnt(0)\ns_barrier')
        self.tstamp(2)
        E = self.PE
        for i in range(2):
            Y = [16 + 44*i, 24 + 44*i, 36 + 44*i, 48 + 44*i]
            for ph in range(4):
                o = 4 if ph else 0
                if ph: a(f'ds_read_b128 {vr(Y[ph],4)}, v{E+2} offset:{(ph-1)*8192 + i*2048}')
                a(f'ds_read_b128 {vr(Y[ph]+o,4)}, v{E} offset:{ph*8192 + i*2048}\nds_read_b128 {vr(Y[ph]+o+4,4)}, v{E+1} offset:{ph*8192 + i*2048}')
        for i in range(2):
            Y = [16 + 44*i, 24 + 44*i, 36 + 44*i, 48 + 44*i]
            for ph in range(1, 4):
                a(f's_waitcnt lgkmcnt({min(14, 11*(1-i) + 3*(3-ph))})')
                if i == 0:
                    a('s_mov_b32 exec_lo, s93\ns_mov_b32 exec_hi, 0')
                    for k in range(4 - ph, 4): a(f'v_mov_b32 v{Y[ph]+k}, 0')
                    a('s_mov_b64 exec, -1')
                for k in range(8): a(f'v_add_f32 v{Y[0]+k}, v{Y[0]+k}, v{Y[ph]+4+k-ph}')
            for k in range(4): a(f'v_cvt_pk_bf16_f32 v{104+4*i+k}, v{Y[0]+2*k}, v{Y[0]+2*k+1}')
            a(f'buffer_store_dwordx4 {vr(104+4*i,4)}, v15, {srd(R_WS)}, s92 offen offset:{1024*i} sc1')
        self.stamp(6); self.fstamp(7); self.tstamp(3)

    def s_assemble(self):
        a = self.a
        A = self.PA
        self.wait_y()
        self.tstamp(5)
        a(f'buffer_load_dwordx4 v[16:19], v{A}, {srd(R_WS)}, s37 offen sc1')
        a(f'buffer_load_dwordx4 v[20:23], v{A}, {srd(R_WS)}, s38 offen sc1')
        a(f's_waitcnt vmcnt(1)\nds_write_b128 v{A+1}, v[16:19]\ns_waitcnt vmcnt(0)\nds_write_b128 v{A+1}, v[20:23] offset:{32*160}')
        a('s_waitcnt lgkmcnt(0)\ns_barrier')
        self.tstamp(6)
        for o in range(2):
            for t in range(2): a(f'ds_read_b64_tr_b16 {vr(24+4*o+2*t,2)}, v{A+2} offset:{(32*o+4*t)*160}')
        a(f's_waitcnt lgkmcnt(2)\nds_write_b128 v{A+4}, v[24:27]\ns_waitcnt lgkmcnt(1)\nds_write_b128 v{A+4}, v[28:31] offset:64\ns_waitcnt lgkmcnt(0)')
        a(f'ds_read_b128 v[24:27], v{self.PUT+2} offset:4096\nds_read_b128 v[28:31], v{self.PUT+2} offset:{4096 + 8*144}')
        a(f's_waitcnt lgkmcnt(1)\nbuffer_store_dwordx4 v[24:27], v{A+3}, {srd(R_OUT)}, s39 offen sc1')
        a(f's_waitcnt lgkmcnt(0)\nbuffer_store_dwordx4 v[28:31], v{A+3}, {srd(R_OUT)}, s94 offen sc1')
        self.stamp(7); self.tstamp(7)

    def kernel_head(self, name):
        self.lend = f'L_end_{name}'
        self.a(f'.globl {name}\n.p2align 8\n.type {name},@function')
        self.a.label(name)
    def kernel_tail(self):
        self.a.label(self.lend)
        self.a('s_endpgm')

    SPIN = 1 << 20
    def nonce(self, n):
        self.a(f's_waitcnt vmcnt({n}) lgkmcnt(0)\nv_readfirstlane_b32 {sNONCE}, v54\ns_add_u32 {sNONCE}, {sNONCE}, 0x9e3779b9')
    def publish_y(self, WS_PY=WS_PY):
        a = self.a; l = self.L('pg')
        a(f's_lshl_b32 s8, s73, 14\ns_lshr_b32 s12, {sM}, 3\ns_lshl_b32 s13, s12, 7\ns_add_u32 s8, s8, s13\ns_add_u32 s8, s8, {WS_PY}\nv_lshl_add_u32 v2, v0, 9, s8')
        a(f's_and_b32 s12, {sM}, 7\ns_lshl_b32 s12, s12, 2\nv_mov_b32 v3, {sNONCE}')
        a('s_waitcnt vmcnt(0)\ns_barrier')
        if WS_PY != WS_PU: self.tstamp(4)
        else: self.ustamp(2)
        a(f's_cmp_lg_u32 {sWAVE}, 0\ns_cbranch_scc1 {l}')
        a(f's_mov_b32 exec_hi, 0\nbuffer_store_dword v3, v2, {srd(R_WS)}, s12 offen sc1\ns_mov_b64 exec, -1')
        a.label(l)
    def poll(self, vaddr, soff, width, mask_lo, mask_hi, sleep, vt=250):
        a = self.a; lp = self.L('poll'); ld = self.L('polled')
        ld_ = {1: 'dword', 2: 'dwordx2', 4: 'dwordx4'}[width]
        a(f's_mov_b32 exec_lo, {hex(mask_lo)}\ns_mov_b32 exec_hi, {hex(mask_hi)}\ns_mov_b32 s47, {self.SPIN}')
        a.label(lp)
        a(f'buffer_load_{ld_} {vr(vt,width)}, {vaddr}, {srd(R_WS)}, {soff} offen sc1\ns_waitcnt vmcnt(0)')
        a(f'v_xor_b32 v{vt}, {sNONCE}, v{vt}')
        for i in range(1, width): a(f'v_xor_b32 v{vt+i}, {sNONCE}, v{vt+i}\nv_or_b32 v{vt}, v{vt}, v{vt+i}')
        a(f'v_cmp_ne_u32 vcc, 0, v{vt}\ns_cbranch_vccz {ld}')
        if sleep: a(f's_sleep {sleep}')
        a(f's_sub_u32 s47, s47, 1\ns_cmp_lg_u32 s47, 0\ns_cbranch_scc1 {lp}')
        a.label(ld)
        a('s_mov_b64 exec, -1')
    def spoll(self, soff, n, sleep, first_sleep=0):
        a = self.a
        a(f's_mov_b32 s40, {sNONCE}\ns_mov_b32 s41, {sNONCE}\ns_mov_b32 s47, {self.SPIN}')
        for c in range(max(1, n // 16)):
            lp = self.L('sp'); lr = self.L('spr'); ld = self.L('spd')
            if c: a(f's_add_u32 {soff}, {soff}, 64')
            elif first_sleep: a(f's_branch {lr}')
            a.label(lp)
            if n == 8:
                a(f's_load_dwordx8 s[16:23], {sp(P_WS)}, {soff} glc\ns_waitcnt lgkmcnt(0)')
                for i in range(3): a(f's_cmp_eq_u64 s[{16+2*i}:{17+2*i}], s[40:41]\ns_cbranch_scc0 {lr}')
                a(f's_cmp_eq_u64 s[22:23], s[40:41]\ns_cbranch_scc1 {ld}')
            elif n == 1:
                a(f's_load_dword s16, {sp(P_WS)}, {soff} glc\ns_waitcnt lgkmcnt(0)\ns_cmp_eq_u32 s16, {sNONCE}\ns_cbranch_scc1 {ld}')
            else:
                a(f's_load_dwordx16 s[16:31], {sp(P_WS)}, {soff} glc\ns_waitcnt lgkmcnt(0)')
                for i in range(7): a(f's_cmp_eq_u64 s[{16+2*i}:{17+2*i}], s[40:41]\ns_cbranch_scc0 {lr}')
                a(f's_cmp_eq_u64 s[30:31], s[40:41]\ns_cbranch_scc1 {ld}')
            a.label(lr)
            if sleep: a(f's_sleep {sleep}')
            a(f's_sub_u32 s47, s47, 1\ns_cmp_gt_i32 s47, 0\ns_cbranch_scc1 {lp}')
            a.label(ld)
    def wait_kv(self, sleep=1):
        a = self.a; l = self.L('wkv')
        a(f's_cmp_lg_u32 {sWAVE}, 0\ns_cbranch_scc1 {l}')
        a(f's_and_b32 s8, s2, {NREP-1}\ns_lshl_b32 s8, s8, 10\ns_add_u32 s8, s8, {WS_FKV}\nv_lshlrev_b32 v2, 4, v0')
        self.poll('v2', 's8', 4, 0xffffffff, 0xffffffff, sleep)
        a.label(l)
        a('s_barrier')
    def wait_y(self, WS_PY=WS_PY, sleep=0):
        a = self.a
        a(f's_lshl_b32 s8, s73, 5\ns_add_u32 s8, s8, {sM}\ns_lshl_b32 s8, s8, 2\ns_add_u32 s8, s8, {sWAVE}\ns_lshl_b32 s8, s8, 7\ns_add_u32 s8, s8, {WS_PY}')
        self.spoll('s8', 8, sleep)
        a('s_barrier')
    def e_update(self):
        a = self.a; l = self.L('eu')
        a(f's_cmp_lg_u32 s2, 253\ns_cbranch_scc1 {l}')
        a(f'v_lshlrev_b32 v2, 8, v0\ns_lshl_b32 s8, {sWAVE}, 14\ns_add_u32 s8, s8, {WS_FA}')
        self.poll('v2', 's8', 1, 0xffffffff, 0xffffffff, 16)
        a(f'v_lshrrev_b32 v2, 3, v0\nv_lshlrev_b32 v2, 7, v2\nv_and_b32 v3, 7, v0\nv_lshl_add_u32 v2, v3, 2, v2\ns_lshl_b32 s8, {sWAVE}, 10\ns_add_u32 s8, s8, {WS_FKV}')
        self.poll('v2', 's8', 1, 0xffffffff, 0xffffffff, 16)
        a(f's_barrier\ns_cmp_lg_u32 {sWAVE}, 0\ns_cbranch_scc1 {l}')
        a(f'v_mov_b32 v2, {WS_E}\nv_mov_b32 v3, {sNONCE}\ns_mov_b64 exec, 1\nbuffer_store_dword v3, v2, {srd(R_WS)}, 0 offen sc1')
        a.label(l)
    def wo_prefetch(self):
        a = self.a
        if OPT('x5idle'): a(f's_mul_i32 s8, {sJ}, 12544')
        else: a(f's_lshl_b32 s8, {sXG}, 2\ns_and_b32 s12, {sJ}, 3\ns_add_u32 s8, s8, s12\ns_mul_i32 s8, s8, 12544')
        a(f's_lshl_b32 s12, {sWAVE}, 10\ns_add_u32 s8, s8, s12')
        for i in range(4):
            a(f'buffer_load_dwordx4 v[240:243], v15, {srd(R_B)}, s8 offen')
            if i < 3: a('s_add_u32 s8, s8, 4096')
    def build_fused(self):
        a = self.a
        kn = NAME + '_kernel'
        self.kernel_head(kn)
        if OPT('empty'): a('s_endpgm')
        self.prologue(512)
        la = self.L('roleA'); lidle = self.L('idle'); lnopf = self.L('nopf'); lnz = self.L('nonce')
        def emit_S():
            if OPT('qonly'): a('s_endpgm')
            a('s_setprio 3')
            self.s_ids(); self.s_kv_addr()
            self.after_kernarg('S')
            lq = self.L('pr'); lq2 = self.L('pr'); lq3 = self.L('pr')
            KF = False
            self.kv_srds()
            a(f's_cmp_ge_u32 {sXG}, 4\ns_cbranch_scc1 {lq}')
            self.s_kv_load()
            a.label(lq)
            lni = self.L('ni')
            a(f's_cmp_ge_u32 {sJ}, 28\ns_cbranch_scc1 {lni}')
            self.s_params_load()
            a.label(lni)
            self.code_prefetch(kn)
            self.s_kv_addr2()
            a(f's_cmp_ge_u32 {sJ}, 28\ns_cbranch_scc1 {lidle}')
            if not OPT('nolow'): a('s_setprio 0')
            a('@CUT S')
            self.mk_srd(R_B, P_U, X_BYTES); self.mk_srd(R_OUT, P_OUT, OUT_BYTES)
            def early_kv(n, part):
                l = self.L('ekv')
                a(f's_cmp_ge_u32 {sXG}, 4\ns_cbranch_scc1 {l}')
                self.s_kv_phase(n, part)
                a.label(l)
            OV = not OPT('noov')
            if OV:
                if OPT('kvpre'):
                    a('s_setprio 3'); self.nonce(5); early_kv(5, 3); a('s_setprio 2'); a('@CUT K')
                a('s_lshl_b32 s8, s9, 12\nv_add_u32 v1, s8, v15')
                self.s_addr_all()
                if OPT('kvsplit'):
                    l = self.L('k2')
                    a(f's_cmp_ge_u32 {sXG}, 4\ns_cbranch_scc1 {l}')
                    self.s_kv_load(2)
                    a.label(l)
                if not OPT('kvpre'): a('s_setprio 3')
                if OPT('kvpre'): pass
                elif not OPT('kvov'):
                    self.nonce(5)
                    early_kv(5, 3)
                else:
                    early_kv(5, 1)
                    self.nonce(5)
            else:
                self.nonce(4)
                early_kv(4, 3)
                a('s_setprio 2')
                self.code_prefetch(kn)
                a('s_lshl_b32 s8, s9, 12\nv_add_u32 v1, s8, v15')
                self.s_table_load(104)
                self.s_addr_all()
            def mid_r0():
                if OV:
                    if OPT('kvov'): early_kv(0, 2)
                    a('s_setprio 2')
                    if not (not OPT('cplate')): self.code_prefetch(kn)
                    self.s_table_load(104)
            def late_kv(hold):
                a(f's_cmp_lt_u32 {sXG}, 4\ns_cbranch_scc1 {lq3}')
                if hold and not OPT('kvnohold'):
                    a(f's_lshl_b32 s8, s2, 8\ns_add_u32 s8, s8, {WS_FA}')
                    self.spoll('s8', 1, 1)
                self.s_kv_load()
                self.s_kv_phase()
                a.label(lq3)
            self.late_kv = late_kv
            self.s_kgen(mid_r0)
            if OPT('kvlate'): late_kv(False)
            if OPT('xs1'): self.stamp_flush(8); a('s_endpgm')
            self.s_u_phase()
            if OPT('xs2'): self.stamp_flush(8); a('s_endpgm')
            a('s_setprio 0')
            if not OPT('notrig') and not OPT('noA'):
                lt = self.L('trig')
                a(f's_cmp_lg_u32 {sWAVE}, 0\ns_cbranch_scc1 {lt}\ns_lshl_b32 s8, s2, 8\ns_add_u32 s8, s8, {WS_FA + 4}')
                self.spoll('s8', 1, 2)
                a.label(lt)
            a('s_barrier')
            if OPT('conv1'): a('s_setprio 1')
            self.s_conv()
            self.publish_y()
            self.s_assemble()
            self.stamp_flush(8)
            a('s_endpgm')
            a.label(lidle)
            self.mk_srd(R_B, P_WO, WQ_BYTES)
            li = self.L('ih')
            self.nonce(1)
            a(f's_cmp_lt_u32 {sXG}, 4\ns_cbranch_scc1 {li}')
            if not OPT('noA'):
                a(f's_lshl_b32 s8, s2, 8\ns_add_u32 s8, s8, {WS_FA}')
                self.spoll('s8', 1, 1)
            self.s_kv_load()
            a.label(li)
            self.s_kv_phase(0, 3)
            if not OPT('noA'):
                a(f's_lshl_b32 s8, s2, 8\ns_add_u32 s8, s8, {WS_FA}')
                self.spoll('s8', 1, 1)
            self.wo_prefetch()
            if not OPT('noA'):
                self.e_update()
            else:
                a(f'v_mov_b32 v2, {WS_E}\nv_mov_b32 v3, {sNONCE}\ns_cmp_lg_u32 s2, 253\ns_cbranch_scc1 {self.lend}\n' + 's_sleep 127\n' * 6 + f'buffer_store_dword v3, v2, {srd(R_WS)}, 0 offen sc1')
            a('s_endpgm')
        def emit_A():
            a.label(la)
            if OPT('noA'): a('s_endpgm')
            a('s_setprio 3')
            self.a_qproj()
            if OPT('qonly'):
                self.stamp_flush(10); a('s_endpgm')
            a('s_setprio 1' if not OPT('ahigh') else 's_setprio 3')
            self.a_attn(); self.a_outproj(); self.stamp_flush(10)
            a('s_endpgm')
            self.a_fallback()
            a('s_endpgm')
        head = list(a.lines); a.lines.clear()
        emit_S(); LS = list(a.lines); a.lines.clear()
        emit_A(); LA = list(a.lines); a.lines.clear()
        if OPT('cutk'): LS.remove('@CUT S'); LS[LS.index('@CUT K')] = '@CUT S'
        elif '@CUT K' in LS: LS.remove('@CUT K')
        cs = LS.index('@CUT S'); ca = LA.index('@CUT A')
        brA = ['s_cmp_ge_u32 s2, 256', f's_cbranch_scc1 {la}']
        if OPT('flat'):
            a.lines += head + brA + LS[:cs] + LS[cs+1:] + LA[:ca] + LA[ca+1:]
        elif OPT('ahead'):
            a.lines += head + ['s_cmp_lt_u32 s2, 256', 's_cbranch_scc1 L_headS'] + LA[:ca] + ['s_branch L_bodyA', 'L_headS:'] + LS[:cs] + LS[cs+1:] + ['L_bodyA:'] + LA[ca+1:]
        else:
            a.lines += head + brA + LS[:cs] + ['s_branch L_bodyS'] + LA[:ca+0] + LA[ca+1:] + ['L_bodyS:'] + LS[cs+1:]
        self.kernel_tail()
        return [kn], [512]
    def code_prefetch(self, kn):
        a = self.a
        lp = self.L('pc')
        a('s_getpc_b64 s[12:13]'); a.label(lp)
        a(f's_add_u32 s12, s12, {kn}-{lp}\ns_addc_u32 s13, s13, -1')
        a(f's_lshl_b32 s8, {sJ}, 2\ns_add_u32 s8, s8, {sWAVE}\ns_mul_i32 s8, s8, 320\nv_mul_u32_u24 v9, 5, v0\nv_add_u32 v9, s8, v9\nv_and_b32 v9, -4, v9\nv_min_u32 v9, L_table-4-{kn}, v9')
        a('global_load_dword v55, v9, s[12:13]' if not OPT('nocpf') else f'global_load_dword v55, v15, {sp(P_LAR)}')
    def nonce_a(self):
        self.a(f's_add_u32 {sNONCE}, {sNONCE}, 0x9e3779b9')

def table():
    import numpy as np
    def rne_bf16(j):
        u = struct.unpack('<I', struct.pack('<f', float(j)))[0]
        u = (u + 0x7fff + ((u >> 16) & 1)) & 0xffff0000
        return int(struct.unpack('<f', struct.pack('<I', u))[0])
    hi = [0,1,2,3,4,5,6,7, 256,258,260,262, 512,516,768,772, 1024,1280,1536,1792, 2048]
    out = []
    for j in range(2048):
        p = rne_bf16(j)
        b = (p >> 3) & 31
        out.append(hi.index(p - 8 * b) * 144 + 4 * b)
    lin = []
    for mh in range(2):
        for i in range(4):
            for lane in range(64):
                lin += out[16*(64*mh+lane)+4*i:16*(64*mh+lane)+4*i+4]
    return lin

def main():
    mode = sys.argv[1]; outp = sys.argv[2]; stamps = len(sys.argv) > 3 and sys.argv[3] == 'stamps'
    g = Gen(mode, stamps)
    names, grids = g.build_multi() if mode == 'multi' else g.build_fused()
    body = g.a.finalize(verbose='-v' in sys.argv)
    head = open('cdna_kernels/' + NAME + '.s.ref').read().split('; Override launch geometry')[0]
    txt = head
    if mode == 'multi':
        for n, gr in zip(names, grids): txt += f'; @launch kernel={n} grid=({gr},1,1) block=(256,1,1) lds=81920\n'
    else:
        txt += f'; @launch grid=({grids[0]},1,1) block=(256,1,1) lds=81920\n'
    txt += '.amdgcn_target "amdgcn-amd-amdhsa--gfx950"\n.text\n' + body
    txt += '.p2align 6\n.type L_table,@object\nL_table:\n'
    t = table()
    for i in range(0, 2048, 16): txt += '.long ' + ','.join(str(x) for x in t[i:i+16]) + '\n'
    txt += '.section .rodata,"a"\n'
    for n in names:
        txt += f'''.p2align 6
.amdhsa_kernel {n}
  .amdhsa_next_free_vgpr 256
  .amdhsa_next_free_sgpr 102
  .amdhsa_accum_offset 256
  .amdhsa_group_segment_fixed_size 0
  .amdhsa_kernarg_size 120
  .amdhsa_user_sgpr_count 2
  .amdhsa_user_sgpr_kernarg_segment_ptr 1
  .amdhsa_system_sgpr_workgroup_id_x 1
.end_amdhsa_kernel
'''
    open(outp, 'w').write(txt)
    print('written', outp, 'nops inserted', g.a.n_nops, 'lines', len(g.a.lines))

if __name__ == '__main__':
    main()
```

```python
import sys, struct, math
from asmdsl import Asm

NAME = 'concat_heads__ssm_conv_s4d__grouped_kv_mqa__prompt'
X_BYTES = 2048 * 896; WQ_BYTES = 448 * 896; WK_BYTES = 448 * 56; OUT_BYTES = 2048 * 1792
WS_E = 0; WS_FKV = 0x80000; WS_FU = 0x9000; WS_FY = 0xA000; WS_FO = 0xB000
WS_FA = 0x50000; WS_PO = 0xC0000; WS_PY = 0xE0000; WS_PU = 0x6C0000; WS_KV = 0x10000; WS_O = 0x100000; WS_UT = 0x300000; WS_YT = 0x500000; WS_ST = 0x700000; WS_BYTES = 0x800000
NREP = 32
def f32(x): return '0x%08x' % struct.unpack('<I', struct.pack('<f', x))[0]
LOG2E = math.log2(math.e)
CSCALE = LOG2E / math.sqrt(28.0)

sWAVE = 's3'; sXG = 's4'; sJ = 's5'; sM = 's96'
P_U, P_LAR, P_AIM, P_CRE, P_CIM, P_LDT, P_DSK, P_X = [16 + 2 * i for i in range(8)]
P_WQ, P_WK, P_WV, P_WO = 32, 34, 36, 38
P_OUT, P_DBG, P_WS = 40, 42, 44
sNONCE = 's46'
R_X = 48; R_W = 52; R_WS = 56; R_OUT = 60; R_B = 64
def srd(r): return f's[{r}:{r+3}]'
def sp(r): return f's[{r}:{r+1}]'
def vr(a, n): return f'v[{a}:{a+n-1}]' if n > 1 else f'v{a}'

def OPT(x): return x in sys.argv
OSP = ' nt' if OPT('ont') else ' sc1' if OPT('osc1') else ' sc0 sc1' if OPT('osc01') else ''
class Gen:
    def __init__(self, mode, stamps=False):
        self.a = Asm(); self.mode = mode; self.stamps = stamps; self.uid = 0
    def L(self, base):
        self.uid += 1
        return f'L_{base}_{self.uid}'
    def mk_srd(self, r, p, nbytes):
        if r == R_OUT and OPT('nostore'): nbytes = 16
        if r == R_WS and OPT('wsbig'): nbytes = 0x10000000
        self.a(f's_mov_b32 s{r}, s{p}\ns_mov_b32 s{r+1}, s{p+1}\ns_mov_b32 s{r+2}, {hex(nbytes)}\ns_mov_b32 s{r+3}, 0x20000')
    def stamp(self, i):
        if self.stamps and not ((OPT('early') or OPT('sfine') or OPT('tail') or OPT('qst') or OPT('ast') or OPT('ust')) and i > 0):
            self.a(f's_memrealtime s[{76+2*i}:{77+2*i}]')
    def fstamp(self, i):
        if self.stamps and OPT('sfine'):
            self.a(f's_memrealtime s[{76+2*i}:{77+2*i}]')
    def tstamp(self, i):
        if self.stamps and OPT('tail'):
            self.a(f's_memrealtime s[{76+2*i}:{77+2*i}]')
    def qstamp(self, i):
        if self.stamps and OPT('qst'):
            self.a(f's_memrealtime s[{76+2*i}:{77+2*i}]')
    def astamp(self, i):
        if self.stamps and OPT('ast'):
            self.a(f'{"s_memtime" if OPT("cyc") else "s_memrealtime"} s[{76+2*i}:{77+2*i}]')
    def ustamp(self, i):
        if self.stamps and OPT('ust'):
            self.a(f's_memrealtime s[{76+2*i}:{77+2*i}]')
    def estamp(self, i):
        if self.stamps and OPT('early'):
            self.a(f's_memrealtime s[{76+2*i}:{77+2*i}]')
    def cstamp(self, i):
        if self.stamps:
            self.a(f's_memtime s[{76+2*i}:{77+2*i}]')
    def stamp_flush(self, n):
        if not self.stamps: return
        a = self.a
        a('s_waitcnt lgkmcnt(0)')
        if OPT('dbgst'):
            l = self.L('dbg')
            a(f's_cmp_lg_u32 {sWAVE}, 0\ns_cbranch_scc1 {l}')
            self.mk_srd(R_X, P_DBG, 256)
            a('v_mov_b32 v2, 0')
            isA = n == 10
            for i in range(8):
                if i == 0 and isA: a('s_not_b32 s6, s76\nv_writelane_b32 v2, s6, 0')
                else: a(f'v_writelane_b32 v2, s{76+2*i}, {i}')
            a(f'v_lshlrev_b32 v1, 2, v0\nv_add_u32 v1, {0 if isA else 32}, v1\ns_mov_b64 exec, 0xff')
            a(f'buffer_atomic_umax v2, v1, {srd(R_X)}, 0 offen\ns_mov_b64 exec, -1')
            a.label(l)
            return
        a(f's_lshl_b32 s6, s2, 2\ns_add_u32 s6, s6, {sWAVE}\ns_lshl_b32 s6, s6, 6\ns_add_u32 s6, s6, {WS_ST}')
        a('v_mov_b32 v1, s6')
        for i in range(n):
            a(f'v_mov_b32 v2, s{76+2*i}\nbuffer_store_dword v2, v1, {srd(R_WS)}, 0 offen offset:{4*i}')
        a('s_getreg_b32 s7, hwreg(HW_REG_XCC_ID)\nv_mov_b32 v2, s7')
        a(f'buffer_store_dword v2, v1, {srd(R_WS)}, 0 offen offset:60')

    def prologue(self, nwg):
        a = self.a
        if self.stamps:
            for i in range(1, 10): a(f's_mov_b64 s[{76+2*i}:{77+2*i}], 0')
        self.stamp(0)
        a(f's_cmp_ge_u32 s2, {nwg}\ns_cbranch_scc1 {self.lend}')
        a('s_load_dwordx16 s[16:31], s[0:1], 0\ns_load_dwordx8 s[32:39], s[0:1], 64')
        a('s_load_dwordx4 s[40:43], s[0:1], 96\ns_load_dwordx2 s[44:45], s[0:1], 112')
        a('v_lshrrev_b32 v1, 6, v0\nv_and_b32 v0, 63, v0')
        a(f's_and_b32 {sXG}, s2, 7\ns_bfe_u32 {sJ}, s2, 0x50003')
        a(f'v_readfirstlane_b32 {sWAVE}, v1')

    def after_kernarg(self, role):
        a = self.a
        self.estamp(1)
        a('s_waitcnt lgkmcnt(0)')
        self.estamp(2)
        if OPT('stlb') and role == 'S' or OPT('atlb') and role == 'A':
            for p in (P_X, P_WQ, P_WK, P_WV, P_WS, P_LAR, P_AIM, P_CRE, P_CIM, P_U, P_WO, P_OUT):
                a(f's_load_dword s47, {sp(p)}, 0')
        self.mk_srd(R_WS, P_WS, WS_BYTES)
        a(f'buffer_load_dword v54, off, {srd(R_WS)}, 0 offset:{WS_E} sc1')

    def row7_addr(self, v0, v1, tmp, rowstride):
        a = self.a
        for v, add in ((v0, 0), (v1, 64)):
            if add: a(f'v_add_u32 {tmp}, {add}, v0')
            else: a(f'v_mov_b32 {tmp}, v0')
            a(f'v_mul_u32_u24 {v}, 147, {tmp}\nv_lshrrev_b32 {v}, 10, {v}')
            a(f'v_mul_u32_u24 {v}, {rowstride - 112}, {v}')
            a(f'v_lshl_add_u32 {v}, {tmp}, 4, {v}')

    def w128_src(self):
        a = self.a
        a(f's_lshl_b32 s8, {sWAVE}, 4\ns_mul_i32 s9, s8, 896\ns_mul_i32 s11, s7, 112\ns_add_u32 s9, s9, s11')
        a('v_lshrrev_b32 v2, 3, v0\nv_mul_u32_u24 v2, 896, v2\nv_bfe_u32 v3, v0, 4, 1\nv_lshlrev_b32 v3, 2, v3\nv_and_b32 v4, 7, v0\nv_xor_b32 v3, v3, v4')
        a('v_lshl_add_u32 v114, v3, 4, v2\nv_add_u32 v114, s9, v114\nv_add_u32 v115, 7168, v114')
    def w128_frag(self, dst, rowmul_h, sbyte):
        a = self.a
        a(f'v_bfe_u32 v2, v0, 4, 1\nv_lshlrev_b32 v2, 5, v2\nv_and_b32 v3, 3, v0\nv_lshl_add_u32 v2, v3, 3, v2\nv_add_u32 v2, {sbyte}, v2')
        a(f'v_bfe_u32 v3, v0, 3, 1\nv_lshlrev_b32 v3, 6, v3\nv_xor_b32 v2, v2, v3')
        a(f'v_lshrrev_b32 v3, 5, v0\nv_mul_u32_u24 v3, {rowmul_h}, v3\nv_bfe_u32 v4, v0, 2, 2\nv_add_u32 v3, v3, v4\nv_lshl_add_u32 {dst}, v3, 7, v2')
    def a_qproj_addr(self):
        a = self.a
        QX = 32768
        self.mk_srd(R_B, P_WO, WQ_BYTES); self.mk_srd(R_OUT, P_OUT, OUT_BYTES)
        a(f's_and_b32 s8, {sWAVE}, 1\ns_lshl_b32 s8, s8, 5')
        a('v_and_b32 v2, 31, v0\nv_add_u32 v2, s8, v2\nv_bfe_u32 v3, v2, 1, 3\nv_lshrrev_b32 v4, 5, v0\nv_xor_b32 v3, v3, v4\nv_lshlrev_b32 v2, 7, v2')
        for ks in range(4):
            a(f'v_xor_b32 v9, {2*ks}, v3\nv_lshl_add_u32 v{116+ks}, v9, 4, v2\nv_add_u32 v{121+ks}, 0x10000, v{116+ks}')
        a(f's_lshr_b32 s8, {sWAVE}, 1\ns_mul_i32 s8, s8, 56')
        self.w128_frag('v120', 8, 's8')
        a('v_add_u32 v125, 0x10000, v120\nv_lshlrev_b32 v15, 4, v0')
        a(f's_lshl_b32 s8, {sWAVE}, 11\ns_add_u32 s8, s8, {QX}\nv_add_u32 v126, s8, v15')
        for js in range(4):
            a(f's_add_u32 s8, {sWAVE}, {1+js}\ns_and_b32 s8, s8, 3\ns_lshl_b32 s9, s8, 11\ns_add_u32 s9, s9, {QX}\nv_add_u32 v{192+js}, s9, v15')
            if js < 3:
                a(f's_mul_i32 s9, s8, 12288\nv_add_u32 v{196+js}, s9, v15')
        for r in range(64, 112): a(f'v_mov_b32 v{r}, 0')
    def a_qproj(self):
        a = self.a
        QX = 32768
        REG = [0, 16384, 32768, 49152, 65536, 0, 16384]
        sQB = 's6'; sHP = 's7'
        a(f's_lshr_b32 s8, {sJ}, 3\ns_lshl_b32 {sQB}, {sXG}, 2\ns_add_u32 {sQB}, {sQB}, s8\ns_and_b32 {sHP}, {sJ}, 7')
        a(f's_lshl_b32 s8, {sWAVE}, 4\ns_lshl_b32 s9, {sQB}, 6\ns_add_u32 s9, s9, s8\ns_mul_i32 s9, s9, 896')
        a('v_lshrrev_b32 v2, 3, v0\nv_lshrrev_b32 v3, 4, v0\nv_and_b32 v4, 7, v0')
        a('v_xor_b32 v4, v4, v3\nv_mul_u32_u24 v2, 896, v2')
        a('v_lshl_add_u32 v112, v4, 4, v2\nv_add_u32 v112, s9, v112')
        a('v_xor_b32 v4, 4, v4\nv_lshl_add_u32 v113, v4, 4, v2\nv_add_u32 v113, s9, v113\nv_add_u32 v113, 7168, v113')
        a(f's_lshl_b32 s10, {sWAVE}, 11')
        self.w128_src()
        a(f's_lshr_b32 s8, {sJ}, 3\ns_lshl_b32 s8, s8, 1\ns_add_u32 s8, s8, {sHP}\ns_cmp_ge_u32 s8, 7\ns_cselect_b32 s9, 7, 0\ns_sub_u32 s8, s8, s9')
        a('s_cmp_ge_u32 s8, 7\ns_cselect_b32 s9, 7, 0\ns_sub_u32 s8, s8, s9')
        if OPT('rot2'): a(f's_lshr_b32 s8, {sJ}, 3\ns_add_u32 s8, s8, {sHP}\ns_and_b32 s8, s8, 1\ns_lshl_b32 s8, s8, 2')
        if OPT('rot2b'): a(f's_lshr_b32 s8, {sJ}, 3\ns_add_u32 s8, s8, {sHP}\ns_and_b32 s8, s8, 1\ns_mul_i32 s8, s8, 3')
        if OPT('rot1'): a('s_mov_b32 s8, 0')
        if OPT('rot4'): a(f's_lshr_b32 s8, {sJ}, 3\ns_add_u32 s8, s8, {sHP}\ns_and_b32 s8, s8, 3\ns_lshl_b32 s8, s8, 1')
        a('s_lshl_b32 s14, s8, 7\ns_mul_i32 s15, s8, 57344')
        self.after_kernarg('A')
        self.mk_srd(R_X, P_X, X_BYTES); self.mk_srd(R_W, P_WQ, WQ_BYTES)
        def loadx(i):
            a(f's_add_u32 m0, s10, {REG[i]}\ns_nop 0\nbuffer_load_dwordx4 v112, {srd(R_X)}, s14 offen lds')
            a(f's_add_u32 m0, s10, {REG[i] + 1024}\ns_nop 0\nbuffer_load_dwordx4 v113, {srd(R_X)}, s14 offen lds')
            if i < 6: a('s_add_u32 s14, s14, 128\ns_cmp_eq_u32 s14, 896\ns_cselect_b32 s14, 0, s14')
        def loadw(i):
            a(f's_add_u32 m0, s10, {REG[i] + 8192}\ns_nop 0\nbuffer_load_dwordx4 v114, {srd(R_W)}, s15 offen lds')
            a(f's_add_u32 m0, s10, {REG[i] + 8192 + 1024}\ns_nop 0\nbuffer_load_dwordx4 v115, {srd(R_W)}, s15 offen lds')
            if i < 6: a(f's_add_u32 s15, s15, 57344\ns_cmp_eq_u32 s15, {7*57344}\ns_cselect_b32 s15, 0, s15')
        def load(i): loadw(i); loadx(i)
        NF = 3 if OPT('q3') else 5 if OPT('q5') else 4
        a('s_setprio 1')
        if OPT('wfirst'): loadw(0); loadw(1); loadx(0); loadx(1)
        else: loadx(0); loadw(0); loadx(1); loadw(1)
        a('@CUT A')
        self.a_qproj_addr(); self.a_attn_setup(); self.a_tail_addr()
        for i in range(2, NF): load(i)
        if not OPT('shi'): a('s_setprio 3')
        self.estamp(3)
        FX = (144, 176); FW = (160, 232); ACC = 48
        issued = NF
        def rd(i):
            hi = REG[i] >= 65536
            off = REG[i] - (65536 if hi else 0)
            for ks in range(4):
                a(f'ds_read_b128 {vr(FX[i&1]+4*ks,4)}, v{(121 if hi else 116)+ks} offset:{off}')
                for t in range(2):
                    a(f'ds_read_b64_tr_b16 {vr(FW[i&1]+4*ks+2*t,2)}, v{125 if hi else 120} offset:{off + 8192 + (16*ks+4*t)*128}')
        def mm(i, waits):
            for ks in range(4):
                c = '0' if (i == 0 and ks == 0) else vr(ACC, 16)
                if waits[ks] is not None: a(f's_waitcnt lgkmcnt({waits[ks]})')
                a(f'v_mfma_f32_32x32x16_bf16 {vr(ACC,16)}, {vr(FW[i&1]+4*ks,4)}, {vr(FX[i&1]+4*ks,4)}, {c}')
        extra = 0; FLS = 4 if OPT('fl4') else 5
        for i in range(7):
            a(f's_waitcnt vmcnt({4*(issued - 1 - i) - (2 if i == 0 and OPT("wfirst") else 0) + extra}) lgkmcnt(0)\ns_barrier')
            if i == 0: self.stamp(1); self.estamp(4)
            if i == 3: self.estamp(5)
            if i == 6: self.estamp(6)
            self.qstamp(i + 1)
            if (i == 6 and OPT('flvec')) or (i == 5 and OPT('flvec5')) or (i == 6 and OPT('flvec6')):
                a(f's_mov_b64 exec, 0xffff\nbuffer_load_dword v250, v251, {srd(R_WS)}, s36 offen sc1\ns_mov_b64 exec, -1'); extra += 1
            rd(i)
            if i and i < 6: mm(i - 1, [None] * 4)
            while issued < 7 and issued <= i + NF and (issued < 5 or issued - 5 < i): load(issued); issued += 1
            if i == 0:
                a(f'v_readfirstlane_b32 {sNONCE}, v54\ns_add_u32 {sNONCE}, {sNONCE}, 0x9e3779b9\ns_mov_b32 s40, {sNONCE}\ns_mov_b32 s41, {sNONCE}\nv_mov_b32 v199, {sNONCE}')
            if i == (5 if OPT('fa5') else 3):
                assert issued == 7
                a(f'buffer_store_dword v199, v248, {srd(R_WS)}, s69 offen sc1'); extra += 1
            if i == 5:
                mm(5, [9, 6, 3, 0])
                if OPT('flpre'):
                    a('s_mov_b32 s14, 0')
                    for x in self.fl_load(): a(x)
        mm(6, [9, 6, 3, 0])
        V2 = OPT('flvec5') or OPT('flvec6')
        if V2:
            lno = self.L('nokv')
            a(f's_waitcnt vmcnt(0)\ns_mov_b64 exec, 0xffff\nv_cmp_ne_u32 vcc, v250, v199\ns_mov_b64 exec, -1\ns_cbranch_vccnz {lno}')
            self.kv_first([0])
            a('s_mov_b32 s75, 1')
            a.label(lno)
        if OPT('flpre'):
            lno = self.L('nokv')
            for x in self.fl_test()[1:]: a(x)
            a(f's_cbranch_scc1 {lno}')
            self.kv_first([0])
            a('s_mov_b32 s75, 1')
            a.label(lno)
        for r in range(8): a(f'v_mov_b32 v{184+r}, 0')
        for r in range(8): a(f'v_cvt_pk_bf16_f32 v{224+r}, v{ACC+2*r}, v{ACC+2*r+1}')
        a('s_mov_b32 exec_lo, 0\nv_mov_b32 v230, 0\nv_mov_b32 v231, 0\ns_mov_b32 exec_lo, -1')
        a('ds_write_b128 v126, v[224:227]\nds_write_b128 v126, v[228:231] offset:1024')
        for r in range(48, 64): a(f'v_mov_b32 v{r}, 0')
        a('s_waitcnt lgkmcnt(0)')
        if not OPT('flpre') and not OPT('flvec') and not V2:
            a('s_mov_b32 s14, 0')
            for x in self.fl_load(): a(x)
        a('s_barrier')
        for js in range(4):
            a(f'ds_read_b128 {vr(16+8*js,4)}, v{192+js}\nds_read_b128 {vr(20+8*js,4)}, v{192+js} offset:1024')
        lno2 = self.L('nokv')
        if OPT('flvec'):
            a(f's_waitcnt vmcnt(0)\ns_mov_b64 exec, 0xffff\nv_cmp_ne_u32 vcc, v250, v199\ns_mov_b64 exec, -1\ns_cbranch_vccnz {lno2}\ns_mov_b32 s75, 1')
            self.kv_first([0])
        elif not OPT('flpre') and not V2:
            for x in self.fl_test(): a(x)
            a(f's_cbranch_scc1 {lno2}\ns_mov_b32 s75, 1')
            self.kv_first([0])
        else: a(f's_cmp_eq_u32 s75, 0\ns_cbranch_scc1 {lno2}')
        self.kv_first([1, 2, 3])
        a.label(lno2)
        self.stamp(2); self.estamp(7)

    KB_ = (112, 128, 200, 216); CK = ['s32', 's33', 's34', 's35']
    def ldK(self, buf): return ['s_nop 0', 's_nop 0'] if OPT('nold') and getattr(self, 'inloop', 0) else [f'buffer_load_dwordx4 {vr(self.KB_[buf] + 4*f, 4)}, v15, {srd(R_WS)}, s68 offen offset:{1024*f} sc1' for f in range(2)]
    def ldV(self, buf): return ['s_nop 0', 's_nop 0'] if OPT('nold') and getattr(self, 'inloop', 0) else [f'buffer_load_dwordx4 {vr(self.KB_[buf] + 8 + 4*f, 4)}, v15, {srd(R_WS)}, s68 offen offset:{2048+1024*f} sc1' for f in range(2)]
    def fl_load(self, g='s14'):
        return [f's_lshr_b32 s8, {g}, 6', 's_add_u32 s8, s8, s36', f's_load_dwordx8 s[16:23], {sp(P_WS)}, s8 glc', 's_add_u32 s9, s8, 512', f's_load_dwordx8 s[24:31], {sp(P_WS)}, s9 glc']
    def fl_test(self):
        out = ['s_waitcnt lgkmcnt(0)', 's_xor_b64 s[16:17], s[16:17], s[40:41]']
        for i in range(1, 8): out += [f's_xor_b64 s[{16+2*i}:{17+2*i}], s[{16+2*i}:{17+2*i}], s[40:41]', f's_or_b64 s[16:17], s[16:17], s[{16+2*i}:{17+2*i}]']
        return out
    def fl_check(self):
        lr = self.L('kvspin'); lb = self.L('kvback')
        self.spins.append((lr, lb))
        return self.fl_test() + [f's_cbranch_scc1 {lr}', lb + ':']
    def kv_first(self, bs=range(4)):
        for b in bs:
            self.a(f's_mov_b32 s68, {self.CK[b]}')
            for x in self.ldK(b) + (self.ldV(b) if b < 3 else []): self.a(x)
    def a_attn_setup(self):
        a = self.a
        self.spins = []
        a(f's_lshl_b32 s8, {sWAVE}, 13\ns_add_u32 s8, s8, {WS_KV}\ns_mov_b32 s37, s8')
        for k in range(4):
            a(f's_add_u32 s9, {sJ}, {k}\ns_and_b32 s12, s9, 1\ns_lshl_b32 s12, s12, 12\ns_and_b32 s9, s9, 2\ns_lshl_b32 s9, s9, 14\ns_add_u32 s9, s9, s12\ns_add_u32 s{32+k}, s8, s9')
        a(f's_and_b32 s36, s2, {NREP-1}\ns_lshl_b32 s36, s36, 12\ns_lshl_b32 s8, {sWAVE}, 7\ns_add_u32 s36, s36, s8\ns_add_u32 s36, s36, {WS_FKV}')
        a('s_mov_b32 s38, 0x07060302')
        a(f's_and_b32 s69, s2, 255\ns_lshl_b32 s69, s69, 8\ns_add_u32 s69, s69, {WS_FA}\nv_mov_b32 v248, 0')
        if OPT('flvec') or OPT('flvec5') or OPT('flvec6'): a('v_and_b32 v251, 7, v0\nv_lshlrev_b32 v251, 2, v251\nv_bfe_u32 v250, v0, 3, 1\nv_lshl_add_u32 v251, v250, 9, v251')
        a(f's_lshl_b32 s71, {sWAVE}, 10\ns_mul_i32 s8, {sWAVE}, 7168\ns_lshl_b32 s9, s7, 4\ns_sub_u32 s8, s9, s8\nv_add_u32 v249, s8, v114')
        a(f's_cmp_eq_u32 s7, 7\ns_cselect_b32 s{R_B+2}, 0, s{R_B+2}')
        a('s_mov_b32 s72, 0\ns_mov_b32 s73, 0\ns_mov_b32 s75, 0')
    def a_attn(self):
        a = self.a
        Q = 16; O = 48; SS = (144, 160); PP = (176, 184)
        KB_ = (112, 128, 200, 216)
        K = lambda buf, f: vr(KB_[buf] + 4*f, 4)
        Vv = lambda buf, f: vr(KB_[buf] + 8 + 4*f, 4)
        sG = 's14'; sF = 's36'; sOFF = 's68'; sCNT = 's70'; sSEQ = 's74'; CK = self.CK
        fl_load = self.fl_load; fl_check = self.fl_check; ldK = self.ldK; ldV = self.ldV
        for r in range(8): a(f'v_mov_b32 v{KB_[3]+8+r}, 0')
        lgo = self.L('go')
        a(f's_cmp_lg_u32 s75, 0\ns_cbranch_scc1 {lgo}')
        self.lagain = self.L('again')
        a.label(self.lagain)
        a(f's_mov_b32 {sG}, 0')
        for x in fl_load() + fl_check(): a(x)
        self.kv_first()
        a.label(lgo)
        a(f's_mov_b32 {sSEQ}, 0x462')
        self.stamp(3); self.cstamp(8); self.astamp(1)
        def nxtG(): return [f's_and_b32 s39, {sSEQ}, 15', 's_lshl_b32 s39, s39, 15', f's_lshr_b32 {sSEQ}, {sSEQ}, 4']
        def mA(u, buf, f):
            s = SS[u & 1]; c = '0' if f == 0 else vr(s, 16)
            return f'v_mfma_f32_32x32x16_bf16 {vr(s,16)}, {K(buf,f)}, {vr(Q + 8*(u&3) + 4*f, 4)}, {c}'
        def mC(u, buf, f):
            o = vr(O + 16*(u & 3), 16)
            return f'v_mfma_f32_32x32x16_bf16 {o}, {Vv(buf,f)}, {vr(PP[u&1] + 4*f, 4)}, {o}'
        a('s_waitcnt lgkmcnt(0)')
        if OPT('tlb'):
            a(f's_mov_b64 exec, 1\nbuffer_load_dword v252, v248, {srd(R_WS)}, s42 offen\nbuffer_load_dword v253, v248, {srd(R_OUT)}, s98 offen\ns_mov_b64 exec, -1')
        for x in nxtG() + fl_load('s39'): a(x)
        a(f's_waitcnt vmcnt({14 if OPT("tlb") else 12})')
        self.astamp(2)
        a(mA(0, 0, 0)); a(mA(0, 0, 1))
        a(f's_mov_b32 {sCNT}, 3')
        def unit(u, mf, extra):
            s = SS[u & 1]; p = PP[u & 1]
            e = lambda i: f'v_exp_f32 v{s+i}, v{s+i}'
            c = (lambda i: f'v_cvt_pk_bf16_f32 v{p+i}, v{s+2*i}, v{s+2*i+1}') if OPT('cvt') else (lambda i: f'v_perm_b32 v{p+i}, v{s+2*i+1}, v{s+2*i}, s38')
            Lq = [e(0), e(1), e(2), e(3), c(0), e(4), e(5), c(1), e(6), e(7), c(2), e(8), e(9), c(3), e(10), e(11), c(4), e(12), e(13), c(5), e(14), e(15), c(6), c(7)]
            sp_ = (4, 4, 4, 12) if OPT('hole') else (6, 6, 6, 6)
            seq = [Lq[sum(sp_[:i]):sum(sp_[:i+1])] for i in range(4)]
            for i in range(4):
                for x in extra.get(('pre', i), []): a(x)
                if mf[i]: a(mf[i])
                for x in extra.get(i, []): a(x)
                for x in seq[i]: a(x)
        lloop = self.L('attn'); self.inloop = 1
        TRIG = [int(x[4:]) for x in sys.argv if x.startswith('trig') and x[4:].isdigit()]
        TRL = [int(x[5:]) for x in sys.argv if x.startswith('trigL')]
        if not TRIG and not TRL: TRL = [13]
        TRI = 2 if OPT('trigIt2') else 1
        TRIG = TRIG[0] if TRIG else 99
        WOR = list(range(8, 15))
        WOU = list(range(2, 10))
        W = lambda n, u, slot: n + (1 if (u, slot) > (TRIG, 0) else 0) + sum(1 for x in WOU if (u, slot) > (x, 1)) + sum(1 for x in WOR if (u, slot) > (x, 3))
        def body(tail):
            for u in range(16):
                t = u >> 2; b = u & 3
                nu = u + 1; nbuf = (nu >> 2) & 3
                pu = u - 1; pbuf = ((pu >> 2) & 3)
                mf = [mA(nu, nbuf, 0), mA(nu, nbuf, 1), mC(pu, pbuf, 0), mC(pu, pbuf, 1)]
                ex = {}
                if tail and u == 15: mf = [mC(pu, pbuf, 0), mC(pu, pbuf, 1), None, None]
                if b == 3:
                    if not tail:
                        ex[('pre', 0)] = ['s_waitcnt vmcnt(10)']
                        ex[0] = [f's_add_u32 {sOFF}, {sG}, {CK[t]}']
                        ex[2] = [ldK(t)[0]]; ex[3] = [ldK(t)[1]]
                    elif t < 3:
                        ex[('pre', 0)] = [f's_waitcnt vmcnt({W(10 - 4*t, u, 0)})']
                if b == 1:
                    if not tail or t == 0:
                        assert TRIG >= 2
                        ex[('pre', 2)] = ['s_waitcnt vmcnt(10)']
                        ex[2] = [ldV((t - 1) & 3)[0]]; ex[3] = [ldV((t - 1) & 3)[1]]
                    else:
                        ex[('pre', 2)] = [f's_waitcnt vmcnt({W(12 - 4*t, u, 2)})']
                if tail and u == TRIG:
                    ex.setdefault(0, []).append(f'buffer_store_dword v199, v248, {srd(R_WS)}, s69 offen offset:4 sc1')
                if not tail and not OPT('nospread'):
                    if u == 0: self.c_ = fl_check()
                    g_ = nxtG() + fl_load('s39')
                    plan = {(12, 0): g_[0:1], (12, 1): g_[1:2], (12, 2): g_[2:3], (12, 3): g_[3:4], (13, 0): g_[4:5], (13, 1): g_[5:6], (14, 1): g_[6:7], (14, 2): g_[7:8]}
                    c_ = self.c_
                    slots = [(0, 1), (0, 2), (0, 3), (1, 0), (1, 1), (2, 0), (2, 1), (2, 2), (2, 3)]
                    per = [2, 2, 2, 2, 2, 2, 2, 2, 3]; k = 0
                    for sl, n in zip(slots, per): plan[sl] = c_[k:k+n]; k += n
                    plan[(0, 0)] = [f's_mov_b32 {sG}, s39']
                    for (uu, sl), xs in plan.items():
                        if uu == u: ex.setdefault(sl, []).extend(xs)
                if not tail and OPT('nospread'):
                    if u == 0:
                        ex[0] = [f's_mov_b32 {sG}, s39']
                    if u == 14:
                        g_ = nxtG() + fl_load('s39')
                        ex.setdefault(1, []).extend(g_[:2]); ex.setdefault(2, []).extend(g_[2:4]); ex.setdefault(3, []).extend(g_[4:6])
                        self.g_rest = g_[6:]
                    if u == 15:
                        ex.setdefault(1, []).extend(self.g_rest)
                    if u == 1:
                        c0 = ['s_waitcnt lgkmcnt(0)', 's_xor_b64 s[16:17], s[16:17], s[40:41]']
                        for i in range(1, 4): c0 += [f's_xor_b64 s[{16+2*i}:{17+2*i}], s[{16+2*i}:{17+2*i}], s[40:41]', f's_or_b64 s[16:17], s[16:17], s[{16+2*i}:{17+2*i}]']
                        ex.setdefault(0, []).extend(c0[:2]); ex.setdefault(1, []).extend(c0[2:4]); ex.setdefault(2, []).extend(c0[4:6]); ex.setdefault(3, []).extend(c0[6:])
                    if u == 2:
                        c_ = fl_check(); self.c_ = c_
                        ex[0] = c_[8:10]; ex[1] = c_[10:12]; ex[2] = c_[12:14]; ex[3] = c_[14:]
                if not tail and TRL and u == TRL[0]:
                    lsk = self.L('tsk')
                    assert u not in (1, 2, 14, 15)
                    ex.setdefault(1, []).extend([f's_cmp_lg_u32 {sCNT}, {TRI}', f's_cbranch_scc1 {lsk}', f'buffer_store_dword v199, v248, {srd(R_WS)}, s69 offen offset:4 sc1', lsk + ':'])
                if tail and u in WOU:
                    i = WOU.index(u)
                    ex.setdefault(0, []).append(f's_add_u32 m0, s71, {self.WOB + 1024*(25+4*i)}')
                    ex.setdefault(('pre', 1), []).append(f's_mov_b32 s13, {(25+4*i)*7168}')
                    ex.setdefault(1, []).append(f'buffer_load_dwordx4 v249, {srd(R_B)}, s13 offen lds')
                if tail and u in WOR:
                    i = WOR.index(u)
                    ex.setdefault(2, []).append(f's_mov_b32 s11, {4*i*7168}')
                    ex.setdefault(3, []).append(f'buffer_load_dwordx4 {vr(112+4*i,4)}, v249, {srd(R_B)}, s11 offen')
                if tail and u == 14:
                    for g in range(4): ex.setdefault((1,2,2,3)[g], []).append(f'ds_write_b128 v196, {vr(O+4*g,4)} offset:{g*1024}')
                if tail and u == 15:
                    if OPT('oldend'):
                        for g in range(4): ex.setdefault((1,2,2,3)[g], []).append(f'ds_write_b128 v197, {vr(O+16+4*g,4)} offset:{4096+g*1024}')
                    else:
                        for g in range(4): ex.setdefault((1,1,2,2)[g], []).append(f'ds_write_b128 v197, {vr(O+16+4*g,4)} offset:{4096+g*1024}')
                        mf = [mC(pu, pbuf, 0), mC(pu, pbuf, 1), None, mC(15, 3, 0)]
                        for g in range(4): ex.setdefault(3, []).append(f'ds_write_b128 v198, {vr(O+32+4*g,4)} offset:{8192+g*1024}')
                if not tail and u == 14:
                    ex.setdefault(0, []).append(f's_sub_u32 {sCNT}, {sCNT}, 1')
                unit(u, mf, ex)
        a('s_nop 10\n.p2align 4')
        a.label(lloop)
        body(False)
        if self.stamps and OPT('ast'):
            for k in range(3):
                l = self.L('ast')
                a(f's_cmp_lg_u32 {sCNT}, {2-k}\ns_cbranch_scc1 {l}'); self.astamp(3 + k); a.label(l)
        a(f's_cmp_lg_u32 {sCNT}, 0\ns_cbranch_scc1 {lloop}')
        body(True)
        self.astamp(6)
        a('s_setprio 3')
        if OPT('oldend'):
            a(mC(15, 3, 0)); a(mC(15, 3, 1))
            for g in range(4): a(f'ds_write_b128 v198, {vr(O+32+4*g,4)} offset:{8192+g*1024}')
            a('s_waitcnt lgkmcnt(0)\ns_barrier')
        else:
            a('s_waitcnt lgkmcnt(0)'); a(mC(15, 3, 1)); a('s_barrier')
        self.stamp(4); self.cstamp(9); self.tstamp(1); self.astamp(7)
        RD = 128 if False else 144
        F = O + 48
        if OPT('oldend'):
            for i in range(12): a(f'ds_read_b128 {vr(RD+4*i,4)}, v2 offset:{i*1024}')
            steps = [(F, RD, 8), (F, RD+16, 4), (F, RD+32, 0)]
        else:
            for i in range(12): a(f'ds_read_b128 {vr(RD+4*i,4)}, v2 offset:{i*1024}')
            steps = [(RD, RD+16, 4), (RD, RD+32, 0), (F, RD, None)]
        for s, (dst, src, w) in enumerate(steps):
            if w is not None: a(f's_waitcnt lgkmcnt({w})')
            order = list(range(16))
            if s == 2: order = [12] + [r for r in order if r != 12]
            for n, r in enumerate(order):
                a(f'v_add_f32 v{dst+r}, v{dst+r}, v{src+r}')
                if s == 2 and n == 1: a(f'v_mov_b32 v208, v{F+12}\nv_mov_b32 v209, v{F+12}')
                if s == 2 and n == 4: a('v_permlane32_swap_b32 v208, v209')
                if s == 2 and n == 7: a('v_rcp_f32 v208, v209')
        if not OPT('olate'): a(f's_load_dwordx8 s[16:23], {sp(P_WS)}, s100 glc')
        for r in range(16): a(f'v_mul_f32 v{F+r}, v{F+r}, v208')
        for r in range(8): a(f'v_cvt_pk_bf16_f32 v{200+r}, v{F+2*r}, v{F+2*r+1}')
        a('s_mov_b32 exec_lo, 0\nv_mov_b32 v206, 0\nv_mov_b32 v207, 0\ns_mov_b32 exec_lo, -1')
        self.lnopub = self.L('nopub'); self.lskip = self.L('skip')
        a(f's_mov_b32 s12, 0\ns_cmp_lg_u32 s73, 0\ns_cbranch_scc1 {self.lskip}')
        a(f'buffer_store_dwordx4 v[200:203], v15, {srd(R_WS)}, s42 offen sc1')
        a(f'buffer_store_dwordx4 v[204:207], v15, {srd(R_WS)}, s42 offen offset:1024 sc1')
        a('s_mov_b32 s9, 0x3f803f80\nv_mov_b32 v210, 0')
        for r in range(8): a(f'v_dot2_f32_bf16 v210, v{200+r}, s9, v210')
        a(f's_mov_b32 s12, {f32(2.0**64)}\nv_mov_b32 v211, 0x207\nv_cmp_nle_f32 vcc, {f32(2.0**-64)}, v209\nv_cmp_nge_f32 s[10:11], s12, v209')
        a('s_or_b64 s[10:11], s[10:11], vcc\nv_cmp_class_f32 vcc, v210, v211\ns_or_b64 s[10:11], s[10:11], vcc')
        a('s_cmp_lg_u64 s[10:11], 0\ns_cselect_b32 s12, 1, 0\ns_andn2_b32 s12, s12, s72')
        a(f's_cbranch_scc1 {self.lskip}')
        self.tstamp(2)
        a('s_waitcnt vmcnt(0)')
        self.tstamp(3)
        a(f's_mov_b64 exec, 0x7f\nbuffer_store_dword v199, v7, {srd(R_WS)}, s43 offen sc1\ns_mov_b64 exec, -1\ns_mov_b32 s73, 1')
        a.label(self.lnopub)
        self.stamp(5)
        self.lfb = self.L('fallback')
        a('v_mov_b32 v210, s12\nds_write_b32 v4, v210 offset:3588')
        a('s_waitcnt lgkmcnt(0)\ns_barrier')
        if OPT('olate'): a(f's_load_dwordx8 s[16:23], {sp(P_WS)}, s100 glc')
        for k in range(4): a(f'ds_read_b32 v{212+k}, v248 offset:{3588+16*k}')
        a(f's_waitcnt lgkmcnt(0)\nv_or3_b32 v212, v212, v213, v214\nv_or_b32 v212, v212, v215\nv_cmp_ne_u32 vcc, 0, v212\ns_cbranch_vccnz {self.lfb}')

    def a_tail_addr(self):
        a = self.a
        XCH = 0
        a(f's_lshr_b32 s12, {sWAVE}, 1\ns_and_b32 s13, {sWAVE}, 1')
        a(f's_lshl_b32 s8, s6, 1\ns_add_u32 s8, s8, s13\ns_lshl_b32 s39, s8, 15\ns_add_u32 s39, s39, {WS_O}')
        a('s_lshl_b32 s9, s7, 1\ns_add_u32 s9, s9, s12\ns_lshl_b32 s9, s9, 11\ns_add_u32 s42, s39, s9')
        a(f's_lshl_b32 s8, s6, 12\ns_add_u32 s8, s8, {WS_PO}\ns_lshr_b32 s9, s7, 2\ns_and_b32 s11, s7, 3\ns_cmp_eq_u32 s9, s12\ns_cselect_b32 s101, s11, 9')
        a('s_lshl_b32 s9, s9, 1\ns_add_u32 s9, s9, s13\ns_lshl_b32 s9, s9, 7\ns_add_u32 s9, s9, s8\nv_lshl_add_u32 v7, v0, 9, s9')
        a(f's_lshl_b32 s9, s7, 2\ns_add_u32 s9, s9, {sWAVE}\ns_lshl_b32 s9, s9, 7\ns_add_u32 s100, s8, s9')
        a('s_lshl_b32 s9, s11, 1\ns_add_u32 s9, s9, s12\ns_lshl_b32 s43, s9, 2')
        a('s_lshl_b32 s8, s12, 6')
        self.w128_frag('v14', 4, 's8')
        a(f's_and_b32 s9, s7, 1\ns_lshl_b32 s11, s12, 1\ns_add_u32 s11, s11, s9\ns_xor_b32 s9, s11, 1\ns_lshl_b32 s96, s11, 13\ns_lshl_b32 s97, s9, 13\ns_add_u32 s96, s96, s39\ns_add_u32 s97, s97, s39')
        a(f's_mul_i32 s8, s11, {112*128}\ns_mul_i32 s9, s9, {112*128}\ns_add_u32 s8, s8, {self.WOB}\ns_add_u32 s9, s9, {self.WOB}')
        a('v_add_u32 v12, s9, v14\nv_add_u32 v14, s8, v14\nv_xor_b32 v13, 64, v14\nv_xor_b32 v11, 64, v12')
        a(f's_xor_b32 s9, {sWAVE}, 2\ns_lshl_b32 s9, s9, 12\nv_add_u32 v5, s9, v15\ns_lshl_b32 s9, {sWAVE}, 12\nv_add_u32 v6, s9, v15')
        a(f's_mul_i32 s9, s13, {32*144}\ns_lshl_b32 s11, s12, 6\ns_add_u32 s9, s9, s11\ns_add_u32 s9, s9, 16384')
        a('v_lshrrev_b32 v4, 5, v0\nv_and_b32 v9, 31, v0\nv_mul_u32_u24 v9, 144, v9\nv_lshl_add_u32 v9, v4, 4, v9\nv_add_u32 v9, s9, v9')
        a(f'v_lshrrev_b32 v2, 3, v0\nv_and_b32 v3, 7, v0\nv_lshlrev_b32 v3, 4, v3\nv_mul_u32_u24 v10, 144, v2\ns_mul_i32 s9, {sWAVE}, {16*144}\ns_add_u32 s9, s9, 16384\nv_add3_u32 v10, v10, v3, s9')
        a(f'v_mul_u32_u24 v8, 1792, v2\nv_add_u32 v8, v8, v3\ns_lshl_b32 s8, s6, 2\ns_add_u32 s8, s8, {sWAVE}\ns_mul_i32 s8, s8, {16*1792}\ns_lshl_b32 s9, s7, 7\ns_add_u32 s8, s8, s9\ns_add_u32 s98, s8, 896\ns_add_u32 s99, s98, {8*1792}')
        a(f'v_add_u32 v1, s71, v15\ns_mul_i32 s8, {sWAVE}, 12288\nv_add_u32 v2, s8, v15\ns_lshl_b32 s8, {sWAVE}, 4\nv_mov_b32 v4, s8')

    def a_fallback(self):
        a = self.a
        lp = self.L('fbl')
        for lr, lb in self.spins:
            l2 = self.L('kvs'); l3 = self.L('kvs')
            a.label(lr)
            a(f's_mov_b32 s47, {self.SPIN}')
            a.label(l2)
            a(f's_sleep 2\ns_sub_u32 s47, s47, 1\ns_cmp_gt_i32 s47, 0\ns_cbranch_scc0 {lb}')
            a(f's_load_dwordx8 s[16:23], {sp(P_WS)}, s8 glc\ns_load_dwordx8 s[24:31], {sp(P_WS)}, s9 glc\ns_waitcnt lgkmcnt(0)')
            for i in range(8): a(f's_cmp_eq_u64 s[{16+2*i}:{17+2*i}], s[40:41]\ns_cbranch_scc0 {l2}')
            a(f's_branch {lb}')
        a.label(self.lskip)
        a(f's_waitcnt vmcnt(0)\ns_branch {self.lnopub}')
        a.label(self.lfb)
        a(f's_barrier\ns_mov_b32 s72, 1\ns_mov_b32 s70, 16\ns_mov_b32 s68, s37')
        for js in range(4): a(f'v_mov_b32 v{240+js}, 0xff800000')
        a.label(lp)
        a(f'buffer_load_dwordx4 v[112:115], v15, {srd(R_WS)}, s68 offen sc1\nbuffer_load_dwordx4 v[116:119], v15, {srd(R_WS)}, s68 offen offset:1024 sc1')
        a('s_bitcmp1_b32 s70, 0\ns_cselect_b32 s8, 7, 1\ns_lshl_b32 s8, s8, 12\ns_add_u32 s68, s68, s8\ns_waitcnt vmcnt(0)')
        for js in range(4):
            a(f'v_mfma_f32_32x32x16_bf16 v[144:159], v[112:115], {vr(16+8*js,4)}, 0\nv_mfma_f32_32x32x16_bf16 v[144:159], v[116:119], {vr(20+8*js,4)}, v[144:159]')
            for r in range(0, 16, 2): a(f'v_max3_f32 v{240+js}, v{240+js}, v{144+r}, v{145+r}')
        a(f's_sub_u32 s70, s70, 1\ns_cmp_lg_u32 s70, 0\ns_cbranch_scc1 {lp}')
        a(f's_lshl_b32 s8, {sWAVE}, 8\nv_lshl_add_u32 v244, v0, 2, s8\nv_lshlrev_b32 v245, 2, v0')
        for js in range(4):
            a(f'v_mov_b32 v246, v{240+js}\nv_mov_b32 v247, v{240+js}\nv_permlane32_swap_b32 v246, v247\nv_max_f32 v{240+js}, v246, v247')
            a(f's_add_u32 s8, {sWAVE}, {1+js}\ns_and_b32 s8, s8, 3\ns_lshl_b32 s8, s8, 10\nv_add_u32 v246, s8, v244\nv_add_u32 v{236+js}, s8, v245')
            a(f'ds_write_b32 v246, v{240+js} offset:1024')
        a('s_waitcnt lgkmcnt(0)\ns_barrier')
        for js in range(4):
            a(f'ds_read2st64_b32 v[246:247], v{236+js} offset0:4 offset1:5\nds_read2st64_b32 v[250:251], v{236+js} offset0:6 offset1:7\ns_waitcnt lgkmcnt(0)')
            a('v_max3_f32 v246, v246, v247, v250\nv_max_f32 v246, v246, v251')
            a('v_xor_b32 v246, 0x80000000, v246\nv_and_b32 v247, 0xffff0000, v246\nv_sub_f32 v246, v246, v247\nv_and_b32 v250, 0xffff0000, v246\nv_sub_f32 v246, v246, v250')
            a(f's_mov_b32 exec_lo, 0\nv_lshrrev_b32 v247, 16, v247\nv_or_b32 v{22+8*js}, v247, v250\nv_lshrrev_b32 v{23+8*js}, 16, v246\ns_mov_b32 exec_lo, -1')
        for r in list(range(48, 112)) + list(range(184, 192)) + list(range(224, 232)): a(f'v_mov_b32 v{r}, 0')
        a(f's_barrier\ns_branch {self.lagain}')

    WOB = 23552
    def a_outproj(self):
        a = self.a
        a(f's_cmp_eq_u32 s7, 7\ns_cbranch_scc1 {self.lend}')
        self.tstamp(4)
        OF = 16; WF = 144; ACC = (80, 96)
        lp = self.L('wo'); lall = self.L('wall'); lone = self.L('wone'); ljoin = self.L('wjoin'); lp2 = self.L('wo'); lok2 = self.L('wok')
        def test():
            for i in range(4):
                a(f's_cmp_eq_u32 s101, {i}\ns_cselect_b64 s[{16+2*i}:{17+2*i}], s[40:41], s[{16+2*i}:{17+2*i}]\ns_xor_b64 s[{16+2*i}:{17+2*i}], s[{16+2*i}:{17+2*i}], s[40:41]')
            a('s_or_b64 s[16:17], s[16:17], s[18:19]\ns_or_b64 s[20:21], s[20:21], s[22:23]')
        def rd(i, lo, hi):
            hd, f = (i >> 1) & 3, i & 1
            b = WF + 8 * (i & 3)
            for ct in range(2):
                for t in range(2):
                    a(f'ds_read_b64_tr_b16 {vr(b+4*ct+2*t,2)}, v{(lo if i < 8 else hi)-ct} offset:{(28*hd+16*f+8*t)*128}')
        def stage(n, first, srcs, lo, hi, wo):
            for i in range(n):
                if i == 4: a(f's_add_u32 {srcs[0]}, {srcs[0]}, 4096')
                if i == 12: a(f's_add_u32 {srcs[1]}, {srcs[1]}, 4096')
                a(f'buffer_load_dwordx4 {vr(OF+4*i,4)}, v15, {srd(R_WS)}, {srcs[0] if i < 8 else srcs[1]} offen offset:{(i%4)*1024} sc1')
                if wo and i < 7: a(f'ds_write_b128 v1, {vr(112+4*i,4)} offset:{self.WOB + 4096*i}')
            if wo: a('s_waitcnt lgkmcnt(0)\ns_barrier')
            for i in range(3): rd(i, lo, hi)
            for i in range(n):
                if i + 3 < n: rd(i + 3, lo, hi)
                left = min(3, n - 1 - i)
                a(f's_waitcnt vmcnt({n-1-i}) lgkmcnt({4*left})')
                b = WF + 8 * (i & 3)
                for ct in (1, 0):
                    c = '0' if (i == 0 and first) else vr(ACC[ct], 16)
                    a(f'v_mfma_f32_32x32x16_bf16 {vr(ACC[ct],16)}, {vr(b+4*ct,4)}, {vr(OF+4*i,4)}, {c}')
        a(f's_mov_b32 s47, {self.SPIN}')
        a.label(lp)
        test()
        a(f's_or_b64 s[18:19], s[16:17], s[20:21]\ns_cbranch_scc0 {lall}')
        a(f's_load_dwordx8 s[16:23], {sp(P_WS)}, s100 glc\ns_sub_u32 s47, s47, 1\ns_cmp_gt_i32 s47, 0\ns_waitcnt lgkmcnt(0)\ns_cbranch_scc1 {lp}')
        a.label(lall)
        self.stamp(6); self.tstamp(5)
        stage(16, True, ('s96', 's97'), 14, 12, True)
        self.tstamp(6)
        for g in range(4): a(f'ds_write_b128 v5, {vr(ACC[1]+4*g,4)} offset:{g*1024}')
        a('s_waitcnt lgkmcnt(0)\ns_barrier')
        for g in range(4): a(f'ds_read_b128 {vr(16+4*g,4)}, v6 offset:{g*1024}')
        a('s_waitcnt lgkmcnt(0)')
        for r in range(16): a(f'v_add_f32 v{ACC[0]+r}, v{ACC[0]+r}, v{16+r}')
        for r in range(8): a(f'v_cvt_pk_bf16_f32 v{32+r}, v{ACC[0]+2*r}, v{ACC[0]+2*r+1}')
        a('v_permlane32_swap_b32 v32, v34\nv_permlane32_swap_b32 v33, v35\nv_permlane32_swap_b32 v36, v38\nv_permlane32_swap_b32 v37, v39')
        a('ds_write_b128 v9, v[32:35]\nds_write_b128 v9, v[36:39] offset:32\ns_waitcnt lgkmcnt(0)\ns_barrier')
        a(f'ds_read_b128 v[16:19], v10\nds_read_b128 v[20:23], v10 offset:{8*144}')
        a(f's_waitcnt lgkmcnt(1)\nbuffer_store_dwordx4 v[16:19], v8, {srd(R_OUT)}, s98 offen sc1\ns_waitcnt lgkmcnt(0)\nbuffer_store_dwordx4 v[20:23], v8, {srd(R_OUT)}, s99 offen sc1')
        self.stamp(7); self.tstamp(7)

    UTILE = 0; TSCR = 8192; UB = 61440; KB = 70656; SCR = 15360
    PU, PZ, PT, PB, PW, PE, PK, PKZ, PD, PUT, PA = 232, 233, 234, 235, 236, 240, 243, 244, 245, 246, 251
    def s_ids(self):
        a = self.a
        if OPT('x5idle'):
            a(f's_cmp_gt_u32 {sXG}, 5\ns_cselect_b32 s8, 1, 0\ns_sub_u32 s73, {sXG}, s8\ns_mov_b32 {sM}, {sJ}')
        else:
            a(f's_mul_i32 s8, {sXG}, 28\ns_add_u32 s8, s8, {sJ}\ns_lshr_b32 s73, s8, 5\ns_and_b32 {sM}, s8, 31')
        a(f's_lshl_b32 s8, s73, 6\ns_lshl_b32 s9, {sM}, 1\ns_add_u32 s74, s8, s9')
        a('v_lshlrev_b32 v15, 4, v0')
        a(f's_lshl_b32 s14, s74, 1\ns_lshr_b32 s10, {sWAVE}, 1\ns_add_u32 s74, s74, s10\ns_and_b32 s9, {sWAVE}, 1')
        a('s_lshl_b32 s8, s74, 9\ns_lshl_b32 s12, s9, 8\ns_add_u32 s8, s8, s12\nv_lshl_add_u32 v2, v0, 2, s8')
    def s_params_load(self, va='v2', scal=True, vec=True):
        a = self.a
        for i, p in enumerate((P_LAR, P_AIM, P_CRE, P_CIM)):
            if vec: a(f'global_load_dword v{16+i}, {va}, {sp(p)}')
        if scal: a(f's_load_dword s71, {sp(P_LDT)}, s14\ns_load_dword s72, {sp(P_DSK)}, s14')
    def s_table_load(self, dst):
        a = self.a
        lp = self.L('pc')
        a('s_getpc_b64 s[12:13]')
        a.label(lp)
        a(f's_add_u32 s12, s12, L_table-{lp}\ns_addc_u32 s13, s13, 0')
        for i in range(4):
            a(f'global_load_dwordx4 {vr(dst+4*i,4)}, v1, s[12:13] offset:{1024*i}')
    def s_kv_addr(self):
        a = self.a
        a(f's_lshr_b32 s7, {sJ}, 1\ns_lshl_b32 s8, {sXG}, 4\ns_add_u32 s7, s7, s8\ns_lshl_b32 s6, {sXG}, 5\ns_add_u32 s6, s6, {sJ}')
        a(f's_lshl_b32 s12, s7, 1\ns_add_u32 s12, s12, s9\ns_mul_i32 s12, s12, {8*896}')
        a(f'v_lshrrev_b32 v7, 3, v0\nv_lshrrev_b32 v8, 4, v0\ns_lshl_b32 s8, s9, 2\nv_add_u32 v8, s8, v8')
        a('v_and_b32 v4, 7, v0\nv_xor_b32 v8, v4, v8\nv_mul_u32_u24 v7, 896, v7\nv_lshl_add_u32 v5, v8, 4, v7\nv_add_u32 v5, s12, v5')
        a(f's_lshl_b32 s11, {sWAVE}, 10\nv_add_u32 v6, s11, v15\ns_add_u32 s15, s11, 28672')
        a(f's_lshr_b32 s8, {sJ}, 1\ns_cmp_ge_u32 s8, 7\ns_cselect_b32 s12, 7, 0\ns_sub_u32 s8, s8, s12\ns_cmp_ge_u32 s8, 7\ns_cselect_b32 s12, 7, 0\ns_sub_u32 s8, s8, s12\ns_lshl_b32 s70, s8, 12')
    def kv_srds(self):
        a = self.a
        self.mk_srd(R_X, P_X, X_BYTES)
        a(f's_bitcmp1_b32 s6, 0\ns_cselect_b32 s{R_W}, s{P_WV}, s{P_WK}\ns_cselect_b32 s{R_W+1}, s{P_WV+1}, s{P_WK+1}')
        a(f's_mov_b32 s{R_W+2}, {WK_BYTES}\ns_mov_b32 s{R_W+3}, 0x20000')
    def s_kv_load(self, part=3):
        a = self.a
        if part & 1:
            a(f's_mul_i32 s12, s10, {3*128}\ns_mul_i32 s13, s10, {3*2048}\ns_lshl_b32 s8, s9, 10\ns_add_u32 s13, s13, s8')
            for i in range(4):
                a(f's_add_u32 m0, s13, {2048*i}\ns_nop 0\nbuffer_load_dwordx4 v5, {srd(R_X)}, s12 offen lds')
                if i < 3: a('s_add_u32 s12, s12, 128')
        for i in range(7):
            if not part & (1 if i == 0 else 2): continue
            if i: a('s_add_u32 s70, s70, 4096\ns_cmp_eq_u32 s70, 28672\ns_cselect_b32 s70, 0, s70')
            a(f's_add_u32 m0, s15, s70\ns_nop 0\nbuffer_load_dwordx4 v6, {srd(R_W)}, s70 offen lds')
    def s_kv_addr2(self):
        a = self.a
        a('s_and_b32 s68, s7, 1')
        a('v_and_b32 v2, 15, v0\nv_bfe_u32 v4, v2, 1, 3\nv_lshrrev_b32 v9, 4, v0\nv_xor_b32 v4, v4, v9\nv_lshlrev_b32 v3, 7, v2')
        a('v_lshl_add_u32 v10, v4, 4, v3\nv_xor_b32 v4, 4, v4\nv_lshl_add_u32 v11, v4, 4, v3')
        a('v_bfe_u32 v3, v0, 2, 2\nv_lshl_add_u32 v3, v9, 3, v3\nv_mul_u32_u24 v3, 56, v3\nv_and_b32 v4, 3, v0\nv_lshl_add_u32 v3, v4, 3, v3')
        a(f's_lshl_b32 s8, {sWAVE}, 5\ns_add_u32 s8, s8, 28672\nv_add_u32 v12, s8, v3')
        a('v_lshlrev_b32 v13, 4, v2\nv_bfe_u32 v3, v0, 4, 1\nv_lshl_add_u32 v13, v3, 9, v13')
        a(f's_bitcmp1_b32 s6, 0\ns_cselect_b32 s12, s68, {sWAVE}\ns_cselect_b32 s13, {sWAVE}, s68\ns_cselect_b32 s8, 2048, 0')
        a(f's_lshl_b32 s12, s12, 10\ns_lshl_b32 s13, s13, 8\ns_add_u32 s12, s12, s13\ns_add_u32 s12, s12, s8\ns_lshr_b32 s13, s7, 1\ns_lshl_b32 s13, s13, 12\ns_add_u32 s12, s12, s13\ns_add_u32 s69, s12, {WS_KV}')
        a(f's_lshr_b32 s8, s6, 3\ns_lshl_b32 s8, s8, 7\ns_and_b32 s12, s6, 7\ns_lshl_b32 s12, s12, 2\ns_add_u32 s8, s8, s12\ns_add_u32 s68, s8, {WS_FKV}\nv_lshlrev_b32 v14, 12, v0')
    def s_kv(self):
        a = self.a
        lv = self.L('kvV'); lst = self.L('kvst')
        ACC = 100
        XF = lambda ks: vr(56 + 8*(ks % 5), 4); WF = lambda ks, t=None: vr(60 + 8*(ks % 5), 4) if t is None else vr(60 + 8*(ks % 5) + 2*t, 2)
        def rdk(ks):
            a(f'ds_read_b128 {XF(ks)}, v{10+(ks&1)} offset:{(ks>>1)*2048}')
            for t in range(2):
                a(f'ds_read_b64_tr_b16 {WF(ks,t)}, v12 offset:{(32*ks+4*t)*56}')
        for ks in range(4): rdk(ks)
        a('s_bitcmp1_b32 s6, 0')
        def chain(swap):
            for ks in range(14):
                if ks + 4 < 14: rdk(ks + 4)
                a(f's_waitcnt lgkmcnt({3*min(4, 13-ks)})')
                A, B = (XF(ks), WF(ks)) if swap else (WF(ks), XF(ks))
                c = '0' if ks == 0 else vr(ACC, 4)
                a(f'v_mfma_f32_16x16x32_bf16 {vr(ACC,4)}, {A}, {B}, {c}')
        a(f's_cbranch_scc1 {lv}')
        chain(False)
        a(f's_cmp_eq_u32 {sWAVE}, 1\ns_cselect_b32 s12, 0xffff0000, 0')
        for r in range(4): a(f'v_mul_f32 v{ACC+r}, {f32(CSCALE)}, v{ACC+r}')
        a(f'v_cvt_pk_bf16_f32 v96, v{ACC}, v{ACC+1}\nv_cvt_pk_bf16_f32 v97, v{ACC+2}, v{ACC+3}')
        a('s_mov_b32 exec_lo, 0\ns_mov_b32 exec_hi, s12\nv_mov_b32 v96, 0x3f803f80\nv_mov_b32 v97, 0x00003f80\ns_mov_b64 exec, -1')
        a(f's_branch {lst}')
        a.label(lv)
        chain(True)
        a(f's_cmp_eq_u32 {sWAVE}, 1\ns_cselect_b32 s12, 0xe000e000, 0\ns_cselect_b32 s13, 0x10001000, 0')
        a(f'v_cvt_pk_bf16_f32 v96, v{ACC}, v{ACC+1}\nv_cvt_pk_bf16_f32 v97, v{ACC+2}, v{ACC+3}')
        a('s_mov_b32 exec_lo, s12\ns_mov_b32 exec_hi, s12\nv_mov_b32 v96, 0\nv_mov_b32 v97, 0')
        a('s_mov_b32 exec_lo, s13\ns_mov_b32 exec_hi, s13\nv_mov_b32 v96, 0x3f803f80\nv_mov_b32 v97, 0x3f803f80\ns_mov_b64 exec, -1')
        a.label(lst)
        a('s_nop 1\nv_permlane32_swap_b32 v96, v98\nv_permlane32_swap_b32 v97, v99\ns_mov_b32 exec_hi, 0')
        a(f'buffer_store_dwordx4 v[96:99], v13, {srd(R_WS)}, s69 offen sc1\ns_mov_b32 exec_hi, -1')
    def s_kv_phase(self, n=0, part=3):
        a = self.a
        l3 = self.L('kvb'); l4 = self.L('kvf')
        if part & 1:
            a(f's_waitcnt vmcnt({n})\ns_barrier')
            self.stamp(1); self.estamp(4)
            a(f's_cmp_ge_u32 {sWAVE}, 2\ns_cbranch_scc1 {l3}')
            self.s_kv()
            a.label(l3)
        if part & 2:
            a(f'v_mov_b32 v33, {sNONCE}\ns_waitcnt vmcnt(0)\ns_barrier\ns_cmp_lg_u32 {sWAVE}, 0\ns_cbranch_scc1 {l4}')
            a(f's_mov_b64 exec, {hex((1 << NREP) - 1) if NREP < 64 else -1}\nbuffer_store_dword v33, v14, {srd(R_WS)}, s68 offen sc1\ns_mov_b64 exec, -1')
            a.label(l4)
            self.stamp(2); self.estamp(5)

    def s_addr_all(self):
        a = self.a
        PU, PZ, PT, PB, PW, PE, PK, PKZ, PD, PUT, PA = [f'v{x}' if not isinstance(x, str) else x for x in (self.PU, self.PZ, self.PT, self.PB, 'x', 'x', self.PK, self.PKZ, self.PD, 'x', 'x')]
        a(f's_lshl_b32 s8, {sM}, 6\ns_lshl_b32 s12, {sWAVE}, 4\ns_add_u32 s8, s8, s12\ns_mul_i32 s8, s8, 896\ns_lshl_b32 s12, s73, 7\ns_add_u32 s8, s8, s12')
        a('v_and_b32 v20, 7, v0\nv_lshl_add_u32 v7, v20, 4, v7\nv_add_u32 v7, s8, v7')
        a(f's_lshl_b32 s8, s74, 12\ns_lshl_b32 s12, s9, 11\ns_add_u32 s8, s8, s12\ns_add_u32 s14, s8, {WS_UT}\ns_add_u32 s92, s8, {WS_YT}')
        a(f's_mul_i32 s11, s10, 4608\ns_add_u32 s11, s11, {self.UB}\ns_mul_i32 s8, s10, 4160\ns_add_u32 s75, s8, {self.KB}')
        a(f's_add_u32 s12, s12, s75\nv_lshl_add_u32 {PK}, v0, 5, s12\nv_lshl_add_u32 {PKZ}, v0, 2, s75')
        a('v_bfe_u32 v2, v0, 1, 2\nv_mul_u32_u24 v2, 1152, v2\nv_lshrrev_b32 v21, 3, v0\nv_lshl_add_u32 v2, v21, 5, v2\nv_and_b32 v4, 1, v0\nv_lshl_add_u32 v2, v4, 4, v2')
        a(f's_lshl_b32 s12, s9, 9\ns_add_u32 s12, s12, s11\nv_add_u32 {PU}, s12, v2')
        a(f'v_mul_u32_u24 v3, 1152, v21\nv_lshl_add_u32 v3, v20, 4, v3\nv_add_u32 {PZ}, s11, v3')
        a('v_lshlrev_b32 v4, 4, v4\nv_bfe_u32 v8, v0, 1, 1\nv_lshl_add_u32 v4, v8, 2, v4\nv_bfe_u32 v8, v0, 4, 1\nv_lshl_add_u32 v4, v8, 3, v4')
        a('v_lshrrev_b32 v22, 5, v0\nv_lshlrev_b32 v8, 5, v22\nv_sub_u32 v4, v4, v8\nv_bfe_u32 v23, v0, 2, 2\nv_lshlrev_b32 v8, 2, v23\nv_sub_u32 v4, v4, v8')
        a(f's_add_u32 s12, s75, 96\nv_lshl_add_u32 {PT}, v4, 1, s12')
        a(f'v_bfe_u32 v4, v0, 3, 2\nv_mul_u32_u24 v3, 1152, v4\nv_add_u32 v8, v20, v22\nv_lshl_add_u32 v3, v8, 4, v3\ns_add_u32 s12, s11, 16\nv_add_u32 {PB}, s12, v3')
        a('v_lshrrev_b32 v8, 1, v20\nv_and_b32 v3, 1, v20\nv_lshl_or_b32 v8, v3, 2, v8\nv_lshlrev_b32 v3, 2, v22\nv_xor_b32 v8, v8, v3')
        a('v_lshlrev_b32 v4, 13, v4\nv_lshl_add_u32 v4, v20, 7, v4\ns_lshl_b32 s13, s10, 15\nv_add_u32 v4, s13, v4')
        for g in range(4): a(f'v_xor_b32 v3, {g}, v8\nv_lshl_add_u32 v{self.PW+g}, v3, 4, v4')
        a('s_lshl_b32 s12, s9, 7\nv_add_u32 v2, s12, v0\nv_lshrrev_b32 v3, 2, v2\nv_and_b32 v4, 3, v2\nv_lshlrev_b32 v4, 1, v4')
        def fa(dst, av): a(f'v_bfe_u32 {dst}, {av}, 1, 2\nv_and_b32 v8, 1, {av}\nv_lshl_or_b32 {dst}, v8, 2, {dst}')
        fa('v9', 'v3')
        a('v_xor_b32 v9, v9, v4\nv_lshlrev_b32 v2, 7, v3\nv_add_u32 v2, s13, v2')
        a(f'v_lshl_add_u32 v{self.PE}, v9, 4, v2\nv_xor_b32 v9, 1, v9\nv_lshl_add_u32 v{self.PE+1}, v9, 4, v2')
        a('v_lshl_add_u32 v4, v3, 3, v4\nv_add_u32 v4, -1, v4\nv_ashrrev_i32 v3, 3, v4\nv_and_b32 v4, 7, v4')
        fa('v9', 'v3')
        a(f'v_xor_b32 v9, v9, v4\nv_lshlrev_b32 v2, 7, v3\nv_add_u32 v2, s13, v2\nv_lshl_add_u32 v2, v9, 4, v2\nv_add_u32 v{self.PE+2}, 8192, v2')
        a('s_cmp_eq_u32 s9, 0\ns_cselect_b32 s93, 1, 0')
        U = self.PUT
        a(f'v_lshrrev_b32 v3, 4, v0\nv_lshl_add_u32 v2, v23, 2, v3\nv_lshlrev_b32 v2, 7, v2\nv_and_b32 v9, 3, v0\nv_lshl_add_u32 v2, v9, 3, v2')
        a(f's_lshl_b32 s8, {sWAVE}, 5\ns_add_u32 s8, s8, {self.UTILE}\nv_add_u32 v{U}, s8, v2')
        a(f's_mul_i32 s12, {sWAVE}, 2304\ns_add_u32 s12, s12, {self.TSCR}')
        a(f'v_and_b32 v4, 15, v0\nv_mul_u32_u24 v4, 144, v4\nv_lshl_add_u32 v4, v3, 5, v4\nv_add_u32 v{U+1}, s12, v4')
        a(f'v_lshlrev_b32 v4, 4, v20\nv_mul_u32_u24 v2, 144, v21\nv_add3_u32 v{U+2}, v2, v4, s12')
        a(f's_lshl_b32 s8, s73, 2\ns_add_u32 s8, s8, {sWAVE}\ns_lshl_b32 s8, s8, 16\ns_lshl_b32 s12, {sM}, 7\ns_add_u32 s8, s8, s12\ns_add_u32 s8, s8, {WS_UT}')
        a(f'v_lshl_add_u32 v{self.PA}, v21, 12, v4\nv_add_u32 v{U+3}, s8, v{self.PA}\nv_add_u32 v{U+4}, {8*4096}, v{U+3}')
        a(f's_lshl_b32 s36, s73, 9\ns_add_u32 s36, s36, {WS_FU}\ns_lshl_b32 s8, {sM}, 2\ns_add_u32 s35, s36, s8')
        A = self.PA
        a(f's_lshl_b32 s8, s73, 6\ns_lshl_b32 s13, {sWAVE}, 3\ns_add_u32 s8, s8, s13\ns_lshl_b32 s8, s8, 12\ns_add_u32 s8, s8, s12\ns_add_u32 s37, s8, {WS_YT}\ns_add_u32 s38, s37, {32*4096}')
        a(f'v_add_u32 v2, s13, v21\nv_mul_u32_u24 v2, 160, v2\nv_add_u32 v{A+1}, v2, v4')
        a(f'v_lshl_add_u32 v2, v3, 3, v23\nv_mul_u32_u24 v2, 160, v2\nv_lshl_add_u32 v2, v9, 3, v2\ns_lshl_b32 s8, {sWAVE}, 5\nv_add_u32 v{A+2}, s8, v2')
        a(f's_lshl_b32 s8, {sM}, 2\ns_add_u32 s8, s8, {sWAVE}\ns_mul_i32 s39, s8, {16*1792}\ns_lshl_b32 s8, s73, 7\ns_add_u32 s39, s39, s8\ns_add_u32 s94, s39, {8*1792}')
        a(f'v_mul_u32_u24 v2, 1792, v21\nv_add_u32 v{A+3}, v2, v4')
        a(f'v_and_b32 v2, 15, v0\nv_mul_u32_u24 v2, 144, v2\nv_lshl_add_u32 v2, v3, 4, v2\ns_mul_i32 s8, {sWAVE}, 2304\ns_add_u32 s8, s8, {self.TSCR + 4096}\nv_add_u32 v{A+4}, s8, v2')
        a(f's_mul_i32 s11, {sWAVE}, {self.SCR}\nv_mul_u32_u24 v2, 240, v0\nv_add_u32 v2, s11, v2')
        a(f'v_lshl_add_u32 v3, v23, 1, v22\nv_mul_u32_u24 v3, 480, v3\nv_bfe_u32 v8, v0, 4, 1\nv_lshl_add_u32 v3, v8, 5, v3\nv_lshl_add_u32 v3, v9, 3, v3\nv_add_u32 v3, s11, v3')
        a(f'v_and_b32 v4, 31, v0\nv_mul_u32_u24 v4, 144, v4\nv_lshl_add_u32 v4, v22, 4, v4\nv_add_u32 v4, s11, v4')

    def s_kgen(self, mid_r0):
        a = self.a
        RS = 240
        AW, AR, AP = 'v2', 'v3', 'v4'
        if OPT('nokvfirst'): raise SystemExit('option removed')
        a(f's_cmp_eq_u32 s10, 1\ns_cselect_b32 s8, 0, 16')
        a('s_lshl_b32 s12, s71, s8\ns_and_b32 s12, s12, 0xffff0000\ns_lshl_b32 s13, s72, s8\ns_and_b32 s72, s13, 0xffff0000')
        a(f'v_mov_b32 v31, s12\nv_mul_f32 v31, {f32(LOG2E)}, v31\nv_exp_f32 v31, v31\nv_mov_b32 v{self.PD}, 0\nv_cvt_pk_bf16_f32 v31, v31, v31\nv_and_b32 v31, 0xffff0000, v31')
        a(f'v_mul_f32 v32, {f32(-LOG2E)}, v31\nv_mul_f32 v30, 0.15915494309189532, v31\nv_add_f32 v31, v31, v31')
        a(f's_mov_b32 exec_lo, s93\ns_mov_b32 exec_hi, 0\nv_mov_b32 v{self.PD}, s72\ns_mov_b64 exec, -1')
        ACC = 40; FR = 56; TB = 120
        W1, W256, W8 = 24, 26, 28
        RR = (120, 176)
        def cmul(z, x, y, conj, t):
            return [f'v_pk_mul_f32 {vr(t,2)}, {vr(x,2)}, {vr(y,2)} op_sel_hi:[1,0]',
                    f'v_pk_fma_f32 {vr(z,2)}, {vr(x,2)}, {vr(y,2)}, {vr(t,2)} op_sel:[1,1,0] op_sel_hi:[0,1,1] {"neg_hi" if conj else "neg_lo"}:[1,0,0]']
        def pack(buf, i, x, y): return [f'v_cvt_pk_bf16_f32 v{buf+i}, v{x}, v{y}', f'v_cvt_pk_bf16_f32 v{buf+4+i}, v{x+1}, v{y+1}']
        def flush(rnd):
            out = []
            for g in range(4): out += [f'ds_write_b128 {AW}, {vr(RR[rnd]+8*g,4)} offset:{16*g}', f'ds_write_b128 {AW}, {vr(RR[rnd]+8*g+4,4)} offset:{64+16*g}']
            for g in range(3): out += [f'ds_write_b128 {AW}, {vr(RR[rnd]+32+8*g,4)} offset:{128+16*g}', f'ds_write_b128 {AW}, {vr(RR[rnd]+32+8*g+4,4)} offset:{176+16*g}']
            return out
        def reads(q):
            qq, part = q >> 1, q & 1
            for t in range(2): a(f'ds_read_b64_tr_b16 {vr(FR+8*q+2*t,2)}, {AR} offset:{(16*qq+t)*RS + 64*part}')
            for t in range(2): a(f'ds_read_b64_tr_b16 {vr(FR+8*q+4+2*t,2)}, {AR} offset:{(16*qq+t)*RS + 128 + 48*part}')
        l1 = self.L('wp'); l2 = self.L('wp')
        a(f's_cmp_ge_u32 {sXG}, 4\ns_cbranch_scc1 {l1}\ns_cmp_ge_u32 {sWAVE}, 2\ns_cbranch_scc1 {l1}\ns_waitcnt vmcnt(2)\ns_branch {l2}')
        a.label(l1); a('s_waitcnt vmcnt(1)'); a.label(l2)
        self.fstamp(1); self.estamp(3)
        mfma = lambda q, first: f'v_mfma_f32_32x32x16_bf16 {vr(ACC,16)}, {vr(FR+8*q,4)}, {vr(FR+8*q+4,4)}, {"0" if first else vr(ACC,16)}'
        H0, H2, H4, H6, HT, HU, LA, LB, TL, TG = 34, 36, 38, 40, 42, 44, 46, 48, 50, 52
        for rnd in range(2):
            ex = (lambda d, s: f'v_lshlrev_b32 v{d}, 16, v{s}') if rnd == 0 else (lambda d, s: f'v_and_b32 v{d}, 0xffff0000, v{s}')
            setup = [ex(20, 16), ex(21, 17), ex(H0, 18), ex(H0+1, 19),
                     f'v_mul_f32 v20, {f32(LOG2E)}, v20', 'v_exp_f32 v20, v20', 'v_mul_f32 v21, v21, v30', 'v_cvt_pk_bf16_f32 v20, v20, v20', 'v_and_b32 v20, 0xffff0000, v20', 'v_mul_f32 v20, v20, v32',
                     f'v_mul_f32 v{H0}, v{H0}, v31', f'v_mul_f32 v{H0+1}, -v{H0+1}, v31']
            for W, m in ((W1, 1.0), (W256, 256.0), (W8, 8.0)):
                if m == 1.0: setup += ['v_exp_f32 v22, v20', 'v_fract_f32 v23, v21']
                else: setup += [f'v_mul_f32 v22, {f32(m)}, v20', f'v_mul_f32 v23, {f32(m)}, v21', 'v_exp_f32 v22, v22', 'v_fract_f32 v23, v23']
                setup += [f'v_cos_f32 v{W}, v23', f'v_sin_f32 v{W+1}, v23', f'v_mul_f32 v{W}, v{W}, v22', f'v_mul_f32 v{W+1}, v{W+1}, v22']
            for x in setup: a(x)
            PL = [RR[rnd] + 8*g for g in range(4)]; PG = [RR[rnd] + 32 + 8*g for g in range(3)]
            jl = [f'v_cvt_pk_bf16_f32 v{PL[0]}, 1.0, v{W8}', f'v_cvt_pk_bf16_f32 v{PL[0]+4}, 0, v{W8+1}']
            cur = W8
            for b in range(2, 32, 2):
                jl += cmul(LA, cur, W8, False, TL) + cmul(LB, LA, W8, False, TL) + pack(PL[b >> 3], (b & 7) >> 1, LA, LB); cur = LB
            jg = cmul(HT, H0, W1, True, TG) + pack(PG[0], 0, H0, HT)
            jg += cmul(H2, HT, W1, True, TG) + cmul(HT, H2, W1, True, TG) + pack(PG[0], 1, H2, HT)
            jg += cmul(H4, HT, W1, True, TG) + cmul(HT, H4, W1, True, TG) + pack(PG[0], 2, H4, HT)
            jg += cmul(H6, HT, W1, True, TG) + cmul(HT, H6, W1, True, TG) + pack(PG[0], 3, H6, HT)
            jg += cmul(H0, H0, W256, True, TG) + cmul(H2, H2, W256, True, TG) + pack(PG[1], 0, H0, H2)
            jg += cmul(H4, H4, W256, True, TG) + cmul(H6, H6, W256, True, TG) + pack(PG[1], 1, H4, H6)
            jg += cmul(H0, H0, W256, True, TG) + cmul(H4, H4, W256, True, TG) + pack(PG[1], 2, H0, H4)
            jg += cmul(H0, H0, W256, True, TG) + cmul(H4, H4, W256, True, TG) + pack(PG[1], 3, H0, H4)
            jg += cmul(HT, H0, W256, True, TG) + cmul(HU, HT, W256, True, TG) + pack(PG[2], 0, HT, HU)
            jg += cmul(HT, HU, W256, True, TG) + cmul(HU, HT, W256, True, TG) + pack(PG[2], 1, HT, HU)
            jg += cmul(HT, HU, W256, True, TG) + pack(PG[2], 2, HT, HT) + [f'v_mov_b32 v{PG[2]+3}, 0', f'v_mov_b32 v{PG[2]+7}, 0']
            for x in jg: a(x)
            if rnd == 0:
                mid_r0()
                for x in jl: a(x)
            elif not OPT('kvlate'):
                for x in jl: a(x)
                self.late_kv(True)
                if OPT('xs0'): self.stamp_flush(8); a('s_endpgm')
                for x in flush(0): a(x)
            else:
                fl = flush(0); step = len(jl) // 14
                for i, x in enumerate(jl):
                    a(x)
                    if i % step == step - 1 and fl: a(fl.pop(0))
                for x in fl: a(x)
            self.fstamp(2 + rnd)
        a(f's_mul_i32 s8, s10, {2*self.SCR}\ns_waitcnt vmcnt(0) lgkmcnt(0)')
        for q in range(6): reads(q)
        for k in range(16): a(f'v_add_u32 v{TB+k}, s8, v{104+k}')
        for q in range(6, 8): reads(q)
        if not OPT('nokgp0'): a('s_setprio 0')
        a('s_waitcnt lgkmcnt(0)')
        fl = flush(1)
        for q in range(8):
            a(mfma(q, q == 0))
            for x in fl[2*q:2*q+2]: a(x)
        a('s_waitcnt lgkmcnt(0)')
        self.estamp(7)
        for q in range(8):
            reads(q)
            if q >= 3:
                a('s_waitcnt lgkmcnt(12)'); a(mfma(q - 3, False))
        for q in range(5, 8):
            a(f's_waitcnt lgkmcnt({4*(7-q)})'); a(mfma(q, False))
        if not OPT('nokgp0'): a('s_setprio 2')
        for g in range(4): a(f'ds_write_b128 {AP}, {vr(ACC+4*g,4)} offset:{32*g}')
        for r in range(4): a(f'v_mov_b32 v{112+r}, 0')
        a('s_waitcnt lgkmcnt(0)\ns_barrier')
        self.fstamp(4)
        G = 56
        for k in range(16): a(f'ds_read2st64_b32 {vr(G+2*k,2)}, v{TB+k} offset1:{self.SCR//256}')
        a(f's_mov_b64 exec, 0xffff\nds_write_b32 v{self.PKZ}, v112\ns_mov_b32 exec_lo, -1\nds_write_b128 v{self.PZ}, v[112:115]\ns_mov_b64 exec, -1')
        for k in range(16):
            if k % 4 == 0: a(f's_waitcnt lgkmcnt({14-k})')
            a(f'v_add_f32 v{G+2*k}, v{G+2*k}, v{G+2*k+1}')
            if k == 0: a(f'v_add_f32 v{G}, v{G}, v{self.PD}')
        for k in range(8): a(f'v_cvt_pk_bf16_f32 v{88+k}, v{G+4*k}, v{G+4*k+2}')
        a(f'ds_write_b128 v{self.PK}, v[88:91] offset:64\nds_write_b128 v{self.PK}, v[92:95] offset:80')
        a(f'v_mov_b32 v113, {sNONCE}\ns_waitcnt lgkmcnt(0)\ns_barrier')
        self.stamp(3)

    def s_u_phase(self):
        a = self.a
        U = self.PUT
        self.ustamp(5)
        a(f's_lshl_b32 s12, {sWAVE}, 11')
        a(f's_add_u32 m0, s12, {self.UTILE}\ns_mov_b32 s13, {8*896}\nbuffer_load_dwordx4 v7, {srd(R_B)}, 0 offen lds')
        a(f's_add_u32 m0, s12, {self.UTILE + 1024}\ns_nop 0\nbuffer_load_dwordx4 v7, {srd(R_B)}, s13 offen lds')
        a('s_waitcnt vmcnt(0)\ns_barrier')
        self.ustamp(1)
        for half in range(2):
            for t in range(2):
                a(f'ds_read_b64_tr_b16 {vr(96+4*half+2*t,2)}, v{U} offset:{(32*half+16*t)*128}')
        a(f's_waitcnt lgkmcnt(2)\nds_write_b128 v{U+1}, v[96:99]\ns_waitcnt lgkmcnt(1)\nds_write_b128 v{U+1}, v[100:103] offset:16\ns_waitcnt lgkmcnt(0)')
        a(f'ds_read_b128 v[96:99], v{U+2}\nds_read_b128 v[100:103], v{U+2} offset:{8*144}')
        a(f's_waitcnt lgkmcnt(1)\nbuffer_store_dwordx4 v[96:99], v{U+3}, {srd(R_WS)}, 0 offen sc1')
        a(f's_waitcnt lgkmcnt(0)\nbuffer_store_dwordx4 v[100:103], v{U+4}, {srd(R_WS)}, 0 offen sc1')
        self.publish_y(WS_PU)
        self.wait_y(WS_PU, 4)
        self.ustamp(3)
        for i in range(2): a(f'buffer_load_dwordx4 {vr(104+4*i,4)}, v15, {srd(R_WS)}, s14 offen offset:{1024*i} sc1')
        a(f's_waitcnt vmcnt(1)\nds_write_b128 v{self.PU}, v[104:107] offset:128\ns_waitcnt vmcnt(0)\nds_write_b128 v{self.PU}, v[108:111] offset:384')
        if OPT('tlb'):
            a(f's_mov_b64 exec, 1\nbuffer_load_dword v116, v112, {srd(R_WS)}, s92 offen\nbuffer_load_dword v117, v112, {srd(R_WS)}, s37 offen\nbuffer_load_dword v118, v112, {srd(R_OUT)}, s39 offen\ns_mov_b64 exec, -1')
        a('s_waitcnt lgkmcnt(0)')
        self.stamp(4); self.ustamp(4)

    def s_conv(self):
        a = self.a
        self.stamp(5); self.fstamp(5); self.tstamp(1)
        D = 16; BF = (80, 112); TF = (144, 176)
        l1 = self.L('cv1'); lj = self.L('cvj')
        a(f's_cmp_eq_u32 s9, 0\ns_cbranch_scc0 {l1}')
        def variant(tset):
            mmax = max(tset)
            mf = []; reads = []
            seen = set(); started = set()
            for r in range(4):
                pb = r & 1
                for jj in range(mmax + 1):
                    for ti, t in enumerate(tset):
                        if t < jj: continue
                        m = t - jj
                        nb = ('B', r, m); nt = ('T', r, jj)
                        for k in (nt, nb):
                            if k not in seen:
                                seen.add(k)
                                if k[0] == 'B':
                                    reads.append((k, [f'ds_read_b128 {vr(BF[pb]+4*m,4)}, v{self.PB} offset:{32*(4*m - r + 3)}']))
                                else:
                                    mu = 4*jj + r
                                    reads.append((k, [f'ds_read_b64_tr_b16 {vr(TF[pb]+4*jj+2*tt,2)}, v{self.PT} offset:{128*mu + 32*(1-tt)}' for tt in range(2)]))
                        c = vr(D+16*ti, 16) if t in started else '0'
                        started.add(t)
                        mf.append((f'v_mfma_f32_32x32x16_bf16 {vr(D+16*ti,16)}, {vr(TF[pb]+4*jj,4)}, {vr(BF[pb]+4*m,4)}, {c}', (nb, nt), r))
            flat = []; endpos = {}
            for k, xs in reads:
                for x in xs: flat.append((x, k))
                endpos[k] = len(flat)
            issued = 0; done = 0
            lastmf = {}
            for i, (txt, needs, r) in enumerate(mf): lastmf[txt.split(',')[0]] = i
            pend = []; released = False
            for i, (txt, needs, r) in enumerate(mf):
                need = max(endpos[k] for k in needs)
                tgt = min(len(flat), need + (12 if r < 2 else 24))
                step = 0
                while issued < tgt and (issued < need + 12 or step < 2):
                    kk = flat[issued][1]
                    if kk[1] >= r + 2: break
                    a(flat[issued][0]); issued += 1; step += 1
                if issued == len(flat) and not released and r == 3:
                    a('s_waitcnt lgkmcnt(0)\ns_barrier'); done = issued; released = True
                    self.fstamp(6)
                if need > done:
                    n = min(14, issued - need)
                    a(f's_waitcnt lgkmcnt({n})'); done = issued - n
                a(txt)
                if released and pend and pend[0][0] <= i:
                    a(pend.pop(0)[1])
                for ti, t in enumerate(tset):
                    if lastmf[f'v_mfma_f32_32x32x16_bf16 {vr(D+16*ti,16)}'] == i:
                        pend += [(i + 5, f'ds_write_b128 v{self.PW+g}, {vr(D+16*ti+4*g,4)} offset:{t*1024}') for g in range(4)]
            assert released
            for _, x in pend: a(x)
        variant([7, 4, 3, 0]); a(f's_branch {lj}')
        a.label(l1); variant([6, 5, 2, 1])
        a.label(lj)
        a(f's_setprio {2 if OPT("epi2") else 3}\ns_waitcnt lgkmcnt(0)\ns_barrier')
        self.tstamp(2)
        E = self.PE
        for i in range(2):
            Y = [16 + 44*i, 24 + 44*i, 36 + 44*i, 48 + 44*i]
            for ph in range(4):
                o = 4 if ph else 0
                if ph: a(f'ds_read_b128 {vr(Y[ph],4)}, v{E+2} offset:{(ph-1)*8192 + i*2048}')
                a(f'ds_read_b128 {vr(Y[ph]+o,4)}, v{E} offset:{ph*8192 + i*2048}\nds_read_b128 {vr(Y[ph]+o+4,4)}, v{E+1} offset:{ph*8192 + i*2048}')
        for i in range(2):
            Y = [16 + 44*i, 24 + 44*i, 36 + 44*i, 48 + 44*i]
            for ph in range(1, 4):
                a(f's_waitcnt lgkmcnt({min(14, 11*(1-i) + 3*(3-ph))})')
                if i == 0:
                    a('s_mov_b32 exec_lo, s93\ns_mov_b32 exec_hi, 0')
                    for k in range(4 - ph, 4): a(f'v_mov_b32 v{Y[ph]+k}, 0')
                    a('s_mov_b64 exec, -1')
                for k in range(8): a(f'v_add_f32 v{Y[0]+k}, v{Y[0]+k}, v{Y[ph]+4+k-ph}')
            for k in range(4): a(f'v_cvt_pk_bf16_f32 v{104+4*i+k}, v{Y[0]+2*k}, v{Y[0]+2*k+1}')
            a(f'buffer_store_dwordx4 {vr(104+4*i,4)}, v15, {srd(R_WS)}, s92 offen offset:{1024*i} sc1')
        self.stamp(6); self.fstamp(7); self.tstamp(3)

    def s_assemble(self):
        a = self.a
        A = self.PA
        self.wait_y()
        self.tstamp(5)
        a(f'buffer_load_dwordx4 v[16:19], v{A}, {srd(R_WS)}, s37 offen sc1')
        a(f'buffer_load_dwordx4 v[20:23], v{A}, {srd(R_WS)}, s38 offen sc1')
        a(f's_waitcnt vmcnt(1)\nds_write_b128 v{A+1}, v[16:19]\ns_waitcnt vmcnt(0)\nds_write_b128 v{A+1}, v[20:23] offset:{32*160}')
        a('s_waitcnt lgkmcnt(0)\ns_barrier')
        self.tstamp(6)
        for o in range(2):
            for t in range(2): a(f'ds_read_b64_tr_b16 {vr(24+4*o+2*t,2)}, v{A+2} offset:{(32*o+4*t)*160}')
        a(f's_waitcnt lgkmcnt(2)\nds_write_b128 v{A+4}, v[24:27]\ns_waitcnt lgkmcnt(1)\nds_write_b128 v{A+4}, v[28:31] offset:64\ns_waitcnt lgkmcnt(0)')
        a(f'ds_read_b128 v[24:27], v{self.PUT+2} offset:4096\nds_read_b128 v[28:31], v{self.PUT+2} offset:{4096 + 8*144}')
        a(f's_waitcnt lgkmcnt(1)\nbuffer_store_dwordx4 v[24:27], v{A+3}, {srd(R_OUT)}, s39 offen sc1')
        a(f's_waitcnt lgkmcnt(0)\nbuffer_store_dwordx4 v[28:31], v{A+3}, {srd(R_OUT)}, s94 offen sc1')
        self.stamp(7); self.tstamp(7)

    def kernel_head(self, name):
        self.lend = f'L_end_{name}'
        self.a(f'.globl {name}\n.p2align 8\n.type {name},@function')
        self.a.label(name)
    def kernel_tail(self):
        self.a.label(self.lend)
        self.a('s_endpgm')

    SPIN = 1 << 20
    def nonce(self, n):
        self.a(f's_waitcnt vmcnt({n}) lgkmcnt(0)\nv_readfirstlane_b32 {sNONCE}, v54\ns_add_u32 {sNONCE}, {sNONCE}, 0x9e3779b9')
    def publish_y(self, WS_PY=WS_PY):
        a = self.a; l = self.L('pg')
        a(f's_lshl_b32 s8, s73, 14\ns_lshr_b32 s12, {sM}, 3\ns_lshl_b32 s13, s12, 7\ns_add_u32 s8, s8, s13\ns_add_u32 s8, s8, {WS_PY}\nv_lshl_add_u32 v2, v0, 9, s8')
        a(f's_and_b32 s12, {sM}, 7\ns_lshl_b32 s12, s12, 2\nv_mov_b32 v3, {sNONCE}')
        a('s_waitcnt vmcnt(0)\ns_barrier')
        if WS_PY != WS_PU: self.tstamp(4)
        else: self.ustamp(2)
        a(f's_cmp_lg_u32 {sWAVE}, 0\ns_cbranch_scc1 {l}')
        a(f's_mov_b32 exec_hi, 0\nbuffer_store_dword v3, v2, {srd(R_WS)}, s12 offen sc1\ns_mov_b64 exec, -1')
        a.label(l)
    def poll(self, vaddr, soff, width, mask_lo, mask_hi, sleep, vt=250):
        a = self.a; lp = self.L('poll'); ld = self.L('polled')
        ld_ = {1: 'dword', 2: 'dwordx2', 4: 'dwordx4'}[width]
        a(f's_mov_b32 exec_lo, {hex(mask_lo)}\ns_mov_b32 exec_hi, {hex(mask_hi)}\ns_mov_b32 s47, {self.SPIN}')
        a.label(lp)
        a(f'buffer_load_{ld_} {vr(vt,width)}, {vaddr}, {srd(R_WS)}, {soff} offen sc1\ns_waitcnt vmcnt(0)')
        a(f'v_xor_b32 v{vt}, {sNONCE}, v{vt}')
        for i in range(1, width): a(f'v_xor_b32 v{vt+i}, {sNONCE}, v{vt+i}\nv_or_b32 v{vt}, v{vt}, v{vt+i}')
        a(f'v_cmp_ne_u32 vcc, 0, v{vt}\ns_cbranch_vccz {ld}')
        if sleep: a(f's_sleep {sleep}')
        a(f's_sub_u32 s47, s47, 1\ns_cmp_lg_u32 s47, 0\ns_cbranch_scc1 {lp}')
        a.label(ld)
        a('s_mov_b64 exec, -1')
    def spoll(self, soff, n, sleep, first_sleep=0):
        a = self.a
        a(f's_mov_b32 s40, {sNONCE}\ns_mov_b32 s41, {sNONCE}\ns_mov_b32 s47, {self.SPIN}')
        for c in range(max(1, n // 16)):
            lp = self.L('sp'); lr = self.L('spr'); ld = self.L('spd')
            if c: a(f's_add_u32 {soff}, {soff}, 64')
            elif first_sleep: a(f's_branch {lr}')
            a.label(lp)
            if n == 8:
                a(f's_load_dwordx8 s[16:23], {sp(P_WS)}, {soff} glc\ns_waitcnt lgkmcnt(0)')
                for i in range(3): a(f's_cmp_eq_u64 s[{16+2*i}:{17+2*i}], s[40:41]\ns_cbranch_scc0 {lr}')
                a(f's_cmp_eq_u64 s[22:23], s[40:41]\ns_cbranch_scc1 {ld}')
            elif n == 1:
                a(f's_load_dword s16, {sp(P_WS)}, {soff} glc\ns_waitcnt lgkmcnt(0)\ns_cmp_eq_u32 s16, {sNONCE}\ns_cbranch_scc1 {ld}')
            else:
                a(f's_load_dwordx16 s[16:31], {sp(P_WS)}, {soff} glc\ns_waitcnt lgkmcnt(0)')
                for i in range(7): a(f's_cmp_eq_u64 s[{16+2*i}:{17+2*i}], s[40:41]\ns_cbranch_scc0 {lr}')
                a(f's_cmp_eq_u64 s[30:31], s[40:41]\ns_cbranch_scc1 {ld}')
            a.label(lr)
            if sleep: a(f's_sleep {sleep}')
            a(f's_sub_u32 s47, s47, 1\ns_cmp_gt_i32 s47, 0\ns_cbranch_scc1 {lp}')
            a.label(ld)
    def wait_kv(self, sleep=1):
        a = self.a; l = self.L('wkv')
        a(f's_cmp_lg_u32 {sWAVE}, 0\ns_cbranch_scc1 {l}')
        a(f's_and_b32 s8, s2, {NREP-1}\ns_lshl_b32 s8, s8, 10\ns_add_u32 s8, s8, {WS_FKV}\nv_lshlrev_b32 v2, 4, v0')
        self.poll('v2', 's8', 4, 0xffffffff, 0xffffffff, sleep)
        a.label(l)
        a('s_barrier')
    def wait_y(self, WS_PY=WS_PY, sleep=0):
        a = self.a
        a(f's_lshl_b32 s8, s73, 5\ns_add_u32 s8, s8, {sM}\ns_lshl_b32 s8, s8, 2\ns_add_u32 s8, s8, {sWAVE}\ns_lshl_b32 s8, s8, 7\ns_add_u32 s8, s8, {WS_PY}')
        self.spoll('s8', 8, sleep)
        a('s_barrier')
    def e_update(self):
        a = self.a; l = self.L('eu')
        a(f's_cmp_lg_u32 s2, 253\ns_cbranch_scc1 {l}')
        a(f'v_lshlrev_b32 v2, 8, v0\ns_lshl_b32 s8, {sWAVE}, 14\ns_add_u32 s8, s8, {WS_FA}')
        self.poll('v2', 's8', 1, 0xffffffff, 0xffffffff, 16)
        a(f'v_lshrrev_b32 v2, 3, v0\nv_lshlrev_b32 v2, 7, v2\nv_and_b32 v3, 7, v0\nv_lshl_add_u32 v2, v3, 2, v2\ns_lshl_b32 s8, {sWAVE}, 10\ns_add_u32 s8, s8, {WS_FKV}')
        self.poll('v2', 's8', 1, 0xffffffff, 0xffffffff, 16)
        a(f's_barrier\ns_cmp_lg_u32 {sWAVE}, 0\ns_cbranch_scc1 {l}')
        a(f'v_mov_b32 v2, {WS_E}\nv_mov_b32 v3, {sNONCE}\ns_mov_b64 exec, 1\nbuffer_store_dword v3, v2, {srd(R_WS)}, 0 offen sc1')
        a.label(l)
    def wo_prefetch(self):
        a = self.a
        if OPT('x5idle'): a(f's_mul_i32 s8, {sJ}, 12544')
        else: a(f's_lshl_b32 s8, {sXG}, 2\ns_and_b32 s12, {sJ}, 3\ns_add_u32 s8, s8, s12\ns_mul_i32 s8, s8, 12544')
        a(f's_lshl_b32 s12, {sWAVE}, 10\ns_add_u32 s8, s8, s12')
        for i in range(4):
            a(f'buffer_load_dwordx4 v[240:243], v15, {srd(R_B)}, s8 offen')
            if i < 3: a('s_add_u32 s8, s8, 4096')
    def build_fused(self):
        a = self.a
        kn = NAME + '_kernel'
        self.kernel_head(kn)
        if OPT('empty'): a('s_endpgm')
        self.prologue(512)
        la = self.L('roleA'); lidle = self.L('idle'); lnopf = self.L('nopf'); lnz = self.L('nonce')
        def emit_S():
            if OPT('qonly'): a('s_endpgm')
            a('s_setprio 3')
            self.s_ids(); self.s_kv_addr()
            self.after_kernarg('S')
            lq = self.L('pr'); lq2 = self.L('pr'); lq3 = self.L('pr')
            KF = False
            self.kv_srds()
            a(f's_cmp_ge_u32 {sXG}, 4\ns_cbranch_scc1 {lq}')
            if OPT('kvfree'): a(f's_cmp_lt_u32 {sJ}, 28\ns_cbranch_scc1 {lq}')
            self.s_kv_load()
            a.label(lq)
            lni = self.L('ni')
            a(f's_cmp_ge_u32 {sJ}, 28\ns_cbranch_scc1 {lni}')
            self.s_params_load()
            a.label(lni)
            self.code_prefetch(kn)
            self.s_kv_addr2()
            a(f's_cmp_ge_u32 {sJ}, 28\ns_cbranch_scc1 {lidle}')
            if not OPT('nolow'): a('s_setprio 0')
            a('@CUT S')
            self.mk_srd(R_B, P_U, X_BYTES); self.mk_srd(R_OUT, P_OUT, OUT_BYTES)
            def early_kv(n, part):
                l = self.L('ekv')
                a(f's_cmp_ge_u32 {sXG}, 4\ns_cbranch_scc1 {l}')
                self.s_kv_phase(n, part)
                a.label(l)
            OV = not OPT('noov')
            if OV:
                if OPT('kvpre'):
                    a('s_setprio 3'); self.nonce(5); early_kv(5, 3); a('s_setprio 2'); a('@CUT K')
                a('s_lshl_b32 s8, s9, 12\nv_add_u32 v1, s8, v15')
                self.s_addr_all()
                if OPT('kvsplit'):
                    l = self.L('k2')
                    a(f's_cmp_ge_u32 {sXG}, 4\ns_cbranch_scc1 {l}')
                    self.s_kv_load(2)
                    a.label(l)
                if not OPT('kvpre'): a('s_setprio 3')
                if OPT('kvpre'): pass
                elif OPT('kvfree'):
                    self.nonce(5)
                    l = self.L('kf')
                    a(f'v_mov_b32 v33, {sNONCE}\ns_cmp_lg_u32 {sWAVE}, 0\ns_cbranch_scc1 {l}\ns_mov_b32 exec_hi, 0\nbuffer_store_dword v33, v14, {srd(R_WS)}, s68 offen sc1\ns_mov_b64 exec, -1')
                    a.label(l)
                    a('s_waitcnt vmcnt(0)')
                elif not OPT('kvov'):
                    self.nonce(5)
                    early_kv(5, 3)
                else:
                    early_kv(5, 1)
                    self.nonce(5)
            else:
                self.nonce(4)
                early_kv(4, 3)
                a('s_setprio 2')
                self.code_prefetch(kn)
                a('s_lshl_b32 s8, s9, 12\nv_add_u32 v1, s8, v15')
                self.s_table_load(104)
                self.s_addr_all()
            def mid_r0():
                if OV:
                    if OPT('kvov'): early_kv(0, 2)
                    a('s_setprio 2')
                    if not (not OPT('cplate')): self.code_prefetch(kn)
                    self.s_table_load(104)
            def late_kv(hold):
                if OPT('kvfree'): return
                a(f's_cmp_lt_u32 {sXG}, 4\ns_cbranch_scc1 {lq3}')
                if hold and not OPT('kvnohold'):
                    a(f's_lshl_b32 s8, s2, 8\ns_add_u32 s8, s8, {WS_FA}')
                    self.spoll('s8', 1, 1)
                self.s_kv_load()
                self.s_kv_phase()
                a.label(lq3)
            self.late_kv = late_kv
            self.s_kgen(mid_r0)
            if OPT('kvlate'): late_kv(False)
            if OPT('xs1'): self.stamp_flush(8); a('s_endpgm')
            self.s_u_phase()
            if OPT('xs2'): self.stamp_flush(8); a('s_endpgm')
            a('s_setprio 0')
            if not OPT('notrig') and not OPT('noA'):
                lt = self.L('trig')
                a(f's_cmp_lg_u32 {sWAVE}, 0\ns_cbranch_scc1 {lt}\ns_lshl_b32 s8, s2, 8\ns_add_u32 s8, s8, {WS_FA + 4}')
                self.spoll('s8', 1, 2)
                a.label(lt)
            a('s_barrier')
            if OPT('conv1'): a('s_setprio 1')
            self.s_conv()
            self.publish_y()
            self.s_assemble()
            self.stamp_flush(8)
            a('s_endpgm')
            a.label(lidle)
            self.mk_srd(R_B, P_WO, WQ_BYTES)
            li = self.L('ih')
            self.nonce(1)
            a(f's_cmp_lt_u32 {sXG}, 4\ns_cbranch_scc1 {li}')
            if not OPT('noA'):
                a(f's_lshl_b32 s8, s2, 8\ns_add_u32 s8, s8, {WS_FA}')
                self.spoll('s8', 1, 1)
            self.s_kv_load()
            a.label(li)
            self.s_kv_phase(0, 3)
            if not OPT('noA'):
                a(f's_lshl_b32 s8, s2, 8\ns_add_u32 s8, s8, {WS_FA}')
                self.spoll('s8', 1, 1)
            self.wo_prefetch()
            if not OPT('noA'):
                self.e_update()
            else:
                a(f'v_mov_b32 v2, {WS_E}\nv_mov_b32 v3, {sNONCE}\ns_cmp_lg_u32 s2, 253\ns_cbranch_scc1 {self.lend}\n' + 's_sleep 127\n' * 6 + f'buffer_store_dword v3, v2, {srd(R_WS)}, 0 offen sc1')
            a('s_endpgm')
        def emit_A():
            a.label(la)
            if OPT('noA'): a('s_endpgm')
            a('s_setprio 3')
            self.a_qproj()
            if OPT('qonly'):
                self.stamp_flush(10); a('s_endpgm')
            a('s_setprio 1' if not OPT('ahigh') else 's_setprio 3')
            self.a_attn(); self.a_outproj(); self.stamp_flush(10)
            a('s_endpgm')
            self.a_fallback()
            a('s_endpgm')
        head = list(a.lines); a.lines.clear()
        emit_S(); LS = list(a.lines); a.lines.clear()
        emit_A(); LA = list(a.lines); a.lines.clear()
        if OPT('cutk'): LS.remove('@CUT S'); LS[LS.index('@CUT K')] = '@CUT S'
        elif '@CUT K' in LS: LS.remove('@CUT K')
        cs = LS.index('@CUT S'); ca = LA.index('@CUT A')
        brA = ['s_cmp_ge_u32 s2, 256', f's_cbranch_scc1 {la}']
        if not OPT('heads') and not OPT('ahead'):
            a.lines += head + brA + LS[:cs] + LS[cs+1:] + LA[:ca] + LA[ca+1:]
        elif OPT('ahead'):
            a.lines += head + ['s_cmp_lt_u32 s2, 256', 's_cbranch_scc1 L_headS'] + LA[:ca] + ['s_branch L_bodyA', 'L_headS:'] + LS[:cs] + LS[cs+1:] + ['L_bodyA:'] + LA[ca+1:]
        else:
            a.lines += head + brA + LS[:cs] + ['s_branch L_bodyS'] + LA[:ca+0] + LA[ca+1:] + ['L_bodyS:'] + LS[cs+1:]
        self.kernel_tail()
        return [kn], [512]
    def code_prefetch(self, kn):
        a = self.a
        lp = self.L('pc')
        a('s_getpc_b64 s[12:13]'); a.label(lp)
        a(f's_add_u32 s12, s12, {kn}-{lp}\ns_addc_u32 s13, s13, -1')
        a(f's_lshl_b32 s8, {sJ}, 2\ns_add_u32 s8, s8, {sWAVE}\ns_mul_i32 s8, s8, 320\nv_mul_u32_u24 v9, 5, v0\nv_add_u32 v9, s8, v9\nv_and_b32 v9, -4, v9\nv_min_u32 v9, L_table-4-{kn}, v9')
        a('global_load_dword v55, v9, s[12:13]' if not OPT('nocpf') else f'global_load_dword v55, v15, {sp(P_LAR)}')
    def nonce_a(self):
        self.a(f's_add_u32 {sNONCE}, {sNONCE}, 0x9e3779b9')

DOC = r'''; ----------------------------------------------------------------------------------------------
; ----------------------------------------------------------------------------------------------
'''

def table():
    import numpy as np
    def rne_bf16(j):
        u = struct.unpack('<I', struct.pack('<f', float(j)))[0]
        u = (u + 0x7fff + ((u >> 16) & 1)) & 0xffff0000
        return int(struct.unpack('<f', struct.pack('<I', u))[0])
    hi = [0,1,2,3,4,5,6,7, 256,258,260,262, 512,516,768,772, 1024,1280,1536,1792, 2048]
    out = []
    for j in range(2048):
        p = rne_bf16(j)
        b = (p >> 3) & 31
        out.append(hi.index(p - 8 * b) * 144 + 4 * b)
    lin = []
    for mh in range(2):
        for i in range(4):
            for lane in range(64):
                lin += out[16*(64*mh+lane)+4*i:16*(64*mh+lane)+4*i+4]
    return lin

def main():
    mode = sys.argv[1]; outp = sys.argv[2]; stamps = len(sys.argv) > 3 and sys.argv[3] == 'stamps'
    g = Gen(mode, stamps)
    names, grids = g.build_multi() if mode == 'multi' else g.build_fused()
    body = g.a.finalize(verbose='-v' in sys.argv)
    head = open('cdna_kernels/' + NAME + '.s.ref').read().split('; Override launch geometry')[0]
    txt = head
    if mode == 'multi':
        for n, gr in zip(names, grids): txt += f'; @launch kernel={n} grid=({gr},1,1) block=(256,1,1) lds=81920\n'
    else:
        txt += f'; @launch grid=({grids[0]},1,1) block=(256,1,1) lds=81920\n'
    txt += DOC + '.amdgcn_target "amdgcn-amd-amdhsa--gfx950"\n.text\n' + body
    txt += '.p2align 6\n.type L_table,@object\nL_table:\n'
    t = table()
    for i in range(0, 2048, 16): txt += '.long ' + ','.join(str(x) for x in t[i:i+16]) + '\n'
    txt += '.section .rodata,"a"\n'
    for n in names:
        txt += f'''.p2align 6
.amdhsa_kernel {n}
  .amdhsa_next_free_vgpr 256
  .amdhsa_next_free_sgpr 102
  .amdhsa_accum_offset 256
  .amdhsa_group_segment_fixed_size 0
  .amdhsa_kernarg_size 120
  .amdhsa_user_sgpr_count 2
  .amdhsa_user_sgpr_kernarg_segment_ptr 1
  .amdhsa_system_sgpr_workgroup_id_x 1
.end_amdhsa_kernel
'''
    open(outp, 'w').write(txt)
    print('written', outp, 'nops inserted', g.a.n_nops, 'lines', len(g.a.lines))

if __name__ == '__main__':
    main()
```
